```python
import torch

def _softmax(x, axis=-1):
    return torch.softmax(x, dim=axis)
def _gelu(x):
    return torch.nn.functional.gelu(x, approximate="tanh")
def _silu(x):
    return torch.nn.functional.silu(x)
def _sigmoid(x):
    return torch.sigmoid(x)
def _layernorm(x, axis=-1, eps=1e-5):
    m = x.mean(dim=axis, keepdim=True)
    v = x.var(dim=axis, keepdim=True, unbiased=False)
    return (x - m) / torch.sqrt(v + eps)
def _scatter_add(tgt, idx, src, axis=0):
    return tgt.clone().index_add_(axis, idx, src)
def _segment_sum(src, seg, n):
    out = torch.zeros((n,) + src.shape[1:], dtype=src.dtype)
    return out.index_add_(0, seg, src)
def _pad(x, pw):
    flat = tuple(v for pair in reversed(pw) for v in pair)
    return torch.nn.functional.pad(x, flat)

kernel_name = 'concat_heads__mha_block_cached__mha_block_cached__near_ridge'

def setup_inputs():

    _w = (lambda a: (lambda t: t.to(torch.bfloat16) if t.is_floating_point() else t)(torch.as_tensor(a)))
    def _A_setup():
        B, Sq, D = 8, 144, 576
        H, Sk, Dh = 32, 512, 128
        return {
            "x": _w((lambda *s: torch.randn(*s, dtype=torch.bfloat16) * 0.8)(B, Sq, D)),
            "k_cache": _w((lambda *s: torch.randn(*s, dtype=torch.bfloat16) * 0.8)(B, H, Sk, Dh)),
            "v_cache": _w((lambda *s: torch.randn(*s, dtype=torch.bfloat16) * 0.05)(B, H, Sk, Dh)),
            "wq": _w((lambda *s: torch.randn(*s, dtype=torch.bfloat16) * 0.8)(D, H * Dh) * (D ** -0.5)),
            "wo": _w((lambda *s: torch.randn(*s, dtype=torch.bfloat16) * 0.05)(H * Dh, D) * ((H * Dh) ** -0.5)),
        }
    _A_in = _A_setup()

    def _B_setup():
        B, Sq, D = 8, 144, 576
        H, Sk, Dh = 32, 512, 128
        return {
            "x": _w((lambda *s: torch.randn(*s, dtype=torch.bfloat16) * 0.8)(B, Sq, D)),
            "k_cache": _w((lambda *s: torch.randn(*s, dtype=torch.bfloat16) * 0.8)(B, H, Sk, Dh)),
            "v_cache": _w((lambda *s: torch.randn(*s, dtype=torch.bfloat16) * 0.05)(B, H, Sk, Dh)),
            "wq": _w((lambda *s: torch.randn(*s, dtype=torch.bfloat16) * 0.8)(D, H * Dh) * (D ** -0.5)),
            "wo": _w((lambda *s: torch.randn(*s, dtype=torch.bfloat16) * 0.05)(H * Dh, D) * ((H * Dh) ** -0.5)),
        }
    _B_in = _B_setup()

    return {
        "A_x": _A_in["x"],
        "A_k_cache": _A_in["k_cache"],
        "A_v_cache": _A_in["v_cache"],
        "A_wq": _A_in["wq"],
        "A_wo": _A_in["wo"],
        "B_x": _B_in["x"],
        "B_k_cache": _B_in["k_cache"],
        "B_v_cache": _B_in["v_cache"],
        "B_wq": _B_in["wq"],
        "B_wo": _B_in["wo"],
    }

def reference(A_x, A_k_cache, A_v_cache, A_wq, A_wo, B_x, B_k_cache, B_v_cache, B_wq, B_wo):
    def _A_ref(x, k_cache, v_cache, wq, wo):
        B, Sq, D = x.shape
        H, Dh = 32, 128
        q = (lambda x, *d: x.permute(*d))((x @ wq).reshape(B, Sq, H, Dh), 0, 2, 1, 3)
        scores = torch.einsum("bhqd,bhkd->bhqk", q, k_cache) * (Dh ** -0.5)
        p = _softmax(scores, axis=-1)
        o = torch.einsum("bhqk,bhkd->bhqd", p, v_cache)
        return (lambda x, *d: x.permute(*d))(o, 0, 2, 1, 3).reshape(B, Sq, H * Dh) @ wo

    def _B_ref(x, k_cache, v_cache, wq, wo):
        B, Sq, D = x.shape
        H, Dh = 32, 128
        q = (lambda x, *d: x.permute(*d))((x @ wq).reshape(B, Sq, H, Dh), 0, 2, 1, 3)
        scores = torch.einsum("bhqd,bhkd->bhqk", q, k_cache) * (Dh ** -0.5)
        p = _softmax(scores, axis=-1)
        o = torch.einsum("bhqk,bhkd->bhqd", p, v_cache)
        return (lambda x, *d: x.permute(*d))(o, 0, 2, 1, 3).reshape(B, Sq, H * Dh) @ wo

    a = _A_ref(A_x, A_k_cache, A_v_cache, A_wq, A_wo)
    b = _B_ref(B_x, B_k_cache, B_v_cache, B_wq, B_wo)
    return torch.concatenate([a, b], axis=-1)
```

```python
KNAME = "concat_heads__mha_block_cached__mha_block_cached__near_ridge"

def header(launch_lines):
    return "\n".join(launch_lines) + "\n.amdgcn_target \"amdgcn-amd-amdhsa--gfx950\"\n.text\n"

def kstart(name):
    return f".globl {name}\n.p2align 8\n.type {name},@function\n{name}:\n"

def kdesc(name, vgpr=512, accum=256, sgpr=102):
    return f""".amdhsa_kernel {name}
  .amdhsa_next_free_vgpr {vgpr}
  .amdhsa_next_free_sgpr {sgpr}
  .amdhsa_accum_offset {accum}
  .amdhsa_group_segment_fixed_size 0
  .amdhsa_kernarg_size 104
  .amdhsa_user_sgpr_count 2
  .amdhsa_user_sgpr_kernarg_segment_ptr 1
  .amdhsa_system_sgpr_workgroup_id_x 1
.end_amdhsa_kernel
"""

RODATA = ".section .rodata,\"a\"\n.p2align 6\n"

class A:
    def __init__(self):
        self.l = []
    def __call__(self, s):
        for x in s.split("\n"):
            x = x.strip()
            if x: self.l.append(("" if x.endswith(":") else "  ") + x)
    def text(self):
        return "\n".join(self.l) + "\n"
```

```python
import sys, argparse
sys.path.insert(0, "tools")
from asmlib import *

class P:
    stamps = False
    xfl = ""
    wfl = ""
    kvfl = "nt"
    ofl = "sc1"
    touch = True
    s0 = 0
    rot = True
    wofl = ""
    pfl = "sc1"
    touch_wo = True

MF = "v_mfma_f32_16x16x32_bf16"
OOB = 0x40000000
LDSOOB = 0x30000
STAMPOFF = 200 << 20
O_BYTES = 16 * 32 * 4 * 9216
P_OFF = 32 << 20

def vr(b, n=4): return f"v[{b}:{b+n-1}]"
def ar(b, n=4): return f"a[{b}:{b+n-1}]"

def weave(a, mfmas, gaps):
    assert len(gaps) <= len(mfmas), (len(gaps), len(mfmas))
    for i, m in enumerate(mfmas):
        a(m)
        if i < len(gaps):
            for x in gaps[i]: a(x)

def stamp(a, p, idx):
    if p.stamps: a(f"s_memrealtime s[{84+2*idx}:{85+2*idx}]")

def stamp_store(a, p, n, rec, base):
    if not p.stamps: return
    a("s_waitcnt lgkmcnt(0)")
    a(f"s_mul_i32 s80, s2, {rec*8}\ns_add_u32 s82, s82, s80\ns_addc_u32 s83, s83, 0\ns_add_u32 s82, s82, {STAMPOFF + base*8}\ns_addc_u32 s83, s83, 0")
    a("v_mov_b32 v1, 0\nv_cmp_eq_u32 vcc, 0, v0\ns_and_saveexec_b64 s[80:81], vcc")
    for j in range(n):
        a(f"v_mov_b32 v2, s{84+2*j}\nv_mov_b32 v3, s{85+2*j}\nglobal_store_dwordx2 v1, v[2:3], s[82:83] offset:{8*j}\ns_nop 1")
    a("s_mov_b64 exec, s[80:81]")

vACC = 96
vS = (80, 88)
vL = 72
vVA = 64
vKA = 60
vXA = 58
vE, vO_, vWE, vWO, vX = 56, 57, 54, 55, 53
vST = 52
aQ = 0
aK = (80, 112)
aV = (144, 176)
aXB = (80, 100)
aWA = (144, 176)
sX, sW, sK, sV, sO = 8, 12, 16, 20, 24
sWAVE, sHL, sROT = 28, 29, 30
sWS, sWM, sXS, sXM = 32, 33, 34, 35
sWD, sXD = 36, 37
sT, sT2, sIT = 38, 39, 40
sKN, sKM, sKS = 41, 42, 43
sRB, sHI = 44, 45
sWSL, sXB = 46, 47
sC = 48
sOB = 49
sNEG = 51
XBUF = 65536
WQB = XBUF + 2 * 18432

def acc(t, dt): return vACC + (t * 8 + dt) * 4

def w_dma(p):
    w = lambda v, o: f"buffer_load_dwordx4 v{v}, s[{sW}:{sW+3}], s{sT} offen offset:{o} {p.wfl} lds"
    return [[f"s_mov_b32 m0, s{sWM}", f"s_mov_b32 s{sT}, s{sWS}", w(vWE, 0)],
            [w(vWO, 1024), f"s_add_u32 s{sT}, s{sWS}, {4*8192 - 2048}"],
            [w(vWE, 2048)],
            [w(vWO, 3072), f"s_add_u32 m0, s{sWM}, 4096", f"s_add_u32 s{sT}, s{sWS}, {16*8192}"],
            [w(vWE, 0)],
            [w(vWO, 1024), f"s_add_u32 s{sT}, s{sWS}, {20*8192 - 2048}"],
            [w(vWE, 2048)],
            [w(vWO, 3072)]]

def kv_pair(p, par):
    ve = vE if ((par - p.s0) & 1) == 0 else vO_
    return [[f"buffer_load_dwordx4 v{ve}, s[{sK}:{sK+3}], s{sKS} offen {p.kvfl} lds", f"s_add_u32 m0, m0, 8192"],
            [f"buffer_load_dwordx4 v{ve}, s[{sV}:{sV+3}], s{sKS} offen {p.kvfl} lds"]]

def k1_qstep(a, p, T, par, loader):
    A_, B_ = aWA[par], aXB[par]
    An, Bn = aWA[par ^ 1], aXB[par ^ 1]
    mf = [f"{MF} {vr(acc(t, dt))}, {ar(A_ + 4*dt)}, {ar(B_ + 4*t)}, {vr(acc(t, dt))}" for dt in range(8) for t in range(T)]
    a("s_waitcnt lgkmcnt(0)")
    if loader:
        a(f"s_waitcnt vmcnt({4 + 8 + (9 if par == 0 else 0)})")
    a("s_barrier")
    upd = [f"v_add_u32 v{vVA+d}, s{sWD}, v{vVA+d}" for d in range(8)]
    if par == 1: upd = [f"v_add_u32 v{vXA}, s{sXD}, v{vXA}", f"v_add_u32 v{vXA+1}, s{sXD}, v{vXA+1}"] + upd
    rd = [f"ds_read_b128 {ar(Bn + 4*t)}, v{vXA + (par ^ 1)} offset:{2048*t}" for t in range(T)]
    for dt in range(8):
        rd.append(f"ds_read_b64_tr_b16 {ar(An + 4*dt, 2)}, v{vVA+dt}")
        rd.append(f"ds_read_b64_tr_b16 {ar(An + 4*dt + 2, 2)}, v{vVA+dt} offset:2048")
    gaps = []
    if not loader:
        for i in range(0, len(upd), 2): gaps.append(upd[i:i+2])
        for x in rd: gaps.append([x])
    else:
        dma = []
        if par == 1:
            for m in range(9):
                pre = [f"s_mov_b32 m0, s{sXM}", "s_nop 0"] if m == 0 else []
                dma.append(pre + [f"buffer_load_dwordx4 v{vX}, s[{sX}:{sX+3}], s{sXS} offen {p.xfl} lds",
                                  f"s_add_u32 m0, m0, 2048", f"s_add_u32 s{sXS}, s{sXS}, 18432"])
        dma += w_dma(p)
        kv = kv_pair(p, par)
        nu = len(upd)
        for i in range(min(nu, len(dma))): gaps.append(dma[i] + [upd[i]])
        if nu > len(dma): gaps[-1] += upd[len(dma):]
        rest_d = dma[nu:]
        n = len(mf) - len(gaps) - len(kv)
        ri = 0
        for d in rest_d:
            gaps.append(d[:1] + [rd[ri]] + d[1:]); ri += 1
        first_free = len(gaps)
        left = rd[ri:]; ng = n - len(rest_d)
        dbl = max(0, len(left) - ng)
        k = 0
        while k < len(left):
            if dbl > 0: gaps.append(left[k:k+2]); k += 2; dbl -= 1
            else: gaps.append(left[k:k+1]); k += 1
        gaps += kv
    bk = kv_cur(p) if loader else []
    bk += f"""s_add_u32 s{sWSL}, s{sWSL}, 8192
    s_cmp_eq_u32 s{sWSL}, 24576
    s_cselect_b32 s{sWSL}, 0, s{sWSL}
    s_cmp_eq_u32 s{sWSL}, 16384
    s_cselect_b32 s{sWD}, s{sNEG}, s{sC}
    s_add_u32 s{sIT}, s{sIT}, 1""".split("\n")
    if par == 1: bk.append(f"s_sub_u32 s{sXD}, 0, s{sXD}")
    if loader:
        bk += f"""s_add_u32 s{sWS}, s{sWS}, {32*8192}
        s_add_u32 s{sWM}, s{sWSL}, s{sXB}
        s_cmp_ge_u32 s{sIT}, 15
        s_cselect_b32 s{sWM}, {LDSOOB}, s{sWM}
        s_cselect_b32 s{sWS}, {OOB}, s{sWS}""".split("\n")
        if par == 0:
            bk += f"""s_add_u32 s{sT}, s{sIT}, 3
            s_lshr_b32 s{sT}, s{sT}, 1
            s_lshl_b32 s{sXS}, s{sT}, 7
            s_and_b32 s{sT}, s{sT}, 1
            s_mul_i32 s{sT}, s{sT}, 18432
            s_lshl_b32 s{sXM}, s{sHL}, 10
            s_add_u32 s{sXM}, s{sXM}, s{sT}
            s_add_u32 s{sXM}, s{sXM}, {XBUF}
            s_cmp_ge_u32 s{sIT}, 15
            s_cselect_b32 s{sXM}, {LDSOOB}, s{sXM}
            s_cselect_b32 s{sXS}, {OOB}, s{sXS}""".split("\n")
        spread(gaps, first_free, len(gaps) - len(kv), bk)
    else:
        lo = len(gaps)
        while len(gaps) < len(mf): gaps.append([])
        spread(gaps, lo, len(gaps), bk)
    weave(a, mf, gaps)

def kv_cur(p):
    return f"""s_sub_u32 s{sKN}, s{sIT}, {p.s0}
    s_lshr_b32 s{sT}, s{sKN}, 3
    s_add_u32 s{sKS}, s{sT}, s{sROT}
    s_and_b32 s{sKS}, s{sKS}, 15
    s_lshl_b32 s{sKS}, s{sKS}, 13
    s_lshl_b32 s{sKM}, s{sT}, 14
    s_and_b32 s{sT}, s{sKN}, 7
    s_lshl_b32 s{sT}, s{sT}, 10
    s_add_u32 s{sKS}, s{sKS}, s{sT}
    s_add_u32 s{sKM}, s{sKM}, s{sT}
    s_add_u32 s{sKM}, s{sKM}, s{sRB}
    s_cmp_ge_u32 s{sKN}, 16
    s_cselect_b32 m0, {LDSOOB}, s{sKM}
    s_cselect_b32 s{sKS}, {OOB}, s{sKS}""".split("\n")

def spread(gaps, lo, hi, items):
    n = hi - lo
    per = -(-len(items) // n)
    for i, x in enumerate(items): gaps[lo + i // per].append(x.strip())

def kv_tile_dma(p, sm, ss):
    out = []
    for half, (srd, lo) in enumerate(((sK, 0), (sK, 4096), (sV, 8192), (sV, 12288))):
        so = ss if (half & 1) == 0 else sT
        for j in range(4):
            g = []
            if j == 0:
                g.append(f"s_add_u32 m0, s{sm}, {lo}")
                g.append(f"s_add_u32 s{sT}, s{ss}, 4096")
            g.append(f"buffer_load_dwordx4 v{vE if j % 2 == 0 else vO_}, s[{srd}:{srd+3}], s{so} offen offset:{1024*j} {p.kvfl} lds")
            out.append(g)
    return out

def frag_reads(par_next, slotoff):
    Kn, Vn = aK[par_next], aV[par_next]
    rd = [f"ds_read_b128 {ar(Kn + (kt*4+s)*4)}, v{vKA+s} offset:{slotoff + 4096*kt}" for kt in range(2) for s in range(4)]
    for dt in range(8):
        rd.append(f"ds_read_b64_tr_b16 {ar(Vn + 4*dt, 2)}, v{vVA+dt} offset:{slotoff}")
        rd.append(f"ds_read_b64_tr_b16 {ar(Vn + 4*dt + 2, 2)}, v{vVA+dt} offset:{slotoff + 4096}")
    return rd

def soft2(S, t):
    ad = [f"v_add_f32 v{vL+t}, v{vL+t}, v{S+j}" for j in range(8)]
    cv = [f"v_cvt_pk_bf16_f32 v{S+j}, v{S+2*j}, v{S+2*j+1}" for j in range(4)]
    return ad[:4] + cv + ad[4:]

def k1_block(a, p, T, par, loader):
    Kc, Vc, Vp = aK[par], aV[par], aV[par ^ 1]
    a("s_waitcnt lgkmcnt(0)")
    if loader: a("s_waitcnt vmcnt(32)")
    a("s_barrier")
    extra = [[x] for x in frag_reads(par ^ 1, 16384 * (par ^ 1))]
    if loader:
        d = kv_tile_dma(p, sKM, sKS)
        m = []
        for i in range(max(len(d), len(extra))):
            if i < len(d): m.append(d[i])
            if i < len(extra): m.append(extra[i])
        extra = m
    tog = [f"v_xor_b32 v{r}, 0x10000, v{r}" for r in list(range(vKA, vKA+4)) + list(range(vVA, vVA+8))] if par == 0 else []
    nsteps_rd = T - 1
    per = -(-len(extra) // nsteps_rd)
    for t in range(T):
        n = par * T + t
        S, Sp = vS[n & 1], vS[(n & 1) ^ 1]
        tp = (t - 1) % T
        qk = [f"{MF} {vr(S + 4*kt)}, {ar(Kc + (kt*4+s)*4)}, {ar(aQ + (t*4+s)*4)}, {'0' if s == 0 else vr(S + 4*kt)}" for kt in range(2) for s in range(4)]
        Vuse = Vp if t == 0 else Vc
        pv = [f"{MF} {vr(acc(tp, dt))}, {ar(Vuse + 4*dt)}, {vr(Sp)}, {vr(acc(tp, dt))}" for dt in range(8)]
        ex = extra[t*per:(t+1)*per] if t < nsteps_rd else []
        if t == 0: assert not any("tr_b16" in x for g in ex for x in g)
        v2 = soft2(Sp, tp)
        if t == T - 1: v2 = v2[:8] + tog + v2[8:]
        gq = [[] for _ in range(8)]
        nx = min(len(ex), 8)
        for i in range(nx): gq[i] += ex[i]
        rest = ex[nx:]
        cap = [1 if i < nx else 2 for i in range(8)]
        while sum(cap) < len(v2):
            i = min(range(8), key=lambda i: cap[i] + (1 if i < nx else 0)); cap[i] += 1
        k = 0
        for i in range(8):
            for _ in range(cap[i]):
                if k < len(v2): gq[i].append(v2[k]); k += 1
        gp = [[f"v_exp_f32 v{S+j}, v{S+j}"] for j in range(8)]
        for i, x in enumerate(rest): gp[i] = x + gp[i]
        weave(a, qk, gq)
        weave(a, pv, gp)

def k1_wave(a, p, T, loader, tag):
    if loader: a("s_waitcnt vmcnt(29)")
    a("s_barrier")
    stamp(a, p, 1)
    for t in range(T): a(f"ds_read_b128 {ar(aXB[0] + 4*t)}, v{vXA} offset:{2048*t}")
    for dt in range(8):
        a(f"ds_read_b64_tr_b16 {ar(aWA[0] + 4*dt, 2)}, v{vVA+dt}")
        a(f"ds_read_b64_tr_b16 {ar(aWA[0] + 4*dt + 2, 2)}, v{vVA+dt} offset:2048")
    a(f"L_q{tag}:")
    k1_qstep(a, p, T, 0, loader)
    k1_qstep(a, p, T, 1, loader)
    a(f"s_cmp_lt_u32 s{sIT}, 18\ns_cbranch_scc1 L_q{tag}")
    stamp(a, p, 2)
    a(f"""v_and_b32 v1, 63, v0
    v_lshrrev_b32 v2, 4, v1
    v_bfe_u32 v3, v1, 2, 2
    v_lshl_add_u32 v2, v2, 2, v3
    v_and_b32 v3, 7, v2
    v_lshlrev_b32 v3, 1, v3
    v_bfe_u32 v4, v1, 1, 1
    v_xor_b32 v3, v3, v4
    v_lshlrev_b32 v3, 4, v3
    v_and_b32 v4, 1, v1
    v_lshl_add_u32 v3, v4, 3, v3
    v_lshl_add_u32 v3, v2, 8, v3
    s_add_u32 s{sT}, s{sRB}, 8192
    v_add_u32 v{vVA}, s{sT}, v3""")
    for dt in range(1, 8): a(f"v_xor_b32 v{vVA+dt}, {32*dt}, v{vVA}")
    a("s_waitcnt lgkmcnt(0)")
    if loader: a("s_waitcnt vmcnt(0)")
    a("s_barrier")
    for x in frag_reads(0, 0): a(x)
    dma = []
    if loader:
        for n in (2, 3):
            dma.append([f"s_add_u32 s{sKS}, s{sROT}, {n}", f"s_and_b32 s{sKS}, s{sKS}, 15", f"s_lshl_b32 s{sKS}, s{sKS}, 13",
                        f"s_add_u32 s{sKM}, s{sRB}, {65536 + 16384*(n & 1)}"])
            dma += kv_tile_dma(p, sKM, sKS)
    di = 0
    for t in range(T):
        for s in range(4):
            A0, B0 = acc(t, 2*s), acc(t, 2*s+1)
            for r in range(4): a(f"v_mul_f32 v{A0+r}, s{sOB}, v{A0+r}")
            for r in range(4): a(f"v_mul_f32 v{B0+r}, s{sOB}, v{B0+r}")
            a(f"v_cvt_pk_bf16_f32 v4, v{A0}, v{A0+1}\nv_cvt_pk_bf16_f32 v5, v{A0+2}, v{A0+3}\nv_cvt_pk_bf16_f32 v6, v{B0}, v{B0+1}\nv_cvt_pk_bf16_f32 v7, v{B0+2}, v{B0+3}")
            for r in range(2): a(f"v_mov_b32 v{A0+r}, 0")
            a("v_permlane32_swap_b32 v4, v6\nv_permlane32_swap_b32 v5, v7")
            for r in range(2, 4): a(f"v_mov_b32 v{A0+r}, 0")
            a("v_permlane16_swap_b32 v4, v6\nv_permlane16_swap_b32 v5, v7")
            for r in range(4): a(f"v_mov_b32 v{B0+r}, 0")
            q = aQ + (t*4+s)*4
            for r in range(4): a(f"v_accvgpr_write_b32 a{q+r}, v{4+r}")
            for _ in range(3):
                if di < len(dma):
                    for x in dma[di]: a(x)
                    di += 1
    assert di == len(dma)
    for t in range(T): a(f"v_mov_b32 v{vL+t}, 0")
    for j in range(8): a(f"v_mov_b32 v{vS[1]+j}, 0")
    a(f"s_mov_b32 s{sIT}, 0\ns_mov_b32 s{sHI}, 0")
    a(f"L_a{tag}:")
    for par in range(2):
        if loader:
            a(f"""s_add_u32 s{sKS}, s{sIT}, s{sROT}
            s_add_u32 s{sKS}, s{sKS}, {4+par}
            s_and_b32 s{sKS}, s{sKS}, 15
            s_lshl_b32 s{sKS}, s{sKS}, 13
            s_add_u32 s{sKM}, s{sRB}, s{sHI}
            s_add_u32 s{sKM}, s{sKM}, {16384*par}
            s_cmp_ge_u32 s{sIT}, 12
            s_cselect_b32 s{sKM}, {LDSOOB}, s{sKM}
            s_cselect_b32 s{sKS}, {OOB}, s{sKS}""")
        k1_block(a, p, T, par, loader)
    a(f"s_xor_b32 s{sHI}, s{sHI}, 0x10000\ns_add_u32 s{sIT}, s{sIT}, 2\ns_cmp_lt_u32 s{sIT}, 16\ns_cbranch_scc1 L_a{tag}")
    S = vS[(2*T - 1) & 1]
    a("s_nop 0")
    for x in soft2(S, T-1): a(x)
    for dt in range(8): a(f"{MF} {vr(acc(T-1, dt))}, {ar(aV[1] + 4*dt)}, {vr(S)}, {vr(acc(T-1, dt))}")
    stamp(a, p, 3)
    for t in range(T): a(f"v_mov_b32 v{8+t}, v{vL+t}")
    a("s_nop 1")
    for t in range(T): a(f"v_permlane32_swap_b32 v{8+t}, v{vL+t}")
    for t in range(T): a(f"v_add_f32 v{vL+t}, v{vL+t}, v{8+t}")
    for t in range(T): a(f"v_mov_b32 v{8+t}, v{vL+t}")
    a("s_nop 1")
    for t in range(T): a(f"v_permlane16_swap_b32 v{8+t}, v{vL+t}")
    for t in range(T): a(f"v_add_f32 v{vL+t}, v{vL+t}, v{8+t}")
    for t in range(T): a(f"v_rcp_f32 v{vL+t}, v{vL+t}")
    a("s_nop 0")
    buf = 0
    for t in range(T):
        for s in range(4):
            A0 = acc(t, 2*s)
            for r in range(8): a(f"v_mul_f32 v{A0+r}, v{vL+t}, v{A0+r}")
            d = 16 + 4 * (buf & 3); buf += 1
            for r in range(4): a(f"v_cvt_pk_bf16_f32 v{d+r}, v{A0+2*r}, v{A0+2*r+1}")
            a(f"s_add_u32 s{sT}, s{sOB+1}, {s*9216 + (4096 if t == 4 else 0)}")
            a(f"buffer_store_dwordx4 {vr(d)}, v{vST}, s[{sO}:{sO+3}], s{sT} offen offset:{1024*(t & 3)} {p.ofl}")

def k1(p):
    a = A()
    a(f"""
    s_cmp_ge_u32 s2, 256
    s_cbranch_scc1 L_k1end""")
    stamp(a, p, 0)
    a(f"""
    s_load_dwordx8 s[52:59], s[0:1], 0
    s_load_dwordx8 s[60:67], s[0:1], 40
    s_load_dwordx2 s[82:83], s[0:1], 96
    v_lshrrev_b32 v1, 6, v0
    v_and_b32 v2, 63, v0
    v_readfirstlane_b32 s{sWAVE}, v1
    s_and_b32 s3, s2, 7
    s_lshr_b32 s4, s2, 3
    s_lshr_b32 s5, s4, 2
    s_and_b32 s4, s4, 3
    s_and_b32 s6, s3, 3
    s_lshl_b32 s6, s6, 3
    s_lshl_b32 s7, s4, 1
    s_add_u32 s6, s6, s7
    s_lshr_b32 s{sHL}, s{sWAVE}, 1
    s_add_u32 s7, s6, s{sHL}
    s_lshl_b32 s{sRB}, s{sHL}, 15
    """)
    if p.rot: a(f"s_lshr_b32 s{sROT}, s2, 3\ns_and_b32 s{sROT}, s{sROT}, 15")
    else: a(f"s_mov_b32 s{sROT}, 0")
    a(f"""
    v_lshrrev_b32 v3, 4, v2
    v_and_b32 v4, 15, v2
    v_lshlrev_b32 v5, 1, v3
    v_xor_b32 v5, v5, v4
    v_lshlrev_b32 v5, 4, v5
    v_lshl_add_u32 v{vE}, v3, 8, v5
    v_xor_b32 v{vO_}, 128, v{vE}
    v_lshl_add_u32 v{vWE}, v3, 13, v5
    s_lshl_b32 s{sT}, s7, 8
    v_add_u32 v{vWE}, s{sT}, v{vWE}
    v_xor_b32 v{vWO}, 128, v{vWE}
    v_add_u32 v{vWO}, {8*8192 - 1024}, v{vWO}
    s_lshl_b32 s{sT}, s{sHL}, 2
    v_add_u32 v5, s{sT}, v3
    v_and_b32 v6, 7, v2
    v_xor_b32 v5, v5, v6
    v_lshlrev_b32 v5, 4, v5
    v_lshrrev_b32 v6, 3, v2
    s_lshl_b32 s{sT}, s{sHL}, 3
    v_add_u32 v6, s{sT}, v6
    s_movk_i32 s{sT}, 1152
    v_mad_u32_u24 v{vX}, v6, s{sT}, v5
    s_waitcnt lgkmcnt(0)
    s_cmp_ge_u32 s3, 4
    s_cselect_b32 s52, s60, s52
    s_cselect_b32 s53, s61, s53
    s_cselect_b32 s54, s62, s54
    s_cselect_b32 s55, s63, s55
    s_cselect_b32 s56, s64, s56
    s_cselect_b32 s57, s65, s57
    s_cselect_b32 s58, s66, s58
    s_cselect_b32 s59, s67, s59
    s_mul_i32 s{sT}, s5, 165888
    s_add_u32 s{sX}, s52, s{sT}
    s_addc_u32 s{sX+1}, s53, 0
    s_mov_b32 s{sX+2}, 165888
    s_mov_b32 s{sX+3}, 0x20000
    s_mov_b32 s{sW}, s58
    s_mov_b32 s{sW+1}, s59
    s_mov_b32 s{sW+2}, 4718592
    s_mov_b32 s{sW+3}, 0x20000
    s_lshl_b32 s{sT}, s5, 5
    s_add_u32 s{sT}, s{sT}, s7
    s_lshl_b32 s{sT2}, s{sT}, 17
    s_add_u32 s{sK}, s54, s{sT2}
    s_addc_u32 s{sK+1}, s55, 0
    s_mov_b32 s{sK+2}, 131072
    s_mov_b32 s{sK+3}, 0x20000
    s_add_u32 s{sV}, s56, s{sT2}
    s_addc_u32 s{sV+1}, s57, 0
    s_mov_b32 s{sV+2}, 131072
    s_mov_b32 s{sV+3}, 0x20000
    s_mov_b32 s{sO}, s82
    s_mov_b32 s{sO+1}, s83
    s_mov_b32 s{sO+2}, {O_BYTES}
    s_mov_b32 s{sO+3}, 0x20000
    s_lshr_b32 s{sT2}, s3, 2
    s_lshl_b32 s{sT2}, s{sT2}, 8
    s_add_u32 s{sT}, s{sT}, s{sT2}
    s_mul_i32 s{sOB+1}, s{sT}, {4*9216}
    s_mul_i32 s{sXB}, s{sHL}, 24576
    s_add_u32 s{sXB}, s{sXB}, {WQB}
    s_bitcmp1_b32 s{sWAVE}, 0
    s_cbranch_scc0 L_k1big0
    """)
    def xload(c):
        a(f"s_lshl_b32 s{sT}, s{sHL}, 10\ns_add_u32 m0, s{sT}, {XBUF + 18432*c}\ns_mov_b32 s{sXS}, {128*c}")
        for m in range(9):
            a(f"buffer_load_dwordx4 v{vX}, s[{sX}:{sX+3}], s{sXS} offen {p.xfl} lds\ns_add_u32 m0, m0, 2048\ns_add_u32 s{sXS}, s{sXS}, 18432")
    def wload(k):
        for hf in range(2):
            a(f"s_add_u32 m0, s{sXB}, {8192*k + 4096*hf}\ns_mov_b32 s{sT}, {(32*k + 16*hf)*8192}")
            a(f"buffer_load_dwordx4 v{vWE}, s[{sW}:{sW+3}], s{sT} offen {p.wfl} lds\nbuffer_load_dwordx4 v{vWO}, s[{sW}:{sW+3}], s{sT} offen offset:1024 {p.wfl} lds")
            a(f"s_mov_b32 s{sT}, {(32*k + 16*hf + 4)*8192 - 2048}")
            a(f"buffer_load_dwordx4 v{vWE}, s[{sW}:{sW+3}], s{sT} offen offset:2048 {p.wfl} lds\nbuffer_load_dwordx4 v{vWO}, s[{sW}:{sW+3}], s{sT} offen offset:3072 {p.wfl} lds")
    def kvp(step):
        a(f"s_mov_b32 s{sIT}, {step}")
        for x in kv_cur(p): a(x)
        g = kv_pair(p, step & 1)
        for x in g[0]: a(x)
        a("s_nop 0")
        for x in g[1]: a(x)
    xload(0); wload(0); wload(1); kvp(-2); xload(1); wload(2); kvp(-1)
    a("s_branch L_k1com\nL_k1big0:")
    if p.touch:
        a(f"""s_mul_i32 s{sT}, s4, 324
        s_mul_i32 s{sT2}, s{sHL}, 162
        s_add_u32 s{sT}, s{sT}, s{sT2}
        v_add_lshl_u32 v8, v2, s{sT}, 7
        v_lshrrev_b32 v9, 2, v2
        v_lshlrev_b32 v9, 4, v9
        s_lshl_b32 s{sT}, s{sHL}, 3
        s_add_u32 s{sT}, s{sT}, s5
        v_add_lshl_u32 v9, v9, s{sT}, 13
        v_and_b32 v10, 3, v2
        v_lshl_add_u32 v9, v10, 7, v9
        s_lshl_b32 s{sT}, s6, 8
        v_add_u32 v9, s{sT}, v9
        s_mov_b32 s{sT}, {256*8192}
        s_mov_b32 s{sT2}, {512*8192}
        buffer_load_dword v10, v9, s[{sW}:{sW+3}], 0 offen {p.wfl}
        buffer_load_dword v11, v8, s[{sX}:{sX+3}], 0 offen {p.xfl}
        buffer_load_dword v12, v9, s[{sW}:{sW+3}], s{sT} offen {p.wfl}
        s_movk_i32 s{sT}, 8192
        buffer_load_dword v13, v8, s[{sX}:{sX+3}], s{sT} offen {p.xfl}
        buffer_load_dword v14, v9, s[{sW}:{sW+3}], s{sT2} offen {p.wfl}
        s_movk_i32 s{sT}, 16384
        v_cmp_gt_u32 vcc, 34, v2
        s_and_saveexec_b64 s[80:81], vcc
        buffer_load_dword v15, v8, s[{sX}:{sX+3}], s{sT} offen {p.xfl}
        s_mov_b64 exec, s[80:81]""")
    a("L_k1com:")
    a(f"""
    v_and_b32 v5, 7, v4
    v_lshlrev_b32 v5, 1, v5
    v_xor_b32 v5, v5, v3
    v_lshlrev_b32 v5, 4, v5
    v_lshl_add_u32 v5, v4, 8, v5
    v_add_u32 v{vKA}, s{sRB}, v5
    v_xor_b32 v{vKA+1}, 64, v{vKA}
    v_xor_b32 v{vKA+2}, 128, v{vKA}
    v_xor_b32 v{vKA+3}, 192, v{vKA}
    v_bfe_u32 v5, v2, 2, 2
    v_and_b32 v6, 1, v3
    v_lshl_add_u32 v5, v6, 2, v5
    v_lshrrev_b32 v6, 1, v3
    v_lshl_add_u32 v6, v6, 4, v5
    v_lshlrev_b32 v5, 1, v5
    v_bfe_u32 v7, v2, 1, 1
    v_xor_b32 v5, v5, v7
    v_lshlrev_b32 v5, 4, v5
    v_and_b32 v7, 1, v2
    v_lshl_add_u32 v5, v7, 3, v5
    v_lshl_add_u32 v5, v6, 8, v5
    v_add_u32 v{vVA}, s{sXB}, v5""")
    for dt in range(1, 8): a(f"v_xor_b32 v{vVA+dt}, {32*dt}, v{vVA}")
    a(f"""
    v_lshrrev_b32 v5, 1, v4
    v_xor_b32 v5, v5, v3
    v_lshlrev_b32 v5, 4, v5
    v_lshl_add_u32 v5, v4, 7, v5
    s_and_b32 s{sT}, s{sWAVE}, 1
    s_mul_i32 s{sT2}, s{sT}, {5*2048}
    s_add_u32 s{sT2}, s{sT2}, {XBUF}
    v_add_u32 v{vXA}, s{sT2}, v5
    v_xor_b32 v{vXA+1}, 64, v{vXA}
    s_mul_i32 s{sT2}, s{sT}, {5*1024}
    v_lshl_add_u32 v{vST}, v2, 4, s{sT2}
    s_mov_b32 s{sOB}, 0x3e0293ee
    s_mov_b32 s{sIT}, 0
    s_mov_b32 s{sWSL}, 0
    s_mov_b32 s{sC}, 8192
    s_mov_b32 s{sNEG}, -16384
    s_mov_b32 s{sWD}, 8192
    s_mov_b32 s{sXD}, 18432
    s_mov_b32 s{sWS}, {3*32*8192}
    s_mov_b32 s{sWM}, s{sXB}
    """)
    for r in range(160): a(f"v_mov_b32 v{vACC+r}, 0")
    a(f"s_bitcmp1_b32 s{sWAVE}, 0\ns_cbranch_scc1 L_k1small")
    k1_wave(a, p, 5, False, "b")
    a("s_branch L_k1fin\nL_k1small:")
    k1_wave(a, p, 4, True, "s")
    a("L_k1fin:")
    if p.stamps:
        a("s_waitcnt vmcnt(0)")
        stamp(a, p, 4)
        stamp_store(a, p, 5, 16, 0)
    a("L_k1end:\ns_endpgm")
    return a.text()

STG = 36864
PBLK = 41472
v2ACC = 64
v2VO = 40
v2B = 50
v2A = 54
a2A = (0, 12)
a2B = (24, 60)
def acc2(nt, u): return v2ACC + 4 * (nt * 9 + u)

def k2_reads(par, off):
    A_, B_ = a2A[par], a2B[par]
    rd = []
    for nt in range(3):
        reg, o = (v2A, 32 * nt) if nt < 2 else (v2A + 1, 0)
        rd.append(f"ds_read_b64_tr_b16 {ar(A_ + 4*nt, 2)}, v{reg} offset:{off + o}")
        rd.append(f"ds_read_b64_tr_b16 {ar(A_ + 4*nt + 2, 2)}, v{reg} offset:{off + o + 4608}")
    rb = []
    for u in range(9):
        reg, o = (v2B, 1024 * u) if u < 3 else (v2B + 1 + (u - 3) // 2, 1024 * ((u - 3) & 1))
        rb.append(f"ds_read_b128 {ar(B_ + 4*u)}, v{reg} offset:{off + o}")
    return rd[:2] + rb[:1] + rd[2:4] + rb[1:2] + rd[4:] + rb[2:]

def k2_mf(par):
    A_, B_ = a2A[par], a2B[par]
    out = []
    for u in range(9):
        for nt in range(3 if u < 3 else 2):
            out.append(f"{MF} {vr(acc2(nt, u))}, {ar(A_ + 4*nt)}, {ar(B_ + 4*u)}, {vr(acc2(nt, u))}")
    return out

def k2_dma(p, sm, ss):
    out = []
    for j in range(9):
        g = []
        if j % 4 == 0: g += [f"s_add_u32 m0, s{sm}, {1024*j}", "s_nop 0"]
        g.append(f"buffer_load_dwordx4 v{v2VO+j}, s[8:11], s{ss} offen offset:{1024*(j % 4)} {p.wofl} lds")
        out.append(g)
    return out

def k2(p):
    a = A()
    a("s_cmp_ge_u32 s2, 256\ns_cbranch_scc1 L_k2end")
    stamp(a, p, 0)
    a(f"""
    s_load_dwordx2 s[52:53], s[0:1], 32
    s_load_dwordx2 s[54:55], s[0:1], 72
    s_load_dwordx2 s[82:83], s[0:1], 96
    v_lshrrev_b32 v1, 6, v0
    v_and_b32 v2, 63, v0
    v_readfirstlane_b32 s28, v1
    s_and_b32 s3, s2, 7
    s_lshr_b32 s4, s2, 3
    s_lshr_b32 s5, s4, 2
    s_and_b32 s4, s4, 3
    s_and_b32 s6, s3, 3
    s_lshr_b32 s7, s3, 2
    s_lshl_b32 s29, s7, 3
    s_add_u32 s29, s29, s5
    """)
    a("s_movk_i32 s30, 3641\ns_movk_i32 s31, 864\ns_cmp_ge_u32 s28, 2\ns_cselect_b32 s31, s31, 0")
    for j in range(9):
        a(f"""v_add_u32 v3, {64*j}, v2
        v_mul_u32_u24 v4, s30, v3
        v_lshrrev_b32 v4, 16, v4
        v_lshlrev_b32 v3, 4, v3
        v_mad_u32_u24 v3, v4, s31, v3
        v_subrev_u32 v{v2VO+j}, {1024*(j % 4)}, v3""")
    a(f"""
    s_waitcnt lgkmcnt(0)
    s_cmp_ge_u32 s3, 4
    s_cselect_b32 s52, s54, s52
    s_cselect_b32 s53, s55, s53
    s_cmp_ge_u32 s28, 2
    s_cselect_b32 s8, s52, s82
    s_cselect_b32 s9, s53, s83
    s_cselect_b32 s10, 4718592, s10
    s_cbranch_scc1 L_k2wo
    s_mov_b32 s10, {O_BYTES}
    s_lshl_b32 s32, s29, 5
    s_lshl_b32 s33, s6, 3
    s_add_u32 s32, s32, s33
    s_lshl_b32 s32, s32, 2
    s_add_u32 s32, s32, s28
    s_mul_i32 s32, s32, 9216
    s_movk_i32 s33, 18432
    s_branch L_k2c
    L_k2wo:
    s_lshl_b32 s32, s6, 10
    s_sub_u32 s33, s28, 2
    s_lshl_b32 s33, s33, 5
    s_add_u32 s32, s32, s33
    s_mul_i32 s32, s32, 1152
    s_mul_i32 s33, s4, 288
    s_add_u32 s32, s32, s33
    s_mov_b32 s33, 73728
    L_k2c:
    s_mov_b32 s11, 0x20000
    s_mul_i32 s34, s28, 9216
    """)
    for st in range(4):
        for g in k2_dma(p, 34, 32):
            for x in g: a(x)
        a(f"s_add_u32 s32, s32, s33\ns_add_u32 s34, s34, {STG}")
    a(f"""
    s_mul_i32 s34, s28, 9216
    v_lshrrev_b32 v3, 2, v2
    v_and_b32 v4, 3, v2
    v_lshlrev_b32 v4, 3, v4
    s_movk_i32 s30, 288
    v_mad_u32_u24 v3, v3, s30, v4
    v_add_u32 v{v2A+1}, {18432 + 256}, v3
    s_lshl_b32 s30, s28, 6
    s_add_u32 s30, s30, 18432
    v_add_u32 v{v2A}, s30, v3
    v_lshlrev_b32 v3, 4, v2
    s_lshl_b32 s30, s28, 11
    v_add_u32 v{v2B}, s30, v3
    s_cmp_eq_u32 s28, 0
    s_cselect_b32 s36, 3, 0
    s_cmp_lt_u32 s28, 2
    s_cselect_b32 s37, 5, 2
    s_cmp_lt_u32 s28, 3
    s_cselect_b32 s38, 7, 4
    s_lshl_b32 s30, s36, 10
    v_add_u32 v{v2B+1}, s30, v3
    s_lshl_b32 s30, s37, 10
    v_add_u32 v{v2B+2}, s30, v3
    s_lshl_b32 s30, s38, 10
    v_add_u32 v{v2B+3}, s30, v3
    s_mov_b32 s35, 0
    s_mov_b32 s39, 0
    s_mov_b32 s40, {STG}
    s_mov_b32 s41, {-3*STG}
    """)
    for r in range(84): a(f"v_mov_b32 v{v2ACC+r}, 0")
    a("s_waitcnt vmcnt(27)\ns_barrier")
    stamp(a, p, 1)
    for x in k2_reads(0, 0): a(x)
    a("L_k2loop:\ns_waitcnt lgkmcnt(0)")
    gaps = [[x] for x in k2_reads(1, 9216)]
    upd = [f"v_add_u32 v{r}, s42, v{r}" for r in range(v2B, v2B + 6)]
    gaps[0] += ["s_cmp_eq_u32 s39, 3", "s_cselect_b32 s42, s41, s40"]
    gaps[1] += ["s_cmp_ge_u32 s35, 12", f"s_cselect_b32 s43, {LDSOOB}, s34"]
    gaps[2] += [f"s_cselect_b32 s44, {OOB}, s32", "s_add_u32 s32, s32, s33"]
    gaps[3] += ["s_add_u32 s34, s34, s42", "s_add_u32 s39, s39, 1"]
    gaps[4] += ["s_and_b32 s39, s39, 3", "s_add_u32 s35, s35, 1"]
    for i in range(0, 6, 2): gaps.append(upd[i:i+2])
    weave(a, k2_mf(0), gaps)
    a("s_waitcnt lgkmcnt(0)\ns_waitcnt vmcnt(18)\ns_barrier")
    d = k2_dma(p, 43, 44); r = k2_reads(0, 0)
    gaps = []
    for i in range(9): gaps.append(d[i] + ([r[i]] if i < 3 else []))
    gaps = [d[0], [r[0], r[1]], d[1], [r[2]], d[2], [r[3], r[4]], d[3], [r[5]], d[4], [r[6], r[7]], d[5], [r[8]], d[6], [r[9]], d[7], [r[10]], d[8], [r[11], r[12]], [r[13]], [r[14]]]
    weave(a, k2_mf(1), gaps)
    a("s_cmp_lt_u32 s35, 16\ns_cbranch_scc1 L_k2loop")
    stamp(a, p, 2)
    a(f"""
    s_lshl_b32 s30, s6, 4
    s_add_u32 s30, s30, s29
    s_lshl_b32 s30, s30, 2
    s_add_u32 s30, s30, s4
    s_mul_i32 s30, s30, {PBLK}
    s_add_u32 s8, s82, {P_OFF}
    s_addc_u32 s9, s83, 0
    s_mov_b32 s10, {256*PBLK}
    s_mul_i32 s31, s28, 9216
    s_add_u32 s31, s31, s30
    v_lshlrev_b32 v3, 4, v2
    v_lshlrev_b32 v4, 3, v2
    s_lshl_b32 s33, s28, 1
    """)
    qs = ["s33", "s33", "s33", "s36", "s36", "s37", "s37", "s38", "s38"]
    qo = [0, 1, 2, 0, 1, 0, 1, 0, 1]
    for u in range(9):
        d = 8 + 4 * (u & 3)
        A0, B0 = acc2(0, u), acc2(1, u)
        a(f"v_cvt_pk_bf16_f32 v{d}, v{A0}, v{A0+1}\nv_cvt_pk_bf16_f32 v{d+1}, v{A0+2}, v{A0+3}\nv_cvt_pk_bf16_f32 v{d+2}, v{B0}, v{B0+1}\nv_cvt_pk_bf16_f32 v{d+3}, v{B0+2}, v{B0+3}")
        a(f"s_lshl_b32 s32, {qs[u]}, 10\ns_add_u32 s32, s32, s31")
        a(f"buffer_store_dwordx4 {vr(d)}, v3, s[8:11], s32 offen offset:{1024*qo[u]} {p.pfl}")
    a(f"s_lshl_b32 s32, s33, 9\ns_add_u32 s32, s32, s30\ns_add_u32 s32, s32, 36864")
    for u in range(3):
        d = 24 + 2 * u
        A0 = acc2(2, u)
        a(f"v_cvt_pk_bf16_f32 v{d}, v{A0}, v{A0+1}\nv_cvt_pk_bf16_f32 v{d+1}, v{A0+2}, v{A0+3}")
        a(f"buffer_store_dwordx2 {vr(d, 2)}, v4, s[8:11], s32 offen offset:{512*u} {p.pfl}")
    if p.stamps:
        a("s_waitcnt vmcnt(0)")
        stamp(a, p, 3)
        stamp_store(a, p, 4, 16, 5)
    a("L_k2end:\ns_endpgm")
    return a.text()

def k3(p):
    a = A()
    a("s_cmp_ge_u32 s2, 256\ns_cbranch_scc1 L_k3end")
    stamp(a, p, 0)
    a(f"""
    s_load_dwordx2 s[12:13], s[0:1], 80
    s_load_dwordx2 s[82:83], s[0:1], 96
    v_lshrrev_b32 v1, 6, v0
    v_and_b32 v2, 63, v0
    v_readfirstlane_b32 s28, v1
    s_and_b32 s3, s2, 3
    s_lshr_b32 s4, s2, 2
    s_mul_i32 s30, s4, {PBLK}
    s_mul_i32 s31, s3, 9216
    s_add_u32 s31, s31, s30
    s_lshl_b32 s32, s28, 10
    s_add_u32 s31, s31, s32
    s_lshl_b32 s32, s28, 9
    s_add_u32 s30, s30, s32
    s_add_u32 s30, s30, 36864
    v_lshlrev_b32 v3, 4, v2
    v_lshlrev_b32 v4, 3, v2
    s_lshr_b32 s33, s28, 1
    s_min_u32 s33, s33, 3
    s_cmp_eq_u32 s33, s3
    s_cselect_b32 s30, s30, {OOB}
    s_cselect_b32 s34, 0, {OOB}
    s_waitcnt lgkmcnt(0)
    s_add_u32 s8, s82, {P_OFF}
    s_addc_u32 s9, s83, 0
    s_mov_b32 s10, {256*PBLK}
    s_mov_b32 s11, 0x20000
    s_mov_b32 s14, {8*144*1152*2}
    s_mov_b32 s15, 0x20000
    """)
    for k in range(4):
        a(f"buffer_load_dwordx4 {vr(8+4*k)}, v3, s[8:11], s31 offen\nbuffer_load_dwordx2 {vr(24+2*k, 2)}, v4, s[8:11], s30 offen")
        a(f"s_add_u32 s31, s31, {64*PBLK}\ns_add_u32 s30, s30, {64*PBLK}")
    a(f"""
    s_lshr_b32 s5, s4, 2
    s_and_b32 s6, s4, 3
    s_and_b32 s7, s5, 7
    s_lshr_b32 s5, s5, 3
    s_mul_i32 s7, s7, 144
    s_lshl_b32 s32, s28, 4
    s_add_u32 s7, s7, s32
    s_mul_i32 s7, s7, 2304
    s_mul_i32 s5, s5, 1152
    s_mul_i32 s6, s6, 288
    s_add_u32 s7, s7, s5
    s_add_u32 s7, s7, s6
    v_and_b32 v5, 15, v2
    s_movk_i32 s32, 2304
    v_lshrrev_b32 v6, 4, v2
    v_lshlrev_b32 v6, 3, v6
    v_mad_u32_u24 v5, v5, s32, v6
    s_lshl_b32 s32, s3, 6
    s_add_u32 s35, s7, s32
    s_add_u32 s34, s34, s7
    s_waitcnt vmcnt(0)
    """)
    def red(src, stride, n, dst):
        for i in range(n):
            for k in range(4):
                r = src + stride * k + i
                if k == 0: a(f"v_lshlrev_b32 v40, 16, v{r}\nv_and_b32 v41, 0xffff0000, v{r}")
                else: a(f"v_lshlrev_b32 v42, 16, v{r}\nv_and_b32 v43, 0xffff0000, v{r}\nv_add_f32 v40, v40, v42\nv_add_f32 v41, v41, v43")
            a(f"v_cvt_pk_bf16_f32 v{dst+i}, v40, v41")
    red(8, 4, 4, 32); red(24, 2, 2, 36)
    a("buffer_store_dwordx2 v[32:33], v5, s[12:15], s35 offen\nbuffer_store_dwordx2 v[34:35], v5, s[12:15], s35 offen offset:32\nbuffer_store_dwordx2 v[36:37], v5, s[12:15], s34 offen offset:256")
    if p.stamps:
        a("s_waitcnt vmcnt(0)")
        stamp(a, p, 1)
        stamp_store(a, p, 2, 16, 9)
    a("L_k3end:\ns_endpgm")
    return a.text()

def build(p):
    hdr = open("cdna_kernels/" + KNAME + ".s.ref").read().split("; Override launch geometry")[0]
    t = hdr + header(["; @launch kernel=qk_attn_kernel grid=(256,1,1) block=(256,1,1) lds=163840",
                "; @launch kernel=oproj_kernel grid=(256,1,1) block=(256,1,1) lds=147456",
                "; @launch kernel=reduce_kernel grid=(256,1,1) block=(576,1,1) lds=0"])
    t += kstart("qk_attn_kernel") + k1(p) + kstart("oproj_kernel") + k2(p) + kstart("reduce_kernel") + k3(p)
    t += RODATA + kdesc("qk_attn_kernel", 512, 256) + ".p2align 6\n" + kdesc("oproj_kernel", 256, 160) + ".p2align 6\n" + kdesc("reduce_kernel", 48, 48)
    return t

if __name__ == "__main__":
    ap = argparse.ArgumentParser()
    ap.add_argument("out")
    ap.add_argument("opts", nargs="*")
    x = ap.parse_args()
    p = P()
    for o in x.opts:
        k, v = o.split("=")
        cur = getattr(p, k)
        setattr(p, k, (v == "1") if isinstance(cur, bool) else int(v) if isinstance(cur, int) else v.replace("+", " "))
    open(x.out, "w").write(build(p))
```

```python
import re

def regs(tok):
    tok = tok.strip()
    m = re.fullmatch(r"([sva])\[(\d+):(\d+)\]", tok)
    if m: return {f"{m.group(1)}{i}" for i in range(int(m.group(2)), int(m.group(3)) + 1)}
    if re.fullmatch(r"[sva]\d+", tok) or tok in ("m0", "vcc", "exec"): return {tok}
    return set()

NOSCC = ("s_mov_b32", "s_mul_i32", "s_movk_i32", "s_nop", "s_cselect_b32", "s_waitcnt")
def rw(text):
    op, _, rest = text.partition(" ")
    ops = [x.strip() for x in rest.split(",")]
    last = ops[-1].split()
    ops[-1] = last[0] if last else ""
    R, W = set(), set()
    if op == "s_waitcnt":
        R.add("vm"); W.add("vm")
    elif op.startswith("s_cmp"):
        for o in ops: R |= regs(o)
        W.add("scc")
    elif op.startswith("s_"):
        W |= regs(ops[0])
        for o in ops[1:]: R |= regs(o)
        if op == "s_cselect_b32": R.add("scc")
        if op not in NOSCC: W.add("scc")
    elif op.startswith("buffer_load") and text.rstrip().endswith("lds"):
        for o in ops: R |= regs(o)
        R.add("m0"); R.add("vm"); W.add("vm")
    elif op.startswith("buffer_load"):
        W |= regs(ops[0])
        for o in ops[1:]: R |= regs(o)
        R.add("vm"); W.add("vm")
    elif op.startswith("buffer_store"):
        for o in ops: R |= regs(o)
        R.add("vm"); W.add("vm")
    elif op.startswith("ds_read"):
        W |= regs(ops[0]); R |= regs(ops[1])
    elif op.startswith("ds_write"):
        for o in ops: R |= regs(o)
    elif op.startswith("v_"):
        W |= regs(ops[0])
        for o in ops[1:]: R |= regs(o)
    else:
        raise ValueError(text)
    return R, W

def kind(text):
    if text.startswith("s_"): return "S"
    if text.startswith("ds_"): return "L"
    if text.startswith("buffer_"): return "M"
    if text.startswith("v_exp") or text.startswith("v_rcp"): return "T"
    return "V"

class It:
    def __init__(self, text, lo=0, hi=None):
        self.t = text.strip(); self.lo = lo; self.hi = hi
        self.k = kind(self.t); self.R, self.W = rw(self.t); self.deps = []; self.done = None

def cost(g):
    t = 4; prevV = False; prev = None
    for i, k in enumerate(g):
        if k != "S": t = max(t, 8)
        if k in "LM" and prevV: t += 8
        if k == "M" and prev == "S": t += 4
        if k == "L" and prev == "L" and g[0] == "L": t += 4
        t += 8 if k == "T" else 4
        prevV = prevV or k in "VT"; prev = k
    return max(0, t - 16)

def order(items):
    return items

def schedule(n, fixed, flo):
    for j, b in enumerate(flo):
        for a in flo[:j]:
            if (a.W & b.R) or (a.W & b.W) or (a.R & b.W): b.deps.append(a)
    gaps = []; over = 0
    pend = list(flo)
    for i in range(n):
        fx = list(fixed[i]) if i < len(fixed) else []
        head, mem, val, tail = [], [], [], []
        def seq(): return head + mem + fx_items + val + tail
        fx_items = [It(x) for x in fx]
        base = cost([x.k for x in seq()])
        cur = []
        progress = True
        while progress:
            progress = False
            for it in pend:
                if it.lo > i: continue
                ok = True
                for d in it.deps:
                    if d.done is None: ok = False; break
                if not ok: continue
                same = [d for d in it.deps if d.done == i]
                if it.k == "S":
                    if not head and not same: dst = head
                    else: dst = tail
                elif it.k in "LM":
                    if any(d in tail or d in val for d in same): continue
                    if it.k == "M" and any("m0" in d.W for d in same): continue
                    dst = mem
                else:
                    if any(d in tail for d in same): continue
                    dst = val
                if dst is head and any((it.W & x.R) or (it.W & x.W) or (it.R & x.W) for x in mem + val + tail): dst = tail
                if dst is mem and any((it.W & x.R) or (it.W & x.W) or (it.R & x.W) for x in val + tail): continue
                if dst is val and any((it.W & x.R) or (it.W & x.W) or (it.R & x.W) for x in tail): continue
                dst.append(it)
                pad = None
                ks = [x.k for x in seq()]
                c = cost(ks)
                if c > base and not head and len(mem) == 2 and ks[0] == "L":
                    pad = It("s_nop 0"); head.append(pad); c = cost([x.k for x in seq()])
                forced = it.hi is not None and i >= it.hi
                if c > base and not forced:
                    dst.remove(it)
                    if pad: head.remove(pad)
                    continue
                base = c
                it.done = i; pend.remove(it); progress = True
                break
        over += base
        gaps.append([x.t for x in seq()])
    assert not pend, [x.t for x in pend]
    return gaps, over
```

```python
import sys, argparse
sys.path.insert(0, "tools")
from asmlib import *
sys.path.insert(0, 'gen')
from sched import It, schedule
VERB = False

class P:
    stamps = False
    cyc = False
    xfl = ""; wfl = ""; kvfl = "nt"
    ofl = "sc1"; olfl = "sc1"; wofl = ""; twfl = ""; pfl = "sc1"; plfl = "sc1"; outfl = ""
    s0 = 4; ppe = 2; stag = 0
    rot = True; krot = True
    kvd = 4
    twpos = 12
    fb = 1
    sh = 3
    qb = 8; qr = 4; vlo = 6
    touch_code = True
    force = False
    kvsame = False
    lim = 0
    notouch = False
    limg = 2
    twq = -1
    twstag = 0
    pw = -1

MF = "v_mfma_f32_16x16x32_bf16"
OOB = 0x40000000
LDSOOB = 0x30000
STAMPOFF = 200 << 20
O_BYTES = 16 * 32 * 4 * 9216
P_OFF = 32 << 20
F_OFF = 48 << 20
PBLK = 41472
STG = 36864
LFLAG = 163836
SPIN = 1 << 18

def vr(b, n=4): return f"v[{b}:{b+n-1}]"
def ar(b, n=4): return f"a[{b}:{b+n-1}]"
def weave(a, mfmas, gaps):
    assert len(gaps) <= len(mfmas)
    for i, m in enumerate(mfmas):
        a(m)
        if i < len(gaps):
            for x in gaps[i]: a(x)
def emit(a, gs, nop=True):
    for g in gs:
        for x in g: a(x)
        if nop: a("s_nop 0")
NST = 9
def stamp(a, p, idx):
    if p.stamps: a(f"{'s_memtime' if p.cyc else 's_memrealtime'} s[{84+2*idx}:{85+2*idx}]")
def stamp_store(a, p):
    if not p.stamps: return
    a("s_waitcnt lgkmcnt(0)")
    a(f"s_mul_i32 s80, s2, 128\ns_add_u32 s82, s82, s80\ns_addc_u32 s83, s83, 0\ns_add_u32 s82, s82, {STAMPOFF}\ns_addc_u32 s83, s83, 0")
    a("v_mov_b32 v1, 0\nv_cmp_eq_u32 vcc, 0, v0\ns_and_saveexec_b64 s[80:81], vcc")
    for j in range(NST):
        a(f"v_mov_b32 v2, s{84+2*j}\nv_mov_b32 v3, s{85+2*j}\nglobal_store_dwordx2 v1, v[2:3], s[82:83] offset:{8*j}\ns_nop 1")
    a("s_mov_b64 exec, s[80:81]")

vACC = 96; vS = (80, 88); vL = 72; vVA = 64; vKA = 60; vXA = 58
vE, vO_, vWE, vWO, vX, vST, vTCH, vDUM, vOW, vFL = 56, 57, 54, 55, 53, 52, 51, 50, 49, 48
v2VO, v2B, v2A = 32, 41, 45
vNM = 8
aQ = 0; aK = (80, 112); aV = (144, 176); aXB = (80, 100); aWA = (144, 176)
a2A = (80, 92); a2B = (104, 140)
v2ACC = 96
sX, sW, sK, sV, sO, sKV, sWO = 8, 12, 16, 20, 24, 68, 56
sWAVE, sHL, sROT, sNONCE = 28, 29, 30, 31
sWS, sWM, sXS, sXM, sWD, sXD, sT, sT2, sIT = 32, 33, 34, 35, 36, 37, 38, 39, 40
sKN, sKM, sKS, sRB, sHI, sWSL, sXB = 41, 42, 43, 44, 45, 46, 47
sC, sSC, sOB, sNEG, sKROT, sS0, sWEND, sTW = 48, 49, 50, 51, 52, 53, 54, 55
sWS2, sXM0, sXS0 = 72, 74, 75
gSRC, gSTR, gDST, gST, gQ1, gQ2, gQ3, gRI = 60, 61, 62, 63, 64, 65, 66, 67
gC1, gC2, gDL, gM0, gSO, gDL2, gLO, gHIW = 72, 73, 74, 75, 76, 77, 78, 79
gLOW, gLIM, gREDO = 32, 33, 34
XBUF = 65536
WQB = XBUF + 2 * 18432
def acc(t, dt): return vACC + (t * 8 + dt) * 4
def acc2(nt, u): return v2ACC + 4 * (nt * 9 + u)

def flat_dma(groups, pos):
    out = []
    for g, q in zip(groups, pos):
        for x in g:
            if x.startswith("s_nop"): continue
            out.append(It(x, q, q + 1) if x.startswith("buffer_") else It(x))
    return out
def read_pos(nrd, start, end, taken):
    free = [i for i in range(start, end) if i not in taken]
    dbl = max(0, nrd - len(free))
    pos = []
    for i in free:
        pos.append(i)
        if dbl > 0: pos.append(i); dbl -= 1
    assert len(pos) >= nrd
    return pos[:nrd]

def w_dma(p):
    w = lambda v, so, o: f"buffer_load_dwordx4 v{v}, s[{sW}:{sW+3}], s{so} offen offset:{o} {p.wfl} lds"
    return [[f"s_mov_b32 m0, s{sWM}", "s_nop 0", w(vWE, sWS, 0)], [w(vWO, sWS, 1024)], [w(vWE, sWS2, 2048)], [w(vWO, sWS2, 3072)]]
def x_dma(p, nX):
    out = []
    for m in range(nX):
        g = [f"s_mov_b32 m0, s{sXM}", "s_nop 0"] if m == 0 else []
        g.append(f"buffer_load_dwordx4 v{vX}, s[{sX}:{sX+3}], s{sXS} offen offset:{2048*(m & 1)} {p.xfl} lds")
        if m + 1 < nX:
            g.append(f"s_add_u32 s{sXS}, s{sXS}, {16384 if m % 2 == 0 else 20480}")
            if m % 2 == 1: g.append("s_add_u32 m0, m0, 4096")
        out.append(g)
    return out
def kv_dma(p):
    out = []
    for j in range(2 * p.ppe):
        g = [f"s_mov_b32 m0, s{sKM}", "s_nop 0"] if j == 0 else []
        if j == 4: g = [f"s_add_u32 m0, s{sKM}, 4096", f"s_add_u32 s{sKS}, s{sKS}, 4096"]
        g.append(f"buffer_load_dwordx4 v{vE if j % 2 == 0 else vO_}, s[{sKV}:{sKV+3}], s{sKS} offen offset:{1024*(j % 4)} {p.kvfl} lds")
        out.append(g)
    return out
def kv_book(p):
    return [[f"s_ashr_i32 s{sKN}, s{sIT}, 1", f"s_sub_u32 s{sKN}, s{sKN}, s{sS0}", f"s_mul_i32 s{sKN}, s{sKN}, {p.ppe}"],
            [f"s_lshr_b32 s{sT}, s{sKN}, 2", f"s_add_u32 s{sKS}, s{sT}, s{sROT}", f"s_and_b32 s{sKS}, s{sKS}, 15"],
            [f"s_lshl_b32 s{sKS}, s{sKS}, 13", f"s_lshl_b32 s{sKM}, s{sT}, 14", f"s_and_b32 s{sT}, s{sKN}, 3"],
            [f"s_lshl_b32 s{sT}, s{sT}, 11", f"s_add_u32 s{sKS}, s{sKS}, s{sT}", f"s_add_u32 s{sKM}, s{sKM}, s{sT}"],
            [f"s_add_u32 s{sKM}, s{sKM}, s{sT2}"],
            [f"s_cmp_ge_u32 s{sKN}, 8", f"s_cselect_b32 s{sKM}, {LDSOOB}, s{sKM}", f"s_cselect_b32 s{sKS}, {OOB}, s{sKS}"]]
def x_book(p):
    return [[f"s_add_u32 s{sT}, s{sIT}, 3", f"s_lshr_b32 s{sT}, s{sT}, 1", f"s_add_u32 s{sXS}, s{sT}, s{sKROT}"],
            [f"s_sub_u32 s{sXM}, s{sXS}, 9", f"s_cselect_b32 s{sXS}, s{sXS}, s{sXM}", f"s_lshl_b32 s{sXS}, s{sXS}, 7"],
            [f"s_add_u32 s{sXS}, s{sXS}, s{sXS0}", f"s_and_b32 s{sT}, s{sT}, 1", f"s_mul_i32 s{sT}, s{sT}, 18432"],
            [f"s_add_u32 s{sXM}, s{sXM0}, s{sT}"],
            [f"s_cmp_ge_u32 s{sIT}, 15", f"s_cselect_b32 s{sXM}, {LDSOOB}, s{sXM}", f"s_cselect_b32 s{sXS}, {OOB}, s{sXS}"]]
def w_adv(p):
    return [f"s_add_u32 s{sWS}, s{sWS}, {32*8192}", f"s_cmp_ge_u32 s{sWS}, s{sWEND}", f"s_cselect_b32 s{sWS}, s78, s{sWS}"]
def q_reads(T, par, ks):
    rd = [f"ds_read_b128 {ar(aXB[par] + 4*t)}, v{vXA + ks} offset:{2048*t}" for t in range(T)]
    for dt in range(8):
        rd.append(f"ds_read_b64_tr_b16 {ar(aWA[par] + 4*dt, 2)}, v{vVA+dt}")
        rd.append(f"ds_read_b64_tr_b16 {ar(aWA[par] + 4*dt + 2, 2)}, v{vVA+dt} offset:2048")
    return rd
def qstep(a, p, T, par):
    A_, B_ = aWA[par], aXB[par]
    e = 2 * p.ppe
    mf = [f"{MF} {vr(acc(t, dt))}, {ar(A_ + 4*dt)}, {ar(B_ + 4*t)}, {vr(acc(t, dt))}" for dt in range(8) for t in range(T)]
    a(f"s_waitcnt lgkmcnt(0)\ns_waitcnt vmcnt({e + 4 + (T if par == 0 else 0)})\ns_barrier")
    upd = [f"v_add_u32 v{vVA+d}, s{sWD}, v{vVA+d}" for d in range(8)]
    if par == 0: upd = [f"v_add_u32 v{vXA}, s{sXD}, v{vXA}", f"v_add_u32 v{vXA+1}, s{sXD}, v{vXA+1}"] + upd
    rd = q_reads(T, par ^ 1, par ^ 1)
    dma = (x_dma(p, T) + w_dma(p)) if par == 1 else (w_dma(p) + kv_dma(p))
    book = [[f"s_add_u32 s{sWSL}, s{sWSL}, 8192", f"s_cmp_eq_u32 s{sWSL}, 24576", f"s_cselect_b32 s{sWSL}, 0, s{sWSL}"],
            [f"s_cmp_eq_u32 s{sWSL}, 8192", f"s_cselect_b32 s{sWD}, s{sNEG}, s{sC}", f"s_add_u32 s{sIT}, s{sIT}, 1"],
            w_adv(p) + [f"s_add_u32 s{sWM}, s{sWSL}, s{sXB}"],
            [f"s_cmp_ge_u32 s{sIT}, 15", f"s_cselect_b32 s{sWM}, {LDSOOB}, s{sWM}", f"s_cselect_b32 s{sWS}, {OOB}, s{sWS}"],
            [f"s_add_u32 s{sWS2}, s{sWS}, {4*8192 - 2048}"] + ([f"s_sub_u32 s{sXD}, 0, s{sXD}"] if par == 0 else [])]
    book += kv_book(p) if par == 1 else x_book(p)
    n = len(mf)
    pos = [1 + i * (n - p.qb) // len(dma) for i in range(len(dma))]
    rp = read_pos(len(rd), 0, n - p.qr, set(pos))
    flo = [It(x, q, q + 1) for x, q in zip(rd, rp)] + [It(x, p.vlo, n - 1) for x in upd] + flat_dma(dma, pos) + [It(x, 0, n - 1) for g in book for x in g]
    gaps, over = schedule(n, [], flo)
    if VERB: print(f"qstep T{T} par{par} over", over, file=sys.stderr)
    weave(a, mf, gaps)

def kv_tile_dma(p, sm, ss, parts=(0, 1, 2, 3)):
    out = []
    for half, (srd, lo) in enumerate(((sK, 0), (sK, 4096), (sV, 8192), (sV, 12288))):
        if half not in parts: continue
        so = ss if (half & 1) == 0 else sT
        for j in range(4):
            g = [f"s_add_u32 m0, s{sm}, {lo}", f"s_add_u32 s{sT}, s{ss}, 4096"] if j == 0 else []
            if p.lim and (j % p.limg == 0): g.append(f"s_waitcnt vmcnt({p.lim - p.limg})")
            g.append(f"buffer_load_dwordx4 v{vE if j % 2 == 0 else vO_}, s[{srd}:{srd+3}], s{so} offen offset:{1024*j} {p.kvfl} lds")
            out.append(g)
    return out
def frag_reads(par, off):
    rd = [f"ds_read_b128 {ar(aK[par] + (kt*4+s)*4)}, v{vKA+s} offset:{off + 4096*kt}" for kt in range(2) for s in range(4)]
    for dt in range(8):
        rd.append(f"ds_read_b64_tr_b16 {ar(aV[par] + 4*dt, 2)}, v{vVA+dt} offset:{off}")
        rd.append(f"ds_read_b64_tr_b16 {ar(aV[par] + 4*dt + 2, 2)}, v{vVA+dt} offset:{off + 4096}")
    return rd
def soft2(S, t):
    ad = [f"v_add_f32 v{vL+t}, v{vL+t}, v{S+j}" for j in range(8)]
    cv = [f"v_cvt_pk_bf16_f32 v{S+j}, v{S+2*j}, v{S+2*j+1}" for j in range(4)]
    return ad[:4] + cv + ad[4:]
def qk(S, Kc, t, c0):
    return [f"{MF} {vr(S + 4*kt)}, {ar(Kc + (kt*4+s)*4)}, {ar(aQ + (t*4+s)*4)}, {c0 if s == 0 else vr(S + 4*kt)}" for kt in range(2) for s in range(4)]
def pv(S, Vc, t):
    return [f"{MF} {vr(acc(t, dt))}, {ar(Vc + 4*dt)}, {vr(S)}, {vr(acc(t, dt))}" for dt in range(8)]
def block(a, p, T, par, loader):
    mf, fixed = [], []
    for t in range(T):
        n = par * T + t
        S, Sp = vS[n & 1], vS[(n & 1) ^ 1]
        tp = (t - 1) % T
        mf += qk(S, aK[par], t, "0") + pv(Sp, aV[par ^ 1] if t == 0 else aV[par], tp)
        v2 = soft2(Sp, tp)
        fixed += [v2[0:1], v2[1:3], v2[3:4], v2[4:6], v2[6:7], v2[7:9], v2[9:10], v2[10:12]]
        fixed += [[f"v_exp_f32 v{S+j}, v{S+j}"] for j in range(8)]
    n = 16 * T
    free = [16*t + j for t in range(T) for j in (0, 2, 4, 6)]
    rd = frag_reads(par ^ 1, 16384 * (par ^ 1))
    dma = kv_tile_dma(p, sKM, sKS) if loader else []
    tog = [f"v_xor_b32 v{r}, 0x10000, v{r}" for r in list(range(vKA, vKA+4)) + list(range(vVA, vVA+8))] if par == 0 else []
    lim = n - 12
    slots = [g for g in free if g < lim]
    extra = [g for g in range(lim) if g not in slots]
    need = len(rd) + len(dma) - len(slots)
    if need > 0: slots = sorted(slots + [extra[(2*i + 1) * len(extra) // (2*need)] for i in range(need)])
    dpos = [slots[(i * len(slots)) // len(dma)] for i in range(len(dma))] if dma else []
    rpos = [g for g in slots if g not in dpos]
    rpos = [max(g, 16) if i >= 8 else g for i, g in enumerate(rpos[:len(rd)])]
    flo = [It(x, q, q + 1) for x, q in zip(rd, rpos)] + flat_dma(dma, dpos) + [It(x, 0, n - 1 - (len(tog) - 1 - i)) for i, x in enumerate(tog)]
    gaps, over = schedule(n, fixed, flo)
    if VERB: print(f"block T{T} par{par} over", over, file=sys.stderr)
    weave(a, mf, gaps)

def wo_touch(a, p, t1=sT, t2=sT2):
    if p.notouch: return
    a(f"""s_add_u32 s{t2}, s{sTW}, 8192
    s_add_u32 s{t1}, s{sTW}, 10240
    buffer_load_dword v{vDUM}, v{vTCH}, s[{sWO}:{sWO+3}], s{sTW} offen {p.twfl}
    buffer_load_dword v{vDUM}, v{vTCH}, s[{sWO}:{sWO+3}], s{t2} offen {p.twfl}
    buffer_load_dword v{vDUM}, v{vTCH}, s[{sWO}:{sWO+3}], s{t1} offen {p.twfl}""")

def g_dma(fl):
    out = []
    for j in range(9):
        g = [f"s_add_u32 m0, s{gM0}, {1024*j}", "s_nop 0"] if j % 4 == 0 else []
        g.append(f"buffer_load_dwordx4 v{v2VO+j}, s[{sX}:{sX+3}], s{gSO} offen offset:{1024*(j % 4)} {fl} lds")
        out.append(g)
    return out
def g_stage_now(a, fl, slot, back):
    a(f"s_add_u32 s{gM0}, s{gDL2}, {slot*STG}")
    emit(a, g_dma(fl), nop=False)
def g_src_adv(r):
    return [f"s_add_u32 s{r}, s{r}, s{gSTR}", f"s_cmp_ge_u32 s{r}, s{gHIW}", f"s_cselect_b32 s{r}, s{gLO}, s{r}"]

def lanesum(a, T, op):
    for sw in ("v_permlane32_swap_b32", "v_permlane16_swap_b32"):
        for t in range(T): a(f"v_mov_b32 v{1+t}, v{vL+t}")
        a("s_nop 1")
        for t in range(T): a(f"{sw} v{1+t}, v{vL+t}")
        a("s_nop 1")
        for t in range(T): a(f"{op} v{vL+t}, v{vL+t}, v{1+t}")

def wave_front(a, p, T, loader, tag):
    e = 2 * p.ppe
    a(f"s_waitcnt vmcnt({4 + e + T + 4})\ns_waitcnt lgkmcnt(0)\ns_barrier")
    stamp(a, p, 1)
    for x in q_reads(T, 0, 0): a(x)
    for dt in range(8): a(f"v_add_u32 v{vVA+dt}, s{sWD}, v{vVA+dt}")
    a(f"L_q{tag}:")
    if p.twq >= 0 and not loader:
        a(f"s_cmp_eq_u32 s{sIT}, s79\ns_cbranch_scc1 L_tq\nL_tqb:")
    qstep(a, p, T, 0)
    qstep(a, p, T, 1)
    a(f"s_cmp_lt_u32 s{sIT}, 18\ns_cbranch_scc1 L_q{tag}")
    stamp(a, p, 2)
    a(f"""v_and_b32 v1, 63, v0
    v_lshrrev_b32 v2, 4, v1
    v_bfe_u32 v3, v1, 2, 2
    v_lshl_add_u32 v2, v2, 2, v3
    v_and_b32 v3, 7, v2
    v_lshlrev_b32 v3, 1, v3
    v_bfe_u32 v4, v1, 1, 1
    v_xor_b32 v3, v3, v4
    v_lshlrev_b32 v3, 4, v3
    v_and_b32 v4, 1, v1
    v_lshl_add_u32 v3, v4, 3, v3
    v_lshl_add_u32 v3, v2, 8, v3
    s_add_u32 s{sT}, s{sRB}, 8192
    v_add_u32 v{vVA}, s{sT}, v3""")
    for dt in range(1, 8): a(f"v_xor_b32 v{vVA+dt}, {32*dt}, v{vVA}")
    dma = []
    if loader:
        for n in range(2, p.kvd):
            dma.append([f"s_add_u32 s{sKS}, s{sROT}, {n}", f"s_and_b32 s{sKS}, s{sKS}, 15", f"s_lshl_b32 s{sKS}, s{sKS}, 13",
                        f"s_add_u32 s{sKM}, s{sRB}, {65536 + 16384*(n & 1)}"])
            dma += kv_tile_dma(p, sKM, sKS)
    di = 0
    for t in range(T):
        for s in range(4):
            if (t, s) == (T - 2, 0):
                assert di == len(dma)
                a(f"s_waitcnt lgkmcnt(0)\ns_waitcnt vmcnt({16*(p.kvd - 2) if loader else 0})\ns_barrier")
                for x in frag_reads(0, 0): a(x)
            for _ in range(5):
                if di < len(dma):
                    for x in dma[di]: a(x)
                    di += 1
            A0, B0 = acc(t, 2*s), acc(t, 2*s+1)
            for r in range(0, 8, 2): a(f"v_pk_mul_f32 {vr(A0+r, 2)}, {vr(A0+r, 2)}, s[{sSC-1}:{sSC}] op_sel:[0,1] op_sel_hi:[1,1]")
            a(f"v_cvt_pk_bf16_f32 v4, v{A0}, v{A0+1}\nv_cvt_pk_bf16_f32 v5, v{A0+2}, v{A0+3}\nv_cvt_pk_bf16_f32 v6, v{B0}, v{B0+1}\nv_cvt_pk_bf16_f32 v7, v{B0+2}, v{B0+3}")
            for r in range(0, 4, 2): a(f"v_pk_mov_b32 {vr(A0+r, 2)}, 0, 0")
            a("v_permlane32_swap_b32 v4, v6\nv_permlane32_swap_b32 v5, v7")
            for r in range(0, 4, 2): a(f"v_pk_mov_b32 {vr(B0+r, 2)}, 0, 0")
            a("v_permlane16_swap_b32 v4, v6\nv_permlane16_swap_b32 v5, v7\ns_nop 0")
            q = aQ + (t*4+s)*4
            for r in (0, 2, 1, 3): a(f"v_accvgpr_write_b32 a{q+r}, v{4+r}")
    for t in range(T): a(f"v_mov_b32 v{vL+t}, 0")
    for j in range(8): a(f"v_mov_b32 v{vS[1]+j}, 0")
    if loader:
        a(f"""s_mov_b32 s{sX}, s{sWO}
        s_mov_b32 s{sX+1}, s{sWO+1}
        s_mov_b32 s{sX+2}, s{sWO+2}
        s_and_b32 s{gLO}, s3, 3
        s_lshl_b32 s{gLO}, s{gLO}, 10
        s_lshl_b32 s{sT}, s{sHL}, 5
        s_add_u32 s{gLO}, s{gLO}, s{sT}
        s_mul_i32 s{gLO}, s{gLO}, 1152
        s_mul_i32 s{sT}, s4, 288
        s_add_u32 s{gLO}, s{gLO}, s{sT}
        s_mov_b32 s{gSTR}, 73728
        s_mul_i32 s{gDL2}, s{sHL}, 9216
        s_add_u32 s{gDL2}, s{gDL2}, 18432
        s_mov_b32 s{gLOW}, 0""")
    else:
        a(f"""s_mov_b32 s{sX}, s{sO}
        s_mov_b32 s{sX+1}, s{sO+1}
        s_mov_b32 s{sX+2}, s{sO+2}
        s_lshl_b32 s{sT}, s4, 1
        s_add_u32 s{sT}, s{sT}, s{sHL}
        s_mul_i32 s{sT}, s{sT}, {4*9216}
        s_sub_u32 s{gLO}, s{sOB}, s{sT}
        s_mul_i32 s{gDL2}, s{sHL}, 9216
        s_add_u32 s{gLO}, s{gLO}, s{gDL2}
        s_movk_i32 s{gSTR}, 18432
        s_mov_b32 s{gLOW}, {p.sh}""")
    a(f"""s_sub_u32 s{gLIM}, 12, s{gLOW}
    s_lshl_b32 s{gHIW}, s{gSTR}, 4
    s_add_u32 s{gHIW}, s{gHIW}, s{gLO}
    s_mul_i32 s{gSRC}, s4, s{gSTR}
    s_lshl_b32 s{gSRC}, s{gSRC}, 2
    s_add_u32 s{gSRC}, s{gSRC}, s{gLO}
    s_mov_b32 s{gREDO}, 0
    s_mov_b32 s{sNEG}, {(127+40) << 23:#x}
    s_mov_b32 s{sIT}, 0
    s_mov_b32 s{sHI}, 0""")
    if tag == "b":
        a(f"v_mov_b32 v1, 0\nglobal_load_dword v{vFL}, v1, s[6:7] sc1")
    out = A()
    if p.twq >= 0 and not loader:
        out("L_tq:")
        wo_touch(out, p, 80, 81)
        out("s_branch L_tqb")
    a(f"L_a{tag}:")
    for par in range(2):
        if loader:
            a(f"""s_add_u32 s{sKS}, s{sIT}, s{sROT}
            s_add_u32 s{sKS}, s{sKS}, {p.kvd+par}
            s_and_b32 s{sKS}, s{sKS}, 15
            s_lshl_b32 s{sKS}, s{sKS}, 13
            s_xor_b32 s{sKM}, s{sHI}, {0x10000 * (((p.kvd + par) >> 1) & 1)}
            s_add_u32 s{sKM}, s{sKM}, s{sRB}
            s_add_u32 s{sKM}, s{sKM}, {16384*((p.kvd + par) & 1)}
            s_cmp_ge_u32 s{sIT}, {16 - p.kvd - par}
            s_cselect_b32 s{sKM}, {LDSOOB}, s{sKM}
            s_cselect_b32 s{sKS}, {OOB}, s{sKS}""")
        a("s_waitcnt lgkmcnt(0)")
        if loader: a(f"s_waitcnt vmcnt({16*(p.kvd - 2)})")
        a("s_barrier")
        if loader:
            a(f"s_cmp_ge_u32 s{sIT}, {14 - 2*par}\ns_cbranch_scc1 L_w{par}\nL_wb{par}:")
            out(f"L_w{par}:\ns_mov_b32 s{gSO}, s{gSRC}")
            if par == 0:
                for x in g_src_adv(gSO): out(x)
                g_stage_now(out, p.wofl, 1, 0)
            else:
                out(f"s_cmp_eq_u32 s{sIT}, 12\ns_cbranch_scc0 L_w1b")
                g_stage_now(out, p.wofl, 0, 0)
                out("s_branch L_wb1\nL_w1b:")
                for x in g_src_adv(gSO) + g_src_adv(gSO): out(x)
                g_stage_now(out, p.wofl, 2, 0)
                for x in g_src_adv(gSO): out(x)
                g_stage_now(out, p.wofl, 3, 0)
            out(f"s_branch L_wb{par}")
        elif par == 0 and p.twpos < 15:
            a(f"s_cmp_eq_u32 s{sIT}, {p.twpos}\ns_cbranch_scc0 L_nt{tag}")
            wo_touch(a, p)
            a(f"L_nt{tag}:")
        block(a, p, T, par, loader)
    a(f"s_xor_b32 s{sHI}, s{sHI}, 0x10000\ns_add_u32 s{sIT}, s{sIT}, 2\ns_cmp_lt_u32 s{sIT}, 16\ns_cbranch_scc1 L_a{tag}")
    S = vS[(2*T - 1) & 1]
    a("s_nop 0")
    for x in soft2(S, T-1): a(x)
    for x in pv(S, aV[1], T-1): a(x)
    stamp(a, p, 3)
    a(f"L_e{tag}:")
    if not loader and p.twpos == 16: wo_touch(a, p)
    lanesum(a, T, "v_add_f32")
    a(f"v_mov_b32 v6, v{vL}\nv_mov_b32 v7, v{vL}")
    for t in range(1, T): a(f"v_min_u32 v6, v6, v{vL+t}\nv_max_u32 v7, v7, v{vL+t}")
    a(f"""v_cmp_gt_u32 vcc, {(127-20) << 23:#x}, v6
    v_cmp_lt_u32 s[80:81], s{sNEG}, v7
    s_nop 1
    s_or_b64 vcc, vcc, s[80:81]
    {'s_mov_b64 vcc, -1' if p.force else ''}
    s_cbranch_vccz L_ok{tag}
    v_mov_b32 v6, {LFLAG}
    v_mov_b32 v7, 1
    ds_write_b32 v6, v7
    L_ok{tag}:""")
    for t in range(T): a(f"v_rcp_f32 v{vL+t}, v{vL+t}")
    a("s_nop 0")
    buf = 0
    for t in range(T):
        for s in range(4):
            A0 = acc(t, 2*s)
            rp = (vL + t) & ~1
            sel = (vL + t) & 1
            for r in range(0, 8, 2): a(f"v_pk_mul_f32 {vr(A0+r, 2)}, {vr(A0+r, 2)}, {vr(rp, 2)} op_sel:[0,{sel}] op_sel_hi:[1,{sel}]")
            d = 16 + 4 * (buf & 3); buf += 1
            for r in range(4): a(f"v_cvt_pk_bf16_f32 v{d+r}, v{A0+2*r}, v{A0+2*r+1}")
            a(f"s_add_u32 s{sT}, s{sOB}, {s*9216 + (4096 if t == 4 else 0)}")
            a(f"ds_write_b128 v{vOW}, {vr(d)} offset:{(s >> 1)*STG + (s & 1)*9216 + 1024*t}")
            a(f"buffer_store_dwordx4 {vr(d)}, v{vST}, s[{sO}:{sO+3}], s{sT} offen offset:{1024*(t & 3)} {p.ofl}")
            for r in range(0, 8, 2):
                if A0 + r < v2ACC + 84: a(f"v_pk_mov_b32 {vr(A0+r, 2)}, 0, 0")
    if not loader and p.twpos == 17: wo_touch(a, p)
    a(f"s_waitcnt lgkmcnt(0)")
    if loader: a(f"s_waitcnt vmcnt({4*T})")
    a("s_branch L_gemm")
    a.l += out.l
    a(f"L_redo{tag}:")
    a(f"s_waitcnt vmcnt(0) lgkmcnt(0)\ns_barrier\nv_mov_b32 v6, {LFLAG}\nv_mov_b32 v7, 0\nds_write_b32 v6, v7")
    for r in list(range(vKA, vKA+4)) + list(range(vVA, vVA+8)): a(f"v_and_b32 v{r}, 0xffff, v{r}")
    for t in range(T): a(f"v_mov_b32 v{vL+t}, 0xff800000")
    for ps in range(2):
        a(f"s_mov_b32 s{sKS}, 0\nL_r{ps}{tag}:")
        if loader:
            emit(a, kv_tile_dma(p, sRB, sKS, (0, 1) if ps == 0 else (0, 1, 2, 3)), nop=False)
        a("s_waitcnt vmcnt(0)\ns_barrier")
        for x in frag_reads(0, 0)[:8 if ps == 0 else 24]: a(x)
        a("s_waitcnt lgkmcnt(0)\ns_barrier")
        for t in range(T):
            S = vS[0]
            for x in qk(S, aK[0], t, "0" if ps == 0 else vr(vNM + 4*t)): a(x)
            a("s_nop 7")
            if ps == 0:
                for j in range(0, 8, 2): a(f"v_max3_f32 v{vL+t}, v{vL+t}, v{S+j}, v{S+j+1}")
            else:
                for j in range(8): a(f"v_exp_f32 v{S+j}, v{S+j}")
                for x in soft2(S, t) + pv(S, aV[0], t): a(x)
        a(f"s_add_u32 s{sKS}, s{sKS}, 8192\ns_cmp_lt_u32 s{sKS}, 131072\ns_cbranch_scc1 L_r{ps}{tag}")
        if ps == 0:
            lanesum(a, T, "v_max_f32")
            for t in range(T):
                for r in range(4): a(f"v_sub_f32 v{vNM + 4*t + r}, 0, v{vL+t}")
                a(f"v_mov_b32 v{vL+t}, 0")
            for r in range(32 * T): a(f"v_mov_b32 v{vACC+r}, 0")
    a("s_barrier")
    if loader:
        a(f"s_mov_b32 s{gSO}, s{gSRC}")
        for st in range(4):
            g_stage_now(a, p.wofl, st, 0)
            for x in g_src_adv(gSO): a(x)
    a(f"s_mov_b32 s{gREDO}, 1\ns_branch L_e{tag}")

def g_reads(par, off):
    A_, B_ = a2A[par], a2B[par]
    rd = []
    for nt in range(3):
        reg, o = (v2A, 32 * nt) if nt < 2 else (v2A + 1, 0)
        rd.append(f"ds_read_b64_tr_b16 {ar(A_ + 4*nt, 2)}, v{reg} offset:{off + o}")
        rd.append(f"ds_read_b64_tr_b16 {ar(A_ + 4*nt + 2, 2)}, v{reg} offset:{off + o + 4608}")
    rb = []
    for u in range(9):
        reg, o = (v2B, 1024 * u) if u < 3 else (v2B + 1 + (u - 3) // 2, 1024 * ((u - 3) & 1))
        rb.append(f"ds_read_b128 {ar(B_ + 4*u)}, v{reg} offset:{off + o}")
    return rd[:2] + rb[:1] + rd[2:4] + rb[1:2] + rd[4:] + rb[2:]
def g_mf(par):
    return [f"{MF} {vr(acc2(nt, u))}, {ar(a2A[par] + 4*nt)}, {ar(a2B[par] + 4*u)}, {vr(acc2(nt, u))}" for u in range(9) for nt in range(3 if u < 3 else 2)]

def poll(a, tag, step, mask, base):
    a(f"""s_and_b32 s{sT}, s2, {mask}
    v_and_b32 v1, 3, v0
    v_mul_u32_u24 v1, {step}, v1
    v_add_lshl_u32 v1, v1, s{sT}, 7
    v_add_u32 v1, {base}, v1
    s_mov_b32 s{sT}, 0
    L_p{tag}:
    global_load_dword v2, v1, s[82:83] sc1
    s_add_u32 s{sT}, s{sT}, 1
    s_waitcnt vmcnt(0)
    v_cmp_ne_u32 vcc, s{sNONCE}, v2
    s_cmp_lt_u32 s{sT}, {SPIN}
    s_cbranch_vccz L_pd{tag}
    s_cbranch_scc1 L_p{tag}
    L_pd{tag}:""")
def post(a, base):
    a(f"""s_lshl_b32 s{sT}, s2, 7
    s_add_u32 s{sT}, s{sT}, {base}
    v_mov_b32 v1, s{sT}
    v_mov_b32 v2, s{sNONCE}
    s_mov_b64 exec, 1
    global_store_dword v1, v2, s[82:83] sc1
    s_mov_b64 exec, -1""")

def gemm_loop(a, out, p, role):
    fl = p.wofl if role == "w" else p.olfl
    a(f"L_g{role}:\ns_waitcnt lgkmcnt(0)")
    d = g_dma(fl); r = g_reads(1, 9216)
    upd = [f"v_add_u32 v{x}, s{gDL}, v{x}" for x in range(v2B, v2B + 6)]
    book0 = [f"s_cmp_eq_u32 s{gRI}, 3", f"s_cselect_b32 s{gDL}, s{gC2}, s{gC1}"]
    book1 = [f"s_sub_u32 s{sT}, s{gST}, s{gLOW}", f"s_cmp_ge_u32 s{sT}, s{gLIM}", f"s_cselect_b32 s{gM0}, {LDSOOB}, s{gDST}", f"s_cselect_b32 s{gSO}, {OOB}, s{gSRC}"] + g_src_adv(gSRC) + \
            [f"s_add_u32 s{gDST}, s{gDST}, s{gDL}", f"s_add_u32 s{gRI}, s{gRI}, 1", f"s_and_b32 s{gRI}, s{gRI}, 3"]
    pos = [1, 5, 9, 13]
    rp = read_pos(15, 0, 17, set(pos))
    flo = [It(x) for x in book0] + [It(x, q, q + 1) for x, q in zip(r, rp)] + flat_dma(d[5:], pos) + [It(x, 0, 20) for x in upd] + [It(x, 0, 20) for x in book1]
    gaps, over = schedule(21, [], flo)
    if VERB: print("gemm step0 over", over, file=sys.stderr)
    weave(a, g_mf(0), gaps)
    a(f"s_cmp_lt_u32 s{gST}, 4\ns_cbranch_scc1 L_h{role}\nL_hb{role}:")
    a(f"s_waitcnt lgkmcnt(0)\ns_waitcnt vmcnt(18)\ns_barrier\nL_hc{role}:")
    r = g_reads(0, 0)
    pos = [1, 5, 9, 13, 17]
    rp = read_pos(15, 0, 17, set(pos))
    gaps, over = schedule(21, [], [It(x, q, q + 1) for x, q in zip(r, rp)] + flat_dma(d[:5], pos) + [It(f"s_add_u32 s{gST}, s{gST}, 1", 3, 20), It(f"s_cmp_lt_u32 s{gST}, 16", 3, 20)])
    if VERB: print("gemm step1 over", over, file=sys.stderr)
    weave(a, g_mf(1), gaps)
    a(f"s_cbranch_scc1 L_g{role}")
    out(f"L_h{role}:")
    if role == "o":
        out(f"s_cmp_eq_u32 s{gST}, {p.sh}\ns_cbranch_scc0 L_h2o")
        poll(out, "1", 8, 0xe7, F_OFF)
        stamp(out, p, 5)
        out(f"s_mov_b32 s{sKM}, s{gM0}\ns_mov_b32 s{sKS}, s{gSO}\ns_mul_i32 s{gSO}, s4, s{gSTR}\ns_lshl_b32 s{gSO}, s{gSO}, 2\ns_add_u32 s{gSO}, s{gSO}, s{gLO}")
        for _ in range(4):
            for x in g_src_adv(gSO): out(x)
        for st in range(p.sh):
            g_stage_now(out, fl, st, 0)
            for x in g_src_adv(gSO): out(x)
        out(f"s_mov_b32 s{gM0}, s{sKM}\ns_mov_b32 s{gSO}, s{sKS}\nL_h2o:")
    ntouch = 3 if (role == "o" and p.twpos == 17 and not p.notouch) else 0
    out(f"s_cmp_eq_u32 s{gST}, {p.fb}\ns_cbranch_scc0 L_hb{role}")
    out(f"s_waitcnt lgkmcnt(0)\ns_waitcnt vmcnt({ntouch + 4 + 9*p.fb})\ns_barrier")
    if role == "o":
        out(f"s_cmp_eq_u32 s{sWAVE}, 0\ns_cbranch_scc0 L_hc{role}")
        post(out, F_OFF)
    out(f"s_branch L_hc{role}")

def back(a, p):
    assert p.fb < p.sh
    out = A()
    a(f"""L_gemm:
    s_barrier""")
    stamp(a, p, 4)
    a(f"v_mov_b32 v1, {LFLAG}\nds_read_b32 v2, v1")
    rd0 = g_reads(0, 0)
    for x in rd0[:12]: a(x)
    a(f"""s_mov_b32 s{gST}, 0
    s_mov_b32 s{gRI}, 0
    s_mov_b32 s{gC1}, {STG}
    s_mov_b32 s{gC2}, {-3*STG}
    s_mov_b32 s{gM0}, {LDSOOB}
    s_mov_b32 m0, {LDSOOB}
    s_mov_b32 s{gSO}, {OOB}
    s_mov_b32 s{gDST}, s{gDL2}
    s_waitcnt lgkmcnt(12)
    v_readfirstlane_b32 s{sT}, v2
    {rd0[12]}
    {rd0[13]}
    {rd0[14]}
    s_andn2_b32 s{sT}, s{sT}, s{gREDO}
    s_cbranch_scc1 L_redo""")
    for _ in range(4):
        for x in g_src_adv(gSRC): a(x)
    a(f"s_bitcmp1_b32 s{sWAVE}, 0\ns_cbranch_scc1 L_gw")
    a(f"""s_waitcnt vmcnt({20 + (3 if p.twpos >= 16 and not p.notouch else 0)})
    v_readfirstlane_b32 s{sNONCE}, v{vFL}
    s_nop 1
    s_cmp_eq_u32 s{sNONCE}, 0
    s_cbranch_scc1 L_tag
    L_tagb:""")
    out(f"""L_tag:
    s_memrealtime s[80:81]
    v_mov_b32 v1, 0
    v_mov_b32 v3, 0
    s_waitcnt lgkmcnt(0)
    s_or_b32 s80, s80, 1
    v_mov_b32 v2, s80
    s_mov_b64 exec, 1
    global_atomic_cmpswap v{vFL}, v1, v[2:3], s[6:7] sc0 sc1
    s_waitcnt vmcnt(0)
    s_mov_b64 exec, -1
    v_readfirstlane_b32 s{sNONCE}, v{vFL}
    s_nop 1
    s_cmp_eq_u32 s{sNONCE}, 0
    s_cselect_b32 s{sNONCE}, s80, s{sNONCE}
    s_branch L_tagb
    L_redo:
    s_bitcmp1_b32 s{sWAVE}, 0
    s_cbranch_scc1 L_redos
    s_branch L_redob""")
    gemm_loop(a, out, p, "o")
    a("s_branch L_ge")
    gemm_loop(a, out, p, "w")
    a("L_ge:")
    stamp(a, p, 6)
    a(f"""s_and_b32 s{sT}, s3, 3
    s_lshl_b32 s60, s{sT}, 4
    s_lshr_b32 s61, s3, 2
    s_lshl_b32 s61, s61, 3
    s_add_u32 s61, s61, s5
    s_add_u32 s60, s60, s61
    s_lshl_b32 s60, s60, 2
    s_add_u32 s60, s60, s4
    s_mul_i32 s60, s60, {PBLK}
    s_add_u32 s{sW}, s82, {P_OFF}
    s_addc_u32 s{sW+1}, s83, 0
    s_mov_b32 s{sW+2}, {256*PBLK}
    s_mul_i32 s62, s{sWAVE}, 9216
    s_add_u32 s62, s62, s60
    v_and_b32 v2, 63, v0
    v_lshlrev_b32 v3, 4, v2
    v_lshlrev_b32 v4, 3, v2
    s_lshl_b32 s63, s{sWAVE}, 1
    s_cmp_eq_u32 s{sWAVE}, 0
    s_cselect_b32 s{gQ1}, 3, 0
    s_cmp_lt_u32 s{sWAVE}, 2
    s_cselect_b32 s{gQ2}, 5, 2
    s_cmp_lt_u32 s{sWAVE}, 3
    s_cselect_b32 s{gQ3}, 7, 4""")
    qs = [63, 63, 63, gQ1, gQ1, gQ2, gQ2, gQ3, gQ3]
    qo = [0, 1, 2, 0, 1, 0, 1, 0, 1]
    for u in range(9):
        d = 8 + 4 * (u & 3)
        A0, B0 = acc2(0, u), acc2(1, u)
        a(f"v_cvt_pk_bf16_f32 v{d}, v{A0}, v{A0+1}\nv_cvt_pk_bf16_f32 v{d+1}, v{A0+2}, v{A0+3}\nv_cvt_pk_bf16_f32 v{d+2}, v{B0}, v{B0+1}\nv_cvt_pk_bf16_f32 v{d+3}, v{B0+2}, v{B0+3}")
        a(f"s_lshl_b32 s{sT}, s{qs[u]}, 10\ns_add_u32 s{sT}, s{sT}, s62")
        a(f"buffer_store_dwordx4 {vr(d)}, v3, s[{sW}:{sW+3}], s{sT} offen offset:{1024*qo[u]} {p.pfl}")
    a(f"s_lshl_b32 s{sT}, s63, 9\ns_add_u32 s{sT}, s{sT}, s60\ns_add_u32 s{sT}, s{sT}, 36864")
    for u in range(3):
        d = 24 + 2 * u
        A0 = acc2(2, u)
        a(f"v_cvt_pk_bf16_f32 v{d}, v{A0}, v{A0+1}\nv_cvt_pk_bf16_f32 v{d+1}, v{A0+2}, v{A0+3}")
        a(f"buffer_store_dwordx2 {vr(d, 2)}, v4, s[{sW}:{sW+3}], s{sT} offen offset:{512*u} {p.pfl}")
    a(f"""s_cmp_eq_u32 s{sWAVE}, 0
    s_cbranch_scc0 L_n0
    v_mov_b32 v5, {LFLAG}
    v_mov_b32 v6, s{sNONCE}
    ds_write_b32 v5, v6
    L_n0:
    s_load_dwordx2 s[68:69], s[0:1], 80""")
    a(f"""s_and_b32 s64, s3, 3
    s_lshl_b32 s65, s61, 2
    s_add_u32 s65, s65, s4
    s_mul_i32 s65, s65, {PBLK}
    s_mul_i32 s66, s64, 9216
    s_add_u32 s66, s66, s65
    s_lshl_b32 s{sT}, s{sWAVE}, 10
    s_add_u32 s66, s66, s{sT}
    s_lshl_b32 s67, s64, 1
    s_add_u32 s67, s67, s{sWAVE}
    s_sub_u32 s67, s67, 1
    s_lshl_b32 s72, s67, 9
    s_add_u32 s72, s72, s65
    s_add_u32 s72, s72, 36864
    s_lshr_b32 s73, s3, 2
    s_mul_i32 s73, s73, 1152
    s_mul_i32 s{sT}, s4, 288
    s_add_u32 s73, s73, s{sT}
    s_mul_i32 s{sT}, s5, {144*2304}
    s_add_u32 s73, s73, s{sT}
    s_mul_i32 s74, s67, {16*2304}
    s_add_u32 s74, s74, s73
    s_add_u32 s74, s74, 256
    s_lshl_b32 s{sT}, s64, 6
    s_add_u32 s73, s73, s{sT}
    s_mul_i32 s{sT}, s{sWAVE}, {16*2304}
    s_add_u32 s73, s73, s{sT}
    s_cmp_eq_u32 s{sWAVE}, 3
    s_cselect_b32 s75, 8, s67
    s_cmp_eq_u32 s75, s67
    s_cselect_b32 s72, s72, {OOB}
    s_cselect_b32 s74, s74, {OOB}
    v_and_b32 v5, 15, v2
    s_movk_i32 s{sT}, 2304
    v_lshrrev_b32 v6, 4, v2
    v_lshlrev_b32 v6, 3, v6
    v_mad_u32_u24 v7, v5, s{sT}, v6
    s_mov_b32 s70, {8*144*1152*2}
    s_mov_b32 s71, 0x20000
    s_waitcnt vmcnt(0) lgkmcnt(0)
    s_barrier
    v_mov_b32 v5, {LFLAG}
    ds_read_b32 v6, v5
    s_cmp_eq_u32 s{sWAVE}, 0
    s_cbranch_scc0 L_n1""")
    post(a, F_OFF + 32768)
    a(f"L_n1:\ns_waitcnt lgkmcnt(0)\nv_readfirstlane_b32 s{sNONCE}, v6")
    poll(a, "2", 1, 0xfc, F_OFF + 32768)
    stamp(a, p, 7)
    def red(src, stride, n, dst):
        for i in range(n):
            for k in range(4):
                r = src + stride * k + i
                if k == 0: a(f"v_lshlrev_b32 v80, 16, v{r}\nv_and_b32 v81, 0xffff0000, v{r}")
                else: a(f"v_lshlrev_b32 v82, 16, v{r}\nv_and_b32 v83, 0xffff0000, v{r}\nv_pk_add_f32 v[80:81], v[80:81], v[82:83]")
            a(f"v_cvt_pk_bf16_f32 v{dst+i}, v80, v81")
    for u in range(2):
        a(f"s_add_u32 s{sT}, s66, {4096*u}")
        for k in range(4):
            a(f"buffer_load_dwordx4 {vr(96 + 16*u + 4*k)}, v3, s[{sW}:{sW+3}], s{sT} offen {p.plfl}\ns_add_u32 s{sT}, s{sT}, {64*PBLK}")
    a(f"s_cmp_eq_u32 s{sWAVE}, 0\ns_cbranch_scc0 L_r3\ns_add_u32 s{sT}, s66, 8192")
    for k in range(4):
        a(f"buffer_load_dwordx4 {vr(128 + 4*k)}, v3, s[{sW}:{sW+3}], s{sT} offen {p.plfl}\ns_add_u32 s{sT}, s{sT}, {64*PBLK}")
    a("s_branch L_r4\nL_r3:")
    for k in range(4):
        a(f"buffer_load_dwordx2 {vr(128 + 4*k, 2)}, v4, s[{sW}:{sW+3}], s72 offen {p.plfl}\ns_add_u32 s72, s72, {64*PBLK}")
    a("L_r4:")
    for u in range(2):
        a(f"s_waitcnt vmcnt({8 - 2*u})")
        red(96 + 16*u, 4, 4, 8 + 4*u)
        a(f"buffer_store_dwordx2 {vr(8+4*u, 2)}, v7, s[68:71], s73 offen {p.outfl}\nbuffer_store_dwordx2 {vr(10+4*u, 2)}, v7, s[68:71], s73 offen offset:32 {p.outfl}")
        a(f"s_add_u32 s73, s73, {64*2304}")
    a("s_waitcnt vmcnt(4)")
    a(f"s_cmp_eq_u32 s{sWAVE}, 0\ns_cbranch_scc0 L_r5")
    red(128, 4, 4, 16)
    a(f"buffer_store_dwordx2 v[16:17], v7, s[68:71], s73 offen {p.outfl}\nbuffer_store_dwordx2 v[18:19], v7, s[68:71], s73 offen offset:32 {p.outfl}\ns_branch L_r6\nL_r5:")
    red(128, 4, 2, 16)
    a(f"buffer_store_dwordx2 v[16:17], v7, s[68:71], s74 offen {p.outfl}\nL_r6:")
    if p.stamps:
        a("s_waitcnt vmcnt(0)")
        stamp(a, p, 8)
        stamp_store(a, p)
    a("L_end:\ns_endpgm")
    a.l += out.l

def kernel(p, K):
    a = A()
    a("s_cmp_ge_u32 s2, 256\ns_cbranch_scc1 L_end")
    stamp(a, p, 0)
    a(f"""
    s_load_dwordx8 s[52:59], s[0:1], 0
    s_load_dwordx8 s[60:67], s[0:1], 40
    s_load_dwordx2 s[82:83], s[0:1], 96
    s_load_dwordx2 s[94:95], s[0:1], 32
    s_load_dwordx2 s[96:97], s[0:1], 72
    s_load_dwordx2 s[98:99], s[0:1], 88
    v_lshrrev_b32 v1, 6, v0
    v_and_b32 v2, 63, v0
    v_readfirstlane_b32 s{sWAVE}, v1
    s_and_b32 s3, s2, 7
    s_lshr_b32 s4, s2, 3
    s_lshr_b32 s5, s4, 2
    s_and_b32 s4, s4, 3
    s_and_b32 s6, s3, 3
    s_lshl_b32 s6, s6, 3
    s_lshl_b32 s7, s4, 1
    s_add_u32 s6, s6, s7
    s_lshr_b32 s{sHL}, s{sWAVE}, 1
    s_add_u32 s7, s6, s{sHL}
    s_lshl_b32 s{sRB}, s{sHL}, 15
    """)
    if p.rot: a(f"s_lshr_b32 s{sROT}, s2, 2\ns_and_b32 s{sROT}, s{sROT}, 14\ns_add_u32 s{sROT}, s{sROT}, s{sHL}")
    else: a(f"s_mov_b32 s{sROT}, 0")
    a(f"""
    v_lshrrev_b32 v3, 4, v2
    v_and_b32 v4, 15, v2
    v_lshlrev_b32 v5, 1, v3
    v_xor_b32 v5, v5, v4
    v_lshlrev_b32 v5, 4, v5
    v_lshl_add_u32 v{vE}, v3, 8, v5
    v_xor_b32 v{vO_}, 128, v{vE}
    v_lshl_add_u32 v{vWE}, v3, 13, v5
    s_lshl_b32 s{sT}, s7, 8
    v_add_u32 v{vWE}, s{sT}, v{vWE}
    v_xor_b32 v{vWO}, 128, v{vWE}
    v_add_u32 v{vWO}, {8*8192 - 1024}, v{vWO}
    s_lshl_b32 s{sT}, s{sHL}, 2
    v_add_u32 v5, s{sT}, v3
    v_and_b32 v6, 7, v2
    v_xor_b32 v5, v5, v6
    v_lshlrev_b32 v5, 4, v5
    v_lshrrev_b32 v6, 3, v2
    s_lshl_b32 s{sT}, s{sHL}, 3
    v_add_u32 v6, s{sT}, v6
    s_movk_i32 s{sT}, 1152
    v_mad_u32_u24 v{vX}, v6, s{sT}, v5
    s_waitcnt lgkmcnt(0)
    s_cmp_ge_u32 s3, 4
    s_cselect_b32 s52, s60, s52
    s_cselect_b32 s53, s61, s53
    s_cselect_b32 s54, s62, s54
    s_cselect_b32 s55, s63, s55
    s_cselect_b32 s56, s64, s56
    s_cselect_b32 s57, s65, s57
    s_cselect_b32 s58, s66, s58
    s_cselect_b32 s59, s67, s59
    s_cselect_b32 s94, s96, s94
    s_cselect_b32 s95, s97, s95
    s_mul_i32 s{sT}, s5, 165888
    s_add_u32 s{sX}, s52, s{sT}
    s_addc_u32 s{sX+1}, s53, 0
    s_mov_b32 s{sX+2}, 165888
    s_mov_b32 s{sX+3}, 0x20000
    s_mov_b32 s{sW}, s58
    s_mov_b32 s{sW+1}, s59
    s_mov_b32 s{sW+2}, 4718592
    s_mov_b32 s{sW+3}, 0x20000
    s_and_b32 s76, s{sWAVE}, 1
    s_mul_i32 s{sXB}, s{sHL}, 24576
    s_add_u32 s{sXB}, s{sXB}, {WQB}
    s_mul_i32 s{sXS0}, s76, {5*18432}
    s_mul_i32 s{sXM0}, s76, {5*2048}
    s_lshl_b32 s{sT}, s{sHL}, 10
    s_add_u32 s{sXM0}, s{sXM0}, s{sT}
    s_add_u32 s{sXM0}, s{sXM0}, {XBUF}
    s_lshl_b32 s77, s76, 12
    s_add_u32 s77, s77, s{sXB}
    s_lshl_b32 s78, s76, 17
    """)
    def xload(c):
        a(f"s_add_u32 s{sXS}, s{sKROT}, {c}\ns_sub_u32 s{sXM}, s{sXS}, 9\ns_cselect_b32 s{sXS}, s{sXS}, s{sXM}\ns_lshl_b32 s{sXS}, s{sXS}, 7")
        a(f"s_add_u32 s{sXM}, s{sXM0}, {18432*c}\ns_add_u32 s{sXS}, s{sXS0}, s{sXS}")
        g = x_dma(p, 5)
        emit(a, g[:4])
        a(f"s_cmp_eq_u32 s76, 1\ns_cbranch_scc1 L_x{c}")
        emit(a, g[4:])
        a(f"L_x{c}:")
    def wload(k):
        a(f"s_add_u32 s{sWM}, s77, {8192*k}\ns_add_u32 s{sWS2}, s{sWS}, {4*8192 - 2048}")
        emit(a, w_dma(p), nop=False)
        emit(a, [w_adv(p)], nop=False)
    a(f"s_mov_b32 s60, s54\ns_mov_b32 s61, s55")
    if p.krot: a(f"s_lshl_b32 s{sKROT}, s4, 1\ns_add_u32 s{sKROT}, s{sKROT}, s5\ns_sub_u32 s{sT}, s{sKROT}, 9\ns_cselect_b32 s{sKROT}, s{sKROT}, s{sT}")
    else: a(f"s_mov_b32 s{sKROT}, 0")
    a(f"s_lshl_b32 s{sWS}, s{sKROT}, 19\ns_add_u32 s{sWS}, s{sWS}, s78\ns_add_u32 s{sWEND}, s78, {576*8192}")
    xload(0); wload(0)
    if p.pw >= 0: a(f"s_waitcnt vmcnt({p.pw})")
    wload(1)
    a(f"""
    s_mul_i32 s{sS0}, s4, {p.stag}
    s_add_u32 s{sS0}, s{sS0}, {p.s0}
    s_lshl_b32 s{sT}, s5, 5
    s_add_u32 s{sT}, s{sT}, s7
    s_lshl_b32 s{sT2}, {'s3' if p.kvsame else f's{sT}'}, 17
    s_add_u32 s{sK}, s60, s{sT2}
    s_addc_u32 s{sK+1}, s61, 0
    s_mov_b32 s{sK+2}, 131072
    s_mov_b32 s{sK+3}, 0x20000
    s_add_u32 s{sV}, s56, s{sT2}
    s_addc_u32 s{sV+1}, s57, 0
    s_mov_b32 s{sV+2}, 131072
    s_mov_b32 s{sV+3}, 0x20000
    s_mov_b32 s{sO}, s82
    s_mov_b32 s{sO+1}, s83
    s_mov_b32 s{sO+2}, {O_BYTES}
    s_mov_b32 s{sO+3}, 0x20000
    s_lshr_b32 s{sT2}, s3, 2
    s_lshl_b32 s{sT2}, s{sT2}, 8
    s_add_u32 s{sT}, s{sT}, s{sT2}
    s_mul_i32 s{sOB}, s{sT}, {4*9216}
    s_mov_b32 s{sWO}, s94
    s_mov_b32 s{sWO+1}, s95
    s_mov_b32 s{sWO+2}, 4718592
    s_mov_b32 s{sWO+3}, 0x20000
    s_and_b32 s{sTW}, s3, 3
    s_lshl_b32 s{sTW}, s{sTW}, 5
    s_lshr_b32 s{sT}, s2, 3
    s_add_u32 s{sTW}, s{sTW}, s{sT}
    s_lshl_b32 s{sTW}, s{sTW}, 1
    s_add_u32 s{sTW}, s{sTW}, s{sHL}
    s_mul_i32 s{sTW}, s{sTW}, 18432
    s_cmp_eq_u32 s76, 1
    s_cselect_b32 s{sKV}, s{sV}, s{sK}
    s_cselect_b32 s{sKV+1}, s{sV+1}, s{sK+1}
    s_mov_b32 s{sKV+2}, 131072
    s_mov_b32 s{sKV+3}, 0x20000
    s_lshl_b32 s{sT2}, s76, 13
    s_add_u32 s{sT2}, s{sT2}, s{sRB}
    s_mov_b32 s6, s98
    s_mov_b32 s7, s99
    v_lshlrev_b32 v{vTCH}, 7, v2
    s_mov_b32 s{sIT}, -2
    """)
    emit(a, kv_book(p), nop=False); emit(a, kv_dma(p), nop=False)
    xload(1); wload(2)
    a(f"s_mov_b32 s{sIT}, 0")
    emit(a, kv_book(p), nop=False)
    a(f"s_mov_b32 s{sWM}, s77\ns_add_u32 s{sWS2}, s{sWS}, {4*8192 - 2048}")
    a(f"s_cmp_eq_u32 s{sWAVE}, 0\ns_cbranch_scc0 L_nc")
    if p.touch_code:
        a(f"""s_getpc_b64 s[80:81]
        L_pc:
        s_sub_u32 s80, s80, L_pc-{K}
        s_subb_u32 s81, s81, 0
        s_lshr_b32 s{sT}, s2, 3
        s_and_b32 s{sT}, s{sT}, 7
        s_lshl_b32 s{sT}, s{sT}, 13
        v_add_u32 v8, s{sT}, v{vTCH}
        s_mov_b32 s{sT}, L_codeend-{K}-4
        v_min_u32 v8, s{sT}, v8
        global_load_dword v{vDUM}, v8, s[80:81]""")
    a(f"""v_mov_b32 v8, {LFLAG}
    v_mov_b32 v9, 0
    ds_write_b32 v8, v9
    s_cmp_lt_u32 s2, 8
    s_cbranch_scc0 L_nc
    s_memrealtime s[80:81]
    v_mov_b32 v11, 0
    s_waitcnt lgkmcnt(0)
    s_or_b32 s80, s80, 1
    v_mov_b32 v10, s80
    s_mov_b64 exec, 1
    global_atomic_cmpswap v9, v[10:11], s[6:7] sc1
    s_mov_b64 exec, -1
    L_nc:""")
    a(f"""
    v_and_b32 v5, 7, v4
    v_lshlrev_b32 v5, 1, v5
    v_xor_b32 v5, v5, v3
    v_lshlrev_b32 v5, 4, v5
    v_lshl_add_u32 v5, v4, 8, v5
    v_add_u32 v{vKA}, s{sRB}, v5
    v_xor_b32 v{vKA+1}, 64, v{vKA}
    v_xor_b32 v{vKA+2}, 128, v{vKA}
    v_xor_b32 v{vKA+3}, 192, v{vKA}
    v_bfe_u32 v5, v2, 2, 2
    v_and_b32 v6, 1, v3
    v_lshl_add_u32 v5, v6, 2, v5
    v_lshrrev_b32 v6, 1, v3
    v_lshl_add_u32 v6, v6, 4, v5
    v_lshlrev_b32 v5, 1, v5
    v_bfe_u32 v7, v2, 1, 1
    v_xor_b32 v5, v5, v7
    v_lshlrev_b32 v5, 4, v5
    v_and_b32 v7, 1, v2
    v_lshl_add_u32 v5, v7, 3, v5
    v_lshl_add_u32 v5, v6, 8, v5
    v_add_u32 v{vVA}, s{sXB}, v5
    s_mov_b32 s{sXB}, s77""")
    for dt in range(1, 8): a(f"v_xor_b32 v{vVA+dt}, {32*dt}, v{vVA}")
    a(f"""
    v_lshrrev_b32 v5, 1, v4
    v_xor_b32 v5, v5, v3
    v_lshlrev_b32 v5, 4, v5
    v_lshl_add_u32 v5, v4, 7, v5
    s_mul_i32 s79, s76, {5*2048}
    s_add_u32 s79, s79, {XBUF}
    v_add_u32 v{vXA}, s79, v5
    v_xor_b32 v{vXA+1}, 64, v{vXA}
    s_mul_i32 s79, s76, {5*1024}
    v_lshl_add_u32 v{vST}, v2, 4, s79
    s_mul_i32 s79, s{sHL}, {2*STG}
    v_add_u32 v{vOW}, s79, v{vST}
    s_mov_b32 s{sSC}, 0x3e0293ee
    s_mov_b32 s{sWSL}, 0
    s_mov_b32 s{sC}, 8192
    s_mov_b32 s{sNEG}, -16384
    s_mov_b32 s{sWD}, 8192
    s_mov_b32 s{sXD}, 18432
    """)
    a(f"s_movk_i32 s79, 3641\ns_mul_i32 s80, s76, 864")
    for j in range(9):
        a(f"""v_add_u32 v5, {64*j}, v2
        v_mul_u32_u24 v6, s79, v5
        v_lshrrev_b32 v6, 16, v6
        v_lshlrev_b32 v5, 4, v5
        v_mad_u32_u24 v5, v6, s80, v5
        v_subrev_u32 v{v2VO+j}, {1024*(j % 4)}, v5""")
    a(f"""
    v_lshrrev_b32 v5, 2, v2
    v_and_b32 v6, 3, v2
    v_lshlrev_b32 v6, 3, v6
    s_movk_i32 s79, 288
    v_mad_u32_u24 v5, v5, s79, v6
    v_add_u32 v{v2A+1}, {18432 + 256}, v5
    s_lshl_b32 s79, s{sWAVE}, 6
    s_add_u32 s79, s79, 18432
    v_add_u32 v{v2A}, s79, v5
    v_lshlrev_b32 v5, 4, v2
    s_lshl_b32 s79, s{sWAVE}, 11
    v_add_u32 v{v2B}, s79, v5
    s_cmp_eq_u32 s{sWAVE}, 0
    s_cselect_b32 s79, 3072, 0
    v_add_u32 v{v2B+1}, s79, v5
    s_cmp_lt_u32 s{sWAVE}, 2
    s_movk_i32 s79, 2048
    s_cselect_b32 s79, 5120, s79
    v_add_u32 v{v2B+2}, s79, v5
    s_cmp_lt_u32 s{sWAVE}, 3
    s_movk_i32 s79, 4096
    s_cselect_b32 s79, 7168, s79
    v_add_u32 v{v2B+3}, s79, v5
    """)
    if p.twq >= 0: a(f"s_mul_i32 s79, s4, {p.twstag}\ns_add_u32 s79, s79, {p.twq}")
    for r in range(0, 160, 2): a(f"v_pk_mov_b32 {vr(vACC+r, 2)}, 0, 0")
    a(f"s_bitcmp1_b32 s{sWAVE}, 0\ns_cbranch_scc1 L_small")
    wave_front(a, p, 5, False, "b")
    a("L_small:")
    wave_front(a, p, 4, True, "s")
    back(a, p)
    a("L_codeend:")
    return a.text()

def build(p):
    K = KNAME + "_kernel"
    hdr = open("cdna_kernels/" + KNAME + ".s.ref").read().split("; Override launch geometry")[0]
    return hdr + header(["; @launch grid=(256,1,1) block=(256,1,1) lds=163840"]) + kstart(K) + kernel(p, K) + RODATA + kdesc(K, 512, 256)

if __name__ == "__main__":
    ap = argparse.ArgumentParser()
    ap.add_argument("out")
    ap.add_argument("opts", nargs="*")
    x = ap.parse_args()
    p = P()
    VERB = True
    for o in x.opts:
        k, v = o.split("=")
        cur = getattr(p, k)
        setattr(p, k, (v == "1") if isinstance(cur, bool) else int(v) if isinstance(cur, int) else v.replace("+", " "))
    if p.twq >= 0: p.twpos = 15
    open(x.out, "w").write(build(p))
```

```python
import re

def regs(tok):
    tok = tok.strip()
    m = re.fullmatch(r"([sva])\[(\d+):(\d+)\]", tok)
    if m: return {f"{m.group(1)}{i}" for i in range(int(m.group(2)), int(m.group(3)) + 1)}
    if re.fullmatch(r"[sva]\d+", tok) or tok in ("m0", "vcc", "exec"): return {tok}
    return set()

NOSCC = ("s_mov_b32", "s_mul_i32", "s_movk_i32", "s_nop", "s_cselect_b32", "s_waitcnt", "s_bitset0_b32", "s_bitset1_b32")
def rw(text):
    op, _, rest = text.partition(" ")
    ops = [x.strip() for x in rest.split(",")]
    last = ops[-1].split()
    ops[-1] = last[0] if last else ""
    R, W = set(), set()
    if op == "s_waitcnt":
        R.add("vm"); W.add("vm")
    elif op.startswith("s_cmp") or op.startswith("s_bitcmp"):
        for o in ops: R |= regs(o)
        W.add("scc")
    elif op.startswith("s_"):
        W |= regs(ops[0])
        for o in ops[1:]: R |= regs(o)
        if op in ("s_cselect_b32", "s_addc_u32"): R.add("scc")
        if op.startswith("s_bitset"): R |= regs(ops[0])
        if op not in NOSCC: W.add("scc")
    elif op.startswith("buffer_load") and text.rstrip().endswith("lds"):
        for o in ops: R |= regs(o)
        R.add("m0"); R.add("vm"); W.add("vm")
    elif op.startswith("buffer_load"):
        W |= regs(ops[0])
        for o in ops[1:]: R |= regs(o)
        R.add("vm"); W.add("vm")
    elif op.startswith("buffer_store"):
        for o in ops: R |= regs(o)
        R.add("vm"); W.add("vm")
    elif op.startswith("ds_read"):
        W |= regs(ops[0]); R |= regs(ops[1])
    elif op.startswith("ds_write"):
        for o in ops: R |= regs(o)
    elif op.startswith("v_"):
        W |= regs(ops[0])
        for o in ops[1:]: R |= regs(o)
    else:
        raise ValueError(text)
    return R, W

def kind(text):
    if text.startswith("s_"): return "S"
    if text.startswith("ds_"): return "L"
    if text.startswith("buffer_"): return "M"
    if text.startswith("v_exp") or text.startswith("v_rcp"): return "T"
    return "V"

class It:
    def __init__(self, text, lo=0, hi=None):
        self.t = text.strip(); self.lo = lo; self.hi = hi
        self.k = kind(self.t); self.R, self.W = rw(self.t); self.deps = []; self.done = None

def cost(g):
    t = 4; prevV = False; prev = None
    for i, k in enumerate(g):
        if k != "S": t = max(t, 8)
        if k in "LM" and prevV: t += 8
        if k == "M" and prev == "S": t += 4
        if k == "L" and prev == "L" and g[0] == "L": t += 4
        t += 8 if k in "TM" else 4
        prevV = prevV or k in "VT"; prev = k
    return max(0, t - 16)

def order(items):
    return items

def schedule(n, fixed, flo):
    for j, b in enumerate(flo):
        for a in flo[:j]:
            if (a.W & b.R) or (a.W & b.W) or (a.R & b.W): b.deps.append(a)
    gaps = []; over = 0
    for it in flo: it.pr = {"M": 0, "L": 1, "V": 2, "T": 2, "S": 3}[it.k]
    for it in reversed(flo):
        if it.pr == 0:
            for d in it.deps:
                if d.k == "S": d.pr = 0
    pend = sorted(flo, key=lambda x: x.pr)
    reserved = {it.lo for it in flo if it.k == "M"}
    for i in range(n):
        fx = list(fixed[i]) if i < len(fixed) else []
        head, mem, val, tail = [], [], [], []
        def seq(): return head + mem + fx_items + val + tail
        fx_items = [It(x) for x in fx]
        base = cost([x.k for x in seq()])
        cur = []
        progress = True
        while progress:
            progress = False
            for it in pend:
                if it.lo > i: continue
                ok = True
                for d in it.deps:
                    if d.done is None: ok = False; break
                if not ok: continue
                same = [d for d in it.deps if d.done == i]
                if it.k == "S":
                    if not head and not same: dst = head
                    else: dst = tail
                elif it.k in "LM":
                    if any(d in tail or d in val for d in same): continue
                    if it.k == "M" and any("m0" in d.W for d in same): continue
                    dst = mem
                else:
                    if any(d in tail for d in same): continue
                    dst = val
                if dst is head and any((it.W & x.R) or (it.W & x.W) or (it.R & x.W) for x in mem + val + tail): dst = tail
                if dst is mem and any((it.W & x.R) or (it.W & x.W) or (it.R & x.W) for x in val + tail): continue
                if dst is val and any((it.W & x.R) or (it.W & x.W) or (it.R & x.W) for x in tail): continue
                dst.append(it)
                pad = None
                ks = [x.k for x in seq()]
                c = cost(ks)
                if c > base and not head and len(mem) == 2 and ks[0] == "L":
                    pad = It("s_nop 0"); head.append(pad); c = cost([x.k for x in seq()])
                forced = it.hi is not None and i >= it.hi
                if i in reserved and it.k != "M" and not forced and any(m.k == "M" and m.lo == i and all(d.done is not None and d.done < i for d in m.deps) for m in pend):
                    c = base + 1
                if c > base and not forced:
                    dst.remove(it)
                    if pad: head.remove(pad)
                    continue
                base = c
                it.done = i; pend.remove(it); progress = True
                break
        over += base
        gaps.append([x.t for x in seq()])
    assert not pend, [x.t for x in pend]
    return gaps, over
```

```python
import sys, argparse
sys.path.insert(0, "tools")
from asmlib import *
sys.path.insert(0, 'gen')
from sched import It, schedule
VERB = False
EXP = 0

class P:
    stamps = False
    cyc = False
    xfl = ""; wfl = ""; kvfl = "nt"
    ofl = "sc1"; olfl = "sc1"; wofl = ""; twfl = ""; pfl = "sc1"; plfl = "sc1"; outfl = ""
    s0 = 1; ppe = 1; stag = 0
    rot = True; krot = True
    kvd = 4
    twpos = 12
    rb = False
    fb = 3
    sh = 2
    qb = 4; qr = 6; vlo = 6
    touch_code = True
    force = False
    kvsame = False
    lim = 0
    notouch = False
    limg = 2
    gprof = False
    pa = -1
    al = 0
    sh4 = 0
    xsp = 0
    wsh = 0
    qprof = 0
    par8 = False
    fc = 0
    fcs = 64
    twown = -1
    perm = 0
    kc = 2
    ksh = 0
    early = True
    pst = 0
    rotm = 0
    swap = 3
    t3 = False
    vp2 = True
    s1 = 1
    defer = False
    warm = True
    exp = 0
    late = True
    twq = -1
    twstag = 0
    pw = -1

MF = "v_mfma_f32_16x16x32_bf16"
OOB = 0x40000000
LDSOOB = 0x30000
STAMPOFF = 200 << 20
O_BYTES = 16 * 32 * 4 * 9216
P_OFF = 32 << 20
F_OFF = 48 << 20
PBLK = 41472
STG = 36864
LFLAG = 163836
SPIN = 1 << 18
PL = 0

def vr(b, n=4): return f"v[{b}:{b+n-1}]"
def ar(b, n=4): return f"a[{b}:{b+n-1}]"
def weave(a, mfmas, gaps):
    assert len(gaps) <= len(mfmas)
    for i, m in enumerate(mfmas):
        a(m)
        if i < len(gaps):
            for x in gaps[i]: a(x)
def align(a, p):
    if p.al: a(f".p2align {p.al}")
    for _ in range(p.sh4): a("s_nop 0")
def emit(a, gs, nop=True):
    for g in gs:
        for x in g: a(x)
        if nop: a("s_nop 0")
NST = 9
def stamp(a, p, idx):
    if p.stamps: a(f"{'s_memtime' if p.cyc else 's_memrealtime'} s[{84+2*idx}:{85+2*idx}]")
def stamp_store(a, p):
    if not p.stamps: return
    a("s_waitcnt lgkmcnt(0)")
    a(f"s_mul_i32 s80, s2, 128\ns_add_u32 s82, s82, s80\ns_addc_u32 s83, s83, 0\ns_add_u32 s82, s82, {STAMPOFF}\ns_addc_u32 s83, s83, 0")
    a("v_mov_b32 v1, 0\nv_cmp_eq_u32 vcc, 0, v0\ns_and_saveexec_b64 s[80:81], vcc")
    for j in range(NST):
        a(f"v_mov_b32 v2, s{84+2*j}\nv_mov_b32 v3, s{85+2*j}\nglobal_store_dwordx2 v1, v[2:3], s[82:83] offset:{8*j}\ns_nop 1")
    a("s_mov_b64 exec, s[80:81]")
    if p.gprof or p.qprof:
        a("v_and_b32 v1, 63, v0\nv_lshlrev_b32 v1, 2, v1\nv_cmp_gt_u32 vcc, 14, v0\ns_and_saveexec_b64 s[80:81], vcc\nglobal_store_dword v1, v31, s[82:83] offset:72\ns_mov_b64 exec, s[80:81]")

vACC = 96; vS = (80, 88); vL = 72; vVA = 64; vKA = 60; vXA = 58
vE, vO_, vWE, vWO, vX, vST, vTCH, vDUM, vOW, vFL = 56, 57, 54, 55, 53, 52, 51, 50, 49, 48
v2VO, v2B, v2A = 32, 41, 45
vNM = 8
aQ = 0; aK = (80, 112); aV = (144, 176); aXB = (80, 100); aWA = (144, 176)
a2A = (80, 92); a2B = (104, 140)
v2ACC = 96
sX, sW, sK, sV, sO, sKV, sWO = 8, 12, 16, 20, 24, 68, 56
sWAVE, sHL, sROT, sNONCE = 28, 29, 30, 31
sWS, sWM, sXS, sXM, sWD, sXD, sT, sT2, sIT = 32, 33, 34, 35, 36, 37, 38, 39, 40
sKN, sKM, sKS, sRB, sHI, sWSL, sXB = 41, 42, 43, 44, 45, 46, 47
sC, sSC, sOB, sNEG, sKROT, sS0, sWEND, sTW = 48, 49, 50, 51, 52, 53, 54, 55
sWS2, sXM0, sXS0 = 72, 74, 75
gSRC, gSTR, gDST, gST, gQ1, gQ2, gQ3, gRI = 60, 52, 62, 63, 64, 65, 66, 67
gC1, gC2, gDL, gM0, gSO, gDL2, gLO, gHIW = 72, 73, 74, 75, 76, 77, 78, 79
gLOW, gLIM, gREDO, gMASK, gTAB, gP4 = 32, 33, 34, 35, 36, 79
gF = 40
REL = [0, 1, 2, 3, 4, 6, 8, 10, 12, 14, 5, 7, 9, 11, 13, 15]
FA, F2, FP = F_OFF, F_OFF + 32768, F_OFF + 49152
gFP, gOFF, gCHK, gPOST, gNN = 80, 33, 32, 53, 46
vPA, vNZ = 47, 48
sPG = 60
sPA, sPM = 73, 74
XBUF = 65536
WQB = XBUF + 2 * 18432
QX = 155648
def acc(t, dt): return vACC + (t * 8 + dt) * 4
def acc2(nt, u): return v2ACC + 4 * (nt * 9 + u)

def flat_dma(groups, pos):
    out = []
    for g, q in zip(groups, pos):
        for x in g:
            if x.startswith("s_nop"): continue
            out.append(It(x, q, q + 1) if x.startswith("buffer_") else It(x))
    return out
def read_pos(nrd, start, end, taken):
    free = [i for i in range(start, end) if i not in taken]
    dbl = max(0, nrd - len(free))
    pos = []
    for i in free:
        pos.append(i)
        if dbl > 0: pos.append(i); dbl -= 1
    assert len(pos) >= nrd
    return pos[:nrd]

WDr, WSr, WS2r = (sWD, 62), (sWS, 63), (sWS2, 64)
def w_dma(p, par=0):
    w = lambda v, so, o: f"buffer_load_dwordx4 v{v}, s[{sW}:{sW+3}], s{so} offen offset:{o} {p.wfl} lds"
    return [[f"s_mov_b32 m0, s{sWM}", "s_nop 0", w(vWE, WSr[par], 0)], [w(vWO, WSr[par], 1024)], [w(vWE, WS2r[par], 2048)], [w(vWO, WS2r[par], 3072)]]
def x_dma(p, nX):
    out = []
    for m in range(nX):
        g = [f"s_mov_b32 m0, s{sXM}", "s_nop 0"] if m == 0 else []
        g.append(f"buffer_load_dwordx4 v{vX}, s[{sX}:{sX+3}], s{sXS} offen offset:{2048*(m & 1)} {p.xfl} lds")
        if m + 1 < nX:
            g.append(f"s_add_u32 s{sXS}, s{sXS}, {16384 if m % 2 == 0 else 20480}")
            if m % 2 == 1: g.append("s_add_u32 m0, m0, 4096")
        out.append(g)
    return out
def kv_dma(p):
    out = []
    for j in range(2 * p.ppe):
        g = [f"s_mov_b32 m0, s{sKM}", "s_nop 0"] if j == 0 else []
        if j == 4: g = [f"s_add_u32 m0, s{sKM}, 4096", f"s_add_u32 s{sKS}, s{sKS}, 4096"]
        g.append(f"buffer_load_dwordx4 v{vE if j % 2 == 0 else vO_}, s[{sKV}:{sKV+3}], s{sKS} offen offset:{1024*(j % 4)} {p.kvfl} lds")
        out.append(g)
    return out
def kv_book(p):
    return [[f"s_ashr_i32 s{sKN}, s{sIT}, 1", f"s_sub_u32 s{sKN}, s{sKN}, s{sS0}", f"s_mul_i32 s{sKN}, s{sKN}, {p.ppe}"],
            [f"s_lshr_b32 s{sT}, s{sKN}, 1", f"s_add_u32 s{sKS}, s{sT}, s{sROT}"] + ([f"s_and_b32 s{sT}, s{sT}, 2", f"s_add_u32 s{sKS}, s{sKS}, s{sT}"] if p.par8 else []) + [f"s_and_b32 s{sKS}, s{sKS}, 31"],
            [f"s_lshl_b32 s{sKS}, s{sKS}, 12", f"s_and_b32 s{sT}, s{sKN}, 1", f"s_lshl_b32 s{sT}, s{sT}, 11", f"s_add_u32 s{sKS}, s{sKS}, s{sT}"],
            [f"s_lshr_b32 s{sKM}, s{sKN}, 2", f"s_lshl_b32 s{sKM}, s{sKM}, 14", f"s_and_b32 s{sT}, s{sKN}, 3", f"s_lshl_b32 s{sT}, s{sT}, 11"],
            [f"s_add_u32 s{sKM}, s{sKM}, s{sT}", f"s_add_u32 s{sKM}, s{sKM}, s{sT2}"],
            [f"s_cmp_ge_u32 s{sKN}, 8", f"s_cselect_b32 s{sKM}, {LDSOOB}, s{sKM}", f"s_cselect_b32 s{sKS}, {OOB}, s{sKS}"]]
def x_book(p):
    return [[f"s_add_u32 s{sT}, s{sIT}, 3", f"s_lshr_b32 s{sT}, s{sT}, 1", f"s_add_u32 s{sXS}, s{sT}, s{sKROT}"],
            [f"s_sub_u32 s{sXM}, s{sXS}, 9", f"s_cselect_b32 s{sXS}, s{sXS}, s{sXM}", f"s_lshl_b32 s{sXS}, s{sXS}, 7"],
            [f"s_add_u32 s{sXS}, s{sXS}, s{sXS0}", f"s_and_b32 s{sT}, s{sT}, 1", f"s_mul_i32 s{sT}, s{sT}, 18432"],
            [f"s_add_u32 s{sXM}, s{sXM0}, s{sT}"],
            [f"s_cmp_ge_u32 s{sIT}, 15", f"s_cselect_b32 s{sXM}, {LDSOOB}, s{sXM}", f"s_cselect_b32 s{sXS}, {OOB}, s{sXS}"]]
def w_adv(p, src=sWS, dst=sWS):
    return [f"s_add_u32 s{dst}, s{src}, {32*8192}", f"s_cmp_ge_u32 s{dst}, s{sWEND}", f"s_cselect_b32 s{dst}, s78, s{dst}"]
def q_reads(T, par, ks):
    rd = [f"ds_read_b128 {ar(aXB[par] + 4*t)}, v{vXA + ks} offset:{2048*t}" for t in range(T)]
    for dt in range(8):
        rd.append(f"ds_read_b64_tr_b16 {ar(aWA[par] + 4*dt, 2)}, v{vVA+dt}")
        rd.append(f"ds_read_b64_tr_b16 {ar(aWA[par] + 4*dt + 2, 2)}, v{vVA+dt} offset:2048")
    return rd
def qstep(a, p, T, par):
    A_, B_ = aWA[par], aXB[par]
    e = 2 * p.ppe
    mf = []
    for dt in range(8):
        for u in range(5):
            if T == 5:
                if u == 4 and dt >= 4: continue
                t = u
            else:
                if u == 0 and dt < 4: continue
                t = (u - 1) % 5
            mf.append(f"{MF} {vr(acc(t, dt))}, {ar(A_ + 4*dt)}, {ar(B_ + 4*u)}, {vr(acc(t, dt))}")
    if not p.exp & 128: a("s_waitcnt lgkmcnt(0)")
    if not p.exp & 64: a(f"s_waitcnt vmcnt({e + 4 + (T - p.wsh if par == 0 else 0)})")
    if not p.exp & 32: a("s_barrier")
    if p.qprof: a(f"s_sub_u32 s98, s{sIT}, {p.qprof - 1}\ns_min_u32 m0, s98, 63\nv_writelane_b32 v31, s96, m0\n{'s_memtime' if p.cyc else 's_memrealtime'} s[96:97]")
    upd = [f"v_add_u32 v{vVA+d}, s{WDr[par]}, v{vVA+d}" for d in range(8)]
    if par == 0: upd = [f"v_add_u32 v{vXA}, s{sXD}, v{vXA}", f"v_add_u32 v{vXA+1}, s{sXD}, v{vXA+1}"] + upd
    rd = q_reads(5, par ^ 1, par ^ 1)
    dma = (x_dma(p, T) + w_dma(p, 1)[:4 - p.wsh]) if par == 1 else (w_dma(p, 1)[4 - p.wsh:] + w_dma(p, 0) + kv_dma(p))
    q = par ^ 1
    book = [[f"s_add_u32 s{sIT}, s{sIT}, 1"]] + (kv_book(p) if par == 1 else x_book(p)) + \
           [[f"s_add_u32 s{sWSL}, s{sWSL}, 8192", f"s_cmp_eq_u32 s{sWSL}, 24576", f"s_cselect_b32 s{sWSL}, 0, s{sWSL}"],
            [f"s_cmp_eq_u32 s{sWSL}, 8192", f"s_cselect_b32 s{WDr[q]}, s{sNEG}, s{sC}"],
            w_adv(p, WSr[par], WSr[q]) + [f"s_add_u32 s65, s{sWSL}, s{sXB}"],
            [f"s_cmp_ge_u32 s{sIT}, 15", f"s_cselect_b32 s65, {LDSOOB}, s65", f"s_cselect_b32 s{WSr[q]}, {OOB}, s{WSr[q]}"],
            [f"s_add_u32 s{WS2r[q]}, s{WSr[q]}, {4*8192 - 2048}", f"s_mov_b32 s{sWM}, s65"] + ([f"s_sub_u32 s{sXD}, 0, s{sXD}"] if par == 0 else [])]
    n = len(mf)
    pos = [1 + i * (n - p.qb) // len(dma) for i in range(len(dma))]
    if par == 1 and p.xsp:
        x0 = 1 + p.xsp * T + 2
        pos = [1 + p.xsp * i for i in range(T)] + [x0 + i * (n - p.qb - x0) // (len(dma) - T) for i in range(len(dma) - T)]
    rp = read_pos(len(rd), 0, n - p.qr, set(pos))
    if p.exp & 8: dma = [[x for x in g if not x.startswith("buffer")] for g in dma]
    if p.exp & 16: rd = []
    flo = [It(x, q, q + 1) for x, q in zip(rd, rp)] + [It(x, p.vlo, n - 1) for x in upd] + flat_dma(dma, pos) + [It(x, 0, n - 1) for g in book for x in g]
    gaps, over = schedule(n, [], flo)
    if VERB: print(f"qstep T{T} par{par} over", over, file=sys.stderr)
    weave(a, mf, gaps)

def kv_tile_dma(p, sm, ss, parts=(0, 1, 2, 3), plain=False):
    out = []
    d1, d2 = (sK, sV) if plain or not p.swap else (sKV, sW)
    for half, (srd, lo) in enumerate(((d1, 0), (d1, 4096), (d2, 8192), (d2, 12288))):
        if half not in parts: continue
        so = ss if (half & 1) == 0 else sT
        for j in range(4):
            g = []
            if j == 0:
                g = [f"s_xor_b32 m0, s{sm}, {lo}"]
                g += [f"s_add_u32 s{sT}, s{ss}, 4096", f"s_bitset0_b32 s{sT}, 17"] if half == 0 else ["s_nop 0"]
            if p.lim and (j % p.limg == 0): g.append(f"s_waitcnt vmcnt({p.lim - p.limg})")
            g.append(f"buffer_load_dwordx4 v{vE if j % 2 == 0 else vO_}, s[{srd}:{srd+3}], s{so} offen offset:{1024*j} {p.kvfl} lds")
            out.append(g)
    return out
def frag_reads(par, off):
    rd = [f"ds_read_b128 {ar(aK[par] + (kt*4+s)*4)}, v{vKA+s} offset:{off + 4096*kt}" for kt in range(2) for s in range(4)]
    for dt in range(8):
        rd.append(f"ds_read_b64_tr_b16 {ar(aV[par] + 4*dt, 2)}, v{vVA+dt} offset:{off}")
        rd.append(f"ds_read_b64_tr_b16 {ar(aV[par] + 4*dt + 2, 2)}, v{vVA+dt} offset:{off + 4096}")
    return rd
def soft2(S, t):
    ad = [f"v_add_f32 v{vL+t}, v{vL+t}, v{S+j}" for j in range(8)]
    cv = [f"v_cvt_pk_bf16_f32 v{S+j}, v{S+2*j}, v{S+2*j+1}" for j in range(4)]
    return ad[:4] + cv + ad[4:]
def qk(S, Kc, t, c0):
    return [f"{MF} {vr(S + 4*kt)}, {ar(Kc + (kt*4+s)*4)}, {ar(aQ + (t*4+s)*4)}, {c0 if s == 0 else vr(S + 4*kt)}" for kt in range(2) for s in range(4)]
def pv(S, Vc, t):
    return [f"{MF} {vr(acc(t, dt))}, {ar(Vc + 4*dt)}, {vr(S)}, {vr(acc(t, dt))}" for dt in range(8)]
def block(a, p, T, par, loader, top, mid):
    mf, fixed = [], []
    for t in range(T):
        n = par * T + t
        S, Sp = vS[n & 1], vS[(n & 1) ^ 1]
        tp = (t - 1) % T
        mf += qk(S, aK[par], t, "0") + pv(Sp, aV[par ^ 1] if t == 0 else aV[par], tp)
        v2 = soft2(Sp, tp)
        fixed += [v2[0:1], v2[1:3], v2[3:4], v2[4:6], v2[6:7], v2[7:9], v2[9:10], v2[10:12]]
        fixed += [[f"v_exp_f32 v{S+j}, v{S+j}"] for j in range(8)]
    n = 16 * T
    free = [16*t + j for t in range(T) for j in (0, 2, 4, 6)]
    dma = kv_tile_dma(p, sKM, sKS) if loader else []
    top(a)
    if not p.late:
        rd = frag_reads(par ^ 1, 16384 * (par ^ 1))
        tog = [f"v_xor_b32 v{r}, 0x10000, v{r}" for r in list(range(vKA, vKA+4)) + list(range(vVA, vVA+8))] if par == 0 else []
        lim = n - 12
        slots = [g for g in free if g < lim]
        extra = [g for g in range(lim) if g not in slots]
        need = len(rd) + len(dma) - len(slots)
        if need > 0: slots = sorted(slots + [extra[(2*i + 1) * len(extra) // (2*need)] for i in range(need)])
        dpos = [slots[(i * len(slots)) // len(dma)] for i in range(len(dma))] if dma else []
        rpos = [g for g in slots if g not in dpos]
        rpos = [max(g, 16) if i >= 8 else g for i, g in enumerate(rpos[:len(rd)])]
        flo = [It(x, q, q + 1) for x, q in zip(rd, rpos)] + flat_dma(dma, dpos) + [It(x, 0, n - 1 - (len(tog) - 1 - i)) for i, x in enumerate(tog)]
        gaps, over = schedule(n, fixed, flo)
        weave(a, mf, gaps)
    else:
        m = n - 16
        rv = frag_reads(par, 16384 * par)[8:]
        vpos = [0, 1, 2, 3, 4, 5, 6, 7, 9, 11, 13, 15, 16, 17, 18, 20]
        togv = [f"v_xor_b32 v{r}, 0x10000, v{r}" for r in range(vVA, vVA+8)] if par == 1 else []
        togk = [f"v_xor_b32 v{r}, 0x10000, v{r}" for r in range(vKA, vKA+4)] if par == 1 else []
        cand = [g for g in range(24 if p.fc else 21, m - 1)]
        dpos = [cand[(i * len(cand)) // len(dma)] for i in range(len(dma))] if dma else []
        flo = [It(x, q, q) for x, q in zip(rv, vpos)] + [It("s_waitcnt lgkmcnt(0)", 23, 23)] + flat_dma(dma, dpos) + \
              [It(x, 22, m - 1 - (11 - i)) for i, x in enumerate(togv + togk)]
        gaps, over = schedule(m, fixed[:m], flo)
        assert any("lgkmcnt" in x for x in gaps[23])
        if loader and p.fc: gaps[23] += [f"s_cmp_eq_u32 s{sWAVE}, 1", f"s_cbranch_scc1 L_fc{par}", f"L_fcb{par}:"]
        weave(a, mf[:m], gaps)
        mid(a)
        rk = frag_reads(par ^ 1, 16384 * (par ^ 1))[:8]
        gaps, o2 = schedule(16, fixed[m:], [It(x, i, i) for i, x in enumerate(rk)])
        over += o2
        weave(a, mf[m:], gaps)
    if VERB: print(f"block T{T} par{par} over", over, file=sys.stderr)

def wo_touch(a, p, t1=sT, t2=sT2):
    if p.notouch: return
    a(f"""s_add_u32 s{t2}, s{sTW}, 8192
    s_add_u32 s{t1}, s{sTW}, 10240
    buffer_load_dword v{vDUM}, v{vTCH}, s[{sWO}:{sWO+3}], s{sTW} offen {p.twfl}
    buffer_load_dword v{vDUM}, v{vTCH}, s[{sWO}:{sWO+3}], s{t2} offen {p.twfl}
    buffer_load_dword v{vDUM}, v{vTCH}, s[{sWO}:{sWO+3}], s{t1} offen {p.twfl}""")

def g_dma(fl):
    out = []
    for j in range(9):
        g = [f"s_add_u32 m0, s{gM0}, {1024*j}", "s_nop 0"] if j % 4 == 0 else []
        g.append(f"buffer_load_dwordx4 v{v2VO+j}, s[{sX}:{sX+3}], s{gSO} offen offset:{1024*(j % 4)} {fl} lds")
        out.append(g)
    return out
def g_stage_now(a, fl, st):
    a(f"s_add_u32 s{gSO}, s{gP4}, {REL[st]}\ns_and_b32 s{gSO}, s{gSO}, 15\ns_mul_i32 s{gSO}, s{gSO}, s{gSTR}\ns_add_u32 s{gSO}, s{gSO}, s{gLO}")
    a(f"s_add_u32 s{gM0}, s{gDL2}, {(st & 3)*STG}")
    emit(a, g_dma(fl), nop=False)
def o_touch(a, p, half):
    if not p.rb: return
    for o in (0, 8192, 10240):
        a(f"s_add_u32 s{sT}, s{sOB}, {half*18432 + o}\ns_nop 0\nbuffer_load_dword v{vDUM}, v{vTCH}, s[{sO}:{sO+3}], s{sT} offen")

KEEP = [16, 20, 24, 28, 192, 196, 200, 204, 224, 228]
def o_store(p, t, s, d):
    return [f"s_add_u32 s{sT}, s{sOB}, {s*9216 + (4096 if t == 4 else 0)}", "s_nop 0",
            f"buffer_store_dwordx4 {vr(d)}, v{vST}, s[{sO}:{sO+3}], s{sT} offen offset:{1024*(t & 3)} {p.ofl}"]
def lanesum(a, T, op):
    for sw in ("v_permlane32_swap_b32", "v_permlane16_swap_b32"):
        for t in range(T): a(f"v_mov_b32 v{1+t}, v{vL+t}")
        a("s_nop 1")
        for t in range(T): a(f"{sw} v{1+t}, v{vL+t}")
        a("s_nop 1")
        for t in range(T): a(f"{op} v{vL+t}, v{vL+t}, v{1+t}")

def wave_front(a, p, T, loader, tag):
    TAB = sum(REL[4+i] << (4*i) for i in range(12))
    e = 2 * p.ppe
    a(f"s_waitcnt vmcnt({4 if p.early else 4 + e + T + 4})\ns_waitcnt lgkmcnt(0)\ns_barrier")
    stamp(a, p, 1)
    for x in q_reads(5, 0, 0): a(x)
    if p.early: p.batch2(a, T)
    for dt in range(8): a(f"v_add_u32 v{vVA+dt}, s{sWD}, v{vVA+dt}")
    align(a, p)
    a(f"L_q{tag}:")
    if p.twq >= 0 and not loader:
        a(f"s_cmp_eq_u32 s{sIT}, s79\ns_cbranch_scc1 L_tq\nL_tqb:")
    qstep(a, p, T, 0)
    qstep(a, p, T, 1)
    a(f"s_cmp_lt_u32 s{sIT}, 18\ns_cbranch_scc1 L_q{tag}")
    stamp(a, p, 2)
    a(f"""v_and_b32 v1, 63, v0
    v_lshrrev_b32 v2, 4, v1
    v_bfe_u32 v3, v1, 2, 2
    v_lshl_add_u32 v2, v2, 2, v3
    v_and_b32 v3, 7, v2
    v_lshlrev_b32 v3, 1, v3
    v_bfe_u32 v4, v1, 1, 1
    v_xor_b32 v3, v3, v4
    v_lshlrev_b32 v3, 4, v3
    v_and_b32 v4, 1, v1
    v_lshl_add_u32 v3, v4, 3, v3
    v_lshl_add_u32 v3, v2, 8, v3
    s_add_u32 s{sT}, s{sRB}, 8192
    v_add_u32 v{vVA}, s{sT}, v3""")
    for dt in range(1, 8): a(f"v_xor_b32 v{vVA+dt}, {32*dt}, v{vVA}")
    dma = []
    if loader:
        if p.swap:
            a(f"""{f"s_bitcmp1_b32 s2, {p.swap}" if p.swap < 99 else f"s_bitcmp1_b32 s{sHL}, 0"}
            s_cselect_b32 s{sKV}, s{sV}, s{sK}
            s_cselect_b32 s{sKV+1}, s{sV+1}, s{sK+1}
            s_cselect_b32 s{sW}, s{sK}, s{sV}
            s_cselect_b32 s{sW+1}, s{sK+1}, s{sV+1}
            s_cselect_b32 s{sXB}, 8192, 0
            s_mov_b32 s{sW+2}, 131072
            s_add_u32 s{sXB}, s{sXB}, s{sRB}""")
        else: a(f"s_mov_b32 s{sXB}, s{sRB}")
        for n in range(2, p.kvd - (1 if p.late and not p.t3 else 0)):
            dma.append([f"s_add_u32 s{sKS}, s{sROT}, {(4 if p.par8 else 2)*n}", f"s_and_b32 s{sKS}, s{sKS}, 31", f"s_lshl_b32 s{sKS}, s{sKS}, 12",
                        f"s_add_u32 s{sKM}, s{sXB}, {65536 + 16384*(n & 1)}"])
            dma += kv_tile_dma(p, sKM, sKS)
    di = 0
    a(f"s_load_dword s{sNONCE}, s[6:7], 0")
    if p.warm and not loader:
        flag_addr(a, 1, FA)
        a(f"s_add_u32 s{sT}, s{sT}, 64\ns_load_dword s{sKN}, s[82:83], s{sT}")
    a(f"v_and_b32 v1, 63, v0\ns_lshl_b32 s{sT}, s{sHL}, 11\ns_add_u32 s{sT}, s{sT}, {QX}\nv_lshl_add_u32 v1, v1, 4, s{sT}")
    units = [(t, s) for t in range(4) for s in range(4)]
    units = ([(4, 2), (4, 3)] + units) if loader else (units + [(4, 0), (4, 1)])
    for n, (t, s) in enumerate(units):
        if n == 10:
            assert di == len(dma)
            a(f"s_waitcnt lgkmcnt(0)\ns_waitcnt vmcnt({16*(p.kvd - 2 - (1 if p.late and not p.t3 else 0)) if loader else 0})\ns_barrier")
            if not loader:
                for s2 in (2, 3): a(f"ds_read_b128 {ar(aQ + (16 + s2)*4)}, v1 offset:{1024*(s2 - 2)}")
            for x in frag_reads(0, 0)[:8 if p.late else 24]: a(x)
        for _ in range(4):
            if di < len(dma):
                for x in dma[di]: a(x)
                di += 1
        A0, B0 = acc(t, 2*s), acc(t, 2*s+1)
        for r in range(0, 8, 2): a(f"v_pk_mul_f32 {vr(A0+r, 2)}, {vr(A0+r, 2)}, s[{sSC-1}:{sSC}] op_sel:[0,1] op_sel_hi:[1,1]")
        a(f"v_cvt_pk_bf16_f32 v4, v{A0}, v{A0+1}\nv_cvt_pk_bf16_f32 v5, v{A0+2}, v{A0+3}\nv_cvt_pk_bf16_f32 v6, v{B0}, v{B0+1}\nv_cvt_pk_bf16_f32 v7, v{B0+2}, v{B0+3}")
        for r in range(0, 4, 2): a(f"v_pk_mov_b32 {vr(A0+r, 2)}, 0, 0")
        a("v_permlane32_swap_b32 v4, v6\nv_permlane32_swap_b32 v5, v7")
        for r in range(0, 4, 2): a(f"v_pk_mov_b32 {vr(B0+r, 2)}, 0, 0")
        a("v_permlane16_swap_b32 v4, v6\nv_permlane16_swap_b32 v5, v7\ns_nop 0")
        if loader and t == 4:
            a(f"ds_write_b128 v1, v[4:7] offset:{1024*(s - 2)}\ns_nop 1")
        else:
            q = aQ + (t*4+s)*4
            for r in (0, 2, 1, 3): a(f"v_accvgpr_write_b32 a{q+r}, v{4+r}")
    for t in range(T): a(f"v_mov_b32 v{vL+t}, 0")
    for j in range(8): a(f"v_mov_b32 v{vS[1]+j}, 0")
    if loader:
        a(f"""s_mov_b32 s{sX}, s{sWO}
        s_mov_b32 s{sX+1}, s{sWO+1}
        s_mov_b32 s{sX+2}, s{sWO+2}
        s_and_b32 s{gLO}, s3, 3
        s_lshl_b32 s{gLO}, s{gLO}, 10
        s_lshl_b32 s{sT}, s{sHL}, 5
        s_add_u32 s{gLO}, s{gLO}, s{sT}
        s_mul_i32 s{gLO}, s{gLO}, 1152
        s_mul_i32 s{sT}, s4, 288
        s_add_u32 s{gLO}, s{gLO}, s{sT}
        s_mov_b32 s{gSTR}, {0 if p.exp & 1 else 73728}
        s_mul_i32 s{gDL2}, s{sHL}, 9216
        s_add_u32 s{gDL2}, s{gDL2}, 18432""")
    else:
        a(f"""s_mov_b32 s{sX}, s{sO}
        s_mov_b32 s{sX+1}, s{sO+1}
        s_mov_b32 s{sX+2}, s{sO+2}
        s_lshl_b32 s{sT}, s4, 1
        s_add_u32 s{sT}, s{sT}, s{sHL}
        s_mul_i32 s{sT}, s{sT}, {4*9216}
        s_sub_u32 s{gLO}, s{sOB}, s{sT}
        s_mul_i32 s{gDL2}, s{sHL}, 9216
        s_add_u32 s{gLO}, s{gLO}, s{gDL2}
        s_movk_i32 s{gSTR}, {0 if p.exp & 2 else 18432}""")
    a(f"""s_lshl_b32 s{gP4}, s4, 2
    s_mov_b32 s{gTAB}, {TAB & 0xffffffff:#x}
    s_mov_b32 s{gTAB+1}, {TAB >> 32:#x}
    s_mov_b32 s{gREDO}, 0
    s_mov_b32 s{sNEG}, {(127+40) << 23:#x}
    s_mov_b32 s{sIT}, 0
    s_mov_b32 s{sHI}, 0""")
    if p.warm and not loader:
        flag_addr(a, 1, FA)
        a(f"""s_add_u32 s{sT}, s{sT}, 64
        v_and_b32 v1, 7, v0
        s_lshr_b32 s80, s3, 2
        s_lshl_b32 s80, s80, 3
        s_add_u32 s80, s80, s5
        s_lshl_b32 s80, s80, 2
        s_add_u32 s80, s80, s4
        s_mul_i32 s80, s80, {PBLK}
        s_add_u32 s80, s80, {P_OFF}
        s_mov_b32 s81, {64*PBLK}
        v_mad_u32_u24 v2, v1, s81, v1
        v_sub_u32 v2, v2, v1
        v_add_u32 v2, s80, v2
        v_mov_b32 v3, s{sT}
        v_cmp_gt_u32 vcc, 4, v1
        s_nop 1
        v_cndmask_b32 v2, v3, v2, vcc
        global_load_dword v{vDUM}, v2, s[82:83] sc1""")
    a(f"s_cmp_eq_u32 s{sNONCE}, 0\ns_cbranch_scc1 L_tag{tag}\nL_tagb{tag}:")
    if loader and p.fc:
        a(f"""s_lshr_b32 s{sPA}, s2, 3
        s_lshl_b32 s{sPA}, s{sPA}, 7
        s_add_u32 s{sPA}, s{sPA}, {FP}
        s_lshl_b32 s{sT}, s3, 2
        s_add_u32 s{sT}, s{sT}, s{sPA}
        v_mov_b32 v{vFL}, s{sT}""")
    out = A()
    out(f"""L_tag{tag}:
    s_memrealtime s[80:81]
    v_mov_b32 v1, 0
    v_mov_b32 v3, 0
    s_waitcnt lgkmcnt(0)
    s_or_b32 s80, s80, 1
    v_mov_b32 v2, s80
    s_mov_b64 exec, 1
    global_atomic_cmpswap v4, v1, v[2:3], s[6:7] sc0 sc1
    s_waitcnt vmcnt(0)
    s_mov_b64 exec, -1
    v_readfirstlane_b32 s{sNONCE}, v4
    s_nop 1
    s_cmp_eq_u32 s{sNONCE}, 0
    s_cselect_b32 s{sNONCE}, s80, s{sNONCE}
    s_branch L_tagb{tag}""")
    if p.twq >= 0 and not loader:
        out("L_tq:")
        wo_touch(out, p, 80, 81)
        out("s_branch L_tqb")
    align(a, p)
    a(f"L_a{tag}:")
    for par in range(2):
        dist = p.kvd - (1 if p.late else 0)
        def kvbook(a):
            e0 = p.late and p.t3 and par == 0
            if p.par8: a(f"s_add_u32 s{sT}, s{sIT}, {dist+par}\ns_lshl_b32 s{sKS}, s{sT}, 2\ns_lshr_b32 s{sT}, s{sT}, 2\ns_and_b32 s{sT}, s{sT}, 2\ns_add_u32 s{sKS}, s{sKS}, s{sT}")
            else: a(f"s_lshl_b32 s{sKS}, s{sIT}, 1\ns_add_u32 s{sKS}, s{sKS}, {2*(dist+par)}")
            a(f"""s_add_u32 s{sKS}, s{sKS}, s{sROT}
            s_and_b32 s{sKS}, s{sKS}, 31
            s_lshl_b32 s{sKS}, s{sKS}, 12
            s_xor_b32 s{sKM}, s{sHI}, {0x10000 * (((dist + par) >> 1) & 1)}
            s_add_u32 s{sKM}, s{sKM}, s{sXB}
            s_add_u32 s{sKM}, s{sKM}, {16384*((dist + par) & 1)}
            {f"s_sub_u32 s{sT}, s{sIT}, 1" if e0 else ""}
            s_cmp_ge_u32 s{sT if e0 else sIT}, {16 - dist - par - (1 if e0 else 0)}
            s_cselect_b32 s{sKM}, {LDSOOB}, s{sKM}
            s_cselect_b32 s{sKS}, {OOB}, s{sKS}""")
        def hooks(a):
            if loader:
                a(f"s_cmp_ge_u32 s{sIT}, {14 - 2*par}\ns_cbranch_scc1 L_w{par}\nL_wb{par}:")
                out(f"L_w{par}:")
                if par == 0: g_stage_now(out, p.wofl, 1)
                else:
                    out(f"s_cmp_eq_u32 s{sIT}, 12\ns_cbranch_scc0 L_w1b")
                    g_stage_now(out, p.wofl, 0)
                    out("s_branch L_wb1\nL_w1b:")
                    g_stage_now(out, p.wofl, 2)
                    g_stage_now(out, p.wofl, 3)
                out(f"s_branch L_wb{par}")
            elif par == 0 and p.twown >= 0:
                a(f"""s_cmp_eq_u32 s{sIT}, {p.twown}
                s_cbranch_scc0 L_nt{tag}
                s_and_b32 s{sT}, s3, 3
                s_lshl_b32 s{sT}, s{sT}, 2
                s_add_u32 s{sT}, s{sT}, s4
                s_lshl_b32 s{sT}, s{sT}, 3
                s_add_u32 s{sT}, s{sT}, s5
                s_lshl_b32 s{sT}, s{sT}, 1
                s_add_u32 s{sT}, s{sT}, s{sHL}
                s_mul_i32 s{sT}, s{sT}, {16*1152}
                s_mul_i32 s{sT2}, s4, 288
                s_and_b32 s{sT2}, s{sT2}, 0xff80
                s_add_u32 s{sT}, s{sT}, s{sT2}
                v_and_b32 v1, 63, v0
                v_lshrrev_b32 v2, 2, v1
                v_mul_u32_u24 v2, 1152, v2
                v_and_b32 v1, 3, v1
                v_lshl_add_u32 v1, v1, 7, v2
                buffer_load_dword v{vDUM}, v1, s[{sWO}:{sWO+3}], s{sT} offen {p.twfl}
                L_nt{tag}:""")
            elif par == 0 and p.twpos < 15:
                a(f"s_cmp_eq_u32 s{sIT}, {p.twpos}\ns_cbranch_scc0 L_nt{tag}")
                wo_touch(a, p)
                a(f"L_nt{tag}:")
        def top(a):
            if loader: kvbook(a)
            a("s_waitcnt lgkmcnt(0)")
            if loader and p.fc:
                out(f"""L_fc{par}:
                s_add_u32 s74, s{sIT}, {par}
                s_add_u32 s75, s74, s{sNONCE}
                v_mov_b32 v2, s75
                s_mov_b64 exec, 1
                global_store_dword v{vFL}, v2, s[82:83] sc1
                s_mov_b64 exec, -1
                s_mov_b32 s76, 0
                s_cmp_lt_u32 s74, {p.fc + 1}
                s_cbranch_scc1 L_fce{par}
                L_fcl{par}:""")
                for j in range(8): out(f"s_sub_u32 s{sPG+j}, s{sPG+j}, s{sNONCE}\ns_cmp_gt_u32 s{sPG+j}, 31\ns_cselect_b32 s{sPG+j}, 0, s{sPG+j}")
                for j in range(1, 8): out(f"s_min_u32 s{sPG}, s{sPG}, s{sPG+j}")
                out(f"""s_add_u32 s{sPG}, s{sPG}, {p.fc}
                s_cmp_ge_u32 s{sPG}, s74
                s_cbranch_scc1 L_fce{par}
                s_add_u32 s76, s76, 1
                s_cmp_ge_u32 s76, {p.fcs}
                s_cbranch_scc1 L_fce{par}
                s_load_dwordx8 s[{sPG}:{sPG+7}], s[82:83], s{sPA} glc
                s_waitcnt lgkmcnt(0)
                s_branch L_fcl{par}
                L_fce{par}:
                s_load_dwordx8 s[{sPG}:{sPG+7}], s[82:83], s{sPA} glc
                s_branch L_fcb{par}""")
            if not p.late:
                if loader: a(f"s_waitcnt vmcnt({16*(p.kvd - 2)})")
                a("s_barrier")
                hooks(a)
        def mid(a):
            if loader: a(f"s_waitcnt vmcnt({16*(dist - 1)})")
            a("s_barrier")
            hooks(a)
        block(a, p, T, par, loader, top, mid)
    a(f"s_xor_b32 s{sHI}, s{sHI}, 0x10000\ns_add_u32 s{sIT}, s{sIT}, 2\ns_cmp_lt_u32 s{sIT}, 16\ns_cbranch_scc1 L_a{tag}")
    S = vS[(2*T - 1) & 1]
    a("s_nop 0")
    for x in soft2(S, T-1): a(x)
    for x in pv(S, aV[1], T-1): a(x)
    stamp(a, p, 3)
    a(f"L_e{tag}:")
    if not loader and p.twpos == 16: wo_touch(a, p)
    lanesum(a, T, "v_add_f32")
    a(f"v_mov_b32 v6, v{vL}\nv_mov_b32 v7, v{vL}")
    for t in range(1, T): a(f"v_min_u32 v6, v6, v{vL+t}\nv_max_u32 v7, v7, v{vL+t}")
    a(f"""v_cmp_gt_u32 vcc, {(127-20) << 23:#x}, v6
    v_cmp_lt_u32 s[80:81], s{sNEG}, v7
    s_nop 1
    s_or_b64 vcc, vcc, s[80:81]
    {'s_mov_b64 vcc, -1' if p.force else ''}
    s_cbranch_vccz L_ok{tag}
    v_mov_b32 v6, {LFLAG}
    v_mov_b32 v7, 1
    ds_write_b32 v6, v7
    L_ok{tag}:""")
    for t in range(T): a(f"v_rcp_f32 v{vL+t}, v{vL+t}")
    a("s_nop 0")
    buf = 0
    for sp in range(2):
        for n, (t, s) in enumerate([(t, 2*sp + k) for t in range(T) for k in range(2)]):
            A0 = acc(t, 2*s)
            rp = (vL + t) & ~1
            sel = (vL + t) & 1
            for r in range(0, 8, 2): a(f"v_pk_mul_f32 {vr(A0+r, 2)}, {vr(A0+r, 2)}, {vr(rp, 2)} op_sel:[0,{sel}] op_sel_hi:[1,{sel}]")
            if sp == 0 or not p.defer: d = (8, 12, 80, 84)[buf & 3]; buf += 1
            else: d = KEEP[n]
            for r in range(4): a(f"v_cvt_pk_bf16_f32 v{d+r}, v{A0+2*r}, v{A0+2*r+1}")
            a(f"ds_write_b128 v{vOW}, {vr(d)} offset:{(s >> 1)*STG + (s & 1)*9216 + 1024*t}")
            if sp == 0 or not p.defer:
                for x in o_store(p, t, s, d): a(x)
            for r in range(0, 8, 2):
                if A0 + r < v2ACC + 84: a(f"v_pk_mov_b32 {vr(A0+r, 2)}, 0, 0")
    if not loader and p.twpos == 17: wo_touch(a, p)
    a(f"""s_mov_b32 s{gST}, 0
    s_mov_b32 s{gRI}, 0
    s_mov_b32 s{gC1}, {STG}
    s_mov_b32 s{gC2}, {-3*STG}
    s_mov_b32 s{gDL}, {STG}
    s_mov_b32 s{gM0}, {LDSOOB}
    s_mov_b32 m0, {LDSOOB}
    s_mov_b32 s{gSO}, {OOB}
    s_mov_b32 s{gDST}, s{gDL2}
    v_mov_b32 v1, {LFLAG}""")
    if True:
        flag_addr(a, 1, FA)
        CHK = 0x3cf
        a(f"""s_add_u32 s{gFP}, s82, s{sT}
        s_addc_u32 s{gFP+1}, s83, 0
        s_lshl_b32 s{sT}, s4, 2
        v_mov_b32 v{vPA}, s{sT}
        v_mov_b32 v{vNZ}, s{sNONCE}
        s_mov_b32 s{gOFF}, 0
        s_mov_b32 s{gCHK}, {CHK}
        s_cmp_eq_u32 s{sWAVE}, 0
        s_cselect_b32 s{gPOST}, 8, 0
        s_mov_b32 s{gMASK}, {7 if loader else CHK | CHK >> 1}
        s_mov_b64 s[{gF}:{gF+1}], 0""")
    a(f"s_waitcnt lgkmcnt(0)\ns_waitcnt vmcnt({(0 if p.pa < 0 and p.defer else 2*T) + (3 if not loader and p.twpos == 17 else 0)})")
    a("s_branch L_gemm")
    a.l += out.l
    a(f"L_redo{tag}:")
    a(f"s_waitcnt vmcnt(0) lgkmcnt(0)\ns_barrier\nv_mov_b32 v6, {LFLAG}\nv_mov_b32 v7, 0\nds_write_b32 v6, v7")
    for r in list(range(vKA, vKA+4)) + list(range(vVA, vVA+8)): a(f"v_and_b32 v{r}, 0xffff, v{r}")
    for t in range(T): a(f"v_mov_b32 v{vL+t}, 0xff800000")
    for ps in range(2):
        a(f"s_mov_b32 s{sKS}, 0\nL_r{ps}{tag}:")
        if loader:
            emit(a, kv_tile_dma(p, sRB, sKS, (0, 1) if ps == 0 else (0, 1, 2, 3), plain=True), nop=False)
        a("s_waitcnt vmcnt(0)\ns_barrier")
        for x in frag_reads(0, 0)[:8 if ps == 0 else 24]: a(x)
        a("s_waitcnt lgkmcnt(0)\ns_barrier")
        for t in range(T):
            S = vS[0]
            for x in qk(S, aK[0], t, "0" if ps == 0 else vr(vNM + 4*t)): a(x)
            a("s_nop 7")
            if ps == 0:
                for j in range(0, 8, 2): a(f"v_max3_f32 v{vL+t}, v{vL+t}, v{S+j}, v{S+j+1}")
            else:
                for j in range(8): a(f"v_exp_f32 v{S+j}, v{S+j}")
                for x in soft2(S, t) + pv(S, aV[0], t): a(x)
        a(f"s_add_u32 s{sKS}, s{sKS}, 8192\ns_cmp_lt_u32 s{sKS}, 131072\ns_cbranch_scc1 L_r{ps}{tag}")
        if ps == 0:
            lanesum(a, T, "v_max_f32")
            for t in range(T):
                for r in range(4): a(f"v_sub_f32 v{vNM + 4*t + r}, 0, v{vL+t}")
                a(f"v_mov_b32 v{vL+t}, 0")
            for r in range(32 * T): a(f"v_mov_b32 v{vACC+r}, 0")
    a("s_barrier")
    if loader:
        for st in range(4): g_stage_now(a, p.wofl, st)
    a(f"s_mov_b32 s{gREDO}, 1\ns_branch L_e{tag}")

def g_reads(par, off):
    A_, B_ = a2A[par], a2B[par]
    rd = []
    for nt in range(3):
        reg, o = (v2A, 32 * nt) if nt < 2 else (v2A + 1, 0)
        rd.append(f"ds_read_b64_tr_b16 {ar(A_ + 4*nt, 2)}, v{reg} offset:{off + o}")
        rd.append(f"ds_read_b64_tr_b16 {ar(A_ + 4*nt + 2, 2)}, v{reg} offset:{off + o + 4608}")
    for u in range(9):
        reg, o = (v2B, 1024 * u) if u < 3 else (v2B + 1 + (u - 3) // 2, 1024 * ((u - 3) & 1))
        rd.append(f"ds_read_b128 {ar(B_ + 4*u)}, v{reg} offset:{off + o}" if not (EXP & 256 and u >= 6) else "s_nop 0")
    return rd
def g_mf(par):
    return [f"{MF} {vr(acc2(nt, u))}, {ar(a2A[par] + 4*nt)}, {ar(a2B[par] + 4*u)}, {vr(acc2(nt, u))}" for u in range(9) for nt in range(3 if u < 3 else 2)]

def flag_addr(a, hop, base):
    if hop == 1: a(f"s_lshr_b32 s{sT}, s2, 5\ns_lshl_b32 s{sT}, s{sT}, 3\ns_add_u32 s{sT}, s{sT}, s3")
    else: a(f"s_lshr_b32 s{sT}, s2, 2")
    a(f"s_lshl_b32 s{sT}, s{sT}, {8 if hop == 1 else 7}\ns_add_u32 s{sT}, s{sT}, {base}")
def poll_issue(a):
    a(f"s_load_dwordx4 s[{gF}:{gF+3}], s[82:83], s{sT} glc")
def poll(a, tag, hop, base, issued=False, lim=SPIN, fail=None):
    flag_addr(a, hop, base)
    a(f"s_mov_b32 s{sT2}, 0")
    if issued: a(f"s_branch L_pc{tag}")
    a(f"L_p{tag}:")
    poll_issue(a)
    a(f"""L_pc{tag}:
    s_waitcnt lgkmcnt(0)
    s_xor_b32 s{gF}, s{gF}, s{sNONCE}
    s_xor_b32 s{gF+1}, s{gF+1}, s{sNONCE}
    s_xor_b32 s{gF+2}, s{gF+2}, s{sNONCE}
    s_xor_b32 s{gF+3}, s{gF+3}, s{sNONCE}
    s_or_b64 s[{gF}:{gF+1}], s[{gF}:{gF+1}], s[{gF+2}:{gF+3}]
    s_cbranch_scc0 L_pd{tag}
    s_add_u32 s{sT2}, s{sT2}, 1
    s_cmp_lt_u32 s{sT2}, {lim}
    s_cbranch_scc1 L_p{tag}
    {f"s_cmp_eq_u32 {lim}, 0" if fail else ""}
    {f"s_cbranch_scc1 {fail}" if fail else ""}
    L_pd{tag}:""")
def vpoll(a, tag, hop, base):
    flag_addr(a, hop, base)
    a(f"""v_and_b32 v1, 3, v0
    v_lshl_add_u32 v1, v1, 2, s{sT}
    s_mov_b32 s{sT}, 0
    L_p{tag}:
    global_load_dword v2, v1, s[82:83] sc1
    s_add_u32 s{sT}, s{sT}, 1
    s_waitcnt vmcnt(0)
    v_cmp_ne_u32 vcc, s{sNONCE}, v2
    s_cmp_lt_u32 s{sT}, {SPIN}
    s_cbranch_vccz L_pd{tag}
    s_cbranch_scc1 L_p{tag}
    L_pd{tag}:""")
def post(a, hop, base):
    flag_addr(a, hop, base)
    if hop == 1: a(f"s_lshl_b32 s{sT2}, s4, 2")
    else: a(f"s_and_b32 s{sT2}, s2, 3\ns_lshl_b32 s{sT2}, s{sT2}, 2")
    a(f"""s_add_u32 s{sT}, s{sT}, s{sT2}
    v_mov_b32 v1, s{sT}
    v_mov_b32 v2, s{sNONCE}
    s_mov_b64 exec, 1
    global_store_dword v1, v2, s[82:83] sc1
    s_mov_b64 exec, -1""")

def gemm_loop(a, out, p, role):
    fl = p.wofl if role == "w" else p.olfl
    d = g_dma(fl)
    align(a, p)
    a(f"L_g{role}:\ns_waitcnt lgkmcnt(6)")
    r = g_reads(1, 9216)
    upd = [f"v_add_u32 v{x}, s{gDL}, v{x}" for x in (v2A, v2A + 1, v2B, v2B + 1, v2B + 2, v2B + 3)]
    book0 = [f"s_add_u32 s{gRI}, s{gRI}, 1", f"s_and_b32 s{gRI}, s{gRI}, 3", f"s_cmp_eq_u32 s{gRI}, 3", f"s_cselect_b32 s{gDL}, s{gC2}, s{gC1}"]
    book2 = [f"s_and_b32 s{gSRC}, s{gTAB}, 15", f"s_lshr_b64 s[{gTAB}:{gTAB+1}], s[{gTAB}:{gTAB+1}], 4", f"s_add_u32 s{gSRC}, s{gSRC}, s{gP4}",
             f"s_and_b32 s{gSRC}, s{gSRC}, 15", f"s_mul_i32 s{gSRC}, s{gSRC}, s{gSTR}", f"s_add_u32 s{gSRC}, s{gSRC}, s{gLO}"]
    book1 = book2 + [f"s_cmp_ge_u32 s{gST}, 12", f"s_cselect_b32 s{gM0}, {LDSOOB}, s{gDST}", f"s_cselect_b32 s{gSO}, {OOB}, s{gSRC}",
             f"s_add_u32 s{gDST}, s{gDST}, s{gDL}"] + book0 + [f"s_bitcmp1_b32 s{gMASK}, s{gST}"]
    rp = [0, 0, 1, 1, 2, 2, 3, 5, 6, 8, 9, 11, 12, 14, 15]
    flo = [It(x, q, q) for x, q in zip(r[:9], rp)] + [It("s_waitcnt lgkmcnt(9)", 7, 8)] + [It(x, q, q) for x, q in zip(r[9:], rp[9:])] + \
          flat_dma(d[3:], [4, 7, 10, 13, 16, 19]) + [It(x, 0, 20) for x in upd]
    flo[9].W = {"x"}; flo[9].R = set()
    for it in flo[10:16]: it.R = it.R | {"x"}
    gaps, over = schedule(21, [], flo)
    assert any("lgkmcnt" in x for g in gaps[7:9] for x in g)
    if VERB: print("gemm step0 over", over, file=sys.stderr)
    weave(a, g_mf(0), gaps)
    mf = g_mf(1)
    a("s_waitcnt lgkmcnt(6)")
    gaps, over = schedule(6, [], [It(x, 0, 5) for x in book1])
    weave(a, mf[:6], gaps)
    if role == "o": a(f"s_cbranch_scc1 L_ho\ns_waitcnt lgkmcnt(0)\ns_waitcnt vmcnt(18)\ns_barrier\nL_hc{role}:")
    else: a(f"s_waitcnt lgkmcnt(0)\ns_cbranch_scc1 L_hw\ns_waitcnt vmcnt(18)\nL_hw:\ns_barrier\nL_hc{role}:")
    if p.gprof: a(f"s_mov_b32 m0, s{gST}\nv_writelane_b32 v31, s98, m0\n{'s_memtime' if p.cyc else 's_memrealtime'} s[98:99]")
    r = g_reads(0, 0)
    rp = [0, 0, 1, 1, 2, 2, 3, 4, 5, 7, 8, 10, 11, 13, 14]
    gaps, over = schedule(15, [], [It(x, q, q) for x, q in zip(r, rp)] + flat_dma(d[:3], [6, 9, 12]) + [It(f"s_add_u32 s{gST}, s{gST}, 1", 7, 14), It(f"s_cmp_lt_u32 s{gST}, 16", 7, 14)])
    if VERB: print("gemm step1 over", over, file=sys.stderr)
    weave(a, mf[6:], gaps)
    a(f"s_cbranch_scc1 L_g{role}")
    if role == "w": return
    out(f"""L_ho:
    s_waitcnt lgkmcnt(0)
    s_bitcmp1_b32 s{gCHK}, s{gST}
    s_cbranch_scc0 L_hx
    s_mov_b32 s{sT2}, 0
    L_hk:
    s_xor_b64 s[{gF}:{gF+1}], s[{gF}:{gF+1}], s[{gNN}:{gNN+1}]
    s_xor_b64 s[{gF+2}:{gF+3}], s[{gF+2}:{gF+3}], s[{gNN}:{gNN+1}]
    s_or_b64 s[{gF}:{gF+1}], s[{gF}:{gF+1}], s[{gF+2}:{gF+3}]
    s_cbranch_scc0 L_hr
    s_bitcmp1_b32 0x208, s{gST}
    s_cbranch_scc1 L_hs
    s_mov_b32 s{gM0}, {LDSOOB}
    s_mov_b32 s{gSO}, {OOB}
    L_hx:
    s_cmp_lt_u32 s{gST}, 3
    s_cbranch_scc1 L_hn
    s_waitcnt vmcnt(18)
    L_hn:
    s_barrier
    s_lshr_b32 s{sT}, s{gCHK}, 1
    s_bitcmp1_b32 s{sT}, s{gST}
    s_cbranch_scc0 L_hp
    s_load_dwordx4 s[{gF}:{gF+3}], s[{gFP}:{gFP+1}], s{gOFF} glc
    L_hp:
    s_bitcmp1_b32 s{gPOST}, s{gST}
    s_cbranch_scc0 L_hco
    s_mov_b64 exec, 1
    global_store_dword v{vPA}, v{vNZ}, s[{gFP}:{gFP+1}] offset:128 sc1
    s_mov_b64 exec, -1
    s_branch L_hco
    L_hs:
    s_add_u32 s{sT2}, s{sT2}, 1
    s_cmp_ge_u32 s{sT2}, {SPIN}
    s_cbranch_scc1 L_hr
    s_load_dwordx4 s[{gF}:{gF+3}], s[{gFP}:{gFP+1}], s{gOFF} glc
    s_waitcnt lgkmcnt(0)
    s_branch L_hk
    L_hr:
    s_mov_b32 s44, s{gM0}
    s_mov_b32 s45, s{gSO}
    s_cmp_eq_u32 s{gOFF}, 0
    s_cbranch_scc0 L_hr1""")
    for ph, lo in enumerate((0, 6)):
        out(f"L_hr{ph}:")
        if ph == 0: stamp(out, p, 5)
        out(f"s_movk_i32 s{gOFF}, 128\ns_and_b32 s{gCHK}, s{gCHK}, {0x3c0 if ph == 0 else 0}\ns_mov_b32 s{gMASK}, {0x3ef if ph == 0 else 0}")
        for j in range(3):
            out(f"s_cmp_gt_u32 s{gST}, {lo + j}\ns_cbranch_scc0 L_hy")
            g_stage_now(out, fl, lo + 4 + j)
        if ph == 0: out("s_branch L_hy")
    out(f"L_hy:\ns_mov_b32 s{gM0}, s44\ns_mov_b32 s{gSO}, s45\ns_branch L_hx")

def back(a, p):
    out = A()
    a(f"""L_gemm:
    s_barrier""")
    stamp(a, p, 4)
    a("ds_read_b32 v2, v1")
    rd0 = g_reads(0, 0)
    for x in rd0[:12]: a(x)
    a(f"""s_waitcnt lgkmcnt(12)
    v_readfirstlane_b32 s{sT}, v2
    {rd0[12]}
    {rd0[13]}
    {rd0[14]}
    s_andn2_b32 s{sT}, s{sT}, s{gREDO}
    s_cbranch_scc1 L_redo
    s_mov_b32 s{gNN}, s{sNONCE}
    s_mov_b32 s{gNN+1}, s{sNONCE}
    s_bitcmp1_b32 s{sWAVE}, 0
    s_cbranch_scc1 L_gw
    s_lshr_b32 exec_lo, s{gPOST}, 3
    s_mov_b32 exec_hi, 0
    global_store_dword v{vPA}, v{vNZ}, s[{gFP}:{gFP+1}] sc1
    s_mov_b64 exec, -1""")
    if p.twpos == 18: wo_touch(a, p)
    out(f"""L_redo:
    s_bitcmp1_b32 s{sWAVE}, 0
    s_cbranch_scc1 L_redos
    s_branch L_redob""")
    gemm_loop(a, out, p, "o")
    a("s_branch L_ge")
    gemm_loop(a, out, p, "w")
    a("L_ge:")
    stamp(a, p, 6)
    a(f"""s_and_b32 s{sT}, s3, 3
    s_lshl_b32 s60, s{sT}, 4
    s_lshr_b32 s61, s3, 2
    s_lshl_b32 s61, s61, 3
    s_add_u32 s61, s61, s5
    s_add_u32 s60, s60, s61
    s_lshl_b32 s60, s60, 2
    s_add_u32 s60, s60, s4
    s_mul_i32 s60, s60, {PBLK}
    s_add_u32 s{sW}, s82, {P_OFF}
    s_addc_u32 s{sW+1}, s83, 0
    s_mov_b32 s{sW+2}, {256*PBLK}
    s_mul_i32 s62, s{sWAVE}, 9216
    s_add_u32 s62, s62, s60
    v_and_b32 v2, 63, v0
    v_lshlrev_b32 v3, 4, v2
    v_lshlrev_b32 v4, 3, v2
    s_lshl_b32 s63, s{sWAVE}, 1
    s_cmp_eq_u32 s{sWAVE}, 0
    s_cselect_b32 s{gQ1}, 3, 0
    s_cmp_lt_u32 s{sWAVE}, 2
    s_cselect_b32 s{gQ2}, 5, 2
    s_cmp_lt_u32 s{sWAVE}, 3
    s_cselect_b32 s{gQ3}, 7, 4""")
    qs = [63, 63, 63, gQ1, gQ1, gQ2, gQ2, gQ3, gQ3]
    qo = [0, 1, 2, 0, 1, 0, 1, 0, 1]
    a(f"s_and_b32 s{sT}, s3, 3\ns_cmp_eq_u32 s{sT}, s{sWAVE}\ns_cbranch_scc1 L_own")
    for own in range(2):
        if own: a(f"s_branch L_pe\nL_own:")
        for u in range(9):
            d = 8 + 4 * (u & 3)
            A0, B0 = acc2(0, u), acc2(1, u)
            a(f"v_cvt_pk_bf16_f32 v{d}, v{A0}, v{A0+1}\nv_cvt_pk_bf16_f32 v{d+1}, v{A0+2}, v{A0+3}\nv_cvt_pk_bf16_f32 v{d+2}, v{B0}, v{B0+1}\nv_cvt_pk_bf16_f32 v{d+3}, v{B0+2}, v{B0+3}")
            if own:
                if qo[u] == 0: a(f"s_lshl_b32 s{sT}, s{qs[u]}, 10\nv_add_u32 v5, s{sT}, v3")
                a(f"ds_write_b128 v5, {vr(d)} offset:{PL + 1024*qo[u]}")
            else:
                a(f"s_lshl_b32 s{sT}, s{qs[u]}, 10\ns_add_u32 s{sT}, s{sT}, s62")
                a(f"buffer_store_dwordx4 {vr(d)}, v3, s[{sW}:{sW+3}], s{sT} offen offset:{1024*qo[u]} {p.pfl}")
        if not own: a(f"s_lshl_b32 s{sT}, s63, 9\ns_add_u32 s{sT}, s{sT}, s60\ns_add_u32 s{sT}, s{sT}, 36864")
        for u in range(3):
            d = 24 + 2 * u
            A0 = acc2(2, u)
            if u == 2 and not own: a(f"s_cmp_eq_u32 s{sWAVE}, 3\ns_cbranch_scc0 L_pe")
            a(f"v_cvt_pk_bf16_f32 v{d}, v{A0}, v{A0+1}\nv_cvt_pk_bf16_f32 v{d+1}, v{A0+2}, v{A0+3}")
            if own: a(f"ds_write_b64 v4, {vr(d, 2)} offset:{PL + 9216 + 512*u}")
            else: a(f"buffer_store_dwordx2 {vr(d, 2)}, v4, s[{sW}:{sW+3}], s{sT} offen offset:{512*u} {p.pfl}")
    a("L_pe:")
    a("s_load_dwordx2 s[68:69], s[0:1], 80")
    a(f"""s_and_b32 s64, s3, 3
    s_lshl_b32 s65, s61, 2
    s_add_u32 s65, s65, s4
    s_mul_i32 s65, s65, {PBLK}
    s_mul_i32 s66, s64, 9216
    s_add_u32 s66, s66, s65
    s_lshl_b32 s{sT}, s{sWAVE}, 10
    s_add_u32 s66, s66, s{sT}
    s_lshl_b32 s67, s64, 1
    s_add_u32 s67, s67, s{sWAVE}
    s_sub_u32 s67, s67, 1
    s_lshl_b32 s72, s67, 9
    s_add_u32 s72, s72, s65
    s_add_u32 s72, s72, 36864
    s_lshr_b32 s73, s3, 2
    s_mul_i32 s73, s73, 1152
    s_mul_i32 s{sT}, s4, 288
    s_add_u32 s73, s73, s{sT}
    s_mul_i32 s{sT}, s5, {144*2304}
    s_add_u32 s73, s73, s{sT}
    s_mul_i32 s74, s67, {16*2304}
    s_add_u32 s74, s74, s73
    s_add_u32 s74, s74, 256
    s_lshl_b32 s{sT}, s64, 6
    s_add_u32 s73, s73, s{sT}
    s_mul_i32 s{sT}, s{sWAVE}, {16*2304}
    s_add_u32 s73, s73, s{sT}
    s_cmp_eq_u32 s{sWAVE}, 3
    s_cselect_b32 s75, 8, s67
    s_cmp_eq_u32 s75, s67
    s_cselect_b32 s72, s72, {OOB}
    s_cselect_b32 s74, s74, {OOB}
    v_and_b32 v5, 15, v2
    s_movk_i32 s{sT}, 2304
    v_lshrrev_b32 v6, 4, v2
    v_lshlrev_b32 v6, 3, v6
    v_mad_u32_u24 v7, v5, s{sT}, v6
    s_mov_b32 s70, {8*144*1152*2}
    s_mov_b32 s71, 0x20000
    s_add_u32 s76, s64, 1
    s_add_u32 s77, s64, 2
    s_add_u32 s78, s64, 3
    s_and_b32 s76, s76, 3
    s_and_b32 s77, s77, 3
    s_and_b32 s78, s78, 3
    s_mul_i32 s76, s76, {64*PBLK}
    s_mul_i32 s77, s77, {64*PBLK}
    s_mul_i32 s78, s78, {64*PBLK}
    v_add_u32 v9, 4096, v3
    s_lshl_b32 s{sT}, s{sWAVE}, 10
    v_add_u32 v10, s{sT}, v3
    s_lshl_b32 s{sT}, s{sWAVE}, 9
    v_add_u32 v11, s{sT}, v4
    s_waitcnt vmcnt(0) lgkmcnt(0)
    s_barrier
    s_cmp_eq_u32 s{sWAVE}, 0
    s_cbranch_scc0 L_n1""")
    post(a, 2, F2)
    a(f"ds_read_b128 v[128:131], v3 offset:{PL + 8192}\ns_branch L_n2\nL_n1:\nds_read_b64 v[128:129], v11 offset:{PL + 9216 - 512}\nL_n2:")
    a(f"ds_read_b128 v[96:99], v10 offset:{PL}\nds_read_b128 v[112:115], v10 offset:{PL + 4096}")
    if p.vp2: vpoll(a, "2", 2, F2)
    else: poll(a, "2", 2, F2)
    stamp(a, p, 7)
    def red(src, stride, n, dst):
        for i in range(n):
            for k in range(4):
                r = src + stride * k + i
                if k == 0: a(f"v_lshlrev_b32 v80, 16, v{r}\nv_and_b32 v81, 0xffff0000, v{r}")
                else: a(f"v_lshlrev_b32 v82, 16, v{r}\nv_and_b32 v83, 0xffff0000, v{r}\nv_pk_add_f32 v[80:81], v[80:81], v[82:83]")
            a(f"v_cvt_pk_bf16_f32 v{dst+i}, v80, v81")
    for u in range(2):
        for k in range(3):
            a(f"s_add_u32 s{sT}, s66, s{76+k}\nbuffer_load_dwordx4 {vr(100 + 16*u + 4*k)}, v{3 if u == 0 else 9}, s[{sW}:{sW+3}], s{sT} offen {p.plfl}")
    a(f"s_cmp_eq_u32 s{sWAVE}, 0\ns_cbranch_scc0 L_r3\ns_add_u32 s66, s66, 8192")
    for k in range(3):
        a(f"s_add_u32 s{sT}, s66, s{76+k}\nbuffer_load_dwordx4 {vr(132 + 4*k)}, v3, s[{sW}:{sW+3}], s{sT} offen {p.plfl}")
    a("s_branch L_r4\nL_r3:")
    for k in range(3):
        a(f"s_add_u32 s{sT}, s72, s{76+k}\nbuffer_load_dwordx2 {vr(132 + 4*k, 2)}, v4, s[{sW}:{sW+3}], s{sT} offen {p.plfl}")
    a("L_r4:\ns_waitcnt lgkmcnt(0)")
    for u in range(2):
        a(f"s_waitcnt vmcnt({6 - u})")
        red(96 + 16*u, 4, 4, 12 + 4*u)
        a(f"buffer_store_dwordx2 {vr(12+4*u, 2)}, v7, s[68:71], s73 offen {p.outfl}\nbuffer_store_dwordx2 {vr(14+4*u, 2)}, v7, s[68:71], s73 offen offset:32 {p.outfl}")
        a(f"s_add_u32 s73, s73, {64*2304}")
    a("s_waitcnt vmcnt(4)")
    a(f"s_cmp_eq_u32 s{sWAVE}, 0\ns_cbranch_scc0 L_r5")
    red(128, 4, 4, 20)
    a(f"buffer_store_dwordx2 v[20:21], v7, s[68:71], s73 offen {p.outfl}\nbuffer_store_dwordx2 v[22:23], v7, s[68:71], s73 offen offset:32 {p.outfl}\ns_branch L_r6\nL_r5:")
    red(128, 4, 2, 20)
    a(f"buffer_store_dwordx2 v[20:21], v7, s[68:71], s74 offen {p.outfl}\nL_r6:")
    if p.stamps:
        a("s_waitcnt vmcnt(0)")
        if not p.pst: stamp(a, p, 8)
        stamp_store(a, p)
    a("L_end:\ns_endpgm")
    a.l += out.l

def kernel(p, K):
    a = A()
    a("s_cmp_ge_u32 s2, 256\ns_cbranch_scc1 L_end")
    if p.perm == 1: a("s_mul_i32 s2, s2, 37\ns_add_u32 s2, s2, 11\ns_and_b32 s2, s2, 255")
    if p.perm == 2: a("s_lshr_b32 s3, s2, 3\ns_and_b32 s2, s2, 7\ns_lshl_b32 s2, s2, 5\ns_or_b32 s2, s2, s3")
    if p.perm == 3: a("s_lshr_b32 s3, s2, 5\ns_and_b32 s2, s2, 31\ns_lshl_b32 s2, s2, 3\ns_or_b32 s2, s2, s3")
    stamp(a, p, 0)
    a(f"""
    s_load_dwordx8 s[52:59], s[0:1], 0
    s_load_dwordx8 s[60:67], s[0:1], 40
    s_load_dwordx2 s[82:83], s[0:1], 96
    s_load_dwordx2 s[94:95], s[0:1], 32
    s_load_dwordx2 s[96:97], s[0:1], 72
    s_load_dwordx2 s[98:99], s[0:1], 88
    v_lshrrev_b32 v1, 6, v0
    v_and_b32 v2, 63, v0
    v_readfirstlane_b32 s{sWAVE}, v1
    s_and_b32 s3, s2, 7
    s_lshr_b32 s4, s2, 3
    s_lshr_b32 s5, s4, 2
    s_and_b32 s4, s4, 3
    s_and_b32 s6, s3, 3
    s_lshl_b32 s6, s6, 3
    s_lshl_b32 s7, s4, 1
    s_add_u32 s6, s6, s7
    s_lshr_b32 s{sHL}, s{sWAVE}, 1
    s_add_u32 s7, s6, s{sHL}
    s_lshl_b32 s{sRB}, s{sHL}, 15
    """)
    if p.rotm == 0: a(f"s_lshr_b32 s{sROT}, s2, 2\ns_and_b32 s{sROT}, s{sROT}, 14\ns_add_u32 s{sROT}, s{sROT}, s{sHL}\ns_lshl_b32 s{sROT}, s{sROT}, 1")
    elif p.rotm == 1: a(f"s_lshr_b32 s{sROT}, s2, 2\ns_and_b32 s{sROT}, s{sROT}, 30\ns_add_u32 s{sROT}, s{sROT}, s{sHL}")
    elif p.rotm == 2: a(f"s_lshr_b32 s{sROT}, s2, 3\ns_lshl_b32 s{sT}, s{sHL}, 4\ns_add_u32 s{sROT}, s{sROT}, s{sT}")
    elif p.rotm == 3: a(f"s_lshl_b32 s{sROT}, s2, 1\ns_add_u32 s{sROT}, s{sROT}, s{sHL}\ns_mul_i32 s{sROT}, s{sROT}, 0x9e3779b1\ns_lshr_b32 s{sROT}, s{sROT}, 27")
    elif p.rotm == 4: a(f"s_lshr_b32 s{sROT}, s2, 2\ns_and_b32 s{sROT}, s{sROT}, 14\ns_add_u32 s{sROT}, s{sROT}, s{sHL}\ns_lshl_b32 s{sROT}, s{sROT}, 1\ns_bfe_u32 s{sT}, s2, 0x10006\ns_add_u32 s{sROT}, s{sROT}, s{sT}")
    a(f"""
    v_lshrrev_b32 v3, 4, v2
    v_and_b32 v4, 15, v2
    v_lshlrev_b32 v5, 1, v3
    v_xor_b32 v5, v5, v4
    v_lshlrev_b32 v5, 4, v5
    v_lshl_add_u32 v{vE}, v3, 8, v5
    v_xor_b32 v{vO_}, 128, v{vE}
    v_lshl_add_u32 v{vWE}, v3, 13, v5
    s_lshl_b32 s{sT}, s7, 8
    v_add_u32 v{vWE}, s{sT}, v{vWE}
    v_xor_b32 v{vWO}, 128, v{vWE}
    v_add_u32 v{vWO}, {8*8192 - 1024}, v{vWO}
    s_lshl_b32 s{sT}, s{sHL}, 2
    v_add_u32 v5, s{sT}, v3
    v_and_b32 v6, 7, v2
    v_xor_b32 v5, v5, v6
    v_lshlrev_b32 v5, 4, v5
    v_lshrrev_b32 v6, 3, v2
    s_lshl_b32 s{sT}, s{sHL}, 3
    v_add_u32 v6, s{sT}, v6
    s_movk_i32 s{sT}, 1152
    v_mad_u32_u24 v{vX}, v6, s{sT}, v5
    s_waitcnt lgkmcnt(0)
    s_cmp_ge_u32 s3, 4
    s_cselect_b32 s52, s60, s52
    s_cselect_b32 s53, s61, s53
    s_cselect_b32 s54, s62, s54
    s_cselect_b32 s55, s63, s55
    s_cselect_b32 s56, s64, s56
    s_cselect_b32 s57, s65, s57
    s_cselect_b32 s58, s66, s58
    s_cselect_b32 s59, s67, s59
    s_cselect_b32 s94, s96, s94
    s_cselect_b32 s95, s97, s95
    s_mul_i32 s{sT}, s5, 165888
    s_add_u32 s{sX}, s52, s{sT}
    s_addc_u32 s{sX+1}, s53, 0
    s_mov_b32 s{sX+2}, 165888
    s_mov_b32 s{sX+3}, 0x20000
    s_mov_b32 s{sW}, s58
    s_mov_b32 s{sW+1}, s59
    s_mov_b32 s{sW+2}, 4718592
    s_mov_b32 s{sW+3}, 0x20000
    s_and_b32 s76, s{sWAVE}, 1
    s_mul_i32 s{sXB}, s{sHL}, 24576
    s_add_u32 s{sXB}, s{sXB}, {WQB}
    s_mul_i32 s{sXS0}, s76, {5*18432}
    s_mul_i32 s{sXM0}, s76, {5*2048}
    s_lshl_b32 s{sT}, s{sHL}, 10
    s_add_u32 s{sXM0}, s{sXM0}, s{sT}
    s_add_u32 s{sXM0}, s{sXM0}, {XBUF}
    s_lshl_b32 s77, s76, 12
    s_add_u32 s77, s77, s{sXB}
    s_lshl_b32 s78, s76, 17
    """)
    def xload(c, a=a, T=None):
        a(f"s_add_u32 s{sXS}, s{sKROT}, {c}\ns_sub_u32 s{sXM}, s{sXS}, 9\ns_cselect_b32 s{sXS}, s{sXS}, s{sXM}\ns_lshl_b32 s{sXS}, s{sXS}, 7")
        a(f"s_add_u32 s{sXM}, s{sXM0}, {18432*c}\ns_add_u32 s{sXS}, s{sXS0}, s{sXS}")
        if T: return emit(a, x_dma(p, T))
        g = x_dma(p, 5)
        emit(a, g[:4])
        a(f"s_cmp_eq_u32 s76, 1\ns_cbranch_scc1 L_x{c}")
        emit(a, g[4:])
        a(f"L_x{c}:")
    def wload(k, a=a):
        a(f"s_add_u32 s{sWM}, s77, {8192*k}\ns_add_u32 s{sWS2}, s{sWS}, {4*8192 - 2048}")
        emit(a, w_dma(p), nop=False)
        emit(a, [w_adv(p)], nop=False)
    a(f"s_mov_b32 s60, s54\ns_mov_b32 s61, s55")
    if p.krot: a(f"s_lshr_b32 s{sKROT}, s4, {p.ksh}\ns_mul_i32 s{sKROT}, s{sKROT}, {p.kc}\ns_add_u32 s{sKROT}, s{sKROT}, s5\ns_sub_u32 s{sT}, s{sKROT}, 9\ns_cselect_b32 s{sKROT}, s{sKROT}, s{sT}")
    else: a(f"s_mov_b32 s{sKROT}, 0")
    a(f"s_lshl_b32 s{sWS}, s{sKROT}, 19\ns_add_u32 s{sWS}, s{sWS}, s78\ns_add_u32 s{sWEND}, s78, {576*8192}")
    if p.rotm == 9:
        a(f"s_lshl_b32 s{sT}, s2, 1\ns_add_u32 s{sT}, s{sT}, s{sHL}\ns_lshl_b32 s{sT}, s{sT}, 2\ns_add_u32 s{sT}, s{sT}, {220 << 20}\ns_load_dword s{sROT}, s[82:83], s{sT}\ns_waitcnt lgkmcnt(0)")
    if p.pst == 1: stamp(a, p, 8)
    xload(0); wload(0)
    if p.pst == 2: stamp(a, p, 8)
    if p.pw >= 0: a(f"s_waitcnt vmcnt({p.pw})")
    wload(1)
    a(f"""
    s_mul_i32 s{sS0}, s4, {p.stag}
    s_add_u32 s{sS0}, s{sS0}, {p.s0}
    s_lshl_b32 s{sT}, s5, 5
    s_add_u32 s{sT}, s{sT}, s7
    s_lshl_b32 s{sT2}, {'s3' if p.kvsame else f's{sT}'}, 17
    s_add_u32 s{sK}, s60, s{sT2}
    s_addc_u32 s{sK+1}, s61, 0
    s_mov_b32 s{sK+2}, 131072
    s_mov_b32 s{sK+3}, 0x20000
    s_add_u32 s{sV}, s56, s{sT2}
    s_addc_u32 s{sV+1}, s57, 0
    s_mov_b32 s{sV+2}, 131072
    s_mov_b32 s{sV+3}, 0x20000
    s_mov_b32 s{sO}, s82
    s_mov_b32 s{sO+1}, s83
    s_mov_b32 s{sO+2}, {O_BYTES}
    s_mov_b32 s{sO+3}, 0x20000
    s_lshr_b32 s{sT2}, s3, 2
    s_lshl_b32 s{sT2}, s{sT2}, 8
    s_add_u32 s{sT}, s{sT}, s{sT2}
    s_mul_i32 s{sOB}, s{sT}, {4*9216}
    s_mov_b32 s{sWO}, s94
    s_mov_b32 s{sWO+1}, s95
    s_mov_b32 s{sWO+2}, 4718592
    s_mov_b32 s{sWO+3}, 0x20000
    s_and_b32 s{sTW}, s3, 3
    s_lshl_b32 s{sTW}, s{sTW}, 5
    s_lshr_b32 s{sT}, s2, 3
    s_add_u32 s{sTW}, s{sTW}, s{sT}
    s_lshl_b32 s{sTW}, s{sTW}, 1
    s_add_u32 s{sTW}, s{sTW}, s{sHL}
    s_mul_i32 s{sTW}, s{sTW}, 18432
    s_cmp_eq_u32 s76, 1
    s_cselect_b32 s{sKV}, s{sV}, s{sK}
    s_cselect_b32 s{sKV+1}, s{sV+1}, s{sK+1}
    s_mov_b32 s{sKV+2}, 131072
    s_mov_b32 s{sKV+3}, 0x20000
    s_lshl_b32 s{sT2}, s76, 13
    s_add_u32 s{sT2}, s{sT2}, s{sRB}
    s_mov_b32 s6, s98
    s_mov_b32 s7, s99
    v_lshlrev_b32 v{vTCH}, 7, v2
    s_mov_b32 s{sIT}, -2
    """)
    def batch2(a, T):
        emit(a, kv_book(p), nop=False); emit(a, kv_dma(p), nop=False)
        xload(1, a, T)
        a(f"s_add_u32 s{sWM}, s77, {8192*2}\ns_mov_b32 s{WSr[1]}, s{sWS}\ns_add_u32 s{WS2r[1]}, s{sWS}, {4*8192 - 2048}")
        emit(a, w_dma(p, 1)[:4 - p.wsh], nop=False)
        emit(a, [w_adv(p)], nop=False)
        a(f"s_mov_b32 s{sIT}, 0")
        emit(a, kv_book(p), nop=False)
        a(f"s_mov_b32 s{sWM}, s77\ns_add_u32 s{sWS2}, s{sWS}, {4*8192 - 2048}")
    if not p.early: batch2(a, None)
    p.batch2 = batch2
    a(f"s_cmp_eq_u32 s{sWAVE}, 0\ns_cbranch_scc0 L_nc")
    if p.touch_code:
        a(f"""s_getpc_b64 s[80:81]
        L_pc:
        s_sub_u32 s80, s80, L_pc-{K}
        s_subb_u32 s81, s81, 0
        s_lshr_b32 s{sT}, s2, 3
        s_and_b32 s{sT}, s{sT}, 7
        s_lshl_b32 s{sT}, s{sT}, 13
        v_add_u32 v8, s{sT}, v{vTCH}
        s_mov_b32 s{sT}, L_codeend-{K}-4
        v_min_u32 v8, s{sT}, v8
        global_load_dword v{vDUM}, v8, s[80:81]""")
    a(f"""v_mov_b32 v8, {LFLAG}
    v_mov_b32 v9, 0
    ds_write_b32 v8, v9
    s_cmp_lt_u32 s2, 8
    s_cbranch_scc0 L_nc
    s_memrealtime s[80:81]
    v_mov_b32 v11, 0
    s_waitcnt lgkmcnt(0)
    s_or_b32 s80, s80, 1
    v_mov_b32 v10, s80
    s_mov_b64 exec, 1
    global_atomic_cmpswap v9, v[10:11], s[6:7] sc1
    s_mov_b64 exec, -1
    L_nc:""")
    a(f"""
    v_and_b32 v5, 7, v4
    v_lshlrev_b32 v5, 1, v5
    v_xor_b32 v5, v5, v3
    v_lshlrev_b32 v5, 4, v5
    v_lshl_add_u32 v5, v4, 8, v5
    v_add_u32 v{vKA}, s{sRB}, v5
    v_xor_b32 v{vKA+1}, 64, v{vKA}
    v_xor_b32 v{vKA+2}, 128, v{vKA}
    v_xor_b32 v{vKA+3}, 192, v{vKA}
    v_bfe_u32 v5, v2, 2, 2
    v_and_b32 v6, 1, v3
    v_lshl_add_u32 v5, v6, 2, v5
    v_lshrrev_b32 v6, 1, v3
    v_lshl_add_u32 v6, v6, 4, v5
    v_lshlrev_b32 v5, 1, v5
    v_bfe_u32 v7, v2, 1, 1
    v_xor_b32 v5, v5, v7
    v_lshlrev_b32 v5, 4, v5
    v_and_b32 v7, 1, v2
    v_lshl_add_u32 v5, v7, 3, v5
    v_lshl_add_u32 v5, v6, 8, v5
    v_add_u32 v{vVA}, s{sXB}, v5
    s_mov_b32 s{sXB}, s77""")
    for dt in range(1, 8): a(f"v_xor_b32 v{vVA+dt}, {32*dt}, v{vVA}")
    a(f"""
    v_lshrrev_b32 v5, 1, v4
    v_xor_b32 v5, v5, v3
    v_lshlrev_b32 v5, 4, v5
    v_lshl_add_u32 v5, v4, 7, v5
    s_mul_i32 s79, s76, {4*2048}
    s_add_u32 s79, s79, {XBUF}
    v_add_u32 v{vXA}, s79, v5
    v_xor_b32 v{vXA+1}, 64, v{vXA}
    s_mul_i32 s79, s76, {5*1024}
    v_lshl_add_u32 v{vST}, v2, 4, s79
    s_mul_i32 s79, s{sHL}, {2*STG}
    v_add_u32 v{vOW}, s79, v{vST}
    s_mov_b32 s{sSC}, 0x3e0293ee
    s_mov_b32 s{sWSL}, 0
    s_mov_b32 s{sC}, 8192
    s_mov_b32 s{sNEG}, -16384
    s_mov_b32 s{sWD}, 8192
    s_mov_b32 s{sXD}, 18432
    """)
    a(f"s_movk_i32 s79, 3641\ns_mul_i32 s80, s76, 864")
    for j in range(9):
        a(f"""v_add_u32 v5, {64*j}, v2
        v_mul_u32_u24 v6, s79, v5
        v_lshrrev_b32 v6, 16, v6
        v_lshlrev_b32 v5, 4, v5
        v_mad_u32_u24 v5, v6, s80, v5
        v_subrev_u32 v{v2VO+j}, {1024*(j % 4)}, v5""")
    a(f"""
    v_lshrrev_b32 v5, 2, v2
    v_and_b32 v6, 3, v2
    v_lshlrev_b32 v6, 3, v6
    s_movk_i32 s79, 288
    v_mad_u32_u24 v5, v5, s79, v6
    v_add_u32 v{v2A+1}, {18432 + 256}, v5
    s_lshl_b32 s79, s{sWAVE}, 6
    s_add_u32 s79, s79, 18432
    v_add_u32 v{v2A}, s79, v5
    v_lshlrev_b32 v5, 4, v2
    s_lshl_b32 s79, s{sWAVE}, 11
    v_add_u32 v{v2B}, s79, v5
    s_cmp_eq_u32 s{sWAVE}, 0
    s_cselect_b32 s79, 3072, 0
    v_add_u32 v{v2B+1}, s79, v5
    s_cmp_lt_u32 s{sWAVE}, 2
    s_movk_i32 s79, 2048
    s_cselect_b32 s79, 5120, s79
    v_add_u32 v{v2B+2}, s79, v5
    s_cmp_lt_u32 s{sWAVE}, 3
    s_movk_i32 s79, 4096
    s_cselect_b32 s79, 7168, s79
    v_add_u32 v{v2B+3}, s79, v5
    """)
    if p.twq >= 0: a(f"s_mul_i32 s79, s4, {p.twstag}\ns_add_u32 s79, s79, {p.twq}")
    for r in range(0, 160, 2): a(f"v_pk_mov_b32 {vr(vACC+r, 2)}, 0, 0")
    if p.pst == 4: stamp(a, p, 8)
    a(f"s_bitcmp1_b32 s{sWAVE}, 0\ns_cbranch_scc1 L_small")
    wave_front(a, p, 5, False, "b")
    a("L_small:")
    wave_front(a, p, 4, True, "s")
    back(a, p)
    a("L_codeend:")
    return a.text()

def build(p):
    K = KNAME + "_kernel"
    hdr = open("cdna_kernels/" + KNAME + ".s.ref").read().split("; Override launch geometry")[0]
    return hdr + header(["; @launch grid=(256,1,1) block=(256,1,1) lds=163840"]) + kstart(K) + kernel(p, K) + RODATA + kdesc(K, 512, 256)

if __name__ == "__main__":
    ap = argparse.ArgumentParser()
    ap.add_argument("out")
    ap.add_argument("opts", nargs="*")
    x = ap.parse_args()
    p = P()
    VERB = True
    for o in x.opts:
        k, v = o.split("=")
        cur = getattr(p, k)
        setattr(p, k, (v == "1") if isinstance(cur, bool) else int(v) if isinstance(cur, int) else v.replace("+", " "))
    if p.twq >= 0: p.twpos = 15
    EXP = p.exp
    open(x.out, "w").write(build(p))
```

```python
import sys, argparse
sys.path.insert(0, "tools")
from asmlib import *
sys.path.insert(0, 'gen')
from sched import It, schedule
VERB = False
EXP = 0

class P:
    stamps = False
    cyc = False
    xfl = ""; wfl = ""; kvfl = "nt"
    ofl = "sc1"; olfl = "sc1"; wofl = ""; twfl = ""; pfl = "sc1"; plfl = "sc1"; outfl = ""
    s0 = 1; ppe = 1; stag = 0
    rot = True; krot = True
    kvd = 4
    twpos = 12
    rb = False
    fb = 3
    sh = 2
    qb = 4; qr = 6; vlo = 6
    touch_code = True
    force = False
    kvsame = False
    lim = 0
    notouch = False
    limg = 2
    gprof = False
    pa = -1
    dbgst = False
    al = 0
    sh4 = 0
    xsp = 0
    wsh = 0
    qprof = 0
    par8 = False
    fc = 0
    fcs = 64
    twown = -1
    perm = 0
    kc = 2
    ksh = 0
    early = True
    pst = 0
    rotm = 0
    swap = 3
    t3 = False
    vp2 = True
    s1 = 1
    defer = False
    warm = True
    exp = 0
    late = True
    twq = -1
    twstag = 0
    pw = -1

MF = "v_mfma_f32_16x16x32_bf16"
OOB = 0x40000000
LDSOOB = 0x30000
STAMPOFF = 200 << 20
O_BYTES = 16 * 32 * 4 * 9216
P_OFF = 32 << 20
F_OFF = 48 << 20
PBLK = 41472
STG = 36864
LFLAG = 163836
SPIN = 1 << 18
PL = 0

def vr(b, n=4): return f"v[{b}:{b+n-1}]"
def ar(b, n=4): return f"a[{b}:{b+n-1}]"
def weave(a, mfmas, gaps):
    assert len(gaps) <= len(mfmas)
    for i, m in enumerate(mfmas):
        a(m)
        if i < len(gaps):
            for x in gaps[i]: a(x)
def align(a, p):
    if p.al: a(f".p2align {p.al}")
    for _ in range(p.sh4): a("s_nop 0")
def emit(a, gs, nop=True):
    for g in gs:
        for x in g: a(x)
        if nop: a("s_nop 0")
NST = 9
def stamp(a, p, idx):
    if p.stamps: a(f"{'s_memtime' if p.cyc else 's_memrealtime'} s[{84+2*idx}:{85+2*idx}]")
def stamp_store(a, p):
    if not p.stamps: return
    a("s_waitcnt lgkmcnt(0)")
    if p.dbgst:
        a("v_mov_b32 v1, 0\nv_cmp_eq_u32 vcc, 0, v0\ns_and_saveexec_b64 s[44:45], vcc")
        for j in range(NST):
            a(f"s_sub_u32 s46, s{84+2*j}, s{sNONCE}\ns_add_u32 s46, s46, 500\nv_mov_b32 v2, s46\nglobal_atomic_umax v1, v2, s[6:7] offset:{4+4*j} sc1\ns_nop 1")
        a("s_mov_b64 exec, s[44:45]")
        return
    a(f"s_mul_i32 s80, s2, 128\ns_add_u32 s82, s82, s80\ns_addc_u32 s83, s83, 0\ns_add_u32 s82, s82, {STAMPOFF}\ns_addc_u32 s83, s83, 0")
    a("v_mov_b32 v1, 0\nv_cmp_eq_u32 vcc, 0, v0\ns_and_saveexec_b64 s[80:81], vcc")
    for j in range(NST):
        a(f"v_mov_b32 v2, s{84+2*j}\nv_mov_b32 v3, s{85+2*j}\nglobal_store_dwordx2 v1, v[2:3], s[82:83] offset:{8*j}\ns_nop 1")
    a("s_mov_b64 exec, s[80:81]")
    if p.gprof or p.qprof:
        a("v_and_b32 v1, 63, v0\nv_lshlrev_b32 v1, 2, v1\nv_cmp_gt_u32 vcc, 14, v0\ns_and_saveexec_b64 s[80:81], vcc\nglobal_store_dword v1, v31, s[82:83] offset:72\ns_mov_b64 exec, s[80:81]")

vACC = 96; vS = (80, 88); vL = 72; vVA = 64; vKA = 60; vXA = 58
vE, vO_, vWE, vWO, vX, vST, vTCH, vDUM, vOW, vFL = 56, 57, 54, 55, 53, 52, 51, 50, 49, 48
v2VO, v2B, v2A = 32, 41, 45
vNM = 8
aQ = 0; aK = (80, 112); aV = (144, 176); aXB = (80, 100); aWA = (144, 176)
a2A = (80, 92); a2B = (104, 140)
v2ACC = 96
sX, sW, sK, sV, sO, sKV, sWO = 8, 12, 16, 20, 24, 68, 56
sWAVE, sHL, sROT, sNONCE = 28, 29, 30, 31
sWS, sWM, sXS, sXM, sWD, sXD, sT, sT2, sIT = 32, 33, 34, 35, 36, 37, 38, 39, 40
sKN, sKM, sKS, sRB, sHI, sWSL, sXB = 41, 42, 43, 44, 45, 46, 47
sC, sSC, sOB, sNEG, sKROT, sS0, sWEND, sTW = 48, 49, 50, 51, 52, 53, 54, 55
sWS2, sXM0, sXS0 = 72, 74, 75
gSRC, gSTR, gDST, gST, gQ1, gQ2, gQ3, gRI = 60, 52, 62, 63, 64, 65, 66, 67
gC1, gC2, gDL, gM0, gSO, gDL2, gLO, gHIW = 72, 73, 74, 75, 76, 77, 78, 79
gLOW, gLIM, gREDO, gMASK, gTAB, gP4 = 32, 33, 34, 35, 36, 79
gF = 40
REL = [0, 1, 2, 3, 4, 6, 8, 10, 12, 14, 5, 7, 9, 11, 13, 15]
FA, F2, FP = F_OFF, F_OFF + 32768, F_OFF + 49152
gFP, gOFF, gCHK, gPOST, gNN = 80, 33, 32, 53, 46
vPA, vNZ = 47, 48
sPG = 60
sPA, sPM = 73, 74
XBUF = 65536
WQB = XBUF + 2 * 18432
QX = 155648
def acc(t, dt): return vACC + (t * 8 + dt) * 4
def acc2(nt, u): return v2ACC + 4 * (nt * 9 + u)

def flat_dma(groups, pos):
    out = []
    for g, q in zip(groups, pos):
        for x in g:
            if x.startswith("s_nop"): continue
            out.append(It(x, q, q + 1) if x.startswith("buffer_") else It(x))
    return out
def read_pos(nrd, start, end, taken):
    free = [i for i in range(start, end) if i not in taken]
    dbl = max(0, nrd - len(free))
    pos = []
    for i in free:
        pos.append(i)
        if dbl > 0: pos.append(i); dbl -= 1
    assert len(pos) >= nrd
    return pos[:nrd]

WDr, WSr, WS2r = (sWD, 62), (sWS, 63), (sWS2, 64)
def w_dma(p, par=0):
    w = lambda v, so, o: f"buffer_load_dwordx4 v{v}, s[{sW}:{sW+3}], s{so} offen offset:{o} {p.wfl} lds"
    return [[f"s_mov_b32 m0, s{sWM}", "s_nop 0", w(vWE, WSr[par], 0)], [w(vWO, WSr[par], 1024)], [w(vWE, WS2r[par], 2048)], [w(vWO, WS2r[par], 3072)]]
def x_dma(p, nX):
    out = []
    for m in range(nX):
        g = [f"s_mov_b32 m0, s{sXM}", "s_nop 0"] if m == 0 else []
        g.append(f"buffer_load_dwordx4 v{vX}, s[{sX}:{sX+3}], s{sXS} offen offset:{2048*(m & 1)} {p.xfl} lds")
        if m + 1 < nX:
            g.append(f"s_add_u32 s{sXS}, s{sXS}, {16384 if m % 2 == 0 else 20480}")
            if m % 2 == 1: g.append("s_add_u32 m0, m0, 4096")
        out.append(g)
    return out
def kv_dma(p):
    out = []
    for j in range(2 * p.ppe):
        g = [f"s_mov_b32 m0, s{sKM}", "s_nop 0"] if j == 0 else []
        if j == 4: g = [f"s_add_u32 m0, s{sKM}, 4096", f"s_add_u32 s{sKS}, s{sKS}, 4096"]
        g.append(f"buffer_load_dwordx4 v{vE if j % 2 == 0 else vO_}, s[{sKV}:{sKV+3}], s{sKS} offen offset:{1024*(j % 4)} {p.kvfl} lds")
        out.append(g)
    return out
def kv_book(p):
    return [[f"s_ashr_i32 s{sKN}, s{sIT}, 1", f"s_sub_u32 s{sKN}, s{sKN}, s{sS0}", f"s_mul_i32 s{sKN}, s{sKN}, {p.ppe}"],
            [f"s_lshr_b32 s{sT}, s{sKN}, 1", f"s_add_u32 s{sKS}, s{sT}, s{sROT}"] + ([f"s_and_b32 s{sT}, s{sT}, 2", f"s_add_u32 s{sKS}, s{sKS}, s{sT}"] if p.par8 else []) + [f"s_and_b32 s{sKS}, s{sKS}, 31"],
            [f"s_lshl_b32 s{sKS}, s{sKS}, 12", f"s_and_b32 s{sT}, s{sKN}, 1", f"s_lshl_b32 s{sT}, s{sT}, 11", f"s_add_u32 s{sKS}, s{sKS}, s{sT}"],
            [f"s_lshr_b32 s{sKM}, s{sKN}, 2", f"s_lshl_b32 s{sKM}, s{sKM}, 14", f"s_and_b32 s{sT}, s{sKN}, 3", f"s_lshl_b32 s{sT}, s{sT}, 11"],
            [f"s_add_u32 s{sKM}, s{sKM}, s{sT}", f"s_add_u32 s{sKM}, s{sKM}, s{sT2}"],
            [f"s_cmp_ge_u32 s{sKN}, 8", f"s_cselect_b32 s{sKM}, {LDSOOB}, s{sKM}", f"s_cselect_b32 s{sKS}, {OOB}, s{sKS}"]]
def x_book(p):
    return [[f"s_add_u32 s{sT}, s{sIT}, 3", f"s_lshr_b32 s{sT}, s{sT}, 1", f"s_add_u32 s{sXS}, s{sT}, s{sKROT}"],
            [f"s_sub_u32 s{sXM}, s{sXS}, 9", f"s_cselect_b32 s{sXS}, s{sXS}, s{sXM}", f"s_lshl_b32 s{sXS}, s{sXS}, 7"],
            [f"s_add_u32 s{sXS}, s{sXS}, s{sXS0}", f"s_and_b32 s{sT}, s{sT}, 1", f"s_mul_i32 s{sT}, s{sT}, 18432"],
            [f"s_add_u32 s{sXM}, s{sXM0}, s{sT}"],
            [f"s_cmp_ge_u32 s{sIT}, 15", f"s_cselect_b32 s{sXM}, {LDSOOB}, s{sXM}", f"s_cselect_b32 s{sXS}, {OOB}, s{sXS}"]]
def w_adv(p, src=sWS, dst=sWS):
    return [f"s_add_u32 s{dst}, s{src}, {32*8192}", f"s_cmp_ge_u32 s{dst}, s{sWEND}", f"s_cselect_b32 s{dst}, s78, s{dst}"]
def q_reads(T, par, ks):
    rd = [f"ds_read_b128 {ar(aXB[par] + 4*t)}, v{vXA + ks} offset:{2048*t}" for t in range(T)]
    for dt in range(8):
        rd.append(f"ds_read_b64_tr_b16 {ar(aWA[par] + 4*dt, 2)}, v{vVA+dt}")
        rd.append(f"ds_read_b64_tr_b16 {ar(aWA[par] + 4*dt + 2, 2)}, v{vVA+dt} offset:2048")
    return rd
def qstep(a, p, T, par):
    A_, B_ = aWA[par], aXB[par]
    e = 2 * p.ppe
    mf = []
    for dt in range(8):
        for u in range(5):
            if T == 5:
                if u == 4 and dt >= 4: continue
                t = u
            else:
                if u == 0 and dt < 4: continue
                t = (u - 1) % 5
            mf.append(f"{MF} {vr(acc(t, dt))}, {ar(A_ + 4*dt)}, {ar(B_ + 4*u)}, {vr(acc(t, dt))}")
    if not p.exp & 128: a("s_waitcnt lgkmcnt(0)")
    if not p.exp & 64: a(f"s_waitcnt vmcnt({e + 4 + (T - p.wsh if par == 0 else 0)})")
    if not p.exp & 32: a("s_barrier")
    if p.qprof: a(f"s_sub_u32 s98, s{sIT}, {p.qprof - 1}\ns_min_u32 m0, s98, 63\nv_writelane_b32 v31, s96, m0\n{'s_memtime' if p.cyc else 's_memrealtime'} s[96:97]")
    upd = [f"v_add_u32 v{vVA+d}, s{WDr[par]}, v{vVA+d}" for d in range(8)]
    if par == 0: upd = [f"v_add_u32 v{vXA}, s{sXD}, v{vXA}", f"v_add_u32 v{vXA+1}, s{sXD}, v{vXA+1}"] + upd
    rd = q_reads(5, par ^ 1, par ^ 1)
    dma = (x_dma(p, T) + w_dma(p, 1)[:4 - p.wsh]) if par == 1 else (w_dma(p, 1)[4 - p.wsh:] + w_dma(p, 0) + kv_dma(p))
    q = par ^ 1
    book = [[f"s_add_u32 s{sIT}, s{sIT}, 1"]] + (kv_book(p) if par == 1 else x_book(p)) + \
           [[f"s_add_u32 s{sWSL}, s{sWSL}, 8192", f"s_cmp_eq_u32 s{sWSL}, 24576", f"s_cselect_b32 s{sWSL}, 0, s{sWSL}"],
            [f"s_cmp_eq_u32 s{sWSL}, 8192", f"s_cselect_b32 s{WDr[q]}, s{sNEG}, s{sC}"],
            w_adv(p, WSr[par], WSr[q]) + [f"s_add_u32 s65, s{sWSL}, s{sXB}"],
            [f"s_cmp_ge_u32 s{sIT}, 15", f"s_cselect_b32 s65, {LDSOOB}, s65", f"s_cselect_b32 s{WSr[q]}, {OOB}, s{WSr[q]}"],
            [f"s_add_u32 s{WS2r[q]}, s{WSr[q]}, {4*8192 - 2048}", f"s_mov_b32 s{sWM}, s65"] + ([f"s_sub_u32 s{sXD}, 0, s{sXD}"] if par == 0 else [])]
    n = len(mf)
    pos = [1 + i * (n - p.qb) // len(dma) for i in range(len(dma))]
    if par == 1 and p.xsp:
        x0 = 1 + p.xsp * T + 2
        pos = [1 + p.xsp * i for i in range(T)] + [x0 + i * (n - p.qb - x0) // (len(dma) - T) for i in range(len(dma) - T)]
    rp = read_pos(len(rd), 0, n - p.qr, set(pos))
    if p.exp & 8: dma = [[x for x in g if not x.startswith("buffer")] for g in dma]
    if p.exp & 16: rd = []
    flo = [It(x, q, q + 1) for x, q in zip(rd, rp)] + [It(x, p.vlo, n - 1) for x in upd] + flat_dma(dma, pos) + [It(x, 0, n - 1) for g in book for x in g]
    gaps, over = schedule(n, [], flo)
    if VERB: print(f"qstep T{T} par{par} over", over, file=sys.stderr)
    weave(a, mf, gaps)

def kv_tile_dma(p, sm, ss, parts=(0, 1, 2, 3), plain=False):
    out = []
    d1, d2 = (sK, sV) if plain or not p.swap else (sKV, sW)
    for half, (srd, lo) in enumerate(((d1, 0), (d1, 4096), (d2, 8192), (d2, 12288))):
        if half not in parts: continue
        so = ss if (half & 1) == 0 else sT
        for j in range(4):
            g = []
            if j == 0:
                g = [f"s_xor_b32 m0, s{sm}, {lo}"]
                g += [f"s_add_u32 s{sT}, s{ss}, 4096", f"s_bitset0_b32 s{sT}, 17"] if half == 0 else ["s_nop 0"]
            if p.lim and (j % p.limg == 0): g.append(f"s_waitcnt vmcnt({p.lim - p.limg})")
            g.append(f"buffer_load_dwordx4 v{vE if j % 2 == 0 else vO_}, s[{srd}:{srd+3}], s{so} offen offset:{1024*j} {p.kvfl} lds")
            out.append(g)
    return out
def frag_reads(par, off):
    rd = [f"ds_read_b128 {ar(aK[par] + (kt*4+s)*4)}, v{vKA+s} offset:{off + 4096*kt}" for kt in range(2) for s in range(4)]
    for dt in range(8):
        rd.append(f"ds_read_b64_tr_b16 {ar(aV[par] + 4*dt, 2)}, v{vVA+dt} offset:{off}")
        rd.append(f"ds_read_b64_tr_b16 {ar(aV[par] + 4*dt + 2, 2)}, v{vVA+dt} offset:{off + 4096}")
    return rd
def soft2(S, t):
    ad = [f"v_add_f32 v{vL+t}, v{vL+t}, v{S+j}" for j in range(8)]
    cv = [f"v_cvt_pk_bf16_f32 v{S+j}, v{S+2*j}, v{S+2*j+1}" for j in range(4)]
    return ad[:4] + cv + ad[4:]
def qk(S, Kc, t, c0):
    return [f"{MF} {vr(S + 4*kt)}, {ar(Kc + (kt*4+s)*4)}, {ar(aQ + (t*4+s)*4)}, {c0 if s == 0 else vr(S + 4*kt)}" for kt in range(2) for s in range(4)]
def pv(S, Vc, t):
    return [f"{MF} {vr(acc(t, dt))}, {ar(Vc + 4*dt)}, {vr(S)}, {vr(acc(t, dt))}" for dt in range(8)]
def block(a, p, T, par, loader, top, mid):
    mf, fixed = [], []
    for t in range(T):
        n = par * T + t
        S, Sp = vS[n & 1], vS[(n & 1) ^ 1]
        tp = (t - 1) % T
        mf += qk(S, aK[par], t, "0") + pv(Sp, aV[par ^ 1] if t == 0 else aV[par], tp)
        v2 = soft2(Sp, tp)
        fixed += [v2[0:1], v2[1:3], v2[3:4], v2[4:6], v2[6:7], v2[7:9], v2[9:10], v2[10:12]]
        fixed += [[f"v_exp_f32 v{S+j}, v{S+j}"] for j in range(8)]
    n = 16 * T
    free = [16*t + j for t in range(T) for j in (0, 2, 4, 6)]
    dma = kv_tile_dma(p, sKM, sKS) if loader else []
    top(a)
    if not p.late:
        rd = frag_reads(par ^ 1, 16384 * (par ^ 1))
        tog = [f"v_xor_b32 v{r}, 0x10000, v{r}" for r in list(range(vKA, vKA+4)) + list(range(vVA, vVA+8))] if par == 0 else []
        lim = n - 12
        slots = [g for g in free if g < lim]
        extra = [g for g in range(lim) if g not in slots]
        need = len(rd) + len(dma) - len(slots)
        if need > 0: slots = sorted(slots + [extra[(2*i + 1) * len(extra) // (2*need)] for i in range(need)])
        dpos = [slots[(i * len(slots)) // len(dma)] for i in range(len(dma))] if dma else []
        rpos = [g for g in slots if g not in dpos]
        rpos = [max(g, 16) if i >= 8 else g for i, g in enumerate(rpos[:len(rd)])]
        flo = [It(x, q, q + 1) for x, q in zip(rd, rpos)] + flat_dma(dma, dpos) + [It(x, 0, n - 1 - (len(tog) - 1 - i)) for i, x in enumerate(tog)]
        gaps, over = schedule(n, fixed, flo)
        weave(a, mf, gaps)
    else:
        m = n - 16
        rv = frag_reads(par, 16384 * par)[8:]
        vpos = [0, 1, 2, 3, 4, 5, 6, 7, 9, 11, 13, 15, 16, 17, 18, 20]
        togv = [f"v_xor_b32 v{r}, 0x10000, v{r}" for r in range(vVA, vVA+8)] if par == 1 else []
        togk = [f"v_xor_b32 v{r}, 0x10000, v{r}" for r in range(vKA, vKA+4)] if par == 1 else []
        cand = [g for g in range(24 if p.fc else 21, m - 1)]
        dpos = [cand[(i * len(cand)) // len(dma)] for i in range(len(dma))] if dma else []
        flo = [It(x, q, q) for x, q in zip(rv, vpos)] + [It("s_waitcnt lgkmcnt(0)", 23, 23)] + flat_dma(dma, dpos) + \
              [It(x, 22, m - 1 - (11 - i)) for i, x in enumerate(togv + togk)]
        gaps, over = schedule(m, fixed[:m], flo)
        assert any("lgkmcnt" in x for x in gaps[23])
        if loader and p.fc: gaps[23] += [f"s_cmp_eq_u32 s{sWAVE}, 1", f"s_cbranch_scc1 L_fc{par}", f"L_fcb{par}:"]
        weave(a, mf[:m], gaps)
        mid(a)
        rk = frag_reads(par ^ 1, 16384 * (par ^ 1))[:8]
        gaps, o2 = schedule(16, fixed[m:], [It(x, i, i) for i, x in enumerate(rk)])
        over += o2
        weave(a, mf[m:], gaps)
    if VERB: print(f"block T{T} par{par} over", over, file=sys.stderr)

def wo_touch(a, p, t1=sT, t2=sT2):
    if p.notouch: return
    a(f"""s_add_u32 s{t2}, s{sTW}, 8192
    s_add_u32 s{t1}, s{sTW}, 10240
    buffer_load_dword v{vDUM}, v{vTCH}, s[{sWO}:{sWO+3}], s{sTW} offen {p.twfl}
    buffer_load_dword v{vDUM}, v{vTCH}, s[{sWO}:{sWO+3}], s{t2} offen {p.twfl}
    buffer_load_dword v{vDUM}, v{vTCH}, s[{sWO}:{sWO+3}], s{t1} offen {p.twfl}""")

def g_dma(fl):
    out = []
    for j in range(9):
        g = [f"s_add_u32 m0, s{gM0}, {1024*j}", "s_nop 0"] if j % 4 == 0 else []
        g.append(f"buffer_load_dwordx4 v{v2VO+j}, s[{sX}:{sX+3}], s{gSO} offen offset:{1024*(j % 4)} {fl} lds")
        out.append(g)
    return out
def g_stage_now(a, fl, st):
    a(f"s_add_u32 s{gSO}, s{gP4}, {REL[st]}\ns_and_b32 s{gSO}, s{gSO}, 15\ns_mul_i32 s{gSO}, s{gSO}, s{gSTR}\ns_add_u32 s{gSO}, s{gSO}, s{gLO}")
    a(f"s_add_u32 s{gM0}, s{gDL2}, {(st & 3)*STG}")
    emit(a, g_dma(fl), nop=False)
def o_touch(a, p, half):
    if not p.rb: return
    for o in (0, 8192, 10240):
        a(f"s_add_u32 s{sT}, s{sOB}, {half*18432 + o}\ns_nop 0\nbuffer_load_dword v{vDUM}, v{vTCH}, s[{sO}:{sO+3}], s{sT} offen")

KEEP = [16, 20, 24, 28, 192, 196, 200, 204, 224, 228]
def o_store(p, t, s, d):
    return [f"s_add_u32 s{sT}, s{sOB}, {s*9216 + (4096 if t == 4 else 0)}", "s_nop 0",
            f"buffer_store_dwordx4 {vr(d)}, v{vST}, s[{sO}:{sO+3}], s{sT} offen offset:{1024*(t & 3)} {p.ofl}"]
def lanesum(a, T, op):
    for sw in ("v_permlane32_swap_b32", "v_permlane16_swap_b32"):
        for t in range(T): a(f"v_mov_b32 v{1+t}, v{vL+t}")
        a("s_nop 1")
        for t in range(T): a(f"{sw} v{1+t}, v{vL+t}")
        a("s_nop 1")
        for t in range(T): a(f"{op} v{vL+t}, v{vL+t}, v{1+t}")

def wave_front(a, p, T, loader, tag):
    TAB = sum(REL[4+i] << (4*i) for i in range(12))
    e = 2 * p.ppe
    a(f"s_waitcnt vmcnt({4 if p.early else 4 + e + T + 4})\ns_waitcnt lgkmcnt(0)\ns_barrier")
    stamp(a, p, 1)
    for x in q_reads(5, 0, 0): a(x)
    if p.early: p.batch2(a, T)
    for dt in range(8): a(f"v_add_u32 v{vVA+dt}, s{sWD}, v{vVA+dt}")
    align(a, p)
    a(f"L_q{tag}:")
    if p.twq >= 0 and not loader:
        a(f"s_cmp_eq_u32 s{sIT}, s79\ns_cbranch_scc1 L_tq\nL_tqb:")
    qstep(a, p, T, 0)
    qstep(a, p, T, 1)
    a(f"s_cmp_lt_u32 s{sIT}, 18\ns_cbranch_scc1 L_q{tag}")
    stamp(a, p, 2)
    a(f"""v_and_b32 v1, 63, v0
    v_lshrrev_b32 v2, 4, v1
    v_bfe_u32 v3, v1, 2, 2
    v_lshl_add_u32 v2, v2, 2, v3
    v_and_b32 v3, 7, v2
    v_lshlrev_b32 v3, 1, v3
    v_bfe_u32 v4, v1, 1, 1
    v_xor_b32 v3, v3, v4
    v_lshlrev_b32 v3, 4, v3
    v_and_b32 v4, 1, v1
    v_lshl_add_u32 v3, v4, 3, v3
    v_lshl_add_u32 v3, v2, 8, v3
    s_add_u32 s{sT}, s{sRB}, 8192
    v_add_u32 v{vVA}, s{sT}, v3""")
    for dt in range(1, 8): a(f"v_xor_b32 v{vVA+dt}, {32*dt}, v{vVA}")
    dma = []
    if loader:
        if p.swap:
            a(f"""{f"s_bitcmp1_b32 s2, {p.swap}" if p.swap < 99 else f"s_bitcmp1_b32 s{sHL}, 0"}
            s_cselect_b32 s{sKV}, s{sV}, s{sK}
            s_cselect_b32 s{sKV+1}, s{sV+1}, s{sK+1}
            s_cselect_b32 s{sW}, s{sK}, s{sV}
            s_cselect_b32 s{sW+1}, s{sK+1}, s{sV+1}
            s_cselect_b32 s{sXB}, 8192, 0
            s_mov_b32 s{sW+2}, 131072
            s_add_u32 s{sXB}, s{sXB}, s{sRB}""")
        else: a(f"s_mov_b32 s{sXB}, s{sRB}")
        for n in range(2, p.kvd - (1 if p.late and not p.t3 else 0)):
            dma.append([f"s_add_u32 s{sKS}, s{sROT}, {(4 if p.par8 else 2)*n}", f"s_and_b32 s{sKS}, s{sKS}, 31", f"s_lshl_b32 s{sKS}, s{sKS}, 12",
                        f"s_add_u32 s{sKM}, s{sXB}, {65536 + 16384*(n & 1)}"])
            dma += kv_tile_dma(p, sKM, sKS)
    di = 0
    a(f"s_load_dword s{sNONCE}, s[6:7], 0")
    if p.warm and not loader:
        flag_addr(a, 1, FA)
        a(f"s_add_u32 s{sT}, s{sT}, 64\ns_load_dword s{sKN}, s[82:83], s{sT}")
    a(f"v_and_b32 v1, 63, v0\ns_lshl_b32 s{sT}, s{sHL}, 11\ns_add_u32 s{sT}, s{sT}, {QX}\nv_lshl_add_u32 v1, v1, 4, s{sT}")
    units = [(t, s) for t in range(4) for s in range(4)]
    units = ([(4, 2), (4, 3)] + units) if loader else (units + [(4, 0), (4, 1)])
    for n, (t, s) in enumerate(units):
        if n == 10:
            assert di == len(dma)
            a(f"s_waitcnt lgkmcnt(0)\ns_waitcnt vmcnt({16*(p.kvd - 2 - (1 if p.late and not p.t3 else 0)) if loader else 0})\ns_barrier")
            if not loader:
                for s2 in (2, 3): a(f"ds_read_b128 {ar(aQ + (16 + s2)*4)}, v1 offset:{1024*(s2 - 2)}")
            for x in frag_reads(0, 0)[:8 if p.late else 24]: a(x)
        for _ in range(4):
            if di < len(dma):
                for x in dma[di]: a(x)
                di += 1
        A0, B0 = acc(t, 2*s), acc(t, 2*s+1)
        for r in range(0, 8, 2): a(f"v_pk_mul_f32 {vr(A0+r, 2)}, {vr(A0+r, 2)}, s[{sSC-1}:{sSC}] op_sel:[0,1] op_sel_hi:[1,1]")
        a(f"v_cvt_pk_bf16_f32 v4, v{A0}, v{A0+1}\nv_cvt_pk_bf16_f32 v5, v{A0+2}, v{A0+3}\nv_cvt_pk_bf16_f32 v6, v{B0}, v{B0+1}\nv_cvt_pk_bf16_f32 v7, v{B0+2}, v{B0+3}")
        for r in range(0, 4, 2): a(f"v_pk_mov_b32 {vr(A0+r, 2)}, 0, 0")
        a("v_permlane32_swap_b32 v4, v6\nv_permlane32_swap_b32 v5, v7")
        for r in range(0, 4, 2): a(f"v_pk_mov_b32 {vr(B0+r, 2)}, 0, 0")
        a("v_permlane16_swap_b32 v4, v6\nv_permlane16_swap_b32 v5, v7\ns_nop 0")
        if loader and t == 4:
            a(f"ds_write_b128 v1, v[4:7] offset:{1024*(s - 2)}\ns_nop 1")
        else:
            q = aQ + (t*4+s)*4
            for r in (0, 2, 1, 3): a(f"v_accvgpr_write_b32 a{q+r}, v{4+r}")
    for t in range(T): a(f"v_mov_b32 v{vL+t}, 0")
    for j in range(8): a(f"v_mov_b32 v{vS[1]+j}, 0")
    if loader:
        a(f"""s_mov_b32 s{sX}, s{sWO}
        s_mov_b32 s{sX+1}, s{sWO+1}
        s_mov_b32 s{sX+2}, s{sWO+2}
        s_and_b32 s{gLO}, s3, 3
        s_lshl_b32 s{gLO}, s{gLO}, 10
        s_lshl_b32 s{sT}, s{sHL}, 5
        s_add_u32 s{gLO}, s{gLO}, s{sT}
        s_mul_i32 s{gLO}, s{gLO}, 1152
        s_mul_i32 s{sT}, s4, 288
        s_add_u32 s{gLO}, s{gLO}, s{sT}
        s_mov_b32 s{gSTR}, {0 if p.exp & 1 else 73728}
        s_mul_i32 s{gDL2}, s{sHL}, 9216
        s_add_u32 s{gDL2}, s{gDL2}, 18432""")
    else:
        a(f"""s_mov_b32 s{sX}, s{sO}
        s_mov_b32 s{sX+1}, s{sO+1}
        s_mov_b32 s{sX+2}, s{sO+2}
        s_lshl_b32 s{sT}, s4, 1
        s_add_u32 s{sT}, s{sT}, s{sHL}
        s_mul_i32 s{sT}, s{sT}, {4*9216}
        s_sub_u32 s{gLO}, s{sOB}, s{sT}
        s_mul_i32 s{gDL2}, s{sHL}, 9216
        s_add_u32 s{gLO}, s{gLO}, s{gDL2}
        s_movk_i32 s{gSTR}, {0 if p.exp & 2 else 18432}""")
    a(f"""s_lshl_b32 s{gP4}, s4, 2
    s_mov_b32 s{gTAB}, {TAB & 0xffffffff:#x}
    s_mov_b32 s{gTAB+1}, {TAB >> 32:#x}
    s_mov_b32 s{gREDO}, 0
    s_mov_b32 s{sNEG}, {(127+40) << 23:#x}
    s_mov_b32 s{sIT}, 0
    s_mov_b32 s{sHI}, 0""")
    if p.warm and not loader:
        flag_addr(a, 1, FA)
        a(f"""s_add_u32 s{sT}, s{sT}, 64
        v_and_b32 v1, 7, v0
        s_lshr_b32 s80, s3, 2
        s_lshl_b32 s80, s80, 3
        s_add_u32 s80, s80, s5
        s_lshl_b32 s80, s80, 2
        s_add_u32 s80, s80, s4
        s_mul_i32 s80, s80, {PBLK}
        s_add_u32 s80, s80, {P_OFF}
        s_mov_b32 s81, {64*PBLK}
        v_mad_u32_u24 v2, v1, s81, v1
        v_sub_u32 v2, v2, v1
        v_add_u32 v2, s80, v2
        v_mov_b32 v3, s{sT}
        v_cmp_gt_u32 vcc, 4, v1
        s_nop 1
        v_cndmask_b32 v2, v3, v2, vcc
        global_load_dword v{vDUM}, v2, s[82:83] sc1""")
    a(f"s_cmp_eq_u32 s{sNONCE}, 0\ns_cbranch_scc1 L_tag{tag}\nL_tagb{tag}:")
    if loader and p.fc:
        a(f"""s_lshr_b32 s{sPA}, s2, 3
        s_lshl_b32 s{sPA}, s{sPA}, 7
        s_add_u32 s{sPA}, s{sPA}, {FP}
        s_lshl_b32 s{sT}, s3, 2
        s_add_u32 s{sT}, s{sT}, s{sPA}
        v_mov_b32 v{vFL}, s{sT}""")
    out = A()
    out(f"""L_tag{tag}:
    s_memrealtime s[80:81]
    v_mov_b32 v1, 0
    v_mov_b32 v3, 0
    s_waitcnt lgkmcnt(0)
    s_or_b32 s80, s80, 1
    v_mov_b32 v2, s80
    s_mov_b64 exec, 1
    global_atomic_cmpswap v4, v1, v[2:3], s[6:7] sc0 sc1
    s_waitcnt vmcnt(0)
    s_mov_b64 exec, -1
    v_readfirstlane_b32 s{sNONCE}, v4
    s_nop 1
    s_cmp_eq_u32 s{sNONCE}, 0
    s_cselect_b32 s{sNONCE}, s80, s{sNONCE}
    s_branch L_tagb{tag}""")
    if p.twq >= 0 and not loader:
        out("L_tq:")
        wo_touch(out, p, 80, 81)
        out("s_branch L_tqb")
    align(a, p)
    a(f"L_a{tag}:")
    for par in range(2):
        dist = p.kvd - (1 if p.late else 0)
        def kvbook(a):
            e0 = p.late and p.t3 and par == 0
            if p.par8: a(f"s_add_u32 s{sT}, s{sIT}, {dist+par}\ns_lshl_b32 s{sKS}, s{sT}, 2\ns_lshr_b32 s{sT}, s{sT}, 2\ns_and_b32 s{sT}, s{sT}, 2\ns_add_u32 s{sKS}, s{sKS}, s{sT}")
            else: a(f"s_lshl_b32 s{sKS}, s{sIT}, 1\ns_add_u32 s{sKS}, s{sKS}, {2*(dist+par)}")
            a(f"""s_add_u32 s{sKS}, s{sKS}, s{sROT}
            s_and_b32 s{sKS}, s{sKS}, 31
            s_lshl_b32 s{sKS}, s{sKS}, 12
            s_xor_b32 s{sKM}, s{sHI}, {0x10000 * (((dist + par) >> 1) & 1)}
            s_add_u32 s{sKM}, s{sKM}, s{sXB}
            s_add_u32 s{sKM}, s{sKM}, {16384*((dist + par) & 1)}
            {f"s_sub_u32 s{sT}, s{sIT}, 1" if e0 else ""}
            s_cmp_ge_u32 s{sT if e0 else sIT}, {16 - dist - par - (1 if e0 else 0)}
            s_cselect_b32 s{sKM}, {LDSOOB}, s{sKM}
            s_cselect_b32 s{sKS}, {OOB}, s{sKS}""")
        def hooks(a):
            if loader:
                a(f"s_cmp_ge_u32 s{sIT}, {14 - 2*par}\ns_cbranch_scc1 L_w{par}\nL_wb{par}:")
                out(f"L_w{par}:")
                if par == 0: g_stage_now(out, p.wofl, 1)
                else:
                    out(f"s_cmp_eq_u32 s{sIT}, 12\ns_cbranch_scc0 L_w1b")
                    g_stage_now(out, p.wofl, 0)
                    out("s_branch L_wb1\nL_w1b:")
                    g_stage_now(out, p.wofl, 2)
                    g_stage_now(out, p.wofl, 3)
                out(f"s_branch L_wb{par}")
            elif par == 0 and p.twown >= 0:
                a(f"""s_cmp_eq_u32 s{sIT}, {p.twown}
                s_cbranch_scc0 L_nt{tag}
                s_and_b32 s{sT}, s3, 3
                s_lshl_b32 s{sT}, s{sT}, 2
                s_add_u32 s{sT}, s{sT}, s4
                s_lshl_b32 s{sT}, s{sT}, 3
                s_add_u32 s{sT}, s{sT}, s5
                s_lshl_b32 s{sT}, s{sT}, 1
                s_add_u32 s{sT}, s{sT}, s{sHL}
                s_mul_i32 s{sT}, s{sT}, {16*1152}
                s_mul_i32 s{sT2}, s4, 288
                s_and_b32 s{sT2}, s{sT2}, 0xff80
                s_add_u32 s{sT}, s{sT}, s{sT2}
                v_and_b32 v1, 63, v0
                v_lshrrev_b32 v2, 2, v1
                v_mul_u32_u24 v2, 1152, v2
                v_and_b32 v1, 3, v1
                v_lshl_add_u32 v1, v1, 7, v2
                buffer_load_dword v{vDUM}, v1, s[{sWO}:{sWO+3}], s{sT} offen {p.twfl}
                L_nt{tag}:""")
            elif par == 0 and p.twpos < 15:
                a(f"s_cmp_eq_u32 s{sIT}, {p.twpos}\ns_cbranch_scc0 L_nt{tag}")
                wo_touch(a, p)
                a(f"L_nt{tag}:")
        def top(a):
            if loader: kvbook(a)
            a("s_waitcnt lgkmcnt(0)")
            if loader and p.fc:
                out(f"""L_fc{par}:
                s_add_u32 s74, s{sIT}, {par}
                s_add_u32 s75, s74, s{sNONCE}
                v_mov_b32 v2, s75
                s_mov_b64 exec, 1
                global_store_dword v{vFL}, v2, s[82:83] sc1
                s_mov_b64 exec, -1
                s_mov_b32 s76, 0
                s_cmp_lt_u32 s74, {p.fc + 1}
                s_cbranch_scc1 L_fce{par}
                L_fcl{par}:""")
                for j in range(8): out(f"s_sub_u32 s{sPG+j}, s{sPG+j}, s{sNONCE}\ns_cmp_gt_u32 s{sPG+j}, 31\ns_cselect_b32 s{sPG+j}, 0, s{sPG+j}")
                for j in range(1, 8): out(f"s_min_u32 s{sPG}, s{sPG}, s{sPG+j}")
                out(f"""s_add_u32 s{sPG}, s{sPG}, {p.fc}
                s_cmp_ge_u32 s{sPG}, s74
                s_cbranch_scc1 L_fce{par}
                s_add_u32 s76, s76, 1
                s_cmp_ge_u32 s76, {p.fcs}
                s_cbranch_scc1 L_fce{par}
                s_load_dwordx8 s[{sPG}:{sPG+7}], s[82:83], s{sPA} glc
                s_waitcnt lgkmcnt(0)
                s_branch L_fcl{par}
                L_fce{par}:
                s_load_dwordx8 s[{sPG}:{sPG+7}], s[82:83], s{sPA} glc
                s_branch L_fcb{par}""")
            if not p.late:
                if loader: a(f"s_waitcnt vmcnt({16*(p.kvd - 2)})")
                a("s_barrier")
                hooks(a)
        def mid(a):
            if loader: a(f"s_waitcnt vmcnt({16*(dist - 1)})")
            a("s_barrier")
            hooks(a)
        block(a, p, T, par, loader, top, mid)
    a(f"s_xor_b32 s{sHI}, s{sHI}, 0x10000\ns_add_u32 s{sIT}, s{sIT}, 2\ns_cmp_lt_u32 s{sIT}, 16\ns_cbranch_scc1 L_a{tag}")
    S = vS[(2*T - 1) & 1]
    a("s_nop 0")
    for x in soft2(S, T-1): a(x)
    for x in pv(S, aV[1], T-1): a(x)
    stamp(a, p, 3)
    a(f"L_e{tag}:")
    if not loader and p.twpos == 16: wo_touch(a, p)
    lanesum(a, T, "v_add_f32")
    a(f"v_mov_b32 v6, v{vL}\nv_mov_b32 v7, v{vL}")
    for t in range(1, T): a(f"v_min_u32 v6, v6, v{vL+t}\nv_max_u32 v7, v7, v{vL+t}")
    a(f"""v_cmp_gt_u32 vcc, {(127-20) << 23:#x}, v6
    v_cmp_lt_u32 s[80:81], s{sNEG}, v7
    s_nop 1
    s_or_b64 vcc, vcc, s[80:81]
    {'s_mov_b64 vcc, -1' if p.force else ''}
    s_cbranch_vccz L_ok{tag}
    v_mov_b32 v6, {LFLAG}
    v_mov_b32 v7, 1
    ds_write_b32 v6, v7
    L_ok{tag}:""")
    for t in range(T): a(f"v_rcp_f32 v{vL+t}, v{vL+t}")
    a("s_nop 0")
    buf = 0
    for sp in range(2):
        for n, (t, s) in enumerate([(t, 2*sp + k) for t in range(T) for k in range(2)]):
            A0 = acc(t, 2*s)
            rp = (vL + t) & ~1
            sel = (vL + t) & 1
            for r in range(0, 8, 2): a(f"v_pk_mul_f32 {vr(A0+r, 2)}, {vr(A0+r, 2)}, {vr(rp, 2)} op_sel:[0,{sel}] op_sel_hi:[1,{sel}]")
            if sp == 0 or not p.defer: d = (8, 12, 80, 84)[buf & 3]; buf += 1
            else: d = KEEP[n]
            for r in range(4): a(f"v_cvt_pk_bf16_f32 v{d+r}, v{A0+2*r}, v{A0+2*r+1}")
            a(f"ds_write_b128 v{vOW}, {vr(d)} offset:{(s >> 1)*STG + (s & 1)*9216 + 1024*t}")
            if sp == 0 or not p.defer:
                for x in o_store(p, t, s, d): a(x)
            for r in range(0, 8, 2):
                if A0 + r < v2ACC + 84: a(f"v_pk_mov_b32 {vr(A0+r, 2)}, 0, 0")
    if not loader and p.twpos == 17: wo_touch(a, p)
    a(f"""s_mov_b32 s{gST}, 0
    s_mov_b32 s{gRI}, 0
    s_mov_b32 s{gC1}, {STG}
    s_mov_b32 s{gC2}, {-3*STG}
    s_mov_b32 s{gDL}, {STG}
    s_mov_b32 s{gM0}, {LDSOOB}
    s_mov_b32 m0, {LDSOOB}
    s_mov_b32 s{gSO}, {OOB}
    s_mov_b32 s{gDST}, s{gDL2}
    v_mov_b32 v1, {LFLAG}""")
    if True:
        flag_addr(a, 1, FA)
        CHK = 0x3cf
        a(f"""s_add_u32 s{gFP}, s82, s{sT}
        s_addc_u32 s{gFP+1}, s83, 0
        s_lshl_b32 s{sT}, s4, 2
        v_mov_b32 v{vPA}, s{sT}
        v_mov_b32 v{vNZ}, s{sNONCE}
        s_mov_b32 s{gOFF}, 0
        s_mov_b32 s{gCHK}, {CHK}
        s_cmp_eq_u32 s{sWAVE}, 0
        s_cselect_b32 s{gPOST}, 8, 0
        s_mov_b32 s{gMASK}, {7 if loader else CHK | CHK >> 1}
        s_mov_b64 s[{gF}:{gF+1}], 0""")
    a(f"s_waitcnt lgkmcnt(0)\ns_waitcnt vmcnt({(0 if p.pa < 0 and p.defer else 2*T) + (3 if not loader and p.twpos == 17 else 0)})")
    a("s_branch L_gemm")
    a.l += out.l
    a(f"L_redo{tag}:")
    a(f"s_waitcnt vmcnt(0) lgkmcnt(0)\ns_barrier\nv_mov_b32 v6, {LFLAG}\nv_mov_b32 v7, 0\nds_write_b32 v6, v7")
    for r in list(range(vKA, vKA+4)) + list(range(vVA, vVA+8)): a(f"v_and_b32 v{r}, 0xffff, v{r}")
    for t in range(T): a(f"v_mov_b32 v{vL+t}, 0xff800000")
    for ps in range(2):
        a(f"s_mov_b32 s{sKS}, 0\nL_r{ps}{tag}:")
        if loader:
            emit(a, kv_tile_dma(p, sRB, sKS, (0, 1) if ps == 0 else (0, 1, 2, 3), plain=True), nop=False)
        a("s_waitcnt vmcnt(0)\ns_barrier")
        for x in frag_reads(0, 0)[:8 if ps == 0 else 24]: a(x)
        a("s_waitcnt lgkmcnt(0)\ns_barrier")
        for t in range(T):
            S = vS[0]
            for x in qk(S, aK[0], t, "0" if ps == 0 else vr(vNM + 4*t)): a(x)
            a("s_nop 7")
            if ps == 0:
                for j in range(0, 8, 2): a(f"v_max3_f32 v{vL+t}, v{vL+t}, v{S+j}, v{S+j+1}")
            else:
                for j in range(8): a(f"v_exp_f32 v{S+j}, v{S+j}")
                for x in soft2(S, t) + pv(S, aV[0], t): a(x)
        a(f"s_add_u32 s{sKS}, s{sKS}, 8192\ns_cmp_lt_u32 s{sKS}, 131072\ns_cbranch_scc1 L_r{ps}{tag}")
        if ps == 0:
            lanesum(a, T, "v_max_f32")
            for t in range(T):
                for r in range(4): a(f"v_sub_f32 v{vNM + 4*t + r}, 0, v{vL+t}")
                a(f"v_mov_b32 v{vL+t}, 0")
            for r in range(32 * T): a(f"v_mov_b32 v{vACC+r}, 0")
    a("s_barrier")
    if loader:
        for st in range(4): g_stage_now(a, p.wofl, st)
    a(f"s_mov_b32 s{gREDO}, 1\ns_branch L_e{tag}")

def g_reads(par, off):
    A_, B_ = a2A[par], a2B[par]
    rd = []
    for nt in range(3):
        reg, o = (v2A, 32 * nt) if nt < 2 else (v2A + 1, 0)
        rd.append(f"ds_read_b64_tr_b16 {ar(A_ + 4*nt, 2)}, v{reg} offset:{off + o}")
        rd.append(f"ds_read_b64_tr_b16 {ar(A_ + 4*nt + 2, 2)}, v{reg} offset:{off + o + 4608}")
    for u in range(9):
        reg, o = (v2B, 1024 * u) if u < 3 else (v2B + 1 + (u - 3) // 2, 1024 * ((u - 3) & 1))
        rd.append(f"ds_read_b128 {ar(B_ + 4*u)}, v{reg} offset:{off + o}" if not (EXP & 256 and u >= 6) else "s_nop 0")
    return rd
def g_mf(par):
    return [f"{MF} {vr(acc2(nt, u))}, {ar(a2A[par] + 4*nt)}, {ar(a2B[par] + 4*u)}, {vr(acc2(nt, u))}" for u in range(9) for nt in range(3 if u < 3 else 2)]

def flag_addr(a, hop, base):
    if hop == 1: a(f"s_lshr_b32 s{sT}, s2, 5\ns_lshl_b32 s{sT}, s{sT}, 3\ns_add_u32 s{sT}, s{sT}, s3")
    else: a(f"s_lshr_b32 s{sT}, s2, 2")
    a(f"s_lshl_b32 s{sT}, s{sT}, {8 if hop == 1 else 7}\ns_add_u32 s{sT}, s{sT}, {base}")
def poll_issue(a):
    a(f"s_load_dwordx4 s[{gF}:{gF+3}], s[82:83], s{sT} glc")
def poll(a, tag, hop, base, issued=False, lim=SPIN, fail=None):
    flag_addr(a, hop, base)
    a(f"s_mov_b32 s{sT2}, 0")
    if issued: a(f"s_branch L_pc{tag}")
    a(f"L_p{tag}:")
    poll_issue(a)
    a(f"""L_pc{tag}:
    s_waitcnt lgkmcnt(0)
    s_xor_b32 s{gF}, s{gF}, s{sNONCE}
    s_xor_b32 s{gF+1}, s{gF+1}, s{sNONCE}
    s_xor_b32 s{gF+2}, s{gF+2}, s{sNONCE}
    s_xor_b32 s{gF+3}, s{gF+3}, s{sNONCE}
    s_or_b64 s[{gF}:{gF+1}], s[{gF}:{gF+1}], s[{gF+2}:{gF+3}]
    s_cbranch_scc0 L_pd{tag}
    s_add_u32 s{sT2}, s{sT2}, 1
    s_cmp_lt_u32 s{sT2}, {lim}
    s_cbranch_scc1 L_p{tag}
    {f"s_cmp_eq_u32 {lim}, 0" if fail else ""}
    {f"s_cbranch_scc1 {fail}" if fail else ""}
    L_pd{tag}:""")
def vpoll(a, tag, hop, base):
    flag_addr(a, hop, base)
    a(f"""v_and_b32 v1, 3, v0
    v_lshl_add_u32 v1, v1, 2, s{sT}
    s_mov_b32 s{sT}, 0
    L_p{tag}:
    global_load_dword v2, v1, s[82:83] sc1
    s_add_u32 s{sT}, s{sT}, 1
    s_waitcnt vmcnt(0)
    v_cmp_ne_u32 vcc, s{sNONCE}, v2
    s_cmp_lt_u32 s{sT}, {SPIN}
    s_cbranch_vccz L_pd{tag}
    s_cbranch_scc1 L_p{tag}
    L_pd{tag}:""")
def post(a, hop, base):
    flag_addr(a, hop, base)
    if hop == 1: a(f"s_lshl_b32 s{sT2}, s4, 2")
    else: a(f"s_and_b32 s{sT2}, s2, 3\ns_lshl_b32 s{sT2}, s{sT2}, 2")
    a(f"""s_add_u32 s{sT}, s{sT}, s{sT2}
    v_mov_b32 v1, s{sT}
    v_mov_b32 v2, s{sNONCE}
    s_mov_b64 exec, 1
    global_store_dword v1, v2, s[82:83] sc1
    s_mov_b64 exec, -1""")

def gemm_loop(a, out, p, role):
    fl = p.wofl if role == "w" else p.olfl
    d = g_dma(fl)
    align(a, p)
    a(f"L_g{role}:\ns_waitcnt lgkmcnt(6)")
    r = g_reads(1, 9216)
    upd = [f"v_add_u32 v{x}, s{gDL}, v{x}" for x in (v2A, v2A + 1, v2B, v2B + 1, v2B + 2, v2B + 3)]
    book0 = [f"s_add_u32 s{gRI}, s{gRI}, 1", f"s_and_b32 s{gRI}, s{gRI}, 3", f"s_cmp_eq_u32 s{gRI}, 3", f"s_cselect_b32 s{gDL}, s{gC2}, s{gC1}"]
    book2 = [f"s_and_b32 s{gSRC}, s{gTAB}, 15", f"s_lshr_b64 s[{gTAB}:{gTAB+1}], s[{gTAB}:{gTAB+1}], 4", f"s_add_u32 s{gSRC}, s{gSRC}, s{gP4}",
             f"s_and_b32 s{gSRC}, s{gSRC}, 15", f"s_mul_i32 s{gSRC}, s{gSRC}, s{gSTR}", f"s_add_u32 s{gSRC}, s{gSRC}, s{gLO}"]
    book1 = book2 + [f"s_cmp_ge_u32 s{gST}, 12", f"s_cselect_b32 s{gM0}, {LDSOOB}, s{gDST}", f"s_cselect_b32 s{gSO}, {OOB}, s{gSRC}",
             f"s_add_u32 s{gDST}, s{gDST}, s{gDL}"] + book0 + [f"s_bitcmp1_b32 s{gMASK}, s{gST}"]
    rp = [0, 0, 1, 1, 2, 2, 3, 5, 6, 8, 9, 11, 12, 14, 15]
    flo = [It(x, q, q) for x, q in zip(r[:9], rp)] + [It("s_waitcnt lgkmcnt(9)", 7, 8)] + [It(x, q, q) for x, q in zip(r[9:], rp[9:])] + \
          flat_dma(d[3:], [4, 7, 10, 13, 16, 19]) + [It(x, 0, 20) for x in upd]
    flo[9].W = {"x"}; flo[9].R = set()
    for it in flo[10:16]: it.R = it.R | {"x"}
    gaps, over = schedule(21, [], flo)
    assert any("lgkmcnt" in x for g in gaps[7:9] for x in g)
    if VERB: print("gemm step0 over", over, file=sys.stderr)
    weave(a, g_mf(0), gaps)
    mf = g_mf(1)
    a("s_waitcnt lgkmcnt(6)")
    gaps, over = schedule(6, [], [It(x, 0, 5) for x in book1])
    weave(a, mf[:6], gaps)
    if role == "o": a(f"s_cbranch_scc1 L_ho\ns_waitcnt lgkmcnt(0)\ns_waitcnt vmcnt(18)\ns_barrier\nL_hc{role}:")
    else: a(f"s_waitcnt lgkmcnt(0)\ns_cbranch_scc1 L_hw\ns_waitcnt vmcnt(18)\nL_hw:\ns_barrier\nL_hc{role}:")
    if p.gprof: a(f"s_mov_b32 m0, s{gST}\nv_writelane_b32 v31, s98, m0\n{'s_memtime' if p.cyc else 's_memrealtime'} s[98:99]")
    r = g_reads(0, 0)
    rp = [0, 0, 1, 1, 2, 2, 3, 4, 5, 7, 8, 10, 11, 13, 14]
    gaps, over = schedule(15, [], [It(x, q, q) for x, q in zip(r, rp)] + flat_dma(d[:3], [6, 9, 12]) + [It(f"s_add_u32 s{gST}, s{gST}, 1", 7, 14), It(f"s_cmp_lt_u32 s{gST}, 16", 7, 14)])
    if VERB: print("gemm step1 over", over, file=sys.stderr)
    weave(a, mf[6:], gaps)
    a(f"s_cbranch_scc1 L_g{role}")
    if role == "w": return
    out(f"""L_ho:
    s_waitcnt lgkmcnt(0)
    s_bitcmp1_b32 s{gCHK}, s{gST}
    s_cbranch_scc0 L_hx
    s_mov_b32 s{sT2}, 0
    L_hk:
    s_xor_b64 s[{gF}:{gF+1}], s[{gF}:{gF+1}], s[{gNN}:{gNN+1}]
    s_xor_b64 s[{gF+2}:{gF+3}], s[{gF+2}:{gF+3}], s[{gNN}:{gNN+1}]
    s_or_b64 s[{gF}:{gF+1}], s[{gF}:{gF+1}], s[{gF+2}:{gF+3}]
    s_cbranch_scc0 L_hr
    s_bitcmp1_b32 0x208, s{gST}
    s_cbranch_scc1 L_hs
    s_mov_b32 s{gM0}, {LDSOOB}
    s_mov_b32 s{gSO}, {OOB}
    L_hx:
    s_cmp_lt_u32 s{gST}, 3
    s_cbranch_scc1 L_hn
    s_waitcnt vmcnt(18)
    L_hn:
    s_barrier
    s_lshr_b32 s{sT}, s{gCHK}, 1
    s_bitcmp1_b32 s{sT}, s{gST}
    s_cbranch_scc0 L_hp
    s_load_dwordx4 s[{gF}:{gF+3}], s[{gFP}:{gFP+1}], s{gOFF} glc
    L_hp:
    s_bitcmp1_b32 s{gPOST}, s{gST}
    s_cbranch_scc0 L_hco
    s_mov_b64 exec, 1
    global_store_dword v{vPA}, v{vNZ}, s[{gFP}:{gFP+1}] offset:128 sc1
    s_mov_b64 exec, -1
    s_branch L_hco
    L_hs:
    s_add_u32 s{sT2}, s{sT2}, 1
    s_cmp_ge_u32 s{sT2}, {SPIN}
    s_cbranch_scc1 L_hr
    s_load_dwordx4 s[{gF}:{gF+3}], s[{gFP}:{gFP+1}], s{gOFF} glc
    s_waitcnt lgkmcnt(0)
    s_branch L_hk
    L_hr:
    s_mov_b32 s44, s{gM0}
    s_mov_b32 s45, s{gSO}
    s_cmp_eq_u32 s{gOFF}, 0
    s_cbranch_scc0 L_hr1""")
    for ph, lo in enumerate((0, 6)):
        out(f"L_hr{ph}:")
        if ph == 0: stamp(out, p, 5)
        out(f"s_movk_i32 s{gOFF}, 128\ns_and_b32 s{gCHK}, s{gCHK}, {0x3c0 if ph == 0 else 0}\ns_mov_b32 s{gMASK}, {0x3ef if ph == 0 else 0}")
        for j in range(3):
            out(f"s_cmp_gt_u32 s{gST}, {lo + j}\ns_cbranch_scc0 L_hy")
            g_stage_now(out, fl, lo + 4 + j)
        if ph == 0: out("s_branch L_hy")
    out(f"L_hy:\ns_mov_b32 s{gM0}, s44\ns_mov_b32 s{gSO}, s45\ns_branch L_hx")

def back(a, p):
    out = A()
    a(f"""L_gemm:
    s_barrier""")
    stamp(a, p, 4)
    a("ds_read_b32 v2, v1")
    rd0 = g_reads(0, 0)
    for x in rd0[:12]: a(x)
    a(f"""s_waitcnt lgkmcnt(12)
    v_readfirstlane_b32 s{sT}, v2
    {rd0[12]}
    {rd0[13]}
    {rd0[14]}
    s_andn2_b32 s{sT}, s{sT}, s{gREDO}
    s_cbranch_scc1 L_redo
    s_mov_b32 s{gNN}, s{sNONCE}
    s_mov_b32 s{gNN+1}, s{sNONCE}
    s_bitcmp1_b32 s{sWAVE}, 0
    s_cbranch_scc1 L_gw
    s_lshr_b32 exec_lo, s{gPOST}, 3
    s_mov_b32 exec_hi, 0
    global_store_dword v{vPA}, v{vNZ}, s[{gFP}:{gFP+1}] sc1
    s_mov_b64 exec, -1""")
    if p.twpos == 18: wo_touch(a, p)
    out(f"""L_redo:
    s_bitcmp1_b32 s{sWAVE}, 0
    s_cbranch_scc1 L_redos
    s_branch L_redob""")
    gemm_loop(a, out, p, "o")
    a("s_branch L_ge")
    gemm_loop(a, out, p, "w")
    a("L_ge:")
    stamp(a, p, 6)
    a(f"""s_and_b32 s{sT}, s3, 3
    s_lshl_b32 s60, s{sT}, 4
    s_lshr_b32 s61, s3, 2
    s_lshl_b32 s61, s61, 3
    s_add_u32 s61, s61, s5
    s_add_u32 s60, s60, s61
    s_lshl_b32 s60, s60, 2
    s_add_u32 s60, s60, s4
    s_mul_i32 s60, s60, {PBLK}
    s_add_u32 s{sW}, s82, {P_OFF}
    s_addc_u32 s{sW+1}, s83, 0
    s_mov_b32 s{sW+2}, {256*PBLK}
    s_mul_i32 s62, s{sWAVE}, 9216
    s_add_u32 s62, s62, s60
    v_and_b32 v2, 63, v0
    v_lshlrev_b32 v3, 4, v2
    v_lshlrev_b32 v4, 3, v2
    s_lshl_b32 s63, s{sWAVE}, 1
    s_cmp_eq_u32 s{sWAVE}, 0
    s_cselect_b32 s{gQ1}, 3, 0
    s_cmp_lt_u32 s{sWAVE}, 2
    s_cselect_b32 s{gQ2}, 5, 2
    s_cmp_lt_u32 s{sWAVE}, 3
    s_cselect_b32 s{gQ3}, 7, 4""")
    qs = [63, 63, 63, gQ1, gQ1, gQ2, gQ2, gQ3, gQ3]
    qo = [0, 1, 2, 0, 1, 0, 1, 0, 1]
    a(f"s_and_b32 s{sT}, s3, 3\ns_cmp_eq_u32 s{sT}, s{sWAVE}\ns_cbranch_scc1 L_own")
    for own in range(2):
        if own: a(f"s_branch L_pe\nL_own:")
        for u in range(9):
            d = 8 + 4 * (u & 3)
            A0, B0 = acc2(0, u), acc2(1, u)
            a(f"v_cvt_pk_bf16_f32 v{d}, v{A0}, v{A0+1}\nv_cvt_pk_bf16_f32 v{d+1}, v{A0+2}, v{A0+3}\nv_cvt_pk_bf16_f32 v{d+2}, v{B0}, v{B0+1}\nv_cvt_pk_bf16_f32 v{d+3}, v{B0+2}, v{B0+3}")
            if own:
                if qo[u] == 0: a(f"s_lshl_b32 s{sT}, s{qs[u]}, 10\nv_add_u32 v5, s{sT}, v3")
                a(f"ds_write_b128 v5, {vr(d)} offset:{PL + 1024*qo[u]}")
            else:
                a(f"s_lshl_b32 s{sT}, s{qs[u]}, 10\ns_add_u32 s{sT}, s{sT}, s62")
                a(f"buffer_store_dwordx4 {vr(d)}, v3, s[{sW}:{sW+3}], s{sT} offen offset:{1024*qo[u]} {p.pfl}")
        if not own: a(f"s_lshl_b32 s{sT}, s63, 9\ns_add_u32 s{sT}, s{sT}, s60\ns_add_u32 s{sT}, s{sT}, 36864")
        for u in range(3):
            d = 24 + 2 * u
            A0 = acc2(2, u)
            if u == 2 and not own: a(f"s_cmp_eq_u32 s{sWAVE}, 3\ns_cbranch_scc0 L_pe")
            a(f"v_cvt_pk_bf16_f32 v{d}, v{A0}, v{A0+1}\nv_cvt_pk_bf16_f32 v{d+1}, v{A0+2}, v{A0+3}")
            if own: a(f"ds_write_b64 v4, {vr(d, 2)} offset:{PL + 9216 + 512*u}")
            else: a(f"buffer_store_dwordx2 {vr(d, 2)}, v4, s[{sW}:{sW+3}], s{sT} offen offset:{512*u} {p.pfl}")
    a("L_pe:")
    a("s_load_dwordx2 s[68:69], s[0:1], 80")
    a(f"""s_and_b32 s64, s3, 3
    s_lshl_b32 s65, s61, 2
    s_add_u32 s65, s65, s4
    s_mul_i32 s65, s65, {PBLK}
    s_mul_i32 s66, s64, 9216
    s_add_u32 s66, s66, s65
    s_lshl_b32 s{sT}, s{sWAVE}, 10
    s_add_u32 s66, s66, s{sT}
    s_lshl_b32 s67, s64, 1
    s_add_u32 s67, s67, s{sWAVE}
    s_sub_u32 s67, s67, 1
    s_lshl_b32 s72, s67, 9
    s_add_u32 s72, s72, s65
    s_add_u32 s72, s72, 36864
    s_lshr_b32 s73, s3, 2
    s_mul_i32 s73, s73, 1152
    s_mul_i32 s{sT}, s4, 288
    s_add_u32 s73, s73, s{sT}
    s_mul_i32 s{sT}, s5, {144*2304}
    s_add_u32 s73, s73, s{sT}
    s_mul_i32 s74, s67, {16*2304}
    s_add_u32 s74, s74, s73
    s_add_u32 s74, s74, 256
    s_lshl_b32 s{sT}, s64, 6
    s_add_u32 s73, s73, s{sT}
    s_mul_i32 s{sT}, s{sWAVE}, {16*2304}
    s_add_u32 s73, s73, s{sT}
    s_cmp_eq_u32 s{sWAVE}, 3
    s_cselect_b32 s75, 8, s67
    s_cmp_eq_u32 s75, s67
    s_cselect_b32 s72, s72, {OOB}
    s_cselect_b32 s74, s74, {OOB}
    v_and_b32 v5, 15, v2
    s_movk_i32 s{sT}, 2304
    v_lshrrev_b32 v6, 4, v2
    v_lshlrev_b32 v6, 3, v6
    v_mad_u32_u24 v7, v5, s{sT}, v6
    s_mov_b32 s70, {8*144*1152*2}
    s_mov_b32 s71, 0x20000
    s_add_u32 s76, s64, 1
    s_add_u32 s77, s64, 2
    s_add_u32 s78, s64, 3
    s_and_b32 s76, s76, 3
    s_and_b32 s77, s77, 3
    s_and_b32 s78, s78, 3
    s_mul_i32 s76, s76, {64*PBLK}
    s_mul_i32 s77, s77, {64*PBLK}
    s_mul_i32 s78, s78, {64*PBLK}
    v_add_u32 v9, 4096, v3
    s_lshl_b32 s{sT}, s{sWAVE}, 10
    v_add_u32 v10, s{sT}, v3
    s_lshl_b32 s{sT}, s{sWAVE}, 9
    v_add_u32 v11, s{sT}, v4
    s_waitcnt vmcnt(0) lgkmcnt(0)
    s_barrier
    s_cmp_eq_u32 s{sWAVE}, 0
    s_cbranch_scc0 L_n1""")
    post(a, 2, F2)
    a(f"ds_read_b128 v[128:131], v3 offset:{PL + 8192}\ns_branch L_n2\nL_n1:\nds_read_b64 v[128:129], v11 offset:{PL + 9216 - 512}\nL_n2:")
    a(f"ds_read_b128 v[96:99], v10 offset:{PL}\nds_read_b128 v[112:115], v10 offset:{PL + 4096}")
    if p.vp2: vpoll(a, "2", 2, F2)
    else: poll(a, "2", 2, F2)
    stamp(a, p, 7)
    def red(src, stride, n, dst):
        for i in range(n):
            for k in range(4):
                r = src + stride * k + i
                if k == 0: a(f"v_lshlrev_b32 v80, 16, v{r}\nv_and_b32 v81, 0xffff0000, v{r}")
                else: a(f"v_lshlrev_b32 v82, 16, v{r}\nv_and_b32 v83, 0xffff0000, v{r}\nv_pk_add_f32 v[80:81], v[80:81], v[82:83]")
            a(f"v_cvt_pk_bf16_f32 v{dst+i}, v80, v81")
    for u in range(2):
        for k in range(3):
            a(f"s_add_u32 s{sT}, s66, s{76+k}\nbuffer_load_dwordx4 {vr(100 + 16*u + 4*k)}, v{3 if u == 0 else 9}, s[{sW}:{sW+3}], s{sT} offen {p.plfl}")
    a(f"s_cmp_eq_u32 s{sWAVE}, 0\ns_cbranch_scc0 L_r3\ns_add_u32 s66, s66, 8192")
    for k in range(3):
        a(f"s_add_u32 s{sT}, s66, s{76+k}\nbuffer_load_dwordx4 {vr(132 + 4*k)}, v3, s[{sW}:{sW+3}], s{sT} offen {p.plfl}")
    a("s_branch L_r4\nL_r3:")
    for k in range(3):
        a(f"s_add_u32 s{sT}, s72, s{76+k}\nbuffer_load_dwordx2 {vr(132 + 4*k, 2)}, v4, s[{sW}:{sW+3}], s{sT} offen {p.plfl}")
    a("L_r4:\ns_waitcnt lgkmcnt(0)")
    for u in range(2):
        a(f"s_waitcnt vmcnt({6 - u})")
        red(96 + 16*u, 4, 4, 12 + 4*u)
        a(f"buffer_store_dwordx2 {vr(12+4*u, 2)}, v7, s[68:71], s73 offen {p.outfl}\nbuffer_store_dwordx2 {vr(14+4*u, 2)}, v7, s[68:71], s73 offen offset:32 {p.outfl}")
        a(f"s_add_u32 s73, s73, {64*2304}")
    a("s_waitcnt vmcnt(4)")
    a(f"s_cmp_eq_u32 s{sWAVE}, 0\ns_cbranch_scc0 L_r5")
    red(128, 4, 4, 20)
    a(f"buffer_store_dwordx2 v[20:21], v7, s[68:71], s73 offen {p.outfl}\nbuffer_store_dwordx2 v[22:23], v7, s[68:71], s73 offen offset:32 {p.outfl}\ns_branch L_r6\nL_r5:")
    red(128, 4, 2, 20)
    a(f"buffer_store_dwordx2 v[20:21], v7, s[68:71], s74 offen {p.outfl}\nL_r6:")
    if p.stamps:
        a("s_waitcnt vmcnt(0)")
        if not p.pst: stamp(a, p, 8)
        stamp_store(a, p)
    a("L_end:\ns_endpgm")
    a.l += out.l

def kernel(p, K):
    a = A()
    a("s_cmp_ge_u32 s2, 256\ns_cbranch_scc1 L_end")
    if p.perm == 1: a("s_mul_i32 s2, s2, 37\ns_add_u32 s2, s2, 11\ns_and_b32 s2, s2, 255")
    if p.perm == 2: a("s_lshr_b32 s3, s2, 3\ns_and_b32 s2, s2, 7\ns_lshl_b32 s2, s2, 5\ns_or_b32 s2, s2, s3")
    if p.perm == 3: a("s_lshr_b32 s3, s2, 5\ns_and_b32 s2, s2, 31\ns_lshl_b32 s2, s2, 3\ns_or_b32 s2, s2, s3")
    stamp(a, p, 0)
    a(f"""
    s_load_dwordx8 s[52:59], s[0:1], 0
    s_load_dwordx8 s[60:67], s[0:1], 40
    s_load_dwordx2 s[82:83], s[0:1], 96
    s_load_dwordx2 s[94:95], s[0:1], 32
    s_load_dwordx2 s[96:97], s[0:1], 72
    s_load_dwordx2 s[98:99], s[0:1], 88
    v_lshrrev_b32 v1, 6, v0
    v_and_b32 v2, 63, v0
    v_readfirstlane_b32 s{sWAVE}, v1
    s_and_b32 s3, s2, 7
    s_lshr_b32 s4, s2, 3
    s_lshr_b32 s5, s4, 2
    s_and_b32 s4, s4, 3
    s_and_b32 s6, s3, 3
    s_lshl_b32 s6, s6, 3
    s_lshl_b32 s7, s4, 1
    s_add_u32 s6, s6, s7
    s_lshr_b32 s{sHL}, s{sWAVE}, 1
    s_add_u32 s7, s6, s{sHL}
    s_lshl_b32 s{sRB}, s{sHL}, 15
    """)
    if p.rotm == 0: a(f"s_lshr_b32 s{sROT}, s2, 2\ns_and_b32 s{sROT}, s{sROT}, 14\ns_add_u32 s{sROT}, s{sROT}, s{sHL}\ns_lshl_b32 s{sROT}, s{sROT}, 1")
    elif p.rotm == 1: a(f"s_lshr_b32 s{sROT}, s2, 2\ns_and_b32 s{sROT}, s{sROT}, 30\ns_add_u32 s{sROT}, s{sROT}, s{sHL}")
    elif p.rotm == 2: a(f"s_lshr_b32 s{sROT}, s2, 3\ns_lshl_b32 s{sT}, s{sHL}, 4\ns_add_u32 s{sROT}, s{sROT}, s{sT}")
    elif p.rotm == 3: a(f"s_lshl_b32 s{sROT}, s2, 1\ns_add_u32 s{sROT}, s{sROT}, s{sHL}\ns_mul_i32 s{sROT}, s{sROT}, 0x9e3779b1\ns_lshr_b32 s{sROT}, s{sROT}, 27")
    elif p.rotm == 4: a(f"s_lshr_b32 s{sROT}, s2, 2\ns_and_b32 s{sROT}, s{sROT}, 14\ns_add_u32 s{sROT}, s{sROT}, s{sHL}\ns_lshl_b32 s{sROT}, s{sROT}, 1\ns_bfe_u32 s{sT}, s2, 0x10006\ns_add_u32 s{sROT}, s{sROT}, s{sT}")
    a(f"""
    v_lshrrev_b32 v3, 4, v2
    v_and_b32 v4, 15, v2
    v_lshlrev_b32 v5, 1, v3
    v_xor_b32 v5, v5, v4
    v_lshlrev_b32 v5, 4, v5
    v_lshl_add_u32 v{vE}, v3, 8, v5
    v_xor_b32 v{vO_}, 128, v{vE}
    v_lshl_add_u32 v{vWE}, v3, 13, v5
    s_lshl_b32 s{sT}, s7, 8
    v_add_u32 v{vWE}, s{sT}, v{vWE}
    v_xor_b32 v{vWO}, 128, v{vWE}
    v_add_u32 v{vWO}, {8*8192 - 1024}, v{vWO}
    s_lshl_b32 s{sT}, s{sHL}, 2
    v_add_u32 v5, s{sT}, v3
    v_and_b32 v6, 7, v2
    v_xor_b32 v5, v5, v6
    v_lshlrev_b32 v5, 4, v5
    v_lshrrev_b32 v6, 3, v2
    s_lshl_b32 s{sT}, s{sHL}, 3
    v_add_u32 v6, s{sT}, v6
    s_movk_i32 s{sT}, 1152
    v_mad_u32_u24 v{vX}, v6, s{sT}, v5
    s_waitcnt lgkmcnt(0)
    s_cmp_ge_u32 s3, 4
    s_cselect_b32 s52, s60, s52
    s_cselect_b32 s53, s61, s53
    s_cselect_b32 s54, s62, s54
    s_cselect_b32 s55, s63, s55
    s_cselect_b32 s56, s64, s56
    s_cselect_b32 s57, s65, s57
    s_cselect_b32 s58, s66, s58
    s_cselect_b32 s59, s67, s59
    s_cselect_b32 s94, s96, s94
    s_cselect_b32 s95, s97, s95
    s_mul_i32 s{sT}, s5, 165888
    s_add_u32 s{sX}, s52, s{sT}
    s_addc_u32 s{sX+1}, s53, 0
    s_mov_b32 s{sX+2}, 165888
    s_mov_b32 s{sX+3}, 0x20000
    s_mov_b32 s{sW}, s58
    s_mov_b32 s{sW+1}, s59
    s_mov_b32 s{sW+2}, 4718592
    s_mov_b32 s{sW+3}, 0x20000
    s_and_b32 s76, s{sWAVE}, 1
    s_mul_i32 s{sXB}, s{sHL}, 24576
    s_add_u32 s{sXB}, s{sXB}, {WQB}
    s_mul_i32 s{sXS0}, s76, {5*18432}
    s_mul_i32 s{sXM0}, s76, {5*2048}
    s_lshl_b32 s{sT}, s{sHL}, 10
    s_add_u32 s{sXM0}, s{sXM0}, s{sT}
    s_add_u32 s{sXM0}, s{sXM0}, {XBUF}
    s_lshl_b32 s77, s76, 12
    s_add_u32 s77, s77, s{sXB}
    s_lshl_b32 s78, s76, 17
    """)
    def xload(c, a=a, T=None):
        a(f"s_add_u32 s{sXS}, s{sKROT}, {c}\ns_sub_u32 s{sXM}, s{sXS}, 9\ns_cselect_b32 s{sXS}, s{sXS}, s{sXM}\ns_lshl_b32 s{sXS}, s{sXS}, 7")
        a(f"s_add_u32 s{sXM}, s{sXM0}, {18432*c}\ns_add_u32 s{sXS}, s{sXS0}, s{sXS}")
        if T: return emit(a, x_dma(p, T))
        g = x_dma(p, 5)
        emit(a, g[:4])
        a(f"s_cmp_eq_u32 s76, 1\ns_cbranch_scc1 L_x{c}")
        emit(a, g[4:])
        a(f"L_x{c}:")
    def wload(k, a=a):
        a(f"s_add_u32 s{sWM}, s77, {8192*k}\ns_add_u32 s{sWS2}, s{sWS}, {4*8192 - 2048}")
        emit(a, w_dma(p), nop=False)
        emit(a, [w_adv(p)], nop=False)
    a(f"s_mov_b32 s60, s54\ns_mov_b32 s61, s55")
    if p.krot: a(f"s_lshr_b32 s{sKROT}, s4, {p.ksh}\ns_mul_i32 s{sKROT}, s{sKROT}, {p.kc}\ns_add_u32 s{sKROT}, s{sKROT}, s5\ns_sub_u32 s{sT}, s{sKROT}, 9\ns_cselect_b32 s{sKROT}, s{sKROT}, s{sT}")
    else: a(f"s_mov_b32 s{sKROT}, 0")
    a(f"s_lshl_b32 s{sWS}, s{sKROT}, 19\ns_add_u32 s{sWS}, s{sWS}, s78\ns_add_u32 s{sWEND}, s78, {576*8192}")
    if p.rotm == 9:
        a(f"s_lshl_b32 s{sT}, s2, 1\ns_add_u32 s{sT}, s{sT}, s{sHL}\ns_lshl_b32 s{sT}, s{sT}, 2\ns_add_u32 s{sT}, s{sT}, {220 << 20}\ns_load_dword s{sROT}, s[82:83], s{sT}\ns_waitcnt lgkmcnt(0)")
    if p.pst == 1: stamp(a, p, 8)
    xload(0); wload(0)
    if p.pst == 2: stamp(a, p, 8)
    if p.pw >= 0: a(f"s_waitcnt vmcnt({p.pw})")
    wload(1)
    a(f"""
    s_mul_i32 s{sS0}, s4, {p.stag}
    s_add_u32 s{sS0}, s{sS0}, {p.s0}
    s_lshl_b32 s{sT}, s5, 5
    s_add_u32 s{sT}, s{sT}, s7
    s_lshl_b32 s{sT2}, {'s3' if p.kvsame else f's{sT}'}, 17
    s_add_u32 s{sK}, s60, s{sT2}
    s_addc_u32 s{sK+1}, s61, 0
    s_mov_b32 s{sK+2}, 131072
    s_mov_b32 s{sK+3}, 0x20000
    s_add_u32 s{sV}, s56, s{sT2}
    s_addc_u32 s{sV+1}, s57, 0
    s_mov_b32 s{sV+2}, 131072
    s_mov_b32 s{sV+3}, 0x20000
    s_mov_b32 s{sO}, s82
    s_mov_b32 s{sO+1}, s83
    s_mov_b32 s{sO+2}, {O_BYTES}
    s_mov_b32 s{sO+3}, 0x20000
    s_lshr_b32 s{sT2}, s3, 2
    s_lshl_b32 s{sT2}, s{sT2}, 8
    s_add_u32 s{sT}, s{sT}, s{sT2}
    s_mul_i32 s{sOB}, s{sT}, {4*9216}
    s_mov_b32 s{sWO}, s94
    s_mov_b32 s{sWO+1}, s95
    s_mov_b32 s{sWO+2}, 4718592
    s_mov_b32 s{sWO+3}, 0x20000
    s_and_b32 s{sTW}, s3, 3
    s_lshl_b32 s{sTW}, s{sTW}, 5
    s_lshr_b32 s{sT}, s2, 3
    s_add_u32 s{sTW}, s{sTW}, s{sT}
    s_lshl_b32 s{sTW}, s{sTW}, 1
    s_add_u32 s{sTW}, s{sTW}, s{sHL}
    s_mul_i32 s{sTW}, s{sTW}, 18432
    s_cmp_eq_u32 s76, 1
    s_cselect_b32 s{sKV}, s{sV}, s{sK}
    s_cselect_b32 s{sKV+1}, s{sV+1}, s{sK+1}
    s_mov_b32 s{sKV+2}, 131072
    s_mov_b32 s{sKV+3}, 0x20000
    s_lshl_b32 s{sT2}, s76, 13
    s_add_u32 s{sT2}, s{sT2}, s{sRB}
    s_mov_b32 s6, s98
    s_mov_b32 s7, s99
    v_lshlrev_b32 v{vTCH}, 7, v2
    s_mov_b32 s{sIT}, -2
    """)
    def batch2(a, T):
        emit(a, kv_book(p), nop=False); emit(a, kv_dma(p), nop=False)
        xload(1, a, T)
        a(f"s_add_u32 s{sWM}, s77, {8192*2}\ns_mov_b32 s{WSr[1]}, s{sWS}\ns_add_u32 s{WS2r[1]}, s{sWS}, {4*8192 - 2048}")
        emit(a, w_dma(p, 1)[:4 - p.wsh], nop=False)
        emit(a, [w_adv(p)], nop=False)
        a(f"s_mov_b32 s{sIT}, 0")
        emit(a, kv_book(p), nop=False)
        a(f"s_mov_b32 s{sWM}, s77\ns_add_u32 s{sWS2}, s{sWS}, {4*8192 - 2048}")
    if not p.early: batch2(a, None)
    p.batch2 = batch2
    a(f"s_cmp_eq_u32 s{sWAVE}, 0\ns_cbranch_scc0 L_nc")
    if p.touch_code:
        a(f"""s_getpc_b64 s[80:81]
        L_pc:
        s_sub_u32 s80, s80, L_pc-{K}
        s_subb_u32 s81, s81, 0
        s_lshr_b32 s{sT}, s2, 3
        s_and_b32 s{sT}, s{sT}, 7
        s_lshl_b32 s{sT}, s{sT}, 13
        v_add_u32 v8, s{sT}, v{vTCH}
        s_mov_b32 s{sT}, L_codeend-{K}-4
        v_min_u32 v8, s{sT}, v8
        global_load_dword v{vDUM}, v8, s[80:81]""")
    a(f"""v_mov_b32 v8, {LFLAG}
    v_mov_b32 v9, 0
    ds_write_b32 v8, v9
    s_cmp_lt_u32 s2, 8
    s_cbranch_scc0 L_nc
    s_memrealtime s[80:81]
    v_mov_b32 v11, 0
    s_waitcnt lgkmcnt(0)
    s_or_b32 s80, s80, 1
    v_mov_b32 v10, s80
    s_mov_b64 exec, 1
    global_atomic_cmpswap v9, v[10:11], s[6:7] sc1
    s_mov_b64 exec, -1
    L_nc:""")
    a(f"""
    v_and_b32 v5, 7, v4
    v_lshlrev_b32 v5, 1, v5
    v_xor_b32 v5, v5, v3
    v_lshlrev_b32 v5, 4, v5
    v_lshl_add_u32 v5, v4, 8, v5
    v_add_u32 v{vKA}, s{sRB}, v5
    v_xor_b32 v{vKA+1}, 64, v{vKA}
    v_xor_b32 v{vKA+2}, 128, v{vKA}
    v_xor_b32 v{vKA+3}, 192, v{vKA}
    v_bfe_u32 v5, v2, 2, 2
    v_and_b32 v6, 1, v3
    v_lshl_add_u32 v5, v6, 2, v5
    v_lshrrev_b32 v6, 1, v3
    v_lshl_add_u32 v6, v6, 4, v5
    v_lshlrev_b32 v5, 1, v5
    v_bfe_u32 v7, v2, 1, 1
    v_xor_b32 v5, v5, v7
    v_lshlrev_b32 v5, 4, v5
    v_and_b32 v7, 1, v2
    v_lshl_add_u32 v5, v7, 3, v5
    v_lshl_add_u32 v5, v6, 8, v5
    v_add_u32 v{vVA}, s{sXB}, v5
    s_mov_b32 s{sXB}, s77""")
    for dt in range(1, 8): a(f"v_xor_b32 v{vVA+dt}, {32*dt}, v{vVA}")
    a(f"""
    v_lshrrev_b32 v5, 1, v4
    v_xor_b32 v5, v5, v3
    v_lshlrev_b32 v5, 4, v5
    v_lshl_add_u32 v5, v4, 7, v5
    s_mul_i32 s79, s76, {4*2048}
    s_add_u32 s79, s79, {XBUF}
    v_add_u32 v{vXA}, s79, v5
    v_xor_b32 v{vXA+1}, 64, v{vXA}
    s_mul_i32 s79, s76, {5*1024}
    v_lshl_add_u32 v{vST}, v2, 4, s79
    s_mul_i32 s79, s{sHL}, {2*STG}
    v_add_u32 v{vOW}, s79, v{vST}
    s_mov_b32 s{sSC}, 0x3e0293ee
    s_mov_b32 s{sWSL}, 0
    s_mov_b32 s{sC}, 8192
    s_mov_b32 s{sNEG}, -16384
    s_mov_b32 s{sWD}, 8192
    s_mov_b32 s{sXD}, 18432
    """)
    a(f"s_movk_i32 s79, 3641\ns_mul_i32 s80, s76, 864")
    for j in range(9):
        a(f"""v_add_u32 v5, {64*j}, v2
        v_mul_u32_u24 v6, s79, v5
        v_lshrrev_b32 v6, 16, v6
        v_lshlrev_b32 v5, 4, v5
        v_mad_u32_u24 v5, v6, s80, v5
        v_subrev_u32 v{v2VO+j}, {1024*(j % 4)}, v5""")
    a(f"""
    v_lshrrev_b32 v5, 2, v2
    v_and_b32 v6, 3, v2
    v_lshlrev_b32 v6, 3, v6
    s_movk_i32 s79, 288
    v_mad_u32_u24 v5, v5, s79, v6
    v_add_u32 v{v2A+1}, {18432 + 256}, v5
    s_lshl_b32 s79, s{sWAVE}, 6
    s_add_u32 s79, s79, 18432
    v_add_u32 v{v2A}, s79, v5
    v_lshlrev_b32 v5, 4, v2
    s_lshl_b32 s79, s{sWAVE}, 11
    v_add_u32 v{v2B}, s79, v5
    s_cmp_eq_u32 s{sWAVE}, 0
    s_cselect_b32 s79, 3072, 0
    v_add_u32 v{v2B+1}, s79, v5
    s_cmp_lt_u32 s{sWAVE}, 2
    s_movk_i32 s79, 2048
    s_cselect_b32 s79, 5120, s79
    v_add_u32 v{v2B+2}, s79, v5
    s_cmp_lt_u32 s{sWAVE}, 3
    s_movk_i32 s79, 4096
    s_cselect_b32 s79, 7168, s79
    v_add_u32 v{v2B+3}, s79, v5
    """)
    if p.twq >= 0: a(f"s_mul_i32 s79, s4, {p.twstag}\ns_add_u32 s79, s79, {p.twq}")
    for r in range(0, 160, 2): a(f"v_pk_mov_b32 {vr(vACC+r, 2)}, 0, 0")
    if p.pst == 4: stamp(a, p, 8)
    a(f"s_bitcmp1_b32 s{sWAVE}, 0\ns_cbranch_scc1 L_small")
    wave_front(a, p, 5, False, "b")
    a("L_small:")
    wave_front(a, p, 4, True, "s")
    back(a, p)
    a("L_codeend:")
    return a.text()

def build(p):
    K = KNAME + "_kernel"
    hdr = open("cdna_kernels/" + KNAME + ".s.ref").read().split("; Override launch geometry")[0]
    return hdr + header(["; @launch grid=(256,1,1) block=(256,1,1) lds=163840"]) + kstart(K) + kernel(p, K) + RODATA + kdesc(K, 512, 256)

if __name__ == "__main__":
    ap = argparse.ArgumentParser()
    ap.add_argument("out")
    ap.add_argument("opts", nargs="*")
    x = ap.parse_args()
    p = P()
    VERB = True
    for o in x.opts:
        k, v = o.split("=")
        cur = getattr(p, k)
        setattr(p, k, (v == "1") if isinstance(cur, bool) else int(v) if isinstance(cur, int) else v.replace("+", " "))
    if p.twq >= 0: p.twpos = 15
    EXP = p.exp
    open(x.out, "w").write(build(p))
```

```python
import sys, argparse
sys.path.insert(0, "tools")
from asmlib import *
sys.path.insert(0, 'gen')
from sched import It, schedule
VERB = False
EXP = 0

class P:
    stamps = False
    cyc = False
    xfl = ""; wfl = ""; kvfl = "nt"
    ofl = "sc1"; olfl = "sc1"; wofl = ""; twfl = ""; pfl = "sc1"; plfl = "sc1"; outfl = ""
    s0 = 1; ppe = 1; stag = 0
    rot = True; krot = True
    kvd = 4
    twpos = 12
    rb = False
    fb = 3
    sh = 2
    qb = 4; qr = 6; vlo = 6
    touch_code = True
    force = False
    kvsame = False
    lim = 0
    notouch = False
    limg = 2
    gprof = False
    pa = -1
    tsplit = -1
    tw2 = 0
    dbgst = False
    al = 0
    sh4 = 0
    xsp = 0
    wsh = 0
    qprof = 0
    par8 = False
    fc = 0
    fcs = 64
    twown = -1
    perm = 0
    kc = 2
    ksh = 0
    early = True
    pst = 0
    rotm = 0
    swap = 3
    t3 = False
    vp2 = True
    s1 = 1
    defer = False
    warm = True
    exp = 0
    late = True
    twq = -1
    twstag = 0
    pw = -1

MF = "v_mfma_f32_16x16x32_bf16"
OOB = 0x40000000
LDSOOB = 0x30000
STAMPOFF = 200 << 20
O_BYTES = 16 * 32 * 4 * 9216
P_OFF = 32 << 20
F_OFF = 48 << 20
PBLK = 41472
STG = 36864
LFLAG = 163836
SPIN = 1 << 18
PL = 0

def vr(b, n=4): return f"v[{b}:{b+n-1}]"
def ar(b, n=4): return f"a[{b}:{b+n-1}]"
def weave(a, mfmas, gaps):
    assert len(gaps) <= len(mfmas)
    for i, m in enumerate(mfmas):
        a(m)
        if i < len(gaps):
            for x in gaps[i]: a(x)
def align(a, p):
    if p.al: a(f".p2align {p.al}")
    for _ in range(p.sh4): a("s_nop 0")
def emit(a, gs, nop=True):
    for g in gs:
        for x in g: a(x)
        if nop: a("s_nop 0")
NST = 9
def stamp(a, p, idx):
    if p.stamps: a(f"{'s_memtime' if p.cyc else 's_memrealtime'} s[{84+2*idx}:{85+2*idx}]")
def stamp_store(a, p):
    if not p.stamps: return
    a("s_waitcnt lgkmcnt(0)")
    if p.dbgst:
        a("v_mov_b32 v1, 0\nv_cmp_eq_u32 vcc, 0, v0\ns_and_saveexec_b64 s[44:45], vcc")
        for j in range(NST):
            a(f"s_sub_u32 s46, s{84+2*j}, s{sNONCE}\ns_add_u32 s46, s46, 500\nv_mov_b32 v2, s46\nglobal_atomic_umax v1, v2, s[6:7] offset:{4+4*j} sc1\ns_nop 1")
        a("s_mov_b64 exec, s[44:45]")
        return
    a(f"s_mul_i32 s80, s2, 128\ns_add_u32 s82, s82, s80\ns_addc_u32 s83, s83, 0\ns_add_u32 s82, s82, {STAMPOFF}\ns_addc_u32 s83, s83, 0")
    a("v_mov_b32 v1, 0\nv_cmp_eq_u32 vcc, 0, v0\ns_and_saveexec_b64 s[80:81], vcc")
    for j in range(NST):
        a(f"v_mov_b32 v2, s{84+2*j}\nv_mov_b32 v3, s{85+2*j}\nglobal_store_dwordx2 v1, v[2:3], s[82:83] offset:{8*j}\ns_nop 1")
    a("s_mov_b64 exec, s[80:81]")
    if p.gprof or p.qprof:
        a("v_and_b32 v1, 63, v0\nv_lshlrev_b32 v1, 2, v1\nv_cmp_gt_u32 vcc, 14, v0\ns_and_saveexec_b64 s[80:81], vcc\nglobal_store_dword v1, v31, s[82:83] offset:72\ns_mov_b64 exec, s[80:81]")

vACC = 96; vS = (80, 88); vL = 72; vVA = 64; vKA = 60; vXA = 58
vE, vO_, vWE, vWO, vX, vST, vTCH, vDUM, vOW, vFL = 56, 57, 54, 55, 53, 52, 51, 50, 49, 48
v2VO, v2B, v2A = 32, 41, 45
vNM = 8
aQ = 0; aK = (80, 112); aV = (144, 176); aXB = (80, 100); aWA = (144, 176)
a2A = (80, 92); a2B = (104, 140)
v2ACC = 96
sX, sW, sK, sV, sO, sKV, sWO = 8, 12, 16, 20, 24, 68, 56
sWAVE, sHL, sROT, sNONCE = 28, 29, 30, 31
sWS, sWM, sXS, sXM, sWD, sXD, sT, sT2, sIT = 32, 33, 34, 35, 36, 37, 38, 39, 40
sKN, sKM, sKS, sRB, sHI, sWSL, sXB = 41, 42, 43, 44, 45, 46, 47
sC, sSC, sOB, sNEG, sKROT, sS0, sWEND, sTW = 48, 49, 50, 51, 52, 53, 54, 55
sWS2, sXM0, sXS0 = 72, 74, 75
gSRC, gSTR, gDST, gST, gQ1, gQ2, gQ3, gRI = 60, 52, 62, 63, 64, 65, 66, 67
gC1, gC2, gDL, gM0, gSO, gDL2, gLO, gHIW = 72, 73, 74, 75, 76, 77, 78, 79
gLOW, gLIM, gREDO, gMASK, gTAB, gP4 = 32, 33, 34, 35, 36, 79
gF = 40
REL = [0, 1, 2, 3, 4, 6, 8, 10, 12, 14, 5, 7, 9, 11, 13, 15]
FA, F2, FP = F_OFF, F_OFF + 32768, F_OFF + 49152
gFP, gOFF, gCHK, gPOST, gNN = 80, 33, 32, 53, 46
vPA, vNZ = 47, 48
sPG = 60
sPA, sPM = 73, 74
XBUF = 65536
WQB = XBUF + 2 * 18432
QX = 155648
def acc(t, dt): return vACC + (t * 8 + dt) * 4
def acc2(nt, u): return v2ACC + 4 * (nt * 9 + u)

def flat_dma(groups, pos):
    out = []
    for g, q in zip(groups, pos):
        for x in g:
            if x.startswith("s_nop"): continue
            out.append(It(x, q, q + 1) if x.startswith("buffer_") else It(x))
    return out
def read_pos(nrd, start, end, taken):
    free = [i for i in range(start, end) if i not in taken]
    dbl = max(0, nrd - len(free))
    pos = []
    for i in free:
        pos.append(i)
        if dbl > 0: pos.append(i); dbl -= 1
    assert len(pos) >= nrd
    return pos[:nrd]

WDr, WSr, WS2r = (sWD, 62), (sWS, 63), (sWS2, 64)
def w_dma(p, par=0):
    w = lambda v, so, o: f"buffer_load_dwordx4 v{v}, s[{sW}:{sW+3}], s{so} offen offset:{o} {p.wfl} lds"
    return [[f"s_mov_b32 m0, s{sWM}", "s_nop 0", w(vWE, WSr[par], 0)], [w(vWO, WSr[par], 1024)], [w(vWE, WS2r[par], 2048)], [w(vWO, WS2r[par], 3072)]]
def x_dma(p, nX):
    out = []
    for m in range(nX):
        g = [f"s_mov_b32 m0, s{sXM}", "s_nop 0"] if m == 0 else []
        g.append(f"buffer_load_dwordx4 v{vX}, s[{sX}:{sX+3}], s{sXS} offen offset:{2048*(m & 1)} {p.xfl} lds")
        if m + 1 < nX:
            g.append(f"s_add_u32 s{sXS}, s{sXS}, {16384 if m % 2 == 0 else 20480}")
            if m % 2 == 1: g.append("s_add_u32 m0, m0, 4096")
        out.append(g)
    return out
def kv_dma(p):
    out = []
    for j in range(2 * p.ppe):
        g = [f"s_mov_b32 m0, s{sKM}", "s_nop 0"] if j == 0 else []
        if j == 4: g = [f"s_add_u32 m0, s{sKM}, 4096", f"s_add_u32 s{sKS}, s{sKS}, 4096"]
        g.append(f"buffer_load_dwordx4 v{vE if j % 2 == 0 else vO_}, s[{sKV}:{sKV+3}], s{sKS} offen offset:{1024*(j % 4)} {p.kvfl} lds")
        out.append(g)
    return out
def kv_book(p):
    return [[f"s_ashr_i32 s{sKN}, s{sIT}, 1", f"s_sub_u32 s{sKN}, s{sKN}, s{sS0}", f"s_mul_i32 s{sKN}, s{sKN}, {p.ppe}"],
            [f"s_lshr_b32 s{sT}, s{sKN}, 1", f"s_add_u32 s{sKS}, s{sT}, s{sROT}"] + ([f"s_and_b32 s{sT}, s{sT}, 2", f"s_add_u32 s{sKS}, s{sKS}, s{sT}"] if p.par8 else []) + [f"s_and_b32 s{sKS}, s{sKS}, 31"],
            [f"s_lshl_b32 s{sKS}, s{sKS}, 12", f"s_and_b32 s{sT}, s{sKN}, 1", f"s_lshl_b32 s{sT}, s{sT}, 11", f"s_add_u32 s{sKS}, s{sKS}, s{sT}"],
            [f"s_lshr_b32 s{sKM}, s{sKN}, 2", f"s_lshl_b32 s{sKM}, s{sKM}, 14", f"s_and_b32 s{sT}, s{sKN}, 3", f"s_lshl_b32 s{sT}, s{sT}, 11"],
            [f"s_add_u32 s{sKM}, s{sKM}, s{sT}", f"s_add_u32 s{sKM}, s{sKM}, s{sT2}"],
            [f"s_cmp_ge_u32 s{sKN}, 8", f"s_cselect_b32 s{sKM}, {LDSOOB}, s{sKM}", f"s_cselect_b32 s{sKS}, {OOB}, s{sKS}"]]
def x_book(p):
    return [[f"s_add_u32 s{sT}, s{sIT}, 3", f"s_lshr_b32 s{sT}, s{sT}, 1", f"s_add_u32 s{sXS}, s{sT}, s{sKROT}"],
            [f"s_sub_u32 s{sXM}, s{sXS}, 9", f"s_cselect_b32 s{sXS}, s{sXS}, s{sXM}", f"s_lshl_b32 s{sXS}, s{sXS}, 7"],
            [f"s_add_u32 s{sXS}, s{sXS}, s{sXS0}", f"s_and_b32 s{sT}, s{sT}, 1", f"s_mul_i32 s{sT}, s{sT}, 18432"],
            [f"s_add_u32 s{sXM}, s{sXM0}, s{sT}"],
            [f"s_cmp_ge_u32 s{sIT}, 15", f"s_cselect_b32 s{sXM}, {LDSOOB}, s{sXM}", f"s_cselect_b32 s{sXS}, {OOB}, s{sXS}"]]
def w_adv(p, src=sWS, dst=sWS):
    return [f"s_add_u32 s{dst}, s{src}, {32*8192}", f"s_cmp_ge_u32 s{dst}, s{sWEND}", f"s_cselect_b32 s{dst}, s78, s{dst}"]
def q_reads(T, par, ks):
    rd = [f"ds_read_b128 {ar(aXB[par] + 4*t)}, v{vXA + ks} offset:{2048*t}" for t in range(T)]
    for dt in range(8):
        rd.append(f"ds_read_b64_tr_b16 {ar(aWA[par] + 4*dt, 2)}, v{vVA+dt}")
        rd.append(f"ds_read_b64_tr_b16 {ar(aWA[par] + 4*dt + 2, 2)}, v{vVA+dt} offset:2048")
    return rd
def qstep(a, p, T, par):
    A_, B_ = aWA[par], aXB[par]
    e = 2 * p.ppe
    mf = []
    for dt in range(8):
        for u in range(5):
            if T == 5:
                if u == 4 and dt >= 4: continue
                t = u
            else:
                if u == 0 and dt < 4: continue
                t = (u - 1) % 5
            mf.append(f"{MF} {vr(acc(t, dt))}, {ar(A_ + 4*dt)}, {ar(B_ + 4*u)}, {vr(acc(t, dt))}")
    if not p.exp & 128: a("s_waitcnt lgkmcnt(0)")
    if not p.exp & 64: a(f"s_waitcnt vmcnt({e + 4 + (T - p.wsh if par == 0 else 0)})")
    if not p.exp & 32: a("s_barrier")
    if p.qprof: a(f"s_sub_u32 s98, s{sIT}, {p.qprof - 1}\ns_min_u32 m0, s98, 63\nv_writelane_b32 v31, s96, m0\n{'s_memtime' if p.cyc else 's_memrealtime'} s[96:97]")
    upd = [f"v_add_u32 v{vVA+d}, s{WDr[par]}, v{vVA+d}" for d in range(8)]
    if par == 0: upd = [f"v_add_u32 v{vXA}, s{sXD}, v{vXA}", f"v_add_u32 v{vXA+1}, s{sXD}, v{vXA+1}"] + upd
    rd = q_reads(5, par ^ 1, par ^ 1)
    dma = (x_dma(p, T) + w_dma(p, 1)[:4 - p.wsh]) if par == 1 else (w_dma(p, 1)[4 - p.wsh:] + w_dma(p, 0) + kv_dma(p))
    q = par ^ 1
    book = [[f"s_add_u32 s{sIT}, s{sIT}, 1"]] + (kv_book(p) if par == 1 else x_book(p)) + \
           [[f"s_add_u32 s{sWSL}, s{sWSL}, 8192", f"s_cmp_eq_u32 s{sWSL}, 24576", f"s_cselect_b32 s{sWSL}, 0, s{sWSL}"],
            [f"s_cmp_eq_u32 s{sWSL}, 8192", f"s_cselect_b32 s{WDr[q]}, s{sNEG}, s{sC}"],
            w_adv(p, WSr[par], WSr[q]) + [f"s_add_u32 s65, s{sWSL}, s{sXB}"],
            [f"s_cmp_ge_u32 s{sIT}, 15", f"s_cselect_b32 s65, {LDSOOB}, s65", f"s_cselect_b32 s{WSr[q]}, {OOB}, s{WSr[q]}"],
            [f"s_add_u32 s{WS2r[q]}, s{WSr[q]}, {4*8192 - 2048}", f"s_mov_b32 s{sWM}, s65"] + ([f"s_sub_u32 s{sXD}, 0, s{sXD}"] if par == 0 else [])]
    n = len(mf)
    pos = [1 + i * (n - p.qb) // len(dma) for i in range(len(dma))]
    if par == 1 and p.xsp:
        x0 = 1 + p.xsp * T + 2
        pos = [1 + p.xsp * i for i in range(T)] + [x0 + i * (n - p.qb - x0) // (len(dma) - T) for i in range(len(dma) - T)]
    rp = read_pos(len(rd), 0, n - p.qr, set(pos))
    if p.exp & 8: dma = [[x for x in g if not x.startswith("buffer")] for g in dma]
    if p.exp & 16: rd = []
    flo = [It(x, q, q + 1) for x, q in zip(rd, rp)] + [It(x, p.vlo, n - 1) for x in upd] + flat_dma(dma, pos) + [It(x, 0, n - 1) for g in book for x in g]
    gaps, over = schedule(n, [], flo)
    if VERB: print(f"qstep T{T} par{par} over", over, file=sys.stderr)
    weave(a, mf, gaps)

def kv_tile_dma(p, sm, ss, parts=(0, 1, 2, 3), plain=False):
    out = []
    d1, d2 = (sK, sV) if plain or not p.swap else (sKV, sW)
    for half, (srd, lo) in enumerate(((d1, 0), (d1, 4096), (d2, 8192), (d2, 12288))):
        if half not in parts: continue
        so = ss if (half & 1) == 0 else sT
        for j in range(4):
            g = []
            if j == 0:
                g = [f"s_xor_b32 m0, s{sm}, {lo}"]
                g += [f"s_add_u32 s{sT}, s{ss}, 4096", f"s_bitset0_b32 s{sT}, 17"] if half == 0 else ["s_nop 0"]
            if p.lim and (j % p.limg == 0): g.append(f"s_waitcnt vmcnt({p.lim - p.limg})")
            g.append(f"buffer_load_dwordx4 v{vE if j % 2 == 0 else vO_}, s[{srd}:{srd+3}], s{so} offen offset:{1024*j} {p.kvfl} lds")
            out.append(g)
    return out
def frag_reads(par, off):
    rd = [f"ds_read_b128 {ar(aK[par] + (kt*4+s)*4)}, v{vKA+s} offset:{off + 4096*kt}" for kt in range(2) for s in range(4)]
    for dt in range(8):
        rd.append(f"ds_read_b64_tr_b16 {ar(aV[par] + 4*dt, 2)}, v{vVA+dt} offset:{off}")
        rd.append(f"ds_read_b64_tr_b16 {ar(aV[par] + 4*dt + 2, 2)}, v{vVA+dt} offset:{off + 4096}")
    return rd
def soft2(S, t):
    ad = [f"v_add_f32 v{vL+t}, v{vL+t}, v{S+j}" for j in range(8)]
    cv = [f"v_cvt_pk_bf16_f32 v{S+j}, v{S+2*j}, v{S+2*j+1}" for j in range(4)]
    return ad[:4] + cv + ad[4:]
def qk(S, Kc, t, c0):
    return [f"{MF} {vr(S + 4*kt)}, {ar(Kc + (kt*4+s)*4)}, {ar(aQ + (t*4+s)*4)}, {c0 if s == 0 else vr(S + 4*kt)}" for kt in range(2) for s in range(4)]
def pv(S, Vc, t):
    return [f"{MF} {vr(acc(t, dt))}, {ar(Vc + 4*dt)}, {vr(S)}, {vr(acc(t, dt))}" for dt in range(8)]
def block(a, p, T, par, loader, top, mid):
    mf, fixed = [], []
    for t in range(T):
        n = par * T + t
        S, Sp = vS[n & 1], vS[(n & 1) ^ 1]
        tp = (t - 1) % T
        mf += qk(S, aK[par], t, "0") + pv(Sp, aV[par ^ 1] if t == 0 else aV[par], tp)
        v2 = soft2(Sp, tp)
        fixed += [v2[0:1], v2[1:3], v2[3:4], v2[4:6], v2[6:7], v2[7:9], v2[9:10], v2[10:12]]
        fixed += [[f"v_exp_f32 v{S+j}, v{S+j}"] for j in range(8)]
    n = 16 * T
    free = [16*t + j for t in range(T) for j in (0, 2, 4, 6)]
    dma = kv_tile_dma(p, sKM, sKS) if loader else []
    top(a)
    if not p.late:
        rd = frag_reads(par ^ 1, 16384 * (par ^ 1))
        tog = [f"v_xor_b32 v{r}, 0x10000, v{r}" for r in list(range(vKA, vKA+4)) + list(range(vVA, vVA+8))] if par == 0 else []
        lim = n - 12
        slots = [g for g in free if g < lim]
        extra = [g for g in range(lim) if g not in slots]
        need = len(rd) + len(dma) - len(slots)
        if need > 0: slots = sorted(slots + [extra[(2*i + 1) * len(extra) // (2*need)] for i in range(need)])
        dpos = [slots[(i * len(slots)) // len(dma)] for i in range(len(dma))] if dma else []
        rpos = [g for g in slots if g not in dpos]
        rpos = [max(g, 16) if i >= 8 else g for i, g in enumerate(rpos[:len(rd)])]
        flo = [It(x, q, q + 1) for x, q in zip(rd, rpos)] + flat_dma(dma, dpos) + [It(x, 0, n - 1 - (len(tog) - 1 - i)) for i, x in enumerate(tog)]
        gaps, over = schedule(n, fixed, flo)
        weave(a, mf, gaps)
    else:
        m = n - 16
        rv = frag_reads(par, 16384 * par)[8:]
        vpos = [0, 1, 2, 3, 4, 5, 6, 7, 9, 11, 13, 15, 16, 17, 18, 20]
        togv = [f"v_xor_b32 v{r}, 0x10000, v{r}" for r in range(vVA, vVA+8)] if par == 1 else []
        togk = [f"v_xor_b32 v{r}, 0x10000, v{r}" for r in range(vKA, vKA+4)] if par == 1 else []
        cand = [g for g in range(24 if p.fc else 21, m - 1)]
        dpos = [cand[(i * len(cand)) // len(dma)] for i in range(len(dma))] if dma else []
        flo = [It(x, q, q) for x, q in zip(rv, vpos)] + [It("s_waitcnt lgkmcnt(0)", 23, 23)] + flat_dma(dma, dpos) + \
              [It(x, 22, m - 1 - (11 - i)) for i, x in enumerate(togv + togk)]
        gaps, over = schedule(m, fixed[:m], flo)
        assert any("lgkmcnt" in x for x in gaps[23])
        if loader and p.fc: gaps[23] += [f"s_cmp_eq_u32 s{sWAVE}, 1", f"s_cbranch_scc1 L_fc{par}", f"L_fcb{par}:"]
        weave(a, mf[:m], gaps)
        mid(a)
        rk = frag_reads(par ^ 1, 16384 * (par ^ 1))[:8]
        gaps, o2 = schedule(16, fixed[m:], [It(x, i, i) for i, x in enumerate(rk)])
        over += o2
        weave(a, mf[m:], gaps)
    if VERB: print(f"block T{T} par{par} over", over, file=sys.stderr)

def wo_touch(a, p, t1=sT, t2=sT2, fl=None):
    if p.notouch: return
    for f in ([fl] if fl is not None else ["nt", ""] if p.tw2 == 1 else ["nt"] if p.tw2 else [p.twfl]):
        a(f"""s_add_u32 s{t2}, s{sTW}, 8192
        s_add_u32 s{t1}, s{sTW}, 10240
        buffer_load_dword v{vDUM}, v{vTCH}, s[{sWO}:{sWO+3}], s{sTW} offen {f}
        buffer_load_dword v{vDUM}, v{vTCH}, s[{sWO}:{sWO+3}], s{t2} offen {f}
        buffer_load_dword v{vDUM}, v{vTCH}, s[{sWO}:{sWO+3}], s{t1} offen {f}""")
        if p.tw2 == 3 and fl is None:
            a("s_waitcnt vmcnt(0)")
            wo_touch(a, p, t1, t2, "")

vT1, vT2 = 28, 29
def wo_touch_setup(a):
    a(f"""v_and_b32 v1, 63, v0
    v_mul_u32_u24 v2, 43, v1
    v_lshrrev_b32 v2, 7, v2
    v_mul_u32_u24 v3, 3, v2
    v_sub_u32 v3, v1, v3
    v_and_b32 v4, 7, v2
    s_lshl_b32 s{sT}, s5, 3
    v_add_u32 v4, s{sT}, v4
    v_mul_u32_u24 v4, 1152, v4
    v_lshl_add_u32 v4, v3, 7, v4
    s_and_b32 s{sT}, s3, 3
    s_mul_i32 s{sT}, s{sT}, {1024*1152}
    s_lshl_b32 s80, s4, 8
    s_add_u32 s{sT}, s{sT}, s80
    v_add_u32 v4, s{sT}, v4
    v_lshrrev_b32 v2, 3, v2
    s_mov_b32 s{sT}, 73728
    v_mad_u32_u24 v{vT1}, v2, s{sT}, v4
    v_mad_u32_u24 v{vT2}, v2, s{sT}, v{vT1}
    v_mov_b32 v3, {OOB}
    v_cmp_gt_u32 vcc, 48, v1
    s_nop 1
    v_cndmask_b32 v{vT1}, v3, v{vT1}, vcc
    v_cndmask_b32 v{vT2}, v3, v{vT2}, vcc""")
def wo_touch_part(a, p, part):
    for r0, r1, v in (((0, 2, vT1), (4, 8, vT2)) if part == 0 else ((12, 5, vT2), (9, 13, vT2))):
        a(f"""s_mul_i32 s{sT}, s{sHL}, {r1 - r0}
        s_add_u32 s{sT}, s{sT}, s{gP4}
        s_add_u32 s{sT}, s{sT}, {r0}
        s_and_b32 s{sT}, s{sT}, 15
        s_mul_i32 s{sT}, s{sT}, 73728
        s_nop 0
        buffer_load_dword v{vDUM}, v{v}, s[{sWO}:{sWO+3}], s{sT} offen {p.twfl}""")
def g_dma(fl):
    out = []
    for j in range(9):
        g = [f"s_add_u32 m0, s{gM0}, {1024*j}", "s_nop 0"] if j % 4 == 0 else []
        g.append(f"buffer_load_dwordx4 v{v2VO+j}, s[{sX}:{sX+3}], s{gSO} offen offset:{1024*(j % 4)} {fl} lds")
        out.append(g)
    return out
def g_stage_now(a, fl, st):
    a(f"s_add_u32 s{gSO}, s{gP4}, {REL[st]}\ns_and_b32 s{gSO}, s{gSO}, 15\ns_mul_i32 s{gSO}, s{gSO}, s{gSTR}\ns_add_u32 s{gSO}, s{gSO}, s{gLO}")
    a(f"s_add_u32 s{gM0}, s{gDL2}, {(st & 3)*STG}")
    emit(a, g_dma(fl), nop=False)
def o_touch(a, p, half):
    if not p.rb: return
    for o in (0, 8192, 10240):
        a(f"s_add_u32 s{sT}, s{sOB}, {half*18432 + o}\ns_nop 0\nbuffer_load_dword v{vDUM}, v{vTCH}, s[{sO}:{sO+3}], s{sT} offen")

KEEP = [16, 20, 24, 28, 192, 196, 200, 204, 224, 228]
def o_store(p, t, s, d):
    return [f"s_add_u32 s{sT}, s{sOB}, {s*9216 + (4096 if t == 4 else 0)}", "s_nop 0",
            f"buffer_store_dwordx4 {vr(d)}, v{vST}, s[{sO}:{sO+3}], s{sT} offen offset:{1024*(t & 3)} {p.ofl}"]
def lanesum(a, T, op):
    for sw in ("v_permlane32_swap_b32", "v_permlane16_swap_b32"):
        for t in range(T): a(f"v_mov_b32 v{1+t}, v{vL+t}")
        a("s_nop 1")
        for t in range(T): a(f"{sw} v{1+t}, v{vL+t}")
        a("s_nop 1")
        for t in range(T): a(f"{op} v{vL+t}, v{vL+t}, v{1+t}")

def wave_front(a, p, T, loader, tag):
    TAB = sum(REL[4+i] << (4*i) for i in range(12))
    e = 2 * p.ppe
    a(f"s_waitcnt vmcnt({4 if p.early else 4 + e + T + 4})\ns_waitcnt lgkmcnt(0)\ns_barrier")
    stamp(a, p, 1)
    for x in q_reads(5, 0, 0): a(x)
    if p.early: p.batch2(a, T)
    for dt in range(8): a(f"v_add_u32 v{vVA+dt}, s{sWD}, v{vVA+dt}")
    align(a, p)
    a(f"L_q{tag}:")
    if p.twq >= 0 and not loader:
        a(f"s_cmp_eq_u32 s{sIT}, s79\ns_cbranch_scc1 L_tq\nL_tqb:")
    qstep(a, p, T, 0)
    qstep(a, p, T, 1)
    a(f"s_cmp_lt_u32 s{sIT}, 18\ns_cbranch_scc1 L_q{tag}")
    stamp(a, p, 2)
    a(f"""v_and_b32 v1, 63, v0
    v_lshrrev_b32 v2, 4, v1
    v_bfe_u32 v3, v1, 2, 2
    v_lshl_add_u32 v2, v2, 2, v3
    v_and_b32 v3, 7, v2
    v_lshlrev_b32 v3, 1, v3
    v_bfe_u32 v4, v1, 1, 1
    v_xor_b32 v3, v3, v4
    v_lshlrev_b32 v3, 4, v3
    v_and_b32 v4, 1, v1
    v_lshl_add_u32 v3, v4, 3, v3
    v_lshl_add_u32 v3, v2, 8, v3
    s_add_u32 s{sT}, s{sRB}, 8192
    v_add_u32 v{vVA}, s{sT}, v3""")
    for dt in range(1, 8): a(f"v_xor_b32 v{vVA+dt}, {32*dt}, v{vVA}")
    dma = []
    if loader:
        if p.swap:
            a(f"""{f"s_bitcmp1_b32 s2, {p.swap}" if p.swap < 99 else f"s_bitcmp1_b32 s{sHL}, 0"}
            s_cselect_b32 s{sKV}, s{sV}, s{sK}
            s_cselect_b32 s{sKV+1}, s{sV+1}, s{sK+1}
            s_cselect_b32 s{sW}, s{sK}, s{sV}
            s_cselect_b32 s{sW+1}, s{sK+1}, s{sV+1}
            s_cselect_b32 s{sXB}, 8192, 0
            s_mov_b32 s{sW+2}, 131072
            s_add_u32 s{sXB}, s{sXB}, s{sRB}""")
        else: a(f"s_mov_b32 s{sXB}, s{sRB}")
        for n in range(2, p.kvd - (1 if p.late and not p.t3 else 0)):
            dma.append([f"s_add_u32 s{sKS}, s{sROT}, {(4 if p.par8 else 2)*n}", f"s_and_b32 s{sKS}, s{sKS}, 31", f"s_lshl_b32 s{sKS}, s{sKS}, 12",
                        f"s_add_u32 s{sKM}, s{sXB}, {65536 + 16384*(n & 1)}"])
            dma += kv_tile_dma(p, sKM, sKS)
    di = 0
    a(f"s_load_dword s{sNONCE}, s[6:7], 0")
    if p.warm and not loader:
        flag_addr(a, 1, FA)
        a(f"s_add_u32 s{sT}, s{sT}, 64\ns_load_dword s{sKN}, s[82:83], s{sT}")
    a(f"v_and_b32 v1, 63, v0\ns_lshl_b32 s{sT}, s{sHL}, 11\ns_add_u32 s{sT}, s{sT}, {QX}\nv_lshl_add_u32 v1, v1, 4, s{sT}")
    units = [(t, s) for t in range(4) for s in range(4)]
    units = ([(4, 2), (4, 3)] + units) if loader else (units + [(4, 0), (4, 1)])
    for n, (t, s) in enumerate(units):
        if n == 10:
            assert di == len(dma)
            a(f"s_waitcnt lgkmcnt(0)\ns_waitcnt vmcnt({16*(p.kvd - 2 - (1 if p.late and not p.t3 else 0)) if loader else 0})\ns_barrier")
            if not loader:
                for s2 in (2, 3): a(f"ds_read_b128 {ar(aQ + (16 + s2)*4)}, v1 offset:{1024*(s2 - 2)}")
            for x in frag_reads(0, 0)[:8 if p.late else 24]: a(x)
        for _ in range(4):
            if di < len(dma):
                for x in dma[di]: a(x)
                di += 1
        A0, B0 = acc(t, 2*s), acc(t, 2*s+1)
        for r in range(0, 8, 2): a(f"v_pk_mul_f32 {vr(A0+r, 2)}, {vr(A0+r, 2)}, s[{sSC-1}:{sSC}] op_sel:[0,1] op_sel_hi:[1,1]")
        a(f"v_cvt_pk_bf16_f32 v4, v{A0}, v{A0+1}\nv_cvt_pk_bf16_f32 v5, v{A0+2}, v{A0+3}\nv_cvt_pk_bf16_f32 v6, v{B0}, v{B0+1}\nv_cvt_pk_bf16_f32 v7, v{B0+2}, v{B0+3}")
        for r in range(0, 4, 2): a(f"v_pk_mov_b32 {vr(A0+r, 2)}, 0, 0")
        a("v_permlane32_swap_b32 v4, v6\nv_permlane32_swap_b32 v5, v7")
        for r in range(0, 4, 2): a(f"v_pk_mov_b32 {vr(B0+r, 2)}, 0, 0")
        a("v_permlane16_swap_b32 v4, v6\nv_permlane16_swap_b32 v5, v7\ns_nop 0")
        if loader and t == 4:
            a(f"ds_write_b128 v1, v[4:7] offset:{1024*(s - 2)}\ns_nop 1")
        else:
            q = aQ + (t*4+s)*4
            for r in (0, 2, 1, 3): a(f"v_accvgpr_write_b32 a{q+r}, v{4+r}")
    for t in range(T): a(f"v_mov_b32 v{vL+t}, 0")
    for j in range(8): a(f"v_mov_b32 v{vS[1]+j}, 0")
    if loader:
        a(f"""s_mov_b32 s{sX}, s{sWO}
        s_mov_b32 s{sX+1}, s{sWO+1}
        s_mov_b32 s{sX+2}, s{sWO+2}
        s_and_b32 s{gLO}, s3, 3
        s_lshl_b32 s{gLO}, s{gLO}, 10
        s_lshl_b32 s{sT}, s{sHL}, 5
        s_add_u32 s{gLO}, s{gLO}, s{sT}
        s_mul_i32 s{gLO}, s{gLO}, 1152
        s_mul_i32 s{sT}, s4, 288
        s_add_u32 s{gLO}, s{gLO}, s{sT}
        s_mov_b32 s{gSTR}, {0 if p.exp & 1 else 73728}
        s_mul_i32 s{gDL2}, s{sHL}, 9216
        s_add_u32 s{gDL2}, s{gDL2}, 18432""")
    else:
        a(f"""s_mov_b32 s{sX}, s{sO}
        s_mov_b32 s{sX+1}, s{sO+1}
        s_mov_b32 s{sX+2}, s{sO+2}
        s_lshl_b32 s{sT}, s4, 1
        s_add_u32 s{sT}, s{sT}, s{sHL}
        s_mul_i32 s{sT}, s{sT}, {4*9216}
        s_sub_u32 s{gLO}, s{sOB}, s{sT}
        s_mul_i32 s{gDL2}, s{sHL}, 9216
        s_add_u32 s{gLO}, s{gLO}, s{gDL2}
        s_movk_i32 s{gSTR}, {0 if p.exp & 2 else 18432}""")
    a(f"""s_lshl_b32 s{gP4}, s4, 2
    s_mov_b32 s{gTAB}, {TAB & 0xffffffff:#x}
    s_mov_b32 s{gTAB+1}, {TAB >> 32:#x}
    s_mov_b32 s{gREDO}, 0
    s_mov_b32 s{sNEG}, {(127+40) << 23:#x}
    s_mov_b32 s{sIT}, 0
    s_mov_b32 s{sHI}, 0""")
    if p.warm and not loader:
        flag_addr(a, 1, FA)
        a(f"""s_add_u32 s{sT}, s{sT}, 64
        v_and_b32 v1, 7, v0
        s_lshr_b32 s80, s3, 2
        s_lshl_b32 s80, s80, 3
        s_add_u32 s80, s80, s5
        s_lshl_b32 s80, s80, 2
        s_add_u32 s80, s80, s4
        s_mul_i32 s80, s80, {PBLK}
        s_add_u32 s80, s80, {P_OFF}
        s_mov_b32 s81, {64*PBLK}
        v_mad_u32_u24 v2, v1, s81, v1
        v_sub_u32 v2, v2, v1
        v_add_u32 v2, s80, v2
        v_mov_b32 v3, s{sT}
        v_cmp_gt_u32 vcc, 4, v1
        s_nop 1
        v_cndmask_b32 v2, v3, v2, vcc
        global_load_dword v{vDUM}, v2, s[82:83] sc1""")
    a(f"s_cmp_eq_u32 s{sNONCE}, 0\ns_cbranch_scc1 L_tag{tag}\nL_tagb{tag}:")
    if loader and p.fc:
        a(f"""s_lshr_b32 s{sPA}, s2, 3
        s_lshl_b32 s{sPA}, s{sPA}, 7
        s_add_u32 s{sPA}, s{sPA}, {FP}
        s_lshl_b32 s{sT}, s3, 2
        s_add_u32 s{sT}, s{sT}, s{sPA}
        v_mov_b32 v{vFL}, s{sT}""")
    out = A()
    out(f"""L_tag{tag}:
    s_memrealtime s[80:81]
    v_mov_b32 v1, 0
    v_mov_b32 v3, 0
    s_waitcnt lgkmcnt(0)
    s_or_b32 s80, s80, 1
    v_mov_b32 v2, s80
    s_mov_b64 exec, 1
    global_atomic_cmpswap v4, v1, v[2:3], s[6:7] sc0 sc1
    s_waitcnt vmcnt(0)
    s_mov_b64 exec, -1
    v_readfirstlane_b32 s{sNONCE}, v4
    s_nop 1
    s_cmp_eq_u32 s{sNONCE}, 0
    s_cselect_b32 s{sNONCE}, s80, s{sNONCE}
    s_branch L_tagb{tag}""")
    if p.twq >= 0 and not loader:
        out("L_tq:")
        wo_touch(out, p, 80, 81)
        out("s_branch L_tqb")
    align(a, p)
    a(f"L_a{tag}:")
    for par in range(2):
        dist = p.kvd - (1 if p.late else 0)
        def kvbook(a):
            e0 = p.late and p.t3 and par == 0
            if p.par8: a(f"s_add_u32 s{sT}, s{sIT}, {dist+par}\ns_lshl_b32 s{sKS}, s{sT}, 2\ns_lshr_b32 s{sT}, s{sT}, 2\ns_and_b32 s{sT}, s{sT}, 2\ns_add_u32 s{sKS}, s{sKS}, s{sT}")
            else: a(f"s_lshl_b32 s{sKS}, s{sIT}, 1\ns_add_u32 s{sKS}, s{sKS}, {2*(dist+par)}")
            a(f"""s_add_u32 s{sKS}, s{sKS}, s{sROT}
            s_and_b32 s{sKS}, s{sKS}, 31
            s_lshl_b32 s{sKS}, s{sKS}, 12
            s_xor_b32 s{sKM}, s{sHI}, {0x10000 * (((dist + par) >> 1) & 1)}
            s_add_u32 s{sKM}, s{sKM}, s{sXB}
            s_add_u32 s{sKM}, s{sKM}, {16384*((dist + par) & 1)}
            {f"s_sub_u32 s{sT}, s{sIT}, 1" if e0 else ""}
            s_cmp_ge_u32 s{sT if e0 else sIT}, {16 - dist - par - (1 if e0 else 0)}
            s_cselect_b32 s{sKM}, {LDSOOB}, s{sKM}
            s_cselect_b32 s{sKS}, {OOB}, s{sKS}""")
        def hooks(a):
            if loader:
                a(f"s_cmp_ge_u32 s{sIT}, {14 - 2*par}\ns_cbranch_scc1 L_w{par}\nL_wb{par}:")
                out(f"L_w{par}:")
                if par == 0: g_stage_now(out, p.wofl, 1)
                else:
                    out(f"s_cmp_eq_u32 s{sIT}, 12\ns_cbranch_scc0 L_w1b")
                    g_stage_now(out, p.wofl, 0)
                    out("s_branch L_wb1\nL_w1b:")
                    g_stage_now(out, p.wofl, 2)
                    g_stage_now(out, p.wofl, 3)
                out(f"s_branch L_wb{par}")
            elif par == 0 and p.twown >= 0:
                a(f"""s_cmp_eq_u32 s{sIT}, {p.twown}
                s_cbranch_scc0 L_nt{tag}
                s_and_b32 s{sT}, s3, 3
                s_lshl_b32 s{sT}, s{sT}, 2
                s_add_u32 s{sT}, s{sT}, s4
                s_lshl_b32 s{sT}, s{sT}, 3
                s_add_u32 s{sT}, s{sT}, s5
                s_lshl_b32 s{sT}, s{sT}, 1
                s_add_u32 s{sT}, s{sT}, s{sHL}
                s_mul_i32 s{sT}, s{sT}, {16*1152}
                s_mul_i32 s{sT2}, s4, 288
                s_and_b32 s{sT2}, s{sT2}, 0xff80
                s_add_u32 s{sT}, s{sT}, s{sT2}
                v_and_b32 v1, 63, v0
                v_lshrrev_b32 v2, 2, v1
                v_mul_u32_u24 v2, 1152, v2
                v_and_b32 v1, 3, v1
                v_lshl_add_u32 v1, v1, 7, v2
                buffer_load_dword v{vDUM}, v1, s[{sWO}:{sWO+3}], s{sT} offen {p.twfl}
                L_nt{tag}:""")
            elif par == 0 and p.twpos < 15:
                a(f"s_cmp_eq_u32 s{sIT}, {p.twpos}\ns_cbranch_scc0 L_nt{tag}")
                if p.tsplit >= 0:
                    wo_touch_part(a, p, 0)
                else: wo_touch(a, p)
                a(f"L_nt{tag}:")
            elif par == 1 and p.tw2 == 2:
                a(f"s_cmp_eq_u32 s{sIT}, {p.twpos}\ns_cbranch_scc0 L_nu{tag}")
                wo_touch(a, p, fl="")
                a(f"L_nu{tag}:")
        def top(a):
            if loader: kvbook(a)
            a("s_waitcnt lgkmcnt(0)")
            if loader and p.fc:
                out(f"""L_fc{par}:
                s_add_u32 s74, s{sIT}, {par}
                s_add_u32 s75, s74, s{sNONCE}
                v_mov_b32 v2, s75
                s_mov_b64 exec, 1
                global_store_dword v{vFL}, v2, s[82:83] sc1
                s_mov_b64 exec, -1
                s_mov_b32 s76, 0
                s_cmp_lt_u32 s74, {p.fc + 1}
                s_cbranch_scc1 L_fce{par}
                L_fcl{par}:""")
                for j in range(8): out(f"s_sub_u32 s{sPG+j}, s{sPG+j}, s{sNONCE}\ns_cmp_gt_u32 s{sPG+j}, 31\ns_cselect_b32 s{sPG+j}, 0, s{sPG+j}")
                for j in range(1, 8): out(f"s_min_u32 s{sPG}, s{sPG}, s{sPG+j}")
                out(f"""s_add_u32 s{sPG}, s{sPG}, {p.fc}
                s_cmp_ge_u32 s{sPG}, s74
                s_cbranch_scc1 L_fce{par}
                s_add_u32 s76, s76, 1
                s_cmp_ge_u32 s76, {p.fcs}
                s_cbranch_scc1 L_fce{par}
                s_load_dwordx8 s[{sPG}:{sPG+7}], s[82:83], s{sPA} glc
                s_waitcnt lgkmcnt(0)
                s_branch L_fcl{par}
                L_fce{par}:
                s_load_dwordx8 s[{sPG}:{sPG+7}], s[82:83], s{sPA} glc
                s_branch L_fcb{par}""")
            if not p.late:
                if loader: a(f"s_waitcnt vmcnt({16*(p.kvd - 2)})")
                a("s_barrier")
                hooks(a)
        def mid(a):
            if loader: a(f"s_waitcnt vmcnt({16*(dist - 1)})")
            a("s_barrier")
            hooks(a)
        block(a, p, T, par, loader, top, mid)
    a(f"s_xor_b32 s{sHI}, s{sHI}, 0x10000\ns_add_u32 s{sIT}, s{sIT}, 2\ns_cmp_lt_u32 s{sIT}, 16\ns_cbranch_scc1 L_a{tag}")
    S = vS[(2*T - 1) & 1]
    a("s_nop 0")
    for x in soft2(S, T-1): a(x)
    for x in pv(S, aV[1], T-1): a(x)
    stamp(a, p, 3)
    a(f"L_e{tag}:")
    if not loader and p.twpos == 16: wo_touch(a, p)
    lanesum(a, T, "v_add_f32")
    a(f"v_mov_b32 v6, v{vL}\nv_mov_b32 v7, v{vL}")
    for t in range(1, T): a(f"v_min_u32 v6, v6, v{vL+t}\nv_max_u32 v7, v7, v{vL+t}")
    a(f"""v_cmp_gt_u32 vcc, {(127-20) << 23:#x}, v6
    v_cmp_lt_u32 s[80:81], s{sNEG}, v7
    s_nop 1
    s_or_b64 vcc, vcc, s[80:81]
    {'s_mov_b64 vcc, -1' if p.force else ''}
    s_cbranch_vccz L_ok{tag}
    v_mov_b32 v6, {LFLAG}
    v_mov_b32 v7, 1
    ds_write_b32 v6, v7
    L_ok{tag}:""")
    for t in range(T): a(f"v_rcp_f32 v{vL+t}, v{vL+t}")
    a("s_nop 0")
    buf = 0
    for sp in range(2):
        for n, (t, s) in enumerate([(t, 2*sp + k) for t in range(T) for k in range(2)]):
            A0 = acc(t, 2*s)
            rp = (vL + t) & ~1
            sel = (vL + t) & 1
            for r in range(0, 8, 2): a(f"v_pk_mul_f32 {vr(A0+r, 2)}, {vr(A0+r, 2)}, {vr(rp, 2)} op_sel:[0,{sel}] op_sel_hi:[1,{sel}]")
            if sp == 0 or not p.defer: d = (8, 12, 80, 84)[buf & 3]; buf += 1
            else: d = KEEP[n]
            for r in range(4): a(f"v_cvt_pk_bf16_f32 v{d+r}, v{A0+2*r}, v{A0+2*r+1}")
            a(f"ds_write_b128 v{vOW}, {vr(d)} offset:{(s >> 1)*STG + (s & 1)*9216 + 1024*t}")
            if sp == 0 or not p.defer:
                for x in o_store(p, t, s, d): a(x)
            for r in range(0, 8, 2):
                if A0 + r < v2ACC + 84: a(f"v_pk_mov_b32 {vr(A0+r, 2)}, 0, 0")
    if not loader and p.twpos == 17: wo_touch(a, p)
    a(f"""s_mov_b32 s{gST}, 0
    s_mov_b32 s{gRI}, 0
    s_mov_b32 s{gC1}, {STG}
    s_mov_b32 s{gC2}, {-3*STG}
    s_mov_b32 s{gDL}, {STG}
    s_mov_b32 s{gM0}, {LDSOOB}
    s_mov_b32 m0, {LDSOOB}
    s_mov_b32 s{gSO}, {OOB}
    s_mov_b32 s{gDST}, s{gDL2}
    v_mov_b32 v1, {LFLAG}""")
    if True:
        flag_addr(a, 1, FA)
        CHK = 0x3cf
        a(f"""s_add_u32 s{gFP}, s82, s{sT}
        s_addc_u32 s{gFP+1}, s83, 0
        s_lshl_b32 s{sT}, s4, 2
        v_mov_b32 v{vPA}, s{sT}
        v_mov_b32 v{vNZ}, s{sNONCE}
        s_mov_b32 s{gOFF}, 0
        s_mov_b32 s{gCHK}, {CHK}
        s_cmp_eq_u32 s{sWAVE}, 0
        s_cselect_b32 s{gPOST}, 8, 0
        s_mov_b32 s{gMASK}, {7 if loader else CHK | CHK >> 1}
        s_mov_b64 s[{gF}:{gF+1}], 0""")
    a(f"s_waitcnt lgkmcnt(0)\ns_waitcnt vmcnt({(0 if p.pa < 0 and p.defer else 2*T) + (3 if not loader and p.twpos == 17 else 0)})")
    a("s_branch L_gemm")
    a.l += out.l
    a(f"L_redo{tag}:")
    a(f"s_waitcnt vmcnt(0) lgkmcnt(0)\ns_barrier\nv_mov_b32 v6, {LFLAG}\nv_mov_b32 v7, 0\nds_write_b32 v6, v7")
    for r in list(range(vKA, vKA+4)) + list(range(vVA, vVA+8)): a(f"v_and_b32 v{r}, 0xffff, v{r}")
    for t in range(T): a(f"v_mov_b32 v{vL+t}, 0xff800000")
    for ps in range(2):
        a(f"s_mov_b32 s{sKS}, 0\nL_r{ps}{tag}:")
        if loader:
            emit(a, kv_tile_dma(p, sRB, sKS, (0, 1) if ps == 0 else (0, 1, 2, 3), plain=True), nop=False)
        a("s_waitcnt vmcnt(0)\ns_barrier")
        for x in frag_reads(0, 0)[:8 if ps == 0 else 24]: a(x)
        a("s_waitcnt lgkmcnt(0)\ns_barrier")
        for t in range(T):
            S = vS[0]
            for x in qk(S, aK[0], t, "0" if ps == 0 else vr(vNM + 4*t)): a(x)
            a("s_nop 7")
            if ps == 0:
                for j in range(0, 8, 2): a(f"v_max3_f32 v{vL+t}, v{vL+t}, v{S+j}, v{S+j+1}")
            else:
                for j in range(8): a(f"v_exp_f32 v{S+j}, v{S+j}")
                for x in soft2(S, t) + pv(S, aV[0], t): a(x)
        a(f"s_add_u32 s{sKS}, s{sKS}, 8192\ns_cmp_lt_u32 s{sKS}, 131072\ns_cbranch_scc1 L_r{ps}{tag}")
        if ps == 0:
            lanesum(a, T, "v_max_f32")
            for t in range(T):
                for r in range(4): a(f"v_sub_f32 v{vNM + 4*t + r}, 0, v{vL+t}")
                a(f"v_mov_b32 v{vL+t}, 0")
            for r in range(32 * T): a(f"v_mov_b32 v{vACC+r}, 0")
    a("s_barrier")
    if loader:
        for st in range(4): g_stage_now(a, p.wofl, st)
    a(f"s_mov_b32 s{gREDO}, 1\ns_branch L_e{tag}")

def g_reads(par, off):
    A_, B_ = a2A[par], a2B[par]
    rd = []
    for nt in range(3):
        reg, o = (v2A, 32 * nt) if nt < 2 else (v2A + 1, 0)
        rd.append(f"ds_read_b64_tr_b16 {ar(A_ + 4*nt, 2)}, v{reg} offset:{off + o}")
        rd.append(f"ds_read_b64_tr_b16 {ar(A_ + 4*nt + 2, 2)}, v{reg} offset:{off + o + 4608}")
    for u in range(9):
        reg, o = (v2B, 1024 * u) if u < 3 else (v2B + 1 + (u - 3) // 2, 1024 * ((u - 3) & 1))
        rd.append(f"ds_read_b128 {ar(B_ + 4*u)}, v{reg} offset:{off + o}" if not (EXP & 256 and u >= 6) else "s_nop 0")
    return rd
def g_mf(par):
    return [f"{MF} {vr(acc2(nt, u))}, {ar(a2A[par] + 4*nt)}, {ar(a2B[par] + 4*u)}, {vr(acc2(nt, u))}" for u in range(9) for nt in range(3 if u < 3 else 2)]

def flag_addr(a, hop, base):
    if hop == 1: a(f"s_lshr_b32 s{sT}, s2, 5\ns_lshl_b32 s{sT}, s{sT}, 3\ns_add_u32 s{sT}, s{sT}, s3")
    else: a(f"s_lshr_b32 s{sT}, s2, 2")
    a(f"s_lshl_b32 s{sT}, s{sT}, {8 if hop == 1 else 7}\ns_add_u32 s{sT}, s{sT}, {base}")
def poll_issue(a):
    a(f"s_load_dwordx4 s[{gF}:{gF+3}], s[82:83], s{sT} glc")
def poll(a, tag, hop, base, issued=False, lim=SPIN, fail=None):
    flag_addr(a, hop, base)
    a(f"s_mov_b32 s{sT2}, 0")
    if issued: a(f"s_branch L_pc{tag}")
    a(f"L_p{tag}:")
    poll_issue(a)
    a(f"""L_pc{tag}:
    s_waitcnt lgkmcnt(0)
    s_xor_b32 s{gF}, s{gF}, s{sNONCE}
    s_xor_b32 s{gF+1}, s{gF+1}, s{sNONCE}
    s_xor_b32 s{gF+2}, s{gF+2}, s{sNONCE}
    s_xor_b32 s{gF+3}, s{gF+3}, s{sNONCE}
    s_or_b64 s[{gF}:{gF+1}], s[{gF}:{gF+1}], s[{gF+2}:{gF+3}]
    s_cbranch_scc0 L_pd{tag}
    s_add_u32 s{sT2}, s{sT2}, 1
    s_cmp_lt_u32 s{sT2}, {lim}
    s_cbranch_scc1 L_p{tag}
    {f"s_cmp_eq_u32 {lim}, 0" if fail else ""}
    {f"s_cbranch_scc1 {fail}" if fail else ""}
    L_pd{tag}:""")
def vpoll(a, tag, hop, base):
    flag_addr(a, hop, base)
    a(f"""v_and_b32 v1, 3, v0
    v_lshl_add_u32 v1, v1, 2, s{sT}
    s_mov_b32 s{sT}, 0
    L_p{tag}:
    global_load_dword v2, v1, s[82:83] sc1
    s_add_u32 s{sT}, s{sT}, 1
    s_waitcnt vmcnt(0)
    v_cmp_ne_u32 vcc, s{sNONCE}, v2
    s_cmp_lt_u32 s{sT}, {SPIN}
    s_cbranch_vccz L_pd{tag}
    s_cbranch_scc1 L_p{tag}
    L_pd{tag}:""")
def post(a, hop, base):
    flag_addr(a, hop, base)
    if hop == 1: a(f"s_lshl_b32 s{sT2}, s4, 2")
    else: a(f"s_and_b32 s{sT2}, s2, 3\ns_lshl_b32 s{sT2}, s{sT2}, 2")
    a(f"""s_add_u32 s{sT}, s{sT}, s{sT2}
    v_mov_b32 v1, s{sT}
    v_mov_b32 v2, s{sNONCE}
    s_mov_b64 exec, 1
    global_store_dword v1, v2, s[82:83] sc1
    s_mov_b64 exec, -1""")

def gemm_loop(a, out, p, role):
    fl = p.wofl if role == "w" else p.olfl
    d = g_dma(fl)
    align(a, p)
    a(f"L_g{role}:\ns_waitcnt lgkmcnt(6)")
    r = g_reads(1, 9216)
    upd = [f"v_add_u32 v{x}, s{gDL}, v{x}" for x in (v2A, v2A + 1, v2B, v2B + 1, v2B + 2, v2B + 3)]
    book0 = [f"s_add_u32 s{gRI}, s{gRI}, 1", f"s_and_b32 s{gRI}, s{gRI}, 3", f"s_cmp_eq_u32 s{gRI}, 3", f"s_cselect_b32 s{gDL}, s{gC2}, s{gC1}"]
    book2 = [f"s_and_b32 s{gSRC}, s{gTAB}, 15", f"s_lshr_b64 s[{gTAB}:{gTAB+1}], s[{gTAB}:{gTAB+1}], 4", f"s_add_u32 s{gSRC}, s{gSRC}, s{gP4}",
             f"s_and_b32 s{gSRC}, s{gSRC}, 15", f"s_mul_i32 s{gSRC}, s{gSRC}, s{gSTR}", f"s_add_u32 s{gSRC}, s{gSRC}, s{gLO}"]
    book1 = book2 + [f"s_cmp_ge_u32 s{gST}, 12", f"s_cselect_b32 s{gM0}, {LDSOOB}, s{gDST}", f"s_cselect_b32 s{gSO}, {OOB}, s{gSRC}",
             f"s_add_u32 s{gDST}, s{gDST}, s{gDL}"] + book0 + [f"s_bitcmp1_b32 s{gMASK}, s{gST}"]
    rp = [0, 0, 1, 1, 2, 2, 3, 5, 6, 8, 9, 11, 12, 14, 15]
    flo = [It(x, q, q) for x, q in zip(r[:9], rp)] + [It("s_waitcnt lgkmcnt(9)", 7, 8)] + [It(x, q, q) for x, q in zip(r[9:], rp[9:])] + \
          flat_dma(d[3:], [4, 7, 10, 13, 16, 19]) + [It(x, 0, 20) for x in upd]
    flo[9].W = {"x"}; flo[9].R = set()
    for it in flo[10:16]: it.R = it.R | {"x"}
    gaps, over = schedule(21, [], flo)
    assert any("lgkmcnt" in x for g in gaps[7:9] for x in g)
    if VERB: print("gemm step0 over", over, file=sys.stderr)
    weave(a, g_mf(0), gaps)
    mf = g_mf(1)
    a("s_waitcnt lgkmcnt(6)")
    gaps, over = schedule(6, [], [It(x, 0, 5) for x in book1])
    weave(a, mf[:6], gaps)
    if role == "o": a(f"s_cbranch_scc1 L_ho\ns_waitcnt lgkmcnt(0)\ns_waitcnt vmcnt(18)\ns_barrier\nL_hc{role}:")
    else: a(f"s_waitcnt lgkmcnt(0)\ns_cbranch_scc1 L_hw\ns_waitcnt vmcnt(18)\nL_hw:\ns_barrier\nL_hc{role}:")
    if p.gprof: a(f"s_mov_b32 m0, s{gST}\nv_writelane_b32 v31, s98, m0\n{'s_memtime' if p.cyc else 's_memrealtime'} s[98:99]")
    r = g_reads(0, 0)
    rp = [0, 0, 1, 1, 2, 2, 3, 4, 5, 7, 8, 10, 11, 13, 14]
    gaps, over = schedule(15, [], [It(x, q, q) for x, q in zip(r, rp)] + flat_dma(d[:3], [6, 9, 12]) + [It(f"s_add_u32 s{gST}, s{gST}, 1", 7, 14), It(f"s_cmp_lt_u32 s{gST}, 16", 7, 14)])
    if VERB: print("gemm step1 over", over, file=sys.stderr)
    weave(a, mf[6:], gaps)
    a(f"s_cbranch_scc1 L_g{role}")
    if role == "w": return
    out(f"""L_ho:
    s_waitcnt lgkmcnt(0)
    s_bitcmp1_b32 s{gCHK}, s{gST}
    s_cbranch_scc0 L_hx
    s_mov_b32 s{sT2}, 0
    L_hk:
    s_xor_b64 s[{gF}:{gF+1}], s[{gF}:{gF+1}], s[{gNN}:{gNN+1}]
    s_xor_b64 s[{gF+2}:{gF+3}], s[{gF+2}:{gF+3}], s[{gNN}:{gNN+1}]
    s_or_b64 s[{gF}:{gF+1}], s[{gF}:{gF+1}], s[{gF+2}:{gF+3}]
    s_cbranch_scc0 L_hr
    s_bitcmp1_b32 0x208, s{gST}
    s_cbranch_scc1 L_hs
    s_mov_b32 s{gM0}, {LDSOOB}
    s_mov_b32 s{gSO}, {OOB}
    L_hx:
    s_cmp_lt_u32 s{gST}, 3
    s_cbranch_scc1 L_hn
    s_waitcnt vmcnt(18)
    L_hn:
    s_barrier
    s_lshr_b32 s{sT}, s{gCHK}, 1
    s_bitcmp1_b32 s{sT}, s{gST}
    s_cbranch_scc0 L_hp
    s_load_dwordx4 s[{gF}:{gF+3}], s[{gFP}:{gFP+1}], s{gOFF} glc
    L_hp:
    {f"s_cmp_eq_u32 s{gST}, {p.tsplit}" if p.tsplit >= 0 else ""}
    {"s_cbranch_scc1 L_ht" if p.tsplit >= 0 else ""}
    L_hq:
    s_bitcmp1_b32 s{gPOST}, s{gST}
    s_cbranch_scc0 L_hco
    s_mov_b64 exec, 1
    global_store_dword v{vPA}, v{vNZ}, s[{gFP}:{gFP+1}] offset:128 sc1
    s_mov_b64 exec, -1
    s_branch L_hco
    L_hs:
    s_add_u32 s{sT2}, s{sT2}, 1
    s_cmp_ge_u32 s{sT2}, {SPIN}
    s_cbranch_scc1 L_hr
    s_load_dwordx4 s[{gF}:{gF+3}], s[{gFP}:{gFP+1}], s{gOFF} glc
    s_waitcnt lgkmcnt(0)
    s_branch L_hk
    L_hr:
    s_mov_b32 s44, s{gM0}
    s_mov_b32 s45, s{gSO}
    s_cmp_eq_u32 s{gOFF}, 0
    s_cbranch_scc0 L_hr1""")
    for ph, lo in enumerate((0, 6)):
        out(f"L_hr{ph}:")
        if ph == 0: stamp(out, p, 5)
        out(f"s_movk_i32 s{gOFF}, 128\ns_and_b32 s{gCHK}, s{gCHK}, {0x3c0 if ph == 0 else 0}\ns_mov_b32 s{gMASK}, {0x3ef if ph == 0 else 0}")
        for j in range(3):
            out(f"s_cmp_gt_u32 s{gST}, {lo + j}\ns_cbranch_scc0 L_hy")
            g_stage_now(out, fl, lo + 4 + j)
        if ph == 0: out("s_branch L_hy")
    out(f"L_hy:\ns_mov_b32 s{gM0}, s44\ns_mov_b32 s{gSO}, s45\ns_branch L_hx")
    if p.tsplit >= 0:
        out("L_ht:")
        wo_touch_part(out, p, 1)
        out("s_branch L_hq")

def back(a, p):
    out = A()
    a(f"""L_gemm:
    s_barrier""")
    stamp(a, p, 4)
    a("ds_read_b32 v2, v1")
    rd0 = g_reads(0, 0)
    for x in rd0[:12]: a(x)
    a(f"""s_waitcnt lgkmcnt(12)
    v_readfirstlane_b32 s{sT}, v2
    {rd0[12]}
    {rd0[13]}
    {rd0[14]}
    s_andn2_b32 s{sT}, s{sT}, s{gREDO}
    s_cbranch_scc1 L_redo
    s_mov_b32 s{gNN}, s{sNONCE}
    s_mov_b32 s{gNN+1}, s{sNONCE}
    s_bitcmp1_b32 s{sWAVE}, 0
    s_cbranch_scc1 L_gw
    s_lshr_b32 exec_lo, s{gPOST}, 3
    s_mov_b32 exec_hi, 0
    global_store_dword v{vPA}, v{vNZ}, s[{gFP}:{gFP+1}] sc1
    s_mov_b64 exec, -1""")
    if p.twpos == 18: wo_touch(a, p)
    out(f"""L_redo:
    s_bitcmp1_b32 s{sWAVE}, 0
    s_cbranch_scc1 L_redos
    s_branch L_redob""")
    gemm_loop(a, out, p, "o")
    a("s_branch L_ge")
    gemm_loop(a, out, p, "w")
    a("L_ge:")
    stamp(a, p, 6)
    a(f"""s_and_b32 s{sT}, s3, 3
    s_lshl_b32 s60, s{sT}, 4
    s_lshr_b32 s61, s3, 2
    s_lshl_b32 s61, s61, 3
    s_add_u32 s61, s61, s5
    s_add_u32 s60, s60, s61
    s_lshl_b32 s60, s60, 2
    s_add_u32 s60, s60, s4
    s_mul_i32 s60, s60, {PBLK}
    s_add_u32 s{sW}, s82, {P_OFF}
    s_addc_u32 s{sW+1}, s83, 0
    s_mov_b32 s{sW+2}, {256*PBLK}
    s_mul_i32 s62, s{sWAVE}, 9216
    s_add_u32 s62, s62, s60
    v_and_b32 v2, 63, v0
    v_lshlrev_b32 v3, 4, v2
    v_lshlrev_b32 v4, 3, v2
    s_lshl_b32 s63, s{sWAVE}, 1
    s_cmp_eq_u32 s{sWAVE}, 0
    s_cselect_b32 s{gQ1}, 3, 0
    s_cmp_lt_u32 s{sWAVE}, 2
    s_cselect_b32 s{gQ2}, 5, 2
    s_cmp_lt_u32 s{sWAVE}, 3
    s_cselect_b32 s{gQ3}, 7, 4""")
    qs = [63, 63, 63, gQ1, gQ1, gQ2, gQ2, gQ3, gQ3]
    qo = [0, 1, 2, 0, 1, 0, 1, 0, 1]
    a(f"s_and_b32 s{sT}, s3, 3\ns_cmp_eq_u32 s{sT}, s{sWAVE}\ns_cbranch_scc1 L_own")
    for own in range(2):
        if own: a(f"s_branch L_pe\nL_own:")
        for u in range(9):
            d = 8 + 4 * (u & 3)
            A0, B0 = acc2(0, u), acc2(1, u)
            a(f"v_cvt_pk_bf16_f32 v{d}, v{A0}, v{A0+1}\nv_cvt_pk_bf16_f32 v{d+1}, v{A0+2}, v{A0+3}\nv_cvt_pk_bf16_f32 v{d+2}, v{B0}, v{B0+1}\nv_cvt_pk_bf16_f32 v{d+3}, v{B0+2}, v{B0+3}")
            if own:
                if qo[u] == 0: a(f"s_lshl_b32 s{sT}, s{qs[u]}, 10\nv_add_u32 v5, s{sT}, v3")
                a(f"ds_write_b128 v5, {vr(d)} offset:{PL + 1024*qo[u]}")
            else:
                a(f"s_lshl_b32 s{sT}, s{qs[u]}, 10\ns_add_u32 s{sT}, s{sT}, s62")
                a(f"buffer_store_dwordx4 {vr(d)}, v3, s[{sW}:{sW+3}], s{sT} offen offset:{1024*qo[u]} {p.pfl}")
        if not own: a(f"s_lshl_b32 s{sT}, s63, 9\ns_add_u32 s{sT}, s{sT}, s60\ns_add_u32 s{sT}, s{sT}, 36864")
        for u in range(3):
            d = 24 + 2 * u
            A0 = acc2(2, u)
            if u == 2 and not own: a(f"s_cmp_eq_u32 s{sWAVE}, 3\ns_cbranch_scc0 L_pe")
            a(f"v_cvt_pk_bf16_f32 v{d}, v{A0}, v{A0+1}\nv_cvt_pk_bf16_f32 v{d+1}, v{A0+2}, v{A0+3}")
            if own: a(f"ds_write_b64 v4, {vr(d, 2)} offset:{PL + 9216 + 512*u}")
            else: a(f"buffer_store_dwordx2 {vr(d, 2)}, v4, s[{sW}:{sW+3}], s{sT} offen offset:{512*u} {p.pfl}")
    a("L_pe:")
    a("s_load_dwordx2 s[68:69], s[0:1], 80")
    a(f"""s_and_b32 s64, s3, 3
    s_lshl_b32 s65, s61, 2
    s_add_u32 s65, s65, s4
    s_mul_i32 s65, s65, {PBLK}
    s_mul_i32 s66, s64, 9216
    s_add_u32 s66, s66, s65
    s_lshl_b32 s{sT}, s{sWAVE}, 10
    s_add_u32 s66, s66, s{sT}
    s_lshl_b32 s67, s64, 1
    s_add_u32 s67, s67, s{sWAVE}
    s_sub_u32 s67, s67, 1
    s_lshl_b32 s72, s67, 9
    s_add_u32 s72, s72, s65
    s_add_u32 s72, s72, 36864
    s_lshr_b32 s73, s3, 2
    s_mul_i32 s73, s73, 1152
    s_mul_i32 s{sT}, s4, 288
    s_add_u32 s73, s73, s{sT}
    s_mul_i32 s{sT}, s5, {144*2304}
    s_add_u32 s73, s73, s{sT}
    s_mul_i32 s74, s67, {16*2304}
    s_add_u32 s74, s74, s73
    s_add_u32 s74, s74, 256
    s_lshl_b32 s{sT}, s64, 6
    s_add_u32 s73, s73, s{sT}
    s_mul_i32 s{sT}, s{sWAVE}, {16*2304}
    s_add_u32 s73, s73, s{sT}
    s_cmp_eq_u32 s{sWAVE}, 3
    s_cselect_b32 s75, 8, s67
    s_cmp_eq_u32 s75, s67
    s_cselect_b32 s72, s72, {OOB}
    s_cselect_b32 s74, s74, {OOB}
    v_and_b32 v5, 15, v2
    s_movk_i32 s{sT}, 2304
    v_lshrrev_b32 v6, 4, v2
    v_lshlrev_b32 v6, 3, v6
    v_mad_u32_u24 v7, v5, s{sT}, v6
    s_mov_b32 s70, {8*144*1152*2}
    s_mov_b32 s71, 0x20000
    s_add_u32 s76, s64, 1
    s_add_u32 s77, s64, 2
    s_add_u32 s78, s64, 3
    s_and_b32 s76, s76, 3
    s_and_b32 s77, s77, 3
    s_and_b32 s78, s78, 3
    s_mul_i32 s76, s76, {64*PBLK}
    s_mul_i32 s77, s77, {64*PBLK}
    s_mul_i32 s78, s78, {64*PBLK}
    v_add_u32 v9, 4096, v3
    s_lshl_b32 s{sT}, s{sWAVE}, 10
    v_add_u32 v10, s{sT}, v3
    s_lshl_b32 s{sT}, s{sWAVE}, 9
    v_add_u32 v11, s{sT}, v4
    s_waitcnt vmcnt(0) lgkmcnt(0)
    s_barrier
    s_cmp_eq_u32 s{sWAVE}, 0
    s_cbranch_scc0 L_n1""")
    post(a, 2, F2)
    a(f"ds_read_b128 v[128:131], v3 offset:{PL + 8192}\ns_branch L_n2\nL_n1:\nds_read_b64 v[128:129], v11 offset:{PL + 9216 - 512}\nL_n2:")
    a(f"ds_read_b128 v[96:99], v10 offset:{PL}\nds_read_b128 v[112:115], v10 offset:{PL + 4096}")
    if p.vp2: vpoll(a, "2", 2, F2)
    else: poll(a, "2", 2, F2)
    stamp(a, p, 7)
    def red(src, stride, n, dst):
        for i in range(n):
            for k in range(4):
                r = src + stride * k + i
                if k == 0: a(f"v_lshlrev_b32 v80, 16, v{r}\nv_and_b32 v81, 0xffff0000, v{r}")
                else: a(f"v_lshlrev_b32 v82, 16, v{r}\nv_and_b32 v83, 0xffff0000, v{r}\nv_pk_add_f32 v[80:81], v[80:81], v[82:83]")
            a(f"v_cvt_pk_bf16_f32 v{dst+i}, v80, v81")
    for u in range(2):
        for k in range(3):
            a(f"s_add_u32 s{sT}, s66, s{76+k}\nbuffer_load_dwordx4 {vr(100 + 16*u + 4*k)}, v{3 if u == 0 else 9}, s[{sW}:{sW+3}], s{sT} offen {p.plfl}")
    a(f"s_cmp_eq_u32 s{sWAVE}, 0\ns_cbranch_scc0 L_r3\ns_add_u32 s66, s66, 8192")
    for k in range(3):
        a(f"s_add_u32 s{sT}, s66, s{76+k}\nbuffer_load_dwordx4 {vr(132 + 4*k)}, v3, s[{sW}:{sW+3}], s{sT} offen {p.plfl}")
    a("s_branch L_r4\nL_r3:")
    for k in range(3):
        a(f"s_add_u32 s{sT}, s72, s{76+k}\nbuffer_load_dwordx2 {vr(132 + 4*k, 2)}, v4, s[{sW}:{sW+3}], s{sT} offen {p.plfl}")
    a("L_r4:\ns_waitcnt lgkmcnt(0)")
    for u in range(2):
        a(f"s_waitcnt vmcnt({6 - u})")
        red(96 + 16*u, 4, 4, 12 + 4*u)
        a(f"buffer_store_dwordx2 {vr(12+4*u, 2)}, v7, s[68:71], s73 offen {p.outfl}\nbuffer_store_dwordx2 {vr(14+4*u, 2)}, v7, s[68:71], s73 offen offset:32 {p.outfl}")
        a(f"s_add_u32 s73, s73, {64*2304}")
    a("s_waitcnt vmcnt(4)")
    a(f"s_cmp_eq_u32 s{sWAVE}, 0\ns_cbranch_scc0 L_r5")
    red(128, 4, 4, 20)
    a(f"buffer_store_dwordx2 v[20:21], v7, s[68:71], s73 offen {p.outfl}\nbuffer_store_dwordx2 v[22:23], v7, s[68:71], s73 offen offset:32 {p.outfl}\ns_branch L_r6\nL_r5:")
    red(128, 4, 2, 20)
    a(f"buffer_store_dwordx2 v[20:21], v7, s[68:71], s74 offen {p.outfl}\nL_r6:")
    if p.stamps:
        a("s_waitcnt vmcnt(0)")
        if not p.pst: stamp(a, p, 8)
        stamp_store(a, p)
    a("L_end:\ns_endpgm")
    a.l += out.l

def kernel(p, K):
    a = A()
    a("s_cmp_ge_u32 s2, 256\ns_cbranch_scc1 L_end")
    if p.perm == 1: a("s_mul_i32 s2, s2, 37\ns_add_u32 s2, s2, 11\ns_and_b32 s2, s2, 255")
    if p.perm == 2: a("s_lshr_b32 s3, s2, 3\ns_and_b32 s2, s2, 7\ns_lshl_b32 s2, s2, 5\ns_or_b32 s2, s2, s3")
    if p.perm == 3: a("s_lshr_b32 s3, s2, 5\ns_and_b32 s2, s2, 31\ns_lshl_b32 s2, s2, 3\ns_or_b32 s2, s2, s3")
    stamp(a, p, 0)
    a(f"""
    s_load_dwordx8 s[52:59], s[0:1], 0
    s_load_dwordx8 s[60:67], s[0:1], 40
    s_load_dwordx2 s[82:83], s[0:1], 96
    s_load_dwordx2 s[94:95], s[0:1], 32
    s_load_dwordx2 s[96:97], s[0:1], 72
    s_load_dwordx2 s[98:99], s[0:1], 88
    v_lshrrev_b32 v1, 6, v0
    v_and_b32 v2, 63, v0
    v_readfirstlane_b32 s{sWAVE}, v1
    s_and_b32 s3, s2, 7
    s_lshr_b32 s4, s2, 3
    s_lshr_b32 s5, s4, 2
    s_and_b32 s4, s4, 3
    s_and_b32 s6, s3, 3
    s_lshl_b32 s6, s6, 3
    s_lshl_b32 s7, s4, 1
    s_add_u32 s6, s6, s7
    s_lshr_b32 s{sHL}, s{sWAVE}, 1
    s_add_u32 s7, s6, s{sHL}
    s_lshl_b32 s{sRB}, s{sHL}, 15
    """)
    if p.rotm == 0: a(f"s_lshr_b32 s{sROT}, s2, 2\ns_and_b32 s{sROT}, s{sROT}, 14\ns_add_u32 s{sROT}, s{sROT}, s{sHL}\ns_lshl_b32 s{sROT}, s{sROT}, 1")
    elif p.rotm == 1: a(f"s_lshr_b32 s{sROT}, s2, 2\ns_and_b32 s{sROT}, s{sROT}, 30\ns_add_u32 s{sROT}, s{sROT}, s{sHL}")
    elif p.rotm == 2: a(f"s_lshr_b32 s{sROT}, s2, 3\ns_lshl_b32 s{sT}, s{sHL}, 4\ns_add_u32 s{sROT}, s{sROT}, s{sT}")
    elif p.rotm == 3: a(f"s_lshl_b32 s{sROT}, s2, 1\ns_add_u32 s{sROT}, s{sROT}, s{sHL}\ns_mul_i32 s{sROT}, s{sROT}, 0x9e3779b1\ns_lshr_b32 s{sROT}, s{sROT}, 27")
    elif p.rotm == 4: a(f"s_lshr_b32 s{sROT}, s2, 2\ns_and_b32 s{sROT}, s{sROT}, 14\ns_add_u32 s{sROT}, s{sROT}, s{sHL}\ns_lshl_b32 s{sROT}, s{sROT}, 1\ns_bfe_u32 s{sT}, s2, 0x10006\ns_add_u32 s{sROT}, s{sROT}, s{sT}")
    a(f"""
    v_lshrrev_b32 v3, 4, v2
    v_and_b32 v4, 15, v2
    v_lshlrev_b32 v5, 1, v3
    v_xor_b32 v5, v5, v4
    v_lshlrev_b32 v5, 4, v5
    v_lshl_add_u32 v{vE}, v3, 8, v5
    v_xor_b32 v{vO_}, 128, v{vE}
    v_lshl_add_u32 v{vWE}, v3, 13, v5
    s_lshl_b32 s{sT}, s7, 8
    v_add_u32 v{vWE}, s{sT}, v{vWE}
    v_xor_b32 v{vWO}, 128, v{vWE}
    v_add_u32 v{vWO}, {8*8192 - 1024}, v{vWO}
    s_lshl_b32 s{sT}, s{sHL}, 2
    v_add_u32 v5, s{sT}, v3
    v_and_b32 v6, 7, v2
    v_xor_b32 v5, v5, v6
    v_lshlrev_b32 v5, 4, v5
    v_lshrrev_b32 v6, 3, v2
    s_lshl_b32 s{sT}, s{sHL}, 3
    v_add_u32 v6, s{sT}, v6
    s_movk_i32 s{sT}, 1152
    v_mad_u32_u24 v{vX}, v6, s{sT}, v5
    s_waitcnt lgkmcnt(0)
    s_cmp_ge_u32 s3, 4
    s_cselect_b32 s52, s60, s52
    s_cselect_b32 s53, s61, s53
    s_cselect_b32 s54, s62, s54
    s_cselect_b32 s55, s63, s55
    s_cselect_b32 s56, s64, s56
    s_cselect_b32 s57, s65, s57
    s_cselect_b32 s58, s66, s58
    s_cselect_b32 s59, s67, s59
    s_cselect_b32 s94, s96, s94
    s_cselect_b32 s95, s97, s95
    s_mul_i32 s{sT}, s5, 165888
    s_add_u32 s{sX}, s52, s{sT}
    s_addc_u32 s{sX+1}, s53, 0
    s_mov_b32 s{sX+2}, 165888
    s_mov_b32 s{sX+3}, 0x20000
    s_mov_b32 s{sW}, s58
    s_mov_b32 s{sW+1}, s59
    s_mov_b32 s{sW+2}, 4718592
    s_mov_b32 s{sW+3}, 0x20000
    s_and_b32 s76, s{sWAVE}, 1
    s_mul_i32 s{sXB}, s{sHL}, 24576
    s_add_u32 s{sXB}, s{sXB}, {WQB}
    s_mul_i32 s{sXS0}, s76, {5*18432}
    s_mul_i32 s{sXM0}, s76, {5*2048}
    s_lshl_b32 s{sT}, s{sHL}, 10
    s_add_u32 s{sXM0}, s{sXM0}, s{sT}
    s_add_u32 s{sXM0}, s{sXM0}, {XBUF}
    s_lshl_b32 s77, s76, 12
    s_add_u32 s77, s77, s{sXB}
    s_lshl_b32 s78, s76, 17
    """)
    def xload(c, a=a, T=None):
        a(f"s_add_u32 s{sXS}, s{sKROT}, {c}\ns_sub_u32 s{sXM}, s{sXS}, 9\ns_cselect_b32 s{sXS}, s{sXS}, s{sXM}\ns_lshl_b32 s{sXS}, s{sXS}, 7")
        a(f"s_add_u32 s{sXM}, s{sXM0}, {18432*c}\ns_add_u32 s{sXS}, s{sXS0}, s{sXS}")
        if T: return emit(a, x_dma(p, T))
        g = x_dma(p, 5)
        emit(a, g[:4])
        a(f"s_cmp_eq_u32 s76, 1\ns_cbranch_scc1 L_x{c}")
        emit(a, g[4:])
        a(f"L_x{c}:")
    def wload(k, a=a):
        a(f"s_add_u32 s{sWM}, s77, {8192*k}\ns_add_u32 s{sWS2}, s{sWS}, {4*8192 - 2048}")
        emit(a, w_dma(p), nop=False)
        emit(a, [w_adv(p)], nop=False)
    a(f"s_mov_b32 s60, s54\ns_mov_b32 s61, s55")
    if p.krot: a(f"s_lshr_b32 s{sKROT}, s4, {p.ksh}\ns_mul_i32 s{sKROT}, s{sKROT}, {p.kc}\ns_add_u32 s{sKROT}, s{sKROT}, s5\ns_sub_u32 s{sT}, s{sKROT}, 9\ns_cselect_b32 s{sKROT}, s{sKROT}, s{sT}")
    else: a(f"s_mov_b32 s{sKROT}, 0")
    a(f"s_lshl_b32 s{sWS}, s{sKROT}, 19\ns_add_u32 s{sWS}, s{sWS}, s78\ns_add_u32 s{sWEND}, s78, {576*8192}")
    if p.rotm == 9:
        a(f"s_lshl_b32 s{sT}, s2, 1\ns_add_u32 s{sT}, s{sT}, s{sHL}\ns_lshl_b32 s{sT}, s{sT}, 2\ns_add_u32 s{sT}, s{sT}, {220 << 20}\ns_load_dword s{sROT}, s[82:83], s{sT}\ns_waitcnt lgkmcnt(0)")
    if p.pst == 1: stamp(a, p, 8)
    xload(0); wload(0)
    if p.pst == 2: stamp(a, p, 8)
    if p.pw >= 0: a(f"s_waitcnt vmcnt({p.pw})")
    wload(1)
    a(f"""
    s_mul_i32 s{sS0}, s4, {p.stag}
    s_add_u32 s{sS0}, s{sS0}, {p.s0}
    s_lshl_b32 s{sT}, s5, 5
    s_add_u32 s{sT}, s{sT}, s7
    s_lshl_b32 s{sT2}, {'s3' if p.kvsame else f's{sT}'}, 17
    s_add_u32 s{sK}, s60, s{sT2}
    s_addc_u32 s{sK+1}, s61, 0
    s_mov_b32 s{sK+2}, 131072
    s_mov_b32 s{sK+3}, 0x20000
    s_add_u32 s{sV}, s56, s{sT2}
    s_addc_u32 s{sV+1}, s57, 0
    s_mov_b32 s{sV+2}, 131072
    s_mov_b32 s{sV+3}, 0x20000
    s_mov_b32 s{sO}, s82
    s_mov_b32 s{sO+1}, s83
    s_mov_b32 s{sO+2}, {O_BYTES}
    s_mov_b32 s{sO+3}, 0x20000
    s_lshr_b32 s{sT2}, s3, 2
    s_lshl_b32 s{sT2}, s{sT2}, 8
    s_add_u32 s{sT}, s{sT}, s{sT2}
    s_mul_i32 s{sOB}, s{sT}, {4*9216}
    s_mov_b32 s{sWO}, s94
    s_mov_b32 s{sWO+1}, s95
    s_mov_b32 s{sWO+2}, 4718592
    s_mov_b32 s{sWO+3}, 0x20000
    s_and_b32 s{sTW}, s3, 3
    s_lshl_b32 s{sTW}, s{sTW}, 5
    s_lshr_b32 s{sT}, s2, 3
    s_add_u32 s{sTW}, s{sTW}, s{sT}
    s_lshl_b32 s{sTW}, s{sTW}, 1
    s_add_u32 s{sTW}, s{sTW}, s{sHL}
    s_mul_i32 s{sTW}, s{sTW}, 18432
    s_cmp_eq_u32 s76, 1
    s_cselect_b32 s{sKV}, s{sV}, s{sK}
    s_cselect_b32 s{sKV+1}, s{sV+1}, s{sK+1}
    s_mov_b32 s{sKV+2}, 131072
    s_mov_b32 s{sKV+3}, 0x20000
    s_lshl_b32 s{sT2}, s76, 13
    s_add_u32 s{sT2}, s{sT2}, s{sRB}
    s_mov_b32 s6, s98
    s_mov_b32 s7, s99
    v_lshlrev_b32 v{vTCH}, 7, v2
    s_mov_b32 s{sIT}, -2
    """)
    def batch2(a, T):
        emit(a, kv_book(p), nop=False); emit(a, kv_dma(p), nop=False)
        xload(1, a, T)
        a(f"s_add_u32 s{sWM}, s77, {8192*2}\ns_mov_b32 s{WSr[1]}, s{sWS}\ns_add_u32 s{WS2r[1]}, s{sWS}, {4*8192 - 2048}")
        emit(a, w_dma(p, 1)[:4 - p.wsh], nop=False)
        emit(a, [w_adv(p)], nop=False)
        a(f"s_mov_b32 s{sIT}, 0")
        emit(a, kv_book(p), nop=False)
        a(f"s_mov_b32 s{sWM}, s77\ns_add_u32 s{sWS2}, s{sWS}, {4*8192 - 2048}")
    if not p.early: batch2(a, None)
    p.batch2 = batch2
    a(f"s_cmp_eq_u32 s{sWAVE}, 0\ns_cbranch_scc0 L_nc")
    if p.touch_code:
        a(f"""s_getpc_b64 s[80:81]
        L_pc:
        s_sub_u32 s80, s80, L_pc-{K}
        s_subb_u32 s81, s81, 0
        s_lshr_b32 s{sT}, s2, 3
        s_and_b32 s{sT}, s{sT}, 7
        s_lshl_b32 s{sT}, s{sT}, 13
        v_add_u32 v8, s{sT}, v{vTCH}
        s_mov_b32 s{sT}, L_codeend-{K}-4
        v_min_u32 v8, s{sT}, v8
        global_load_dword v{vDUM}, v8, s[80:81]""")
    a(f"""v_mov_b32 v8, {LFLAG}
    v_mov_b32 v9, 0
    ds_write_b32 v8, v9
    s_cmp_lt_u32 s2, 8
    s_cbranch_scc0 L_nc
    s_memrealtime s[80:81]
    v_mov_b32 v11, 0
    s_waitcnt lgkmcnt(0)
    s_or_b32 s80, s80, 1
    v_mov_b32 v10, s80
    s_mov_b64 exec, 1
    global_atomic_cmpswap v9, v[10:11], s[6:7] sc1
    s_mov_b64 exec, -1
    L_nc:""")
    a(f"""
    v_and_b32 v5, 7, v4
    v_lshlrev_b32 v5, 1, v5
    v_xor_b32 v5, v5, v3
    v_lshlrev_b32 v5, 4, v5
    v_lshl_add_u32 v5, v4, 8, v5
    v_add_u32 v{vKA}, s{sRB}, v5
    v_xor_b32 v{vKA+1}, 64, v{vKA}
    v_xor_b32 v{vKA+2}, 128, v{vKA}
    v_xor_b32 v{vKA+3}, 192, v{vKA}
    v_bfe_u32 v5, v2, 2, 2
    v_and_b32 v6, 1, v3
    v_lshl_add_u32 v5, v6, 2, v5
    v_lshrrev_b32 v6, 1, v3
    v_lshl_add_u32 v6, v6, 4, v5
    v_lshlrev_b32 v5, 1, v5
    v_bfe_u32 v7, v2, 1, 1
    v_xor_b32 v5, v5, v7
    v_lshlrev_b32 v5, 4, v5
    v_and_b32 v7, 1, v2
    v_lshl_add_u32 v5, v7, 3, v5
    v_lshl_add_u32 v5, v6, 8, v5
    v_add_u32 v{vVA}, s{sXB}, v5
    s_mov_b32 s{sXB}, s77""")
    for dt in range(1, 8): a(f"v_xor_b32 v{vVA+dt}, {32*dt}, v{vVA}")
    a(f"""
    v_lshrrev_b32 v5, 1, v4
    v_xor_b32 v5, v5, v3
    v_lshlrev_b32 v5, 4, v5
    v_lshl_add_u32 v5, v4, 7, v5
    s_mul_i32 s79, s76, {4*2048}
    s_add_u32 s79, s79, {XBUF}
    v_add_u32 v{vXA}, s79, v5
    v_xor_b32 v{vXA+1}, 64, v{vXA}
    s_mul_i32 s79, s76, {5*1024}
    v_lshl_add_u32 v{vST}, v2, 4, s79
    s_mul_i32 s79, s{sHL}, {2*STG}
    v_add_u32 v{vOW}, s79, v{vST}
    s_mov_b32 s{sSC}, 0x3e0293ee
    s_mov_b32 s{sWSL}, 0
    s_mov_b32 s{sC}, 8192
    s_mov_b32 s{sNEG}, -16384
    s_mov_b32 s{sWD}, 8192
    s_mov_b32 s{sXD}, 18432
    """)
    a(f"s_movk_i32 s79, 3641\ns_mul_i32 s80, s76, 864")
    for j in range(9):
        a(f"""v_add_u32 v5, {64*j}, v2
        v_mul_u32_u24 v6, s79, v5
        v_lshrrev_b32 v6, 16, v6
        v_lshlrev_b32 v5, 4, v5
        v_mad_u32_u24 v5, v6, s80, v5
        v_subrev_u32 v{v2VO+j}, {1024*(j % 4)}, v5""")
    a(f"""
    v_lshrrev_b32 v5, 2, v2
    v_and_b32 v6, 3, v2
    v_lshlrev_b32 v6, 3, v6
    s_movk_i32 s79, 288
    v_mad_u32_u24 v5, v5, s79, v6
    v_add_u32 v{v2A+1}, {18432 + 256}, v5
    s_lshl_b32 s79, s{sWAVE}, 6
    s_add_u32 s79, s79, 18432
    v_add_u32 v{v2A}, s79, v5
    v_lshlrev_b32 v5, 4, v2
    s_lshl_b32 s79, s{sWAVE}, 11
    v_add_u32 v{v2B}, s79, v5
    s_cmp_eq_u32 s{sWAVE}, 0
    s_cselect_b32 s79, 3072, 0
    v_add_u32 v{v2B+1}, s79, v5
    s_cmp_lt_u32 s{sWAVE}, 2
    s_movk_i32 s79, 2048
    s_cselect_b32 s79, 5120, s79
    v_add_u32 v{v2B+2}, s79, v5
    s_cmp_lt_u32 s{sWAVE}, 3
    s_movk_i32 s79, 4096
    s_cselect_b32 s79, 7168, s79
    v_add_u32 v{v2B+3}, s79, v5
    """)
    if p.twq >= 0: a(f"s_mul_i32 s79, s4, {p.twstag}\ns_add_u32 s79, s79, {p.twq}")
    if p.tsplit >= 0: wo_touch_setup(a)
    for r in range(0, 160, 2): a(f"v_pk_mov_b32 {vr(vACC+r, 2)}, 0, 0")
    if p.pst == 4: stamp(a, p, 8)
    a(f"s_bitcmp1_b32 s{sWAVE}, 0\ns_cbranch_scc1 L_small")
    wave_front(a, p, 5, False, "b")
    a("L_small:")
    wave_front(a, p, 4, True, "s")
    back(a, p)
    a("L_codeend:")
    return a.text()

def build(p):
    K = KNAME + "_kernel"
    hdr = open("cdna_kernels/" + KNAME + ".s.ref").read().split("; Override launch geometry")[0]
    return hdr + header(["; @launch grid=(256,1,1) block=(256,1,1) lds=163840"]) + kstart(K) + kernel(p, K) + RODATA + kdesc(K, 512, 256)

if __name__ == "__main__":
    ap = argparse.ArgumentParser()
    ap.add_argument("out")
    ap.add_argument("opts", nargs="*")
    x = ap.parse_args()
    p = P()
    VERB = True
    for o in x.opts:
        k, v = o.split("=")
        cur = getattr(p, k)
        setattr(p, k, (v == "1") if isinstance(cur, bool) else int(v) if isinstance(cur, int) else v.replace("+", " "))
    if p.twq >= 0: p.twpos = 15
    EXP = p.exp
    open(x.out, "w").write(build(p))
```

```python
import sys, argparse
sys.path.insert(0, "tools")
from asmlib import *
sys.path.insert(0, 'gen')
from sched import It, schedule
VERB = False
EXP = 0

class P:
    stamps = False
    cyc = False
    xfl = ""; wfl = ""; kvfl = "nt"
    ofl = "sc1"; olfl = "sc1"; wofl = ""; twfl = ""; pfl = "sc1"; plfl = "sc1"; outfl = ""
    s0 = 5; ppe = 2; stag = 0
    rot = True; krot = True
    kvd = 4
    twpos = 12
    rb = False
    fb = 3
    sh = 2
    qb = 4; qr = 6; vlo = 6
    touch_code = True
    force = False
    kvsame = False
    lim = 0
    notouch = False
    limg = 2
    gprof = False
    pa = -1
    soft = False
    tst = -1
    tsw = 0
    aprof = False
    st0 = -1
    pmul = 0
    pace = 2
    pmask = 7
    pw2 = 16
    pw3 = -1
    pbit = 6
    c0 = False
    kt = ''
    ktfl = ''
    ktst = 0
    tsplit = -1
    tw2 = 0
    dbgst = False
    al = 0
    sh4 = 0
    xsp = 0
    wsh = 0
    qprof = 0
    par8 = False
    fc = 0
    fcs = 64
    twown = -1
    perm = 0
    kc = 2
    ksh = 0
    early = True
    pst = 0
    rotm = 0
    swap = 3
    t3 = False
    vp2 = True
    s1 = 1
    defer = False
    warm = True
    exp = 0
    late = True
    twq = -1
    twstag = 0
    pw = -1

MF = "v_mfma_f32_16x16x32_bf16"
OOB = 0x40000000
LDSOOB = 0x30000
STAMPOFF = 200 << 20
O_BYTES = 16 * 32 * 4 * 9216
P_OFF = 32 << 20
F_OFF = 48 << 20
PBLK = 41472
STG = 36864
LFLAG = 163836
SPIN = 1 << 18
PL = 0

def vr(b, n=4): return f"v[{b}:{b+n-1}]"
def ar(b, n=4): return f"a[{b}:{b+n-1}]"
def weave(a, mfmas, gaps):
    assert len(gaps) <= len(mfmas)
    for i, m in enumerate(mfmas):
        a(m)
        if i < len(gaps):
            for x in gaps[i]: a(x)
def align(a, p):
    if p.al: a(f".p2align {p.al}")
    for _ in range(p.sh4): a("s_nop 0")
def emit(a, gs, nop=True):
    for g in gs:
        for x in g: a(x)
        if nop: a("s_nop 0")
NST = 9
def stamp(a, p, idx):
    if p.stamps: a(f"{'s_memtime' if p.cyc else 's_memrealtime'} s[{84+2*idx}:{85+2*idx}]")
def stamp_store(a, p):
    if not p.stamps: return
    a("s_waitcnt lgkmcnt(0)")
    if p.dbgst:
        a("v_mov_b32 v1, 0\nv_cmp_eq_u32 vcc, 0, v0\ns_and_saveexec_b64 s[44:45], vcc")
        for j in range(NST):
            a(f"s_sub_u32 s46, s{84+2*j}, s{sNONCE}\ns_add_u32 s46, s46, 500\nv_mov_b32 v2, s46\nglobal_atomic_umax v1, v2, s[6:7] offset:{4+4*j} sc1\ns_nop 1")
        a("s_mov_b64 exec, s[44:45]")
        return
    a(f"s_mul_i32 s80, s2, 128\ns_add_u32 s82, s82, s80\ns_addc_u32 s83, s83, 0\ns_add_u32 s82, s82, {STAMPOFF}\ns_addc_u32 s83, s83, 0")
    a("v_mov_b32 v1, 0\nv_cmp_eq_u32 vcc, 0, v0\ns_and_saveexec_b64 s[80:81], vcc")
    for j in range(NST):
        a(f"v_mov_b32 v2, s{84+2*j}\nv_mov_b32 v3, s{85+2*j}\nglobal_store_dwordx2 v1, v[2:3], s[82:83] offset:{8*j}\ns_nop 1")
    a("s_mov_b64 exec, s[80:81]")
    if p.gprof or p.qprof or p.aprof:
        a("v_and_b32 v1, 63, v0\nv_lshlrev_b32 v1, 2, v1\nv_cmp_gt_u32 vcc, 14, v0\ns_and_saveexec_b64 s[80:81], vcc\nglobal_store_dword v1, v31, s[82:83] offset:72\ns_mov_b64 exec, s[80:81]")

vACC = 96; vS = (80, 88); vL = 72; vVA = 64; vKA = 60; vXA = 58
vE, vO_, vWE, vWO, vX, vST, vTCH, vDUM, vOW, vFL = 56, 57, 54, 55, 53, 52, 51, 50, 49, 48
v2VO, v2B, v2A = 32, 41, 45
vNM = 8
aQ = 0; aK = (80, 112); aV = (144, 176); aXB = (80, 100); aWA = (144, 176)
a2A = (80, 92); a2B = (104, 140)
v2ACC = 96
sX, sW, sK, sV, sO, sKV, sWO = 8, 12, 16, 20, 24, 68, 56
sWAVE, sHL, sROT, sNONCE = 28, 29, 30, 31
sWS, sWM, sXS, sXM, sWD, sXD, sT, sT2, sIT = 32, 33, 34, 35, 36, 37, 38, 39, 40
sKN, sKM, sKS, sRB, sHI, sWSL, sXB = 41, 42, 43, 44, 45, 46, 47
sC, sSC, sOB, sNEG, sKROT, sS0, sWEND, sTW = 48, 49, 50, 51, 52, 53, 54, 55
sWS2, sXM0, sXS0 = 72, 74, 75
gSRC, gSTR, gDST, gST, gQ1, gQ2, gQ3, gRI = 60, 52, 62, 63, 64, 65, 66, 67
gC1, gC2, gDL, gM0, gSO, gDL2, gLO, gHIW = 72, 73, 74, 75, 76, 77, 78, 79
gLOW, gLIM, gREDO, gMASK, gTAB, gP4 = 32, 33, 34, 35, 36, 79
gF = 40
REL = [0, 1, 2, 3, 4, 6, 8, 10, 12, 14, 5, 7, 9, 11, 13, 15]
FA, F2, FP = F_OFF, F_OFF + 32768, F_OFF + 49152
gFP, gOFF, gCHK, gPOST, gNN = 80, 33, 32, 53, 46
vPA, vNZ = 47, 48
sPG = 60
sPA, sPM = 73, 74
sSW = 62
XBUF = 65536
WQB = XBUF + 2 * 18432
QX = 155648
def acc(t, dt): return vACC + (t * 8 + dt) * 4
def acc2(nt, u): return v2ACC + 4 * (nt * 9 + u)

def flat_dma(groups, pos):
    out = []
    for g, q in zip(groups, pos):
        for x in g:
            if x.startswith("s_nop"): continue
            out.append(It(x, q, q + 1) if x.startswith("buffer_") else It(x))
    return out
def read_pos(nrd, start, end, taken):
    free = [i for i in range(start, end) if i not in taken]
    dbl = max(0, nrd - len(free))
    pos = []
    for i in free:
        pos.append(i)
        if dbl > 0: pos.append(i); dbl -= 1
    assert len(pos) >= nrd
    return pos[:nrd]

WDr, WSr, WS2r = (sWD, 62), (sWS, 63), (sWS2, 64)
def w_dma(p, par=0):
    w = lambda v, so, o: f"buffer_load_dwordx4 v{v}, s[{sW}:{sW+3}], s{so} offen offset:{o} {p.wfl} lds"
    return [[f"s_mov_b32 m0, s{sWM}", "s_nop 0", w(vWE, WSr[par], 0)], [w(vWO, WSr[par], 1024)], [w(vWE, WS2r[par], 2048)], [w(vWO, WS2r[par], 3072)]]
def x_dma(p, nX):
    out = []
    for m in range(nX):
        g = [f"s_mov_b32 m0, s{sXM}", "s_nop 0"] if m == 0 else []
        g.append(f"buffer_load_dwordx4 v{vX}, s[{sX}:{sX+3}], s{sXS} offen offset:{2048*(m & 1)} {p.xfl} lds")
        if m + 1 < nX:
            g.append(f"s_add_u32 s{sXS}, s{sXS}, {16384 if m % 2 == 0 else 20480}")
            if m % 2 == 1: g.append("s_add_u32 m0, m0, 4096")
        out.append(g)
    return out
def kv_dma(p):
    out = []
    for j in range(2 * p.ppe):
        g = [f"s_mov_b32 m0, s{sKM}", "s_nop 0"] if j == 0 else []
        if j == 4: g = [f"s_add_u32 m0, s{sKM}, 4096", f"s_add_u32 s{sKS}, s{sKS}, 4096"]
        g.append(f"buffer_load_dwordx4 v{vE if j % 2 == 0 else vO_}, s[{sKV}:{sKV+3}], s{sKS} offen offset:{1024*(j % 4)} {p.kvfl} lds")
        out.append(g)
    return out
def kv_book(p):
    return [[f"s_ashr_i32 s{sKN}, s{sIT}, 1", f"s_sub_u32 s{sKN}, s{sKN}, s{sS0}", f"s_mul_i32 s{sKN}, s{sKN}, {p.ppe}"],
            [f"s_lshr_b32 s{sT}, s{sKN}, 1", f"s_add_u32 s{sKS}, s{sT}, s{sROT}"] + ([f"s_and_b32 s{sT}, s{sT}, 2", f"s_add_u32 s{sKS}, s{sKS}, s{sT}"] if p.par8 else []) + [f"s_and_b32 s{sKS}, s{sKS}, 31"],
            [f"s_lshl_b32 s{sKS}, s{sKS}, 12", f"s_and_b32 s{sT}, s{sKN}, 1", f"s_lshl_b32 s{sT}, s{sT}, 11", f"s_add_u32 s{sKS}, s{sKS}, s{sT}"],
            [f"s_lshr_b32 s{sKM}, s{sKN}, 2", f"s_lshl_b32 s{sKM}, s{sKM}, 14", f"s_and_b32 s{sT}, s{sKN}, 3", f"s_lshl_b32 s{sT}, s{sT}, 11"],
            [f"s_add_u32 s{sKM}, s{sKM}, s{sT}", f"s_add_u32 s{sKM}, s{sKM}, s{sT2}"],
            [f"s_cmp_ge_u32 s{sKN}, 8", f"s_cselect_b32 s{sKM}, {LDSOOB}, s{sKM}", f"s_cselect_b32 s{sKS}, {OOB}, s{sKS}"]]
def x_book(p):
    return [[f"s_add_u32 s{sT}, s{sIT}, 3", f"s_lshr_b32 s{sT}, s{sT}, 1", f"s_add_u32 s{sXS}, s{sT}, s{sKROT}"],
            [f"s_sub_u32 s{sXM}, s{sXS}, {8 if p.c0 else 9}", f"s_cmp_lt_u32 s{sXS}, 9", f"s_cselect_b32 s{sXS}, s{sXS}, s{sXM}", f"s_lshl_b32 s{sXS}, s{sXS}, 7"],
            [f"s_add_u32 s{sXS}, s{sXS}, s{sXS0}", f"s_and_b32 s{sT}, s{sT}, 1", f"s_mul_i32 s{sT}, s{sT}, 18432"],
            [f"s_add_u32 s{sXM}, s{sXM0}, s{sT}"],
            [f"s_cmp_ge_u32 s{sIT}, 15", f"s_cselect_b32 s{sXM}, {LDSOOB}, s{sXM}", f"s_cselect_b32 s{sXS}, {OOB}, s{sXS}"]]
def w_adv(p, src=sWS, dst=sWS):
    return [f"s_add_u32 s{dst}, s{src}, {32*8192}", f"s_cmp_ge_u32 s{dst}, s{sWEND}", f"s_cselect_b32 s{dst}, s78, s{dst}"]
def q_reads(T, par, ks):
    rd = [f"ds_read_b128 {ar(aXB[par] + 4*t)}, v{vXA + ks} offset:{2048*t}" for t in range(T)]
    for dt in range(8):
        rd.append(f"ds_read_b64_tr_b16 {ar(aWA[par] + 4*dt, 2)}, v{vVA+dt}")
        rd.append(f"ds_read_b64_tr_b16 {ar(aWA[par] + 4*dt + 2, 2)}, v{vVA+dt} offset:2048")
    return rd
def qstep(a, p, T, par):
    A_, B_ = aWA[par], aXB[par]
    e = 2 * p.ppe
    mf = []
    for dt in range(8):
        for u in range(5):
            if T == 5:
                if u == 4 and dt >= 4: continue
                t = u
            else:
                if u == 0 and dt < 4: continue
                t = (u - 1) % 5
            mf.append(f"{MF} {vr(acc(t, dt))}, {ar(A_ + 4*dt)}, {ar(B_ + 4*u)}, {vr(acc(t, dt))}")
    if not p.exp & 128: a("s_waitcnt lgkmcnt(0)")
    if not p.exp & 64: a(f"s_waitcnt vmcnt({e + 4 + (T - p.wsh if par == 0 else 0)})")
    if not p.exp & 32: a("s_barrier")
    if p.qprof: a(f"s_sub_u32 s98, s{sIT}, {p.qprof - 1}\ns_min_u32 m0, s98, 63\nv_writelane_b32 v31, s96, m0\n{'s_memtime' if p.cyc else 's_memrealtime'} s[96:97]")
    upd = [f"v_add_u32 v{vVA+d}, s{WDr[par]}, v{vVA+d}" for d in range(8)]
    if par == 0: upd = [f"v_add_u32 v{vXA}, s{sXD}, v{vXA}", f"v_add_u32 v{vXA+1}, s{sXD}, v{vXA+1}"] + upd
    rd = q_reads(5, par ^ 1, par ^ 1)
    dma = (x_dma(p, T) + w_dma(p, 1)[:4 - p.wsh]) if par == 1 else (w_dma(p, 1)[4 - p.wsh:] + w_dma(p, 0) + kv_dma(p))
    q = par ^ 1
    book = [[f"s_add_u32 s{sIT}, s{sIT}, 1"]] + (kv_book(p) if par == 1 else x_book(p)) + \
           [[f"s_add_u32 s{sWSL}, s{sWSL}, 8192", f"s_cmp_eq_u32 s{sWSL}, 24576", f"s_cselect_b32 s{sWSL}, 0, s{sWSL}"],
            [f"s_cmp_eq_u32 s{sWSL}, 8192", f"s_cselect_b32 s{WDr[q]}, s{sNEG}, s{sC}"],
            w_adv(p, WSr[par], WSr[q]) + [f"s_add_u32 s65, s{sWSL}, s{sXB}"],
            [f"s_cmp_ge_u32 s{sIT}, 15", f"s_cselect_b32 s65, {LDSOOB}, s65", f"s_cselect_b32 s{WSr[q]}, {OOB}, s{WSr[q]}"],
            [f"s_add_u32 s{WS2r[q]}, s{WSr[q]}, {4*8192 - 2048}", f"s_mov_b32 s{sWM}, s65"] + ([f"s_sub_u32 s{sXD}, 0, s{sXD}"] if par == 0 else [])]
    n = len(mf)
    pos = [1 + i * (n - p.qb) // len(dma) for i in range(len(dma))]
    if par == 1 and p.xsp:
        x0 = 1 + p.xsp * T + 2
        pos = [1 + p.xsp * i for i in range(T)] + [x0 + i * (n - p.qb - x0) // (len(dma) - T) for i in range(len(dma) - T)]
    rp = read_pos(len(rd), 0, n - p.qr, set(pos))
    if p.exp & 8: dma = [[x for x in g if not x.startswith("buffer")] for g in dma]
    if p.exp & 16: rd = []
    flo = [It(x, q, q + 1) for x, q in zip(rd, rp)] + [It(x, p.vlo, n - 1) for x in upd] + flat_dma(dma, pos) + [It(x, 0, n - 1) for g in book for x in g]
    gaps, over = schedule(n, [], flo)
    if VERB: print(f"qstep T{T} par{par} over", over, file=sys.stderr)
    weave(a, mf, gaps)

def kv_tile_dma(p, sm, ss, parts=(0, 1, 2, 3), plain=False):
    out = []
    d1, d2 = (sK, sV) if plain or not p.swap else (sKV, sW)
    for half, (srd, lo) in enumerate(((d1, 0), (d1, 4096), (d2, 8192), (d2, 12288))):
        if half not in parts: continue
        so = ss if (half & 1) == 0 else sT
        for j in range(4):
            g = []
            if j == 0:
                g = [f"s_xor_b32 m0, s{sm}, {lo}"]
                g += [f"s_add_u32 s{sT}, s{ss}, 4096", f"s_bitset0_b32 s{sT}, 17"] if half == 0 else ["s_nop 0"]
            if p.lim and (j % p.limg == 0): g.append(f"s_waitcnt vmcnt({p.lim - p.limg})")
            g.append(f"buffer_load_dwordx4 v{vE if j % 2 == 0 else vO_}, s[{srd}:{srd+3}], s{so} offen offset:{1024*j} {p.kvfl} lds")
            out.append(g)
    return out
def frag_reads(par, off):
    rd = [f"ds_read_b128 {ar(aK[par] + (kt*4+s)*4)}, v{vKA+s} offset:{off + 4096*kt}" for kt in range(2) for s in range(4)]
    for dt in range(8):
        rd.append(f"ds_read_b64_tr_b16 {ar(aV[par] + 4*dt, 2)}, v{vVA+dt} offset:{off}")
        rd.append(f"ds_read_b64_tr_b16 {ar(aV[par] + 4*dt + 2, 2)}, v{vVA+dt} offset:{off + 4096}")
    return rd
def soft2(S, t):
    ad = [f"v_add_f32 v{vL+t}, v{vL+t}, v{S+j}" for j in range(8)]
    cv = [f"v_cvt_pk_bf16_f32 v{S+j}, v{S+2*j}, v{S+2*j+1}" for j in range(4)]
    return ad[:4] + cv + ad[4:]
def qk(S, Kc, t, c0):
    return [f"{MF} {vr(S + 4*kt)}, {ar(Kc + (kt*4+s)*4)}, {ar(aQ + (t*4+s)*4)}, {c0 if s == 0 else vr(S + 4*kt)}" for kt in range(2) for s in range(4)]
def pv(S, Vc, t):
    return [f"{MF} {vr(acc(t, dt))}, {ar(Vc + 4*dt)}, {vr(S)}, {vr(acc(t, dt))}" for dt in range(8)]
def block(a, p, T, par, loader, top, mid, ins=None):
    mf, fixed = [], []
    for t in range(T):
        n = par * T + t
        S, Sp = vS[n & 1], vS[(n & 1) ^ 1]
        tp = (t - 1) % T
        mf += qk(S, aK[par], t, "0") + pv(Sp, aV[par ^ 1] if t == 0 else aV[par], tp)
        v2 = soft2(Sp, tp)
        fixed += [v2[0:1], v2[1:3], v2[3:4], v2[4:6], v2[6:7], v2[7:9], v2[9:10], v2[10:12]]
        fixed += [[f"v_exp_f32 v{S+j}, v{S+j}"] for j in range(8)]
    n = 16 * T
    free = [16*t + j for t in range(T) for j in (0, 2, 4, 6)]
    dma = kv_tile_dma(p, sKM, sKS) if loader else []
    top(a)
    if not p.late:
        rd = frag_reads(par ^ 1, 16384 * (par ^ 1))
        tog = [f"v_xor_b32 v{r}, 0x10000, v{r}" for r in list(range(vKA, vKA+4)) + list(range(vVA, vVA+8))] if par == 0 else []
        lim = n - 12
        slots = [g for g in free if g < lim]
        extra = [g for g in range(lim) if g not in slots]
        need = len(rd) + len(dma) - len(slots)
        if need > 0: slots = sorted(slots + [extra[(2*i + 1) * len(extra) // (2*need)] for i in range(need)])
        dpos = [slots[(i * len(slots)) // len(dma)] for i in range(len(dma))] if dma else []
        rpos = [g for g in slots if g not in dpos]
        rpos = [max(g, 16) if i >= 8 else g for i, g in enumerate(rpos[:len(rd)])]
        flo = [It(x, q, q + 1) for x, q in zip(rd, rpos)] + flat_dma(dma, dpos) + [It(x, 0, n - 1 - (len(tog) - 1 - i)) for i, x in enumerate(tog)]
        gaps, over = schedule(n, fixed, flo)
        weave(a, mf, gaps)
    else:
        m = n - 16
        rv = frag_reads(par, 16384 * par)[8:]
        vpos = [0, 1, 2, 3, 4, 5, 6, 7, 9, 11, 13, 15, 16, 17, 18, 20]
        togv = [f"v_xor_b32 v{r}, 0x10000, v{r}" for r in range(vVA, vVA+8)] if par == 1 else []
        togk = [f"v_xor_b32 v{r}, 0x10000, v{r}" for r in range(vKA, vKA+4)] if par == 1 else []
        cand = [g for g in range(24 if p.fc else 21, m - 1)]
        dpos = [cand[(i * len(cand)) // len(dma)] for i in range(len(dma))] if dma else []
        flo = [It(x, q, q) for x, q in zip(rv, vpos)] + [It("s_waitcnt lgkmcnt(0)", 23, 23)] + flat_dma(dma, dpos) + \
              [It(x, 22, m - 1 - (11 - i)) for i, x in enumerate(togv + togk)]
        gaps, over = schedule(m, fixed[:m], flo)
        assert any("lgkmcnt" in x for x in gaps[23])
        if loader and p.fc: gaps[23] += [f"s_cmp_eq_u32 s{sWAVE}, 1", f"s_cbranch_scc1 L_fc{par}", f"L_fcb{par}:"]
        if ins:
            for t in range(1, T):
                x = A(); ins(x, t)
                gaps[16*t - 1] += [y.strip() for y in x.l]
        weave(a, mf[:m], gaps)
        mid(a)
        rk = frag_reads(par ^ 1, 16384 * (par ^ 1))[:8]
        gaps, o2 = schedule(16, fixed[m:], [It(x, i, i) for i, x in enumerate(rk)])
        over += o2
        weave(a, mf[m:], gaps)
    if VERB: print(f"block T{T} par{par} over", over, file=sys.stderr)

def wo_touch(a, p, t1=sT, t2=sT2, fl=None):
    if p.notouch: return
    for f in ([fl] if fl is not None else ["nt", ""] if p.tw2 == 1 else ["nt"] if p.tw2 else [p.twfl]):
        a(f"""s_add_u32 s{t2}, s{sTW}, 8192
        s_add_u32 s{t1}, s{sTW}, 10240
        buffer_load_dword v{vDUM}, v{vTCH}, s[{sWO}:{sWO+3}], s{sTW} offen {f}
        buffer_load_dword v{vDUM}, v{vTCH}, s[{sWO}:{sWO+3}], s{t2} offen {f}
        buffer_load_dword v{vDUM}, v{vTCH}, s[{sWO}:{sWO+3}], s{t1} offen {f}""")
        if p.tw2 == 3 and fl is None:
            a("s_waitcnt vmcnt(0)")
            wo_touch(a, p, t1, t2, "")

vT1, vT2 = 28, 29
def wo_touch_setup(a):
    a(f"""v_and_b32 v1, 63, v0
    v_mul_u32_u24 v2, 43, v1
    v_lshrrev_b32 v2, 7, v2
    v_mul_u32_u24 v3, 3, v2
    v_sub_u32 v3, v1, v3
    v_and_b32 v4, 7, v2
    s_lshl_b32 s{sT}, s5, 3
    v_add_u32 v4, s{sT}, v4
    v_mul_u32_u24 v4, 1152, v4
    v_lshl_add_u32 v4, v3, 7, v4
    s_and_b32 s{sT}, s3, 3
    s_mul_i32 s{sT}, s{sT}, {1024*1152}
    s_lshl_b32 s80, s4, 8
    s_add_u32 s{sT}, s{sT}, s80
    v_add_u32 v4, s{sT}, v4
    v_lshrrev_b32 v2, 3, v2
    s_mov_b32 s{sT}, 73728
    v_mad_u32_u24 v{vT1}, v2, s{sT}, v4
    v_mad_u32_u24 v{vT2}, v2, s{sT}, v{vT1}
    v_mov_b32 v3, {OOB}
    v_cmp_gt_u32 vcc, 48, v1
    s_nop 1
    v_cndmask_b32 v{vT1}, v3, v{vT1}, vcc
    v_cndmask_b32 v{vT2}, v3, v{vT2}, vcc""")
def wo_touch_part(a, p, part):
    for r0, r1, v in (((0, 2, vT1), (4, 8, vT2)) if part == 0 else ((12, 5, vT2), (9, 13, vT2))):
        a(f"""s_mul_i32 s{sT}, s{sHL}, {r1 - r0}
        s_add_u32 s{sT}, s{sT}, s{gP4}
        s_add_u32 s{sT}, s{sT}, {r0}
        s_and_b32 s{sT}, s{sT}, 15
        s_mul_i32 s{sT}, s{sT}, 73728
        s_nop 0
        buffer_load_dword v{vDUM}, v{v}, s[{sWO}:{sWO+3}], s{sT} offen {p.twfl}""")
def g_dma(fl):
    out = []
    for j in range(9):
        g = [f"s_add_u32 m0, s{gM0}, {1024*j}", "s_nop 0"] if j % 4 == 0 else []
        g.append(f"buffer_load_dwordx4 v{v2VO+j}, s[{sX}:{sX+3}], s{gSO} offen offset:{1024*(j % 4)} {fl} lds")
        out.append(g)
    return out
def g_stage_now(a, fl, st):
    a(f"s_add_u32 s{gSO}, s{gP4}, {REL[st]}\ns_and_b32 s{gSO}, s{gSO}, 15\ns_mul_i32 s{gSO}, s{gSO}, s{gSTR}\ns_add_u32 s{gSO}, s{gSO}, s{gLO}")
    a(f"s_add_u32 s{gM0}, s{gDL2}, {(st & 3)*STG}")
    emit(a, g_dma(fl), nop=False)
def o_touch(a, p, half):
    if not p.rb: return
    for o in (0, 8192, 10240):
        a(f"s_add_u32 s{sT}, s{sOB}, {half*18432 + o}\ns_nop 0\nbuffer_load_dword v{vDUM}, v{vTCH}, s[{sO}:{sO+3}], s{sT} offen")

KEEP = [16, 20, 24, 28, 192, 196, 200, 204, 224, 228]
def o_store(p, t, s, d):
    return [f"s_add_u32 s{sT}, s{sOB}, {s*9216 + (4096 if t == 4 else 0)}", "s_nop 0",
            f"buffer_store_dwordx4 {vr(d)}, v{vST}, s[{sO}:{sO+3}], s{sT} offen offset:{1024*(t & 3)} {p.ofl}"]
def lanesum(a, T, op):
    for sw in ("v_permlane32_swap_b32", "v_permlane16_swap_b32"):
        for t in range(T): a(f"v_mov_b32 v{1+t}, v{vL+t}")
        a("s_nop 1")
        for t in range(T): a(f"{sw} v{1+t}, v{vL+t}")
        a("s_nop 1")
        for t in range(T): a(f"{op} v{vL+t}, v{vL+t}, v{1+t}")

def wave_front(a, p, T, loader, tag):
    TAB = sum(REL[4+i] << (4*i) for i in range(12))
    e = 2 * p.ppe
    a(f"s_waitcnt vmcnt({4 if p.early else 4 + e + T + 4})\ns_waitcnt lgkmcnt(0)\ns_barrier")
    stamp(a, p, 1)
    for x in q_reads(5, 0, 0): a(x)
    if p.early: p.batch2(a, T)
    for dt in range(8): a(f"v_add_u32 v{vVA+dt}, s{sWD}, v{vVA+dt}")
    align(a, p)
    a(f"L_q{tag}:")
    if p.twq >= 0 and not loader:
        a(f"s_cmp_eq_u32 s{sIT}, s79\ns_cbranch_scc1 L_tq\nL_tqb:")
    KT = [tuple(int(y) for y in x.split(":")) for x in p.kt.split(",") if x]
    if KT: a(f"s_bitcmp1_b32 s79, s{sIT}\ns_cbranch_scc1 L_kt{tag}\nL_ktb{tag}:")
    qstep(a, p, T, 0)
    qstep(a, p, T, 1)
    a(f"s_cmp_lt_u32 s{sIT}, 18\ns_cbranch_scc1 L_q{tag}")
    stamp(a, p, 2)
    a(f"""v_and_b32 v1, 63, v0
    v_lshrrev_b32 v2, 4, v1
    v_bfe_u32 v3, v1, 2, 2
    v_lshl_add_u32 v2, v2, 2, v3
    v_and_b32 v3, 7, v2
    v_lshlrev_b32 v3, 1, v3
    v_bfe_u32 v4, v1, 1, 1
    v_xor_b32 v3, v3, v4
    v_lshlrev_b32 v3, 4, v3
    v_and_b32 v4, 1, v1
    v_lshl_add_u32 v3, v4, 3, v3
    v_lshl_add_u32 v3, v2, 8, v3
    s_add_u32 s{sT}, s{sRB}, 8192
    v_add_u32 v{vVA}, s{sT}, v3""")
    for dt in range(1, 8): a(f"v_xor_b32 v{vVA+dt}, {32*dt}, v{vVA}")
    dma = []
    if loader:
        if p.swap:
            a(f"""{f"s_bitcmp1_b32 s2, {p.swap}" if p.swap < 99 else f"s_bitcmp1_b32 s{sHL}, 0"}
            s_cselect_b32 s{sKV}, s{sV}, s{sK}
            s_cselect_b32 s{sKV+1}, s{sV+1}, s{sK+1}
            s_cselect_b32 s{sW}, s{sK}, s{sV}
            s_cselect_b32 s{sW+1}, s{sK+1}, s{sV+1}
            s_cselect_b32 s{sXB}, 8192, 0
            s_mov_b32 s{sW+2}, 131072
            s_add_u32 s{sXB}, s{sXB}, s{sRB}""")
        else: a(f"s_mov_b32 s{sXB}, s{sRB}")
        for n in range(2, p.kvd - (1 if p.late and not p.t3 else 0)):
            dma.append([f"s_add_u32 s{sKS}, s{sROT}, {(4 if p.par8 else 2)*n}", f"s_and_b32 s{sKS}, s{sKS}, 31", f"s_lshl_b32 s{sKS}, s{sKS}, 12",
                        f"s_add_u32 s{sKM}, s{sXB}, {65536 + 16384*(n & 1)}"])
            dma += kv_tile_dma(p, sKM, sKS)
    di = 0
    a(f"s_load_dword s{sNONCE}, s[6:7], 0")
    if p.warm and not loader:
        flag_addr(a, 1, FA)
        a(f"s_add_u32 s{sT}, s{sT}, 64\ns_load_dword s{sKN}, s[82:83], s{sT}")
    a(f"v_and_b32 v1, 63, v0\ns_lshl_b32 s{sT}, s{sHL}, 11\ns_add_u32 s{sT}, s{sT}, {QX}\nv_lshl_add_u32 v1, v1, 4, s{sT}")
    units = [(t, s) for t in range(4) for s in range(4)]
    units = ([(4, 2), (4, 3)] + units) if loader else (units + [(4, 0), (4, 1)])
    def conv(a, t, s):
        A0, B0 = acc(t, 2*s), acc(t, 2*s+1)
        for r in range(0, 8, 2): a(f"v_pk_mul_f32 {vr(A0+r, 2)}, {vr(A0+r, 2)}, s[{sSC-1}:{sSC}] op_sel:[0,1] op_sel_hi:[1,1]")
        a(f"v_cvt_pk_bf16_f32 v4, v{A0}, v{A0+1}\nv_cvt_pk_bf16_f32 v5, v{A0+2}, v{A0+3}\nv_cvt_pk_bf16_f32 v6, v{B0}, v{B0+1}\nv_cvt_pk_bf16_f32 v7, v{B0+2}, v{B0+3}")
        for r in range(0, 4, 2): a(f"v_pk_mov_b32 {vr(A0+r, 2)}, 0, 0")
        a("v_permlane32_swap_b32 v4, v6\nv_permlane32_swap_b32 v5, v7")
        for r in range(0, 4, 2): a(f"v_pk_mov_b32 {vr(B0+r, 2)}, 0, 0")
        a("v_permlane16_swap_b32 v4, v6\nv_permlane16_swap_b32 v5, v7\ns_nop 0")
        if loader and t == 4:
            a(f"ds_write_b128 v1, v[4:7] offset:{1024*(s - 2)}\ns_nop 1")
        else:
            q = aQ + (t*4+s)*4
            for r in (0, 2, 1, 3): a(f"v_accvgpr_write_b32 a{q+r}, v{4+r}")
    nb = 6 if p.soft else 10
    later = units[nb:] if p.soft else []
    for n, (t, s) in enumerate(units + [(None, None)]):
        if n == nb:
            assert di == len(dma)
            if loader and p.tst >= 0: a(f"s_bitcmp1_b32 s2, {p.tst}\ns_cbranch_scc0 L_ts\ns_waitcnt vmcnt({p.tsw})\nL_ts:")
            a(f"s_waitcnt lgkmcnt(0)\ns_waitcnt vmcnt({16*(p.kvd - 2 - (1 if p.late and not p.t3 else 0)) if loader else 0})\ns_barrier")
            if not loader:
                for s2 in (2, 3): a(f"ds_read_b128 {ar(aQ + (16 + s2)*4)}, v1 offset:{1024*(s2 - 2)}")
            for x in frag_reads(0, 0)[:8 if p.late else 24]: a(x)
            if p.soft: break
        if t is None: break
        for _ in range(6 if p.soft and p.t3 else 4 if not p.soft else 3):
            if di < len(dma):
                for x in dma[di]: a(x)
                di += 1
        conv(a, t, s)
    for t in range(T): a(f"v_mov_b32 v{vL+t}, 0")
    for j in range(8): a(f"v_mov_b32 v{vS[1]+j}, 0")
    if loader:
        a(f"""s_mov_b32 s{sX}, s{sWO}
        s_mov_b32 s{sX+1}, s{sWO+1}
        s_mov_b32 s{sX+2}, s{sWO+2}
        s_and_b32 s{gLO}, s3, 3
        s_lshl_b32 s{gLO}, s{gLO}, 10
        s_lshl_b32 s{sT}, s{sHL}, 5
        s_add_u32 s{gLO}, s{gLO}, s{sT}
        s_mul_i32 s{gLO}, s{gLO}, 1152
        s_mul_i32 s{sT}, s4, 288
        s_add_u32 s{gLO}, s{gLO}, s{sT}
        s_mov_b32 s{gSTR}, {0 if p.exp & 1 else 73728}
        s_mul_i32 s{gDL2}, s{sHL}, 9216
        s_add_u32 s{gDL2}, s{gDL2}, 18432""")
    else:
        a(f"""s_mov_b32 s{sX}, s{sO}
        s_mov_b32 s{sX+1}, s{sO+1}
        s_mov_b32 s{sX+2}, s{sO+2}
        s_lshl_b32 s{sT}, s4, 1
        s_add_u32 s{sT}, s{sT}, s{sHL}
        s_mul_i32 s{sT}, s{sT}, {4*9216}
        s_sub_u32 s{gLO}, s{sOB}, s{sT}
        s_mul_i32 s{gDL2}, s{sHL}, 9216
        s_add_u32 s{gLO}, s{gLO}, s{gDL2}
        s_movk_i32 s{gSTR}, {0 if p.exp & 2 else 18432}""")
    a(f"""s_lshl_b32 s{gP4}, s4, 2
    s_mov_b32 s{gTAB}, {TAB & 0xffffffff:#x}
    s_mov_b32 s{gTAB+1}, {TAB >> 32:#x}
    s_mov_b32 s{gREDO}, 0
    s_mov_b32 s{sNEG}, {(127+40) << 23:#x}
    s_mov_b32 s{sIT}, 0
    s_mov_b32 s{sHI}, 0""")
    if p.warm and not loader:
        flag_addr(a, 1, FA)
        a(f"""s_add_u32 s{sT}, s{sT}, 64
        v_and_b32 v1, 7, v0
        s_lshr_b32 s80, s3, 2
        s_lshl_b32 s80, s80, 3
        s_add_u32 s80, s80, s5
        s_lshl_b32 s80, s80, 2
        s_add_u32 s80, s80, s4
        s_mul_i32 s80, s80, {PBLK}
        s_add_u32 s80, s80, {P_OFF}
        s_mov_b32 s81, {64*PBLK}
        v_mad_u32_u24 v2, v1, s81, v1
        v_sub_u32 v2, v2, v1
        v_add_u32 v2, s80, v2
        v_mov_b32 v3, s{sT}
        v_cmp_gt_u32 vcc, 4, v1
        s_nop 1
        v_cndmask_b32 v2, v3, v2, vcc
        global_load_dword v{vDUM}, v2, s[82:83] sc1""")
    a(f"s_cmp_eq_u32 s{sNONCE}, 0\ns_cbranch_scc1 L_tag{tag}\nL_tagb{tag}:")
    if loader and p.pace >= 0:
        a(f"s_lshr_b32 s{sSW}, s2, 3\ns_mul_i32 s{sSW+1}, s3, {p.pmul}\ns_add_u32 s{sSW}, s{sSW}, s{sSW+1}\ns_and_b32 s{sSW}, s{sSW}, {p.pmask}\ns_add_u32 s{sSW}, s{sSW}, {p.pace}\ns_sub_u32 s{sSW+1}, s{sSW}, 1")
    if loader and p.fc:
        a(f"""s_lshr_b32 s{sPA}, s2, 3
        s_lshl_b32 s{sPA}, s{sPA}, 7
        s_add_u32 s{sPA}, s{sPA}, {FP}
        s_lshl_b32 s{sT}, s3, 2
        s_add_u32 s{sT}, s{sT}, s{sPA}
        v_mov_b32 v{vFL}, s{sT}""")
    out = A()
    out(f"""L_tag{tag}:
    s_memrealtime s[80:81]
    v_mov_b32 v1, 0
    v_mov_b32 v3, 0
    s_waitcnt lgkmcnt(0)
    s_or_b32 s80, s80, 1
    v_mov_b32 v2, s80
    s_mov_b64 exec, 1
    global_atomic_cmpswap v4, v1, v[2:3], s[6:7] sc0 sc1
    s_waitcnt vmcnt(0)
    s_mov_b64 exec, -1
    v_readfirstlane_b32 s{sNONCE}, v4
    s_nop 1
    s_cmp_eq_u32 s{sNONCE}, 0
    s_cselect_b32 s{sNONCE}, s80, s{sNONCE}
    s_branch L_tagb{tag}""")
    if KT:
        out(f"L_kt{tag}:\ns_mul_i32 s81, s4, {p.ktst}\ns_sub_u32 s81, s{sIT}, s81")
        for i, (st, f0, cnt) in enumerate(KT):
            out(f"s_cmp_eq_u32 s81, {st}\ns_cbranch_scc0 L_kt{tag}{i}")
            for n in range(f0, f0 + cnt):
                out(f"s_add_u32 s80, s{sROT}, {2*n}\ns_and_b32 s80, s80, 31\ns_lshl_b32 s80, s80, 12\ns_nop 0\nbuffer_load_dword v{vDUM}, v{vTCH}, s[{sKV}:{sKV+3}], s80 offen {p.ktfl}")
            out(f"L_kt{tag}{i}:")
        out(f"s_branch L_ktb{tag}")
    if p.twq >= 0 and not loader:
        out("L_tq:")
        wo_touch(out, p, 80, 81)
        out("s_branch L_tqb")
    seq = ([(0, True)] if p.soft else []) + [(0, False), (1, False)]
    for par, peeled in seq:
        if par == 0 and not peeled:
            if p.soft: a(f"s_branch L_a1{tag}")
            align(a, p)
            a(f"L_a{tag}:")
        if par == 1: a(f"L_a1{tag}:")
        dist = p.kvd - (1 if p.late else 0)
        def kvbook(a):
            e0 = p.late and p.t3 and par == 0
            if p.par8: a(f"s_add_u32 s{sT}, s{sIT}, {dist+par}\ns_lshl_b32 s{sKS}, s{sT}, 2\ns_lshr_b32 s{sT}, s{sT}, 2\ns_and_b32 s{sT}, s{sT}, 2\ns_add_u32 s{sKS}, s{sKS}, s{sT}")
            else: a(f"s_lshl_b32 s{sKS}, s{sIT}, 1\ns_add_u32 s{sKS}, s{sKS}, {2*(dist+par)}")
            a(f"""s_add_u32 s{sKS}, s{sKS}, s{sROT}
            s_and_b32 s{sKS}, s{sKS}, 31
            s_lshl_b32 s{sKS}, s{sKS}, 12
            s_xor_b32 s{sKM}, s{sHI}, {0x10000 * (((dist + par) >> 1) & 1)}
            s_add_u32 s{sKM}, s{sKM}, s{sXB}
            s_add_u32 s{sKM}, s{sKM}, {16384*((dist + par) & 1)}
            {f"s_sub_u32 s{sT}, s{sIT}, 1" if e0 else ""}
            s_cmp_ge_u32 s{sT if e0 else sIT}, {16 - dist - par - (1 if e0 else 0)}
            s_cselect_b32 s{sKM}, {LDSOOB}, s{sKM}
            s_cselect_b32 s{sKS}, {OOB}, s{sKS}""")
        def hooks(a):
            if loader:
                a(f"s_cmp_ge_u32 s{sIT}, {14 - 2*par}\ns_cbranch_scc1 L_w{par}\nL_wb{par}:")
                out(f"L_w{par}:")
                if par == 0: g_stage_now(out, p.wofl, 1)
                else:
                    out(f"s_cmp_eq_u32 s{sIT}, 12\ns_cbranch_scc0 L_w1b")
                    g_stage_now(out, p.wofl, 0)
                    out("s_branch L_wb1\nL_w1b:")
                    g_stage_now(out, p.wofl, 2)
                    g_stage_now(out, p.wofl, 3)
                out(f"s_branch L_wb{par}")
            elif par == 0 and p.twown >= 0:
                a(f"""s_cmp_eq_u32 s{sIT}, {p.twown}
                s_cbranch_scc0 L_nt{tag}
                s_and_b32 s{sT}, s3, 3
                s_lshl_b32 s{sT}, s{sT}, 2
                s_add_u32 s{sT}, s{sT}, s4
                s_lshl_b32 s{sT}, s{sT}, 3
                s_add_u32 s{sT}, s{sT}, s5
                s_lshl_b32 s{sT}, s{sT}, 1
                s_add_u32 s{sT}, s{sT}, s{sHL}
                s_mul_i32 s{sT}, s{sT}, {16*1152}
                s_mul_i32 s{sT2}, s4, 288
                s_and_b32 s{sT2}, s{sT2}, 0xff80
                s_add_u32 s{sT}, s{sT}, s{sT2}
                v_and_b32 v1, 63, v0
                v_lshrrev_b32 v2, 2, v1
                v_mul_u32_u24 v2, 1152, v2
                v_and_b32 v1, 3, v1
                v_lshl_add_u32 v1, v1, 7, v2
                buffer_load_dword v{vDUM}, v1, s[{sWO}:{sWO+3}], s{sT} offen {p.twfl}
                L_nt{tag}:""")
            elif par == 0 and p.twpos < 15:
                a(f"s_cmp_eq_u32 s{sIT}, {p.twpos}\ns_cbranch_scc0 L_nt{tag}")
                if p.tsplit >= 0:
                    wo_touch_part(a, p, 0)
                else: wo_touch(a, p)
                a(f"L_nt{tag}:")
            elif par == 1 and p.tw2 == 2:
                a(f"s_cmp_eq_u32 s{sIT}, {p.twpos}\ns_cbranch_scc0 L_nu{tag}")
                wo_touch(a, p, fl="")
                a(f"L_nu{tag}:")
        def top(a):
            if loader: kvbook(a)
            a("s_waitcnt lgkmcnt(0)")
            if loader and p.fc:
                out(f"""L_fc{par}:
                s_add_u32 s74, s{sIT}, {par}
                s_add_u32 s75, s74, s{sNONCE}
                v_mov_b32 v2, s75
                s_mov_b64 exec, 1
                global_store_dword v{vFL}, v2, s[82:83] sc1
                s_mov_b64 exec, -1
                s_mov_b32 s76, 0
                s_cmp_lt_u32 s74, {p.fc + 1}
                s_cbranch_scc1 L_fce{par}
                L_fcl{par}:""")
                for j in range(8): out(f"s_sub_u32 s{sPG+j}, s{sPG+j}, s{sNONCE}\ns_cmp_gt_u32 s{sPG+j}, 31\ns_cselect_b32 s{sPG+j}, 0, s{sPG+j}")
                for j in range(1, 8): out(f"s_min_u32 s{sPG}, s{sPG}, s{sPG+j}")
                out(f"""s_add_u32 s{sPG}, s{sPG}, {p.fc}
                s_cmp_ge_u32 s{sPG}, s74
                s_cbranch_scc1 L_fce{par}
                s_add_u32 s76, s76, 1
                s_cmp_ge_u32 s76, {p.fcs}
                s_cbranch_scc1 L_fce{par}
                s_load_dwordx8 s[{sPG}:{sPG+7}], s[82:83], s{sPA} glc
                s_waitcnt lgkmcnt(0)
                s_branch L_fcl{par}
                L_fce{par}:
                s_load_dwordx8 s[{sPG}:{sPG+7}], s[82:83], s{sPA} glc
                s_branch L_fcb{par}""")
            if not p.late:
                if loader: a(f"s_waitcnt vmcnt({16*(p.kvd - 2)})")
                a("s_barrier")
                hooks(a)
        def mid(a):
            if loader and p.pace >= 0:
                a(f"s_cmp_lt_i32 s{sIT}, s{sSW + par}\ns_cbranch_scc0 L_pc{par}\ns_waitcnt vmcnt({p.pw2})")
                if p.pw3 >= 0: a(f"s_bitcmp1_b32 s2, {p.pbit}\ns_cbranch_scc0 L_pc{par}\ns_waitcnt vmcnt({p.pw3})")
                if p.st0 >= 0 and par == 0: a(f"s_cmp_eq_u32 s{sIT}, 0\ns_cbranch_scc0 L_pc{par}\ns_bitcmp1_b32 s2, {p.pbit}\ns_cbranch_scc0 L_pc{par}\ns_waitcnt vmcnt({p.st0})")
                a(f"L_pc{par}:")
            if loader: a(f"s_waitcnt vmcnt({16*(dist - 1)})")
            a("s_barrier")
            if p.aprof: a(f"s_add_u32 s98, s{sIT}, {par}\ns_mov_b32 s99, m0\ns_mov_b32 m0, s98\nv_writelane_b32 v31, s96, m0\ns_memrealtime s[96:97]\ns_mov_b32 m0, s99")
            hooks(a)
        if peeled:
            assert p.late and not p.fc
            def top0(a):
                if loader: kvbook(a)
                a("s_waitcnt lgkmcnt(0)")
            def mid0(a):
                if loader: a(f"s_waitcnt vmcnt({p.pw2 if p.pace >= 1 else 16*(dist - 1)})")
                a("s_barrier")
                if p.aprof: a("s_memrealtime s[96:97]")
            def ins(a, t):
                for u in later:
                    if u[0] == t: conv(a, *u)
            block(a, p, T, 0, loader, top0, mid0, ins)
            continue
        block(a, p, T, par, loader, top, mid)
    a(f"s_xor_b32 s{sHI}, s{sHI}, 0x10000\ns_add_u32 s{sIT}, s{sIT}, 2\ns_cmp_lt_u32 s{sIT}, 16\ns_cbranch_scc1 L_a{tag}")
    S = vS[(2*T - 1) & 1]
    a("s_nop 0")
    for x in soft2(S, T-1): a(x)
    for x in pv(S, aV[1], T-1): a(x)
    stamp(a, p, 3)
    a(f"L_e{tag}:")
    if not loader and p.twpos == 16: wo_touch(a, p)
    lanesum(a, T, "v_add_f32")
    a(f"v_mov_b32 v6, v{vL}\nv_mov_b32 v7, v{vL}")
    for t in range(1, T): a(f"v_min_u32 v6, v6, v{vL+t}\nv_max_u32 v7, v7, v{vL+t}")
    a(f"""v_cmp_gt_u32 vcc, {(127-20) << 23:#x}, v6
    v_cmp_lt_u32 s[80:81], s{sNEG}, v7
    s_nop 1
    s_or_b64 vcc, vcc, s[80:81]
    {'s_mov_b64 vcc, -1' if p.force else ''}
    s_cbranch_vccz L_ok{tag}
    v_mov_b32 v6, {LFLAG}
    v_mov_b32 v7, 1
    ds_write_b32 v6, v7
    L_ok{tag}:""")
    for t in range(T): a(f"v_rcp_f32 v{vL+t}, v{vL+t}")
    a("s_nop 0")
    buf = 0
    for sp in range(2):
        for n, (t, s) in enumerate([(t, 2*sp + k) for t in range(T) for k in range(2)]):
            A0 = acc(t, 2*s)
            rp = (vL + t) & ~1
            sel = (vL + t) & 1
            for r in range(0, 8, 2): a(f"v_pk_mul_f32 {vr(A0+r, 2)}, {vr(A0+r, 2)}, {vr(rp, 2)} op_sel:[0,{sel}] op_sel_hi:[1,{sel}]")
            if sp == 0 or not p.defer: d = (8, 12, 80, 84)[buf & 3]; buf += 1
            else: d = KEEP[n]
            for r in range(4): a(f"v_cvt_pk_bf16_f32 v{d+r}, v{A0+2*r}, v{A0+2*r+1}")
            a(f"ds_write_b128 v{vOW}, {vr(d)} offset:{(s >> 1)*STG + (s & 1)*9216 + 1024*t}")
            if sp == 0 or not p.defer:
                for x in o_store(p, t, s, d): a(x)
            for r in range(0, 8, 2):
                if A0 + r < v2ACC + 84: a(f"v_pk_mov_b32 {vr(A0+r, 2)}, 0, 0")
    if not loader and p.twpos == 17: wo_touch(a, p)
    a(f"""s_mov_b32 s{gST}, 0
    s_mov_b32 s{gRI}, 0
    s_mov_b32 s{gC1}, {STG}
    s_mov_b32 s{gC2}, {-3*STG}
    s_mov_b32 s{gDL}, {STG}
    s_mov_b32 s{gM0}, {LDSOOB}
    s_mov_b32 m0, {LDSOOB}
    s_mov_b32 s{gSO}, {OOB}
    s_mov_b32 s{gDST}, s{gDL2}
    v_mov_b32 v1, {LFLAG}""")
    if True:
        flag_addr(a, 1, FA)
        CHK = 0x3cf
        a(f"""s_add_u32 s{gFP}, s82, s{sT}
        s_addc_u32 s{gFP+1}, s83, 0
        s_lshl_b32 s{sT}, s4, 2
        v_mov_b32 v{vPA}, s{sT}
        v_mov_b32 v{vNZ}, s{sNONCE}
        s_mov_b32 s{gOFF}, 0
        s_mov_b32 s{gCHK}, {CHK}
        s_cmp_eq_u32 s{sWAVE}, 0
        s_cselect_b32 s{gPOST}, 8, 0
        s_mov_b32 s{gMASK}, {7 if loader else CHK | CHK >> 1}
        s_mov_b64 s[{gF}:{gF+1}], 0""")
    a(f"s_waitcnt lgkmcnt(0)\ns_waitcnt vmcnt({(0 if p.pa < 0 and p.defer else 2*T) + (3 if not loader and p.twpos == 17 else 0)})")
    a("s_branch L_gemm")
    a.l += out.l
    a(f"L_redo{tag}:")
    a(f"s_waitcnt vmcnt(0) lgkmcnt(0)\ns_barrier\nv_mov_b32 v6, {LFLAG}\nv_mov_b32 v7, 0\nds_write_b32 v6, v7")
    for r in list(range(vKA, vKA+4)) + list(range(vVA, vVA+8)): a(f"v_and_b32 v{r}, 0xffff, v{r}")
    for t in range(T): a(f"v_mov_b32 v{vL+t}, 0xff800000")
    for ps in range(2):
        a(f"s_mov_b32 s{sKS}, 0\nL_r{ps}{tag}:")
        if loader:
            emit(a, kv_tile_dma(p, sRB, sKS, (0, 1) if ps == 0 else (0, 1, 2, 3), plain=True), nop=False)
        a("s_waitcnt vmcnt(0)\ns_barrier")
        for x in frag_reads(0, 0)[:8 if ps == 0 else 24]: a(x)
        a("s_waitcnt lgkmcnt(0)\ns_barrier")
        for t in range(T):
            S = vS[0]
            for x in qk(S, aK[0], t, "0" if ps == 0 else vr(vNM + 4*t)): a(x)
            a("s_nop 7")
            if ps == 0:
                for j in range(0, 8, 2): a(f"v_max3_f32 v{vL+t}, v{vL+t}, v{S+j}, v{S+j+1}")
            else:
                for j in range(8): a(f"v_exp_f32 v{S+j}, v{S+j}")
                for x in soft2(S, t) + pv(S, aV[0], t): a(x)
        a(f"s_add_u32 s{sKS}, s{sKS}, 8192\ns_cmp_lt_u32 s{sKS}, 131072\ns_cbranch_scc1 L_r{ps}{tag}")
        if ps == 0:
            lanesum(a, T, "v_max_f32")
            for t in range(T):
                for r in range(4): a(f"v_sub_f32 v{vNM + 4*t + r}, 0, v{vL+t}")
                a(f"v_mov_b32 v{vL+t}, 0")
            for r in range(32 * T): a(f"v_mov_b32 v{vACC+r}, 0")
    a("s_barrier")
    if loader:
        for st in range(4): g_stage_now(a, p.wofl, st)
    a(f"s_mov_b32 s{gREDO}, 1\ns_branch L_e{tag}")

def g_reads(par, off):
    A_, B_ = a2A[par], a2B[par]
    rd = []
    for nt in range(3):
        reg, o = (v2A, 32 * nt) if nt < 2 else (v2A + 1, 0)
        rd.append(f"ds_read_b64_tr_b16 {ar(A_ + 4*nt, 2)}, v{reg} offset:{off + o}")
        rd.append(f"ds_read_b64_tr_b16 {ar(A_ + 4*nt + 2, 2)}, v{reg} offset:{off + o + 4608}")
    for u in range(9):
        reg, o = (v2B, 1024 * u) if u < 3 else (v2B + 1 + (u - 3) // 2, 1024 * ((u - 3) & 1))
        rd.append(f"ds_read_b128 {ar(B_ + 4*u)}, v{reg} offset:{off + o}" if not (EXP & 256 and u >= 6) else "s_nop 0")
    return rd
def g_mf(par):
    return [f"{MF} {vr(acc2(nt, u))}, {ar(a2A[par] + 4*nt)}, {ar(a2B[par] + 4*u)}, {vr(acc2(nt, u))}" for u in range(9) for nt in range(3 if u < 3 else 2)]

def flag_addr(a, hop, base):
    if hop == 1: a(f"s_lshr_b32 s{sT}, s2, 5\ns_lshl_b32 s{sT}, s{sT}, 3\ns_add_u32 s{sT}, s{sT}, s3")
    else: a(f"s_lshr_b32 s{sT}, s2, 2")
    a(f"s_lshl_b32 s{sT}, s{sT}, {8 if hop == 1 else 7}\ns_add_u32 s{sT}, s{sT}, {base}")
def poll_issue(a):
    a(f"s_load_dwordx4 s[{gF}:{gF+3}], s[82:83], s{sT} glc")
def poll(a, tag, hop, base, issued=False, lim=SPIN, fail=None):
    flag_addr(a, hop, base)
    a(f"s_mov_b32 s{sT2}, 0")
    if issued: a(f"s_branch L_pc{tag}")
    a(f"L_p{tag}:")
    poll_issue(a)
    a(f"""L_pc{tag}:
    s_waitcnt lgkmcnt(0)
    s_xor_b32 s{gF}, s{gF}, s{sNONCE}
    s_xor_b32 s{gF+1}, s{gF+1}, s{sNONCE}
    s_xor_b32 s{gF+2}, s{gF+2}, s{sNONCE}
    s_xor_b32 s{gF+3}, s{gF+3}, s{sNONCE}
    s_or_b64 s[{gF}:{gF+1}], s[{gF}:{gF+1}], s[{gF+2}:{gF+3}]
    s_cbranch_scc0 L_pd{tag}
    s_add_u32 s{sT2}, s{sT2}, 1
    s_cmp_lt_u32 s{sT2}, {lim}
    s_cbranch_scc1 L_p{tag}
    {f"s_cmp_eq_u32 {lim}, 0" if fail else ""}
    {f"s_cbranch_scc1 {fail}" if fail else ""}
    L_pd{tag}:""")
def vpoll(a, tag, hop, base):
    flag_addr(a, hop, base)
    a(f"""v_and_b32 v1, 3, v0
    v_lshl_add_u32 v1, v1, 2, s{sT}
    s_mov_b32 s{sT}, 0
    L_p{tag}:
    global_load_dword v2, v1, s[82:83] sc1
    s_add_u32 s{sT}, s{sT}, 1
    s_waitcnt vmcnt(0)
    v_cmp_ne_u32 vcc, s{sNONCE}, v2
    s_cmp_lt_u32 s{sT}, {SPIN}
    s_cbranch_vccz L_pd{tag}
    s_cbranch_scc1 L_p{tag}
    L_pd{tag}:""")
def post(a, hop, base):
    flag_addr(a, hop, base)
    if hop == 1: a(f"s_lshl_b32 s{sT2}, s4, 2")
    else: a(f"s_and_b32 s{sT2}, s2, 3\ns_lshl_b32 s{sT2}, s{sT2}, 2")
    a(f"""s_add_u32 s{sT}, s{sT}, s{sT2}
    v_mov_b32 v1, s{sT}
    v_mov_b32 v2, s{sNONCE}
    s_mov_b64 exec, 1
    global_store_dword v1, v2, s[82:83] sc1
    s_mov_b64 exec, -1""")

def gemm_loop(a, out, p, role):
    fl = p.wofl if role == "w" else p.olfl
    d = g_dma(fl)
    align(a, p)
    a(f"L_g{role}:\ns_waitcnt lgkmcnt(6)")
    r = g_reads(1, 9216)
    upd = [f"v_add_u32 v{x}, s{gDL}, v{x}" for x in (v2A, v2A + 1, v2B, v2B + 1, v2B + 2, v2B + 3)]
    book0 = [f"s_add_u32 s{gRI}, s{gRI}, 1", f"s_and_b32 s{gRI}, s{gRI}, 3", f"s_cmp_eq_u32 s{gRI}, 3", f"s_cselect_b32 s{gDL}, s{gC2}, s{gC1}"]
    book2 = [f"s_and_b32 s{gSRC}, s{gTAB}, 15", f"s_lshr_b64 s[{gTAB}:{gTAB+1}], s[{gTAB}:{gTAB+1}], 4", f"s_add_u32 s{gSRC}, s{gSRC}, s{gP4}",
             f"s_and_b32 s{gSRC}, s{gSRC}, 15", f"s_mul_i32 s{gSRC}, s{gSRC}, s{gSTR}", f"s_add_u32 s{gSRC}, s{gSRC}, s{gLO}"]
    book1 = book2 + [f"s_cmp_ge_u32 s{gST}, 12", f"s_cselect_b32 s{gM0}, {LDSOOB}, s{gDST}", f"s_cselect_b32 s{gSO}, {OOB}, s{gSRC}",
             f"s_add_u32 s{gDST}, s{gDST}, s{gDL}"] + book0 + [f"s_bitcmp1_b32 s{gMASK}, s{gST}"]
    rp = [0, 0, 1, 1, 2, 2, 3, 5, 6, 8, 9, 11, 12, 14, 15]
    flo = [It(x, q, q) for x, q in zip(r[:9], rp)] + [It("s_waitcnt lgkmcnt(9)", 7, 8)] + [It(x, q, q) for x, q in zip(r[9:], rp[9:])] + \
          flat_dma(d[3:], [4, 7, 10, 13, 16, 19]) + [It(x, 0, 20) for x in upd]
    flo[9].W = {"x"}; flo[9].R = set()
    for it in flo[10:16]: it.R = it.R | {"x"}
    gaps, over = schedule(21, [], flo)
    assert any("lgkmcnt" in x for g in gaps[7:9] for x in g)
    if VERB: print("gemm step0 over", over, file=sys.stderr)
    weave(a, g_mf(0), gaps)
    mf = g_mf(1)
    a("s_waitcnt lgkmcnt(6)")
    gaps, over = schedule(6, [], [It(x, 0, 5) for x in book1])
    weave(a, mf[:6], gaps)
    if role == "o": a(f"s_cbranch_scc1 L_ho\ns_waitcnt lgkmcnt(0)\ns_waitcnt vmcnt(18)\ns_barrier\nL_hc{role}:")
    else: a(f"s_waitcnt lgkmcnt(0)\ns_cbranch_scc1 L_hw\ns_waitcnt vmcnt(18)\nL_hw:\ns_barrier\nL_hc{role}:")
    if p.gprof: a(f"s_mov_b32 m0, s{gST}\nv_writelane_b32 v31, s98, m0\n{'s_memtime' if p.cyc else 's_memrealtime'} s[98:99]")
    r = g_reads(0, 0)
    rp = [0, 0, 1, 1, 2, 2, 3, 4, 5, 7, 8, 10, 11, 13, 14]
    gaps, over = schedule(15, [], [It(x, q, q) for x, q in zip(r, rp)] + flat_dma(d[:3], [6, 9, 12]) + [It(f"s_add_u32 s{gST}, s{gST}, 1", 7, 14), It(f"s_cmp_lt_u32 s{gST}, 16", 7, 14)])
    if VERB: print("gemm step1 over", over, file=sys.stderr)
    weave(a, mf[6:], gaps)
    a(f"s_cbranch_scc1 L_g{role}")
    if role == "w": return
    out(f"""L_ho:
    s_waitcnt lgkmcnt(0)
    s_bitcmp1_b32 s{gCHK}, s{gST}
    s_cbranch_scc0 L_hx
    s_mov_b32 s{sT2}, 0
    L_hk:
    s_xor_b64 s[{gF}:{gF+1}], s[{gF}:{gF+1}], s[{gNN}:{gNN+1}]
    s_xor_b64 s[{gF+2}:{gF+3}], s[{gF+2}:{gF+3}], s[{gNN}:{gNN+1}]
    s_or_b64 s[{gF}:{gF+1}], s[{gF}:{gF+1}], s[{gF+2}:{gF+3}]
    s_cbranch_scc0 L_hr
    s_bitcmp1_b32 0x208, s{gST}
    s_cbranch_scc1 L_hs
    s_mov_b32 s{gM0}, {LDSOOB}
    s_mov_b32 s{gSO}, {OOB}
    L_hx:
    s_cmp_lt_u32 s{gST}, 3
    s_cbranch_scc1 L_hn
    s_waitcnt vmcnt(18)
    L_hn:
    s_barrier
    s_lshr_b32 s{sT}, s{gCHK}, 1
    s_bitcmp1_b32 s{sT}, s{gST}
    s_cbranch_scc0 L_hp
    s_load_dwordx4 s[{gF}:{gF+3}], s[{gFP}:{gFP+1}], s{gOFF} glc
    L_hp:
    {f"s_cmp_eq_u32 s{gST}, {p.tsplit}" if p.tsplit >= 0 else ""}
    {"s_cbranch_scc1 L_ht" if p.tsplit >= 0 else ""}
    L_hq:
    s_bitcmp1_b32 s{gPOST}, s{gST}
    s_cbranch_scc0 L_hco
    s_mov_b64 exec, 1
    global_store_dword v{vPA}, v{vNZ}, s[{gFP}:{gFP+1}] offset:128 sc1
    s_mov_b64 exec, -1
    s_branch L_hco
    L_hs:
    s_add_u32 s{sT2}, s{sT2}, 1
    s_cmp_ge_u32 s{sT2}, {SPIN}
    s_cbranch_scc1 L_hr
    s_load_dwordx4 s[{gF}:{gF+3}], s[{gFP}:{gFP+1}], s{gOFF} glc
    s_waitcnt lgkmcnt(0)
    s_branch L_hk
    L_hr:
    s_mov_b32 s44, s{gM0}
    s_mov_b32 s45, s{gSO}
    s_cmp_eq_u32 s{gOFF}, 0
    s_cbranch_scc0 L_hr1""")
    for ph, lo in enumerate((0, 6)):
        out(f"L_hr{ph}:")
        if ph == 0: stamp(out, p, 5)
        out(f"s_movk_i32 s{gOFF}, 128\ns_and_b32 s{gCHK}, s{gCHK}, {0x3c0 if ph == 0 else 0}\ns_mov_b32 s{gMASK}, {0x3ef if ph == 0 else 0}")
        for j in range(3):
            out(f"s_cmp_gt_u32 s{gST}, {lo + j}\ns_cbranch_scc0 L_hy")
            g_stage_now(out, fl, lo + 4 + j)
        if ph == 0: out("s_branch L_hy")
    out(f"L_hy:\ns_mov_b32 s{gM0}, s44\ns_mov_b32 s{gSO}, s45\ns_branch L_hx")
    if p.tsplit >= 0:
        out("L_ht:")
        wo_touch_part(out, p, 1)
        out("s_branch L_hq")

def back(a, p):
    out = A()
    a(f"""L_gemm:
    s_barrier""")
    stamp(a, p, 4)
    a("ds_read_b32 v2, v1")
    rd0 = g_reads(0, 0)
    for x in rd0[:12]: a(x)
    a(f"""s_waitcnt lgkmcnt(12)
    v_readfirstlane_b32 s{sT}, v2
    {rd0[12]}
    {rd0[13]}
    {rd0[14]}
    s_andn2_b32 s{sT}, s{sT}, s{gREDO}
    s_cbranch_scc1 L_redo
    s_mov_b32 s{gNN}, s{sNONCE}
    s_mov_b32 s{gNN+1}, s{sNONCE}
    s_bitcmp1_b32 s{sWAVE}, 0
    s_cbranch_scc1 L_gw
    s_lshr_b32 exec_lo, s{gPOST}, 3
    s_mov_b32 exec_hi, 0
    global_store_dword v{vPA}, v{vNZ}, s[{gFP}:{gFP+1}] sc1
    s_mov_b64 exec, -1""")
    if p.twpos == 18: wo_touch(a, p)
    out(f"""L_redo:
    s_bitcmp1_b32 s{sWAVE}, 0
    s_cbranch_scc1 L_redos
    s_branch L_redob""")
    gemm_loop(a, out, p, "o")
    a("s_branch L_ge")
    gemm_loop(a, out, p, "w")
    a("L_ge:")
    stamp(a, p, 6)
    a(f"""s_and_b32 s{sT}, s3, 3
    s_lshl_b32 s60, s{sT}, 4
    s_lshr_b32 s61, s3, 2
    s_lshl_b32 s61, s61, 3
    s_add_u32 s61, s61, s5
    s_add_u32 s60, s60, s61
    s_lshl_b32 s60, s60, 2
    s_add_u32 s60, s60, s4
    s_mul_i32 s60, s60, {PBLK}
    s_add_u32 s{sW}, s82, {P_OFF}
    s_addc_u32 s{sW+1}, s83, 0
    s_mov_b32 s{sW+2}, {256*PBLK}
    s_mul_i32 s62, s{sWAVE}, 9216
    s_add_u32 s62, s62, s60
    v_and_b32 v2, 63, v0
    v_lshlrev_b32 v3, 4, v2
    v_lshlrev_b32 v4, 3, v2
    s_lshl_b32 s63, s{sWAVE}, 1
    s_cmp_eq_u32 s{sWAVE}, 0
    s_cselect_b32 s{gQ1}, 3, 0
    s_cmp_lt_u32 s{sWAVE}, 2
    s_cselect_b32 s{gQ2}, 5, 2
    s_cmp_lt_u32 s{sWAVE}, 3
    s_cselect_b32 s{gQ3}, 7, 4""")
    qs = [63, 63, 63, gQ1, gQ1, gQ2, gQ2, gQ3, gQ3]
    qo = [0, 1, 2, 0, 1, 0, 1, 0, 1]
    a(f"s_and_b32 s{sT}, s3, 3\ns_cmp_eq_u32 s{sT}, s{sWAVE}\ns_cbranch_scc1 L_own")
    for own in range(2):
        if own: a(f"s_branch L_pe\nL_own:")
        for u in range(9):
            d = 8 + 4 * (u & 3)
            A0, B0 = acc2(0, u), acc2(1, u)
            a(f"v_cvt_pk_bf16_f32 v{d}, v{A0}, v{A0+1}\nv_cvt_pk_bf16_f32 v{d+1}, v{A0+2}, v{A0+3}\nv_cvt_pk_bf16_f32 v{d+2}, v{B0}, v{B0+1}\nv_cvt_pk_bf16_f32 v{d+3}, v{B0+2}, v{B0+3}")
            if own:
                if qo[u] == 0: a(f"s_lshl_b32 s{sT}, s{qs[u]}, 10\nv_add_u32 v5, s{sT}, v3")
                a(f"ds_write_b128 v5, {vr(d)} offset:{PL + 1024*qo[u]}")
            else:
                a(f"s_lshl_b32 s{sT}, s{qs[u]}, 10\ns_add_u32 s{sT}, s{sT}, s62")
                a(f"buffer_store_dwordx4 {vr(d)}, v3, s[{sW}:{sW+3}], s{sT} offen offset:{1024*qo[u]} {p.pfl}")
        if not own: a(f"s_lshl_b32 s{sT}, s63, 9\ns_add_u32 s{sT}, s{sT}, s60\ns_add_u32 s{sT}, s{sT}, 36864")
        for u in range(3):
            d = 24 + 2 * u
            A0 = acc2(2, u)
            if u == 2 and not own: a(f"s_cmp_eq_u32 s{sWAVE}, 3\ns_cbranch_scc0 L_pe")
            a(f"v_cvt_pk_bf16_f32 v{d}, v{A0}, v{A0+1}\nv_cvt_pk_bf16_f32 v{d+1}, v{A0+2}, v{A0+3}")
            if own: a(f"ds_write_b64 v4, {vr(d, 2)} offset:{PL + 9216 + 512*u}")
            else: a(f"buffer_store_dwordx2 {vr(d, 2)}, v4, s[{sW}:{sW+3}], s{sT} offen offset:{512*u} {p.pfl}")
    a("L_pe:")
    a("s_load_dwordx2 s[68:69], s[0:1], 80")
    a(f"""s_and_b32 s64, s3, 3
    s_lshl_b32 s65, s61, 2
    s_add_u32 s65, s65, s4
    s_mul_i32 s65, s65, {PBLK}
    s_mul_i32 s66, s64, 9216
    s_add_u32 s66, s66, s65
    s_lshl_b32 s{sT}, s{sWAVE}, 10
    s_add_u32 s66, s66, s{sT}
    s_lshl_b32 s67, s64, 1
    s_add_u32 s67, s67, s{sWAVE}
    s_sub_u32 s67, s67, 1
    s_lshl_b32 s72, s67, 9
    s_add_u32 s72, s72, s65
    s_add_u32 s72, s72, 36864
    s_lshr_b32 s73, s3, 2
    s_mul_i32 s73, s73, 1152
    s_mul_i32 s{sT}, s4, 288
    s_add_u32 s73, s73, s{sT}
    s_mul_i32 s{sT}, s5, {144*2304}
    s_add_u32 s73, s73, s{sT}
    s_mul_i32 s74, s67, {16*2304}
    s_add_u32 s74, s74, s73
    s_add_u32 s74, s74, 256
    s_lshl_b32 s{sT}, s64, 6
    s_add_u32 s73, s73, s{sT}
    s_mul_i32 s{sT}, s{sWAVE}, {16*2304}
    s_add_u32 s73, s73, s{sT}
    s_cmp_eq_u32 s{sWAVE}, 3
    s_cselect_b32 s75, 8, s67
    s_cmp_eq_u32 s75, s67
    s_cselect_b32 s72, s72, {OOB}
    s_cselect_b32 s74, s74, {OOB}
    v_and_b32 v5, 15, v2
    s_movk_i32 s{sT}, 2304
    v_lshrrev_b32 v6, 4, v2
    v_lshlrev_b32 v6, 3, v6
    v_mad_u32_u24 v7, v5, s{sT}, v6
    s_mov_b32 s70, {8*144*1152*2}
    s_mov_b32 s71, 0x20000
    s_add_u32 s76, s64, 1
    s_add_u32 s77, s64, 2
    s_add_u32 s78, s64, 3
    s_and_b32 s76, s76, 3
    s_and_b32 s77, s77, 3
    s_and_b32 s78, s78, 3
    s_mul_i32 s76, s76, {64*PBLK}
    s_mul_i32 s77, s77, {64*PBLK}
    s_mul_i32 s78, s78, {64*PBLK}
    v_add_u32 v9, 4096, v3
    s_lshl_b32 s{sT}, s{sWAVE}, 10
    v_add_u32 v10, s{sT}, v3
    s_lshl_b32 s{sT}, s{sWAVE}, 9
    v_add_u32 v11, s{sT}, v4
    s_waitcnt vmcnt(0) lgkmcnt(0)
    s_barrier
    s_cmp_eq_u32 s{sWAVE}, 0
    s_cbranch_scc0 L_n1""")
    post(a, 2, F2)
    a(f"ds_read_b128 v[128:131], v3 offset:{PL + 8192}\ns_branch L_n2\nL_n1:\nds_read_b64 v[128:129], v11 offset:{PL + 9216 - 512}\nL_n2:")
    a(f"ds_read_b128 v[96:99], v10 offset:{PL}\nds_read_b128 v[112:115], v10 offset:{PL + 4096}")
    if p.vp2: vpoll(a, "2", 2, F2)
    else: poll(a, "2", 2, F2)
    stamp(a, p, 7)
    def red(src, stride, n, dst):
        for i in range(n):
            for k in range(4):
                r = src + stride * k + i
                if k == 0: a(f"v_lshlrev_b32 v80, 16, v{r}\nv_and_b32 v81, 0xffff0000, v{r}")
                else: a(f"v_lshlrev_b32 v82, 16, v{r}\nv_and_b32 v83, 0xffff0000, v{r}\nv_pk_add_f32 v[80:81], v[80:81], v[82:83]")
            a(f"v_cvt_pk_bf16_f32 v{dst+i}, v80, v81")
    for u in range(2):
        for k in range(3):
            a(f"s_add_u32 s{sT}, s66, s{76+k}\nbuffer_load_dwordx4 {vr(100 + 16*u + 4*k)}, v{3 if u == 0 else 9}, s[{sW}:{sW+3}], s{sT} offen {p.plfl}")
    a(f"s_cmp_eq_u32 s{sWAVE}, 0\ns_cbranch_scc0 L_r3\ns_add_u32 s66, s66, 8192")
    for k in range(3):
        a(f"s_add_u32 s{sT}, s66, s{76+k}\nbuffer_load_dwordx4 {vr(132 + 4*k)}, v3, s[{sW}:{sW+3}], s{sT} offen {p.plfl}")
    a("s_branch L_r4\nL_r3:")
    for k in range(3):
        a(f"s_add_u32 s{sT}, s72, s{76+k}\nbuffer_load_dwordx2 {vr(132 + 4*k, 2)}, v4, s[{sW}:{sW+3}], s{sT} offen {p.plfl}")
    a("L_r4:\ns_waitcnt lgkmcnt(0)")
    for u in range(2):
        a(f"s_waitcnt vmcnt({6 - u})")
        red(96 + 16*u, 4, 4, 12 + 4*u)
        a(f"buffer_store_dwordx2 {vr(12+4*u, 2)}, v7, s[68:71], s73 offen {p.outfl}\nbuffer_store_dwordx2 {vr(14+4*u, 2)}, v7, s[68:71], s73 offen offset:32 {p.outfl}")
        a(f"s_add_u32 s73, s73, {64*2304}")
    a("s_waitcnt vmcnt(4)")
    a(f"s_cmp_eq_u32 s{sWAVE}, 0\ns_cbranch_scc0 L_r5")
    red(128, 4, 4, 20)
    a(f"buffer_store_dwordx2 v[20:21], v7, s[68:71], s73 offen {p.outfl}\nbuffer_store_dwordx2 v[22:23], v7, s[68:71], s73 offen offset:32 {p.outfl}\ns_branch L_r6\nL_r5:")
    red(128, 4, 2, 20)
    a(f"buffer_store_dwordx2 v[20:21], v7, s[68:71], s74 offen {p.outfl}\nL_r6:")
    if p.stamps:
        a("s_waitcnt vmcnt(0)")
        if not p.pst: stamp(a, p, 8)
        stamp_store(a, p)
    a("L_end:\ns_endpgm")
    a.l += out.l

def kernel(p, K):
    a = A()
    a("s_cmp_ge_u32 s2, 256\ns_cbranch_scc1 L_end")
    if p.perm == 1: a("s_mul_i32 s2, s2, 37\ns_add_u32 s2, s2, 11\ns_and_b32 s2, s2, 255")
    if p.perm == 2: a("s_lshr_b32 s3, s2, 3\ns_and_b32 s2, s2, 7\ns_lshl_b32 s2, s2, 5\ns_or_b32 s2, s2, s3")
    if p.perm == 3: a("s_lshr_b32 s3, s2, 5\ns_and_b32 s2, s2, 31\ns_lshl_b32 s2, s2, 3\ns_or_b32 s2, s2, s3")
    stamp(a, p, 0)
    a(f"""
    s_load_dwordx8 s[52:59], s[0:1], 0
    s_load_dwordx8 s[60:67], s[0:1], 40
    s_load_dwordx2 s[82:83], s[0:1], 96
    s_load_dwordx2 s[94:95], s[0:1], 32
    s_load_dwordx2 s[96:97], s[0:1], 72
    s_load_dwordx2 s[98:99], s[0:1], 88
    v_lshrrev_b32 v1, 6, v0
    v_and_b32 v2, 63, v0
    v_readfirstlane_b32 s{sWAVE}, v1
    s_and_b32 s3, s2, 7
    s_lshr_b32 s4, s2, 3
    s_lshr_b32 s5, s4, 2
    s_and_b32 s4, s4, 3
    s_and_b32 s6, s3, 3
    s_lshl_b32 s6, s6, 3
    s_lshl_b32 s7, s4, 1
    s_add_u32 s6, s6, s7
    s_lshr_b32 s{sHL}, s{sWAVE}, 1
    s_add_u32 s7, s6, s{sHL}
    s_lshl_b32 s{sRB}, s{sHL}, 15
    """)
    if p.rotm == 0: a(f"s_lshr_b32 s{sROT}, s2, 2\ns_and_b32 s{sROT}, s{sROT}, 14\ns_add_u32 s{sROT}, s{sROT}, s{sHL}\ns_lshl_b32 s{sROT}, s{sROT}, 1")
    elif p.rotm == 1: a(f"s_lshr_b32 s{sROT}, s2, 2\ns_and_b32 s{sROT}, s{sROT}, 30\ns_add_u32 s{sROT}, s{sROT}, s{sHL}")
    elif p.rotm == 2: a(f"s_lshr_b32 s{sROT}, s2, 3\ns_lshl_b32 s{sT}, s{sHL}, 4\ns_add_u32 s{sROT}, s{sROT}, s{sT}")
    elif p.rotm == 3: a(f"s_lshl_b32 s{sROT}, s2, 1\ns_add_u32 s{sROT}, s{sROT}, s{sHL}\ns_mul_i32 s{sROT}, s{sROT}, 0x9e3779b1\ns_lshr_b32 s{sROT}, s{sROT}, 27")
    elif p.rotm == 4: a(f"s_lshr_b32 s{sROT}, s2, 2\ns_and_b32 s{sROT}, s{sROT}, 14\ns_add_u32 s{sROT}, s{sROT}, s{sHL}\ns_lshl_b32 s{sROT}, s{sROT}, 1\ns_bfe_u32 s{sT}, s2, 0x10006\ns_add_u32 s{sROT}, s{sROT}, s{sT}")
    a(f"""
    v_lshrrev_b32 v3, 4, v2
    v_and_b32 v4, 15, v2
    v_lshlrev_b32 v5, 1, v3
    v_xor_b32 v5, v5, v4
    v_lshlrev_b32 v5, 4, v5
    v_lshl_add_u32 v{vE}, v3, 8, v5
    v_xor_b32 v{vO_}, 128, v{vE}
    v_lshl_add_u32 v{vWE}, v3, 13, v5
    s_lshl_b32 s{sT}, s7, 8
    v_add_u32 v{vWE}, s{sT}, v{vWE}
    v_xor_b32 v{vWO}, 128, v{vWE}
    v_add_u32 v{vWO}, {8*8192 - 1024}, v{vWO}
    s_lshl_b32 s{sT}, s{sHL}, 2
    v_add_u32 v5, s{sT}, v3
    v_and_b32 v6, 7, v2
    v_xor_b32 v5, v5, v6
    v_lshlrev_b32 v5, 4, v5
    v_lshrrev_b32 v6, 3, v2
    s_lshl_b32 s{sT}, s{sHL}, 3
    v_add_u32 v6, s{sT}, v6
    s_movk_i32 s{sT}, 1152
    v_mad_u32_u24 v{vX}, v6, s{sT}, v5
    s_waitcnt lgkmcnt(0)
    s_cmp_ge_u32 s3, 4
    s_cselect_b32 s52, s60, s52
    s_cselect_b32 s53, s61, s53
    s_cselect_b32 s54, s62, s54
    s_cselect_b32 s55, s63, s55
    s_cselect_b32 s56, s64, s56
    s_cselect_b32 s57, s65, s57
    s_cselect_b32 s58, s66, s58
    s_cselect_b32 s59, s67, s59
    s_cselect_b32 s94, s96, s94
    s_cselect_b32 s95, s97, s95
    s_mul_i32 s{sT}, s5, 165888
    s_add_u32 s{sX}, s52, s{sT}
    s_addc_u32 s{sX+1}, s53, 0
    s_mov_b32 s{sX+2}, 165888
    s_mov_b32 s{sX+3}, 0x20000
    s_mov_b32 s{sW}, s58
    s_mov_b32 s{sW+1}, s59
    s_mov_b32 s{sW+2}, 4718592
    s_mov_b32 s{sW+3}, 0x20000
    s_and_b32 s76, s{sWAVE}, 1
    s_mul_i32 s{sXB}, s{sHL}, 24576
    s_add_u32 s{sXB}, s{sXB}, {WQB}
    s_mul_i32 s{sXS0}, s76, {5*18432}
    s_mul_i32 s{sXM0}, s76, {5*2048}
    s_lshl_b32 s{sT}, s{sHL}, 10
    s_add_u32 s{sXM0}, s{sXM0}, s{sT}
    s_add_u32 s{sXM0}, s{sXM0}, {XBUF}
    s_lshl_b32 s77, s76, 12
    s_add_u32 s77, s77, s{sXB}
    s_lshl_b32 s78, s76, 17
    """)
    def xload(c, a=a, T=None):
        if p.c0: a(f"s_mov_b32 s{sXS}, 0" if c == 0 else f"s_add_u32 s{sXS}, s{sKROT}, 1\ns_lshl_b32 s{sXS}, s{sXS}, 7")
        else: a(f"s_add_u32 s{sXS}, s{sKROT}, {c}\ns_sub_u32 s{sXM}, s{sXS}, 9\ns_cselect_b32 s{sXS}, s{sXS}, s{sXM}\ns_lshl_b32 s{sXS}, s{sXS}, 7")
        a(f"s_add_u32 s{sXM}, s{sXM0}, {18432*c}\ns_add_u32 s{sXS}, s{sXS0}, s{sXS}")
        if T: return emit(a, x_dma(p, T))
        g = x_dma(p, 5)
        emit(a, g[:4])
        a(f"s_cmp_eq_u32 s76, 1\ns_cbranch_scc1 L_x{c}")
        emit(a, g[4:])
        a(f"L_x{c}:")
    def wload(k, a=a):
        a(f"s_add_u32 s{sWM}, s77, {8192*k}\ns_add_u32 s{sWS2}, s{sWS}, {4*8192 - 2048}")
        emit(a, w_dma(p), nop=False)
        emit(a, [w_adv(p)], nop=False)
    a(f"s_mov_b32 s60, s54\ns_mov_b32 s61, s55")
    if p.krot: a(f"s_lshr_b32 s{sKROT}, s4, {p.ksh}\ns_mul_i32 s{sKROT}, s{sKROT}, {p.kc}\ns_add_u32 s{sKROT}, s{sKROT}, s5\n" + (f"s_and_b32 s{sKROT}, s{sKROT}, 7" if p.c0 else f"s_sub_u32 s{sT}, s{sKROT}, 9\ns_cselect_b32 s{sKROT}, s{sKROT}, s{sT}"))
    else: a(f"s_mov_b32 s{sKROT}, 0")
    if p.c0: a(f"s_mov_b32 s{sWS}, s78\ns_add_u32 s{sWEND}, s78, {576*8192}")
    else: a(f"s_lshl_b32 s{sWS}, s{sKROT}, 19\ns_add_u32 s{sWS}, s{sWS}, s78\ns_add_u32 s{sWEND}, s78, {576*8192}")
    if p.rotm == 9:
        a(f"s_lshl_b32 s{sT}, s2, 1\ns_add_u32 s{sT}, s{sT}, s{sHL}\ns_lshl_b32 s{sT}, s{sT}, 2\ns_add_u32 s{sT}, s{sT}, {220 << 20}\ns_load_dword s{sROT}, s[82:83], s{sT}\ns_waitcnt lgkmcnt(0)")
    if p.pst == 1: stamp(a, p, 8)
    xload(0); wload(0)
    if p.pst == 2: stamp(a, p, 8)
    if p.pw >= 0: a(f"s_waitcnt vmcnt({p.pw})")
    wload(1)
    a(f"""
    s_mul_i32 s{sS0}, s4, {p.stag}
    s_add_u32 s{sS0}, s{sS0}, {p.s0}
    s_lshl_b32 s{sT}, s5, 5
    s_add_u32 s{sT}, s{sT}, s7
    s_lshl_b32 s{sT2}, {'s3' if p.kvsame else f's{sT}'}, 17
    s_add_u32 s{sK}, s60, s{sT2}
    s_addc_u32 s{sK+1}, s61, 0
    s_mov_b32 s{sK+2}, 131072
    s_mov_b32 s{sK+3}, 0x20000
    s_add_u32 s{sV}, s56, s{sT2}
    s_addc_u32 s{sV+1}, s57, 0
    s_mov_b32 s{sV+2}, 131072
    s_mov_b32 s{sV+3}, 0x20000
    s_mov_b32 s{sO}, s82
    s_mov_b32 s{sO+1}, s83
    s_mov_b32 s{sO+2}, {O_BYTES}
    s_mov_b32 s{sO+3}, 0x20000
    s_lshr_b32 s{sT2}, s3, 2
    s_lshl_b32 s{sT2}, s{sT2}, 8
    s_add_u32 s{sT}, s{sT}, s{sT2}
    s_mul_i32 s{sOB}, s{sT}, {4*9216}
    s_mov_b32 s{sWO}, s94
    s_mov_b32 s{sWO+1}, s95
    s_mov_b32 s{sWO+2}, 4718592
    s_mov_b32 s{sWO+3}, 0x20000
    s_and_b32 s{sTW}, s3, 3
    s_lshl_b32 s{sTW}, s{sTW}, 5
    s_lshr_b32 s{sT}, s2, 3
    s_add_u32 s{sTW}, s{sTW}, s{sT}
    s_lshl_b32 s{sTW}, s{sTW}, 1
    s_add_u32 s{sTW}, s{sTW}, s{sHL}
    s_mul_i32 s{sTW}, s{sTW}, 18432
    s_cmp_eq_u32 s76, 1
    s_cselect_b32 s{sKV}, s{sV}, s{sK}
    s_cselect_b32 s{sKV+1}, s{sV+1}, s{sK+1}
    s_mov_b32 s{sKV+2}, 131072
    s_mov_b32 s{sKV+3}, 0x20000
    s_lshl_b32 s{sT2}, s76, 13
    s_add_u32 s{sT2}, s{sT2}, s{sRB}
    s_mov_b32 s6, s98
    s_mov_b32 s7, s99
    v_lshlrev_b32 v{vTCH}, 7, v2
    s_mov_b32 s{sIT}, -2
    """)
    def batch2(a, T):
        emit(a, kv_book(p), nop=False); emit(a, kv_dma(p), nop=False)
        xload(1, a, T)
        if p.c0: a(f"s_add_u32 s78, s78, {64*8192}\ns_lshl_b32 s{sWS}, s{sKROT}, 19\ns_add_u32 s{sWS}, s{sWS}, s78")
        a(f"s_add_u32 s{sWM}, s77, {8192*2}\ns_mov_b32 s{WSr[1]}, s{sWS}\ns_add_u32 s{WS2r[1]}, s{sWS}, {4*8192 - 2048}")
        emit(a, w_dma(p, 1)[:4 - p.wsh], nop=False)
        emit(a, [w_adv(p)], nop=False)
        a(f"s_mov_b32 s{sIT}, 0")
        emit(a, kv_book(p), nop=False)
        a(f"s_mov_b32 s{sWM}, s77\ns_add_u32 s{sWS2}, s{sWS}, {4*8192 - 2048}")
    if not p.early: batch2(a, None)
    p.batch2 = batch2
    a(f"s_cmp_eq_u32 s{sWAVE}, 0\ns_cbranch_scc0 L_nc")
    if p.touch_code:
        a(f"""s_getpc_b64 s[80:81]
        L_pc:
        s_sub_u32 s80, s80, L_pc-{K}
        s_subb_u32 s81, s81, 0
        s_lshr_b32 s{sT}, s2, 3
        s_and_b32 s{sT}, s{sT}, 7
        s_lshl_b32 s{sT}, s{sT}, 13
        v_add_u32 v8, s{sT}, v{vTCH}
        s_mov_b32 s{sT}, L_codeend-{K}-4
        v_min_u32 v8, s{sT}, v8
        global_load_dword v{vDUM}, v8, s[80:81]""")
    a(f"""v_mov_b32 v8, {LFLAG}
    v_mov_b32 v9, 0
    ds_write_b32 v8, v9
    s_cmp_lt_u32 s2, 8
    s_cbranch_scc0 L_nc
    s_memrealtime s[80:81]
    v_mov_b32 v11, 0
    s_waitcnt lgkmcnt(0)
    s_or_b32 s80, s80, 1
    v_mov_b32 v10, s80
    s_mov_b64 exec, 1
    global_atomic_cmpswap v9, v[10:11], s[6:7] sc1
    s_mov_b64 exec, -1
    L_nc:""")
    a(f"""
    v_and_b32 v5, 7, v4
    v_lshlrev_b32 v5, 1, v5
    v_xor_b32 v5, v5, v3
    v_lshlrev_b32 v5, 4, v5
    v_lshl_add_u32 v5, v4, 8, v5
    v_add_u32 v{vKA}, s{sRB}, v5
    v_xor_b32 v{vKA+1}, 64, v{vKA}
    v_xor_b32 v{vKA+2}, 128, v{vKA}
    v_xor_b32 v{vKA+3}, 192, v{vKA}
    v_bfe_u32 v5, v2, 2, 2
    v_and_b32 v6, 1, v3
    v_lshl_add_u32 v5, v6, 2, v5
    v_lshrrev_b32 v6, 1, v3
    v_lshl_add_u32 v6, v6, 4, v5
    v_lshlrev_b32 v5, 1, v5
    v_bfe_u32 v7, v2, 1, 1
    v_xor_b32 v5, v5, v7
    v_lshlrev_b32 v5, 4, v5
    v_and_b32 v7, 1, v2
    v_lshl_add_u32 v5, v7, 3, v5
    v_lshl_add_u32 v5, v6, 8, v5
    v_add_u32 v{vVA}, s{sXB}, v5
    s_mov_b32 s{sXB}, s77""")
    for dt in range(1, 8): a(f"v_xor_b32 v{vVA+dt}, {32*dt}, v{vVA}")
    a(f"""
    v_lshrrev_b32 v5, 1, v4
    v_xor_b32 v5, v5, v3
    v_lshlrev_b32 v5, 4, v5
    v_lshl_add_u32 v5, v4, 7, v5
    s_mul_i32 s79, s76, {4*2048}
    s_add_u32 s79, s79, {XBUF}
    v_add_u32 v{vXA}, s79, v5
    v_xor_b32 v{vXA+1}, 64, v{vXA}
    s_mul_i32 s79, s76, {5*1024}
    v_lshl_add_u32 v{vST}, v2, 4, s79
    s_mul_i32 s79, s{sHL}, {2*STG}
    v_add_u32 v{vOW}, s79, v{vST}
    s_mov_b32 s{sSC}, 0x3e0293ee
    s_mov_b32 s{sWSL}, 0
    s_mov_b32 s{sC}, 8192
    s_mov_b32 s{sNEG}, -16384
    s_mov_b32 s{sWD}, 8192
    s_mov_b32 s{sXD}, 18432
    """)
    a(f"s_movk_i32 s79, 3641\ns_mul_i32 s80, s76, 864")
    for j in range(9):
        a(f"""v_add_u32 v5, {64*j}, v2
        v_mul_u32_u24 v6, s79, v5
        v_lshrrev_b32 v6, 16, v6
        v_lshlrev_b32 v5, 4, v5
        v_mad_u32_u24 v5, v6, s80, v5
        v_subrev_u32 v{v2VO+j}, {1024*(j % 4)}, v5""")
    a(f"""
    v_lshrrev_b32 v5, 2, v2
    v_and_b32 v6, 3, v2
    v_lshlrev_b32 v6, 3, v6
    s_movk_i32 s79, 288
    v_mad_u32_u24 v5, v5, s79, v6
    v_add_u32 v{v2A+1}, {18432 + 256}, v5
    s_lshl_b32 s79, s{sWAVE}, 6
    s_add_u32 s79, s79, 18432
    v_add_u32 v{v2A}, s79, v5
    v_lshlrev_b32 v5, 4, v2
    s_lshl_b32 s79, s{sWAVE}, 11
    v_add_u32 v{v2B}, s79, v5
    s_cmp_eq_u32 s{sWAVE}, 0
    s_cselect_b32 s79, 3072, 0
    v_add_u32 v{v2B+1}, s79, v5
    s_cmp_lt_u32 s{sWAVE}, 2
    s_movk_i32 s79, 2048
    s_cselect_b32 s79, 5120, s79
    v_add_u32 v{v2B+2}, s79, v5
    s_cmp_lt_u32 s{sWAVE}, 3
    s_movk_i32 s79, 4096
    s_cselect_b32 s79, 7168, s79
    v_add_u32 v{v2B+3}, s79, v5
    """)
    if p.twq >= 0: a(f"s_mul_i32 s79, s4, {p.twstag}\ns_add_u32 s79, s79, {p.twq}")
    if p.kt: a(f"s_mul_i32 s80, s4, {p.ktst}\ns_lshl_b32 s79, {sum(1 << int(x.split(':')[0]) for x in p.kt.split(','))}, s80")
    if p.tsplit >= 0: wo_touch_setup(a)
    for r in range(0, 160, 2): a(f"v_pk_mov_b32 {vr(vACC+r, 2)}, 0, 0")
    if p.pst == 4: stamp(a, p, 8)
    a(f"s_bitcmp1_b32 s{sWAVE}, 0\ns_cbranch_scc1 L_small")
    wave_front(a, p, 5, False, "b")
    a("L_small:")
    wave_front(a, p, 4, True, "s")
    back(a, p)
    a("L_codeend:")
    return a.text()

def build(p):
    K = KNAME + "_kernel"
    hdr = open("cdna_kernels/" + KNAME + ".s.ref").read().split("; Override launch geometry")[0]
    return hdr + header(["; @launch grid=(256,1,1) block=(256,1,1) lds=163840"]) + kstart(K) + kernel(p, K) + RODATA + kdesc(K, 512, 256)

if __name__ == "__main__":
    ap = argparse.ArgumentParser()
    ap.add_argument("out")
    ap.add_argument("opts", nargs="*")
    x = ap.parse_args()
    p = P()
    VERB = True
    for o in x.opts:
        k, v = o.split("=")
        cur = getattr(p, k)
        setattr(p, k, (v == "1") if isinstance(cur, bool) else int(v) if isinstance(cur, int) else v.replace("+", " "))
    if p.twq >= 0: p.twpos = 15
    EXP = p.exp
    open(x.out, "w").write(build(p))
```

```python
import sys, argparse
sys.path.insert(0, "tools")
from asmlib import *
sys.path.insert(0, 'gen')
from sched import It, schedule
VERB = False
EXP = 0

class P:
    stamps = False
    cyc = False
    xfl = ""; wfl = ""; kvfl = "nt"
    ofl = "sc1"; olfl = "sc1"; wofl = ""; twfl = ""; pfl = "sc1"; plfl = "sc1"; outfl = ""
    s0 = 5; ppe = 2; stag = 0
    rot = True; krot = True
    kvd = 4
    twpos = 12
    rb = False
    fb = 3
    sh = 2
    qb = 4; qr = 6; vlo = 6
    touch_code = True
    force = False
    kvsame = False
    lim = 0
    notouch = False
    limg = 2
    gprof = False
    pa = -1
    tail = True
    dd = True
    spm = 0x208
    nod = True
    soft = False
    tst = -1
    tsw = 0
    aprof = False
    st0 = -1
    pmul = 0
    pace = 2
    pmask = 7
    pw2 = 16
    pw3 = -1
    pbit = 6
    c0 = False
    kt = ''
    ktfl = ''
    ktst = 0
    tsplit = -1
    tw2 = 0
    dbgst = False
    al = 0
    sh4 = 0
    xsp = 0
    wsh = 0
    qprof = 0
    par8 = False
    fc = 0
    fcs = 64
    twown = -1
    perm = 0
    kc = 2
    ksh = 0
    early = True
    pst = 0
    rotm = 0
    swap = 3
    t3 = False
    vp2 = True
    s1 = 1
    defer = False
    warm = True
    exp = 0
    late = True
    twq = -1
    twstag = 0
    pw = -1

MF = "v_mfma_f32_16x16x32_bf16"
OOB = 0x40000000
LDSOOB = 0x30000
STAMPOFF = 200 << 20
O_BYTES = 16 * 32 * 4 * 9216
P_OFF = 32 << 20
F_OFF = 48 << 20
PBLK = 41472
STG = 36864
LFLAG = 163836
SPIN = 1 << 18
PL = 0

def vr(b, n=4): return f"v[{b}:{b+n-1}]"
def ar(b, n=4): return f"a[{b}:{b+n-1}]"
def weave(a, mfmas, gaps):
    assert len(gaps) <= len(mfmas)
    for i, m in enumerate(mfmas):
        a(m)
        if i < len(gaps):
            for x in gaps[i]: a(x)
def align(a, p):
    if p.al: a(f".p2align {p.al}")
    for _ in range(p.sh4): a("s_nop 0")
def emit(a, gs, nop=True):
    for g in gs:
        for x in g: a(x)
        if nop: a("s_nop 0")
NST = 9
def stamp(a, p, idx):
    if p.stamps: a(f"{'s_memtime' if p.cyc else 's_memrealtime'} s[{84+2*idx}:{85+2*idx}]")
def stamp_store(a, p):
    if not p.stamps: return
    a("s_waitcnt lgkmcnt(0)")
    if p.dbgst:
        a("v_mov_b32 v1, 0\nv_cmp_eq_u32 vcc, 0, v0\ns_and_saveexec_b64 s[44:45], vcc")
        for j in range(NST):
            a(f"s_sub_u32 s46, s{84+2*j}, s{sNONCE}\ns_add_u32 s46, s46, 500\nv_mov_b32 v2, s46\nglobal_atomic_umax v1, v2, s[6:7] offset:{4+4*j} sc1\ns_nop 1")
        a("s_mov_b64 exec, s[44:45]")
        return
    a(f"s_mul_i32 s80, s2, 128\ns_add_u32 s82, s82, s80\ns_addc_u32 s83, s83, 0\ns_add_u32 s82, s82, {STAMPOFF}\ns_addc_u32 s83, s83, 0")
    a("v_mov_b32 v1, 0\nv_cmp_eq_u32 vcc, 0, v0\ns_and_saveexec_b64 s[80:81], vcc")
    for j in range(NST):
        a(f"v_mov_b32 v2, s{84+2*j}\nv_mov_b32 v3, s{85+2*j}\nglobal_store_dwordx2 v1, v[2:3], s[82:83] offset:{8*j}\ns_nop 1")
    a("s_mov_b64 exec, s[80:81]")
    if p.gprof or p.qprof or p.aprof:
        a("v_and_b32 v1, 63, v0\nv_lshlrev_b32 v1, 2, v1\nv_cmp_gt_u32 vcc, 14, v0\ns_and_saveexec_b64 s[80:81], vcc\nglobal_store_dword v1, v31, s[82:83] offset:72\ns_mov_b64 exec, s[80:81]")

vACC = 96; vS = (80, 88); vL = 72; vVA = 64; vKA = 60; vXA = 58
vE, vO_, vWE, vWO, vX, vST, vTCH, vDUM, vOW, vFL = 56, 57, 54, 55, 53, 52, 51, 50, 49, 48
v2VO, v2B, v2A = 32, 41, 45
vNM = 8
aQ = 0; aK = (80, 112); aV = (144, 176); aXB = (80, 100); aWA = (144, 176)
a2A = (80, 92); a2B = (104, 140)
v2ACC = 96
sX, sW, sK, sV, sO, sKV, sWO = 8, 12, 16, 20, 24, 68, 56
sWAVE, sHL, sROT, sNONCE = 28, 29, 30, 31
sWS, sWM, sXS, sXM, sWD, sXD, sT, sT2, sIT = 32, 33, 34, 35, 36, 37, 38, 39, 40
sKN, sKM, sKS, sRB, sHI, sWSL, sXB = 41, 42, 43, 44, 45, 46, 47
sC, sSC, sOB, sNEG, sKROT, sS0, sWEND, sTW = 48, 49, 50, 51, 52, 53, 54, 55
sWS2, sXM0, sXS0 = 72, 74, 75
gSRC, gSTR, gDST, gST, gQ1, gQ2, gQ3, gRI = 60, 52, 62, 63, 64, 65, 66, 67
gC1, gC2, gDL, gM0, gSO, gDL2, gLO, gHIW = 72, 73, 74, 75, 76, 77, 78, 79
gLOW, gLIM, gREDO, gMASK, gTAB, gP4 = 32, 33, 34, 35, 36, 79
gF = 40
REL = [0, 1, 2, 3, 4, 6, 8, 10, 12, 14, 5, 7, 9, 11, 13, 15]
FA, F2, FP = F_OFF, F_OFF + 32768, F_OFF + 49152
gFP, gOFF, gCHK, gPOST, gNN = 80, 33, 32, 53, 46
vPA, vNZ = 47, 48
sPG = 60
sPA, sPM = 73, 74
sSW = 62
XBUF = 65536
WQB = XBUF + 2 * 18432
QX = 155648
def acc(t, dt): return vACC + (t * 8 + dt) * 4
def acc2(nt, u): return v2ACC + 4 * (nt * 9 + u)

def flat_dma(groups, pos):
    out = []
    for g, q in zip(groups, pos):
        for x in g:
            if x.startswith("s_nop"): continue
            out.append(It(x, q, q + 1) if x.startswith("buffer_") else It(x))
    return out
def read_pos(nrd, start, end, taken):
    free = [i for i in range(start, end) if i not in taken]
    dbl = max(0, nrd - len(free))
    pos = []
    for i in free:
        pos.append(i)
        if dbl > 0: pos.append(i); dbl -= 1
    assert len(pos) >= nrd
    return pos[:nrd]

WDr, WSr, WS2r = (sWD, 62), (sWS, 63), (sWS2, 64)
def w_dma(p, par=0):
    w = lambda v, so, o: f"buffer_load_dwordx4 v{v}, s[{sW}:{sW+3}], s{so} offen offset:{o} {p.wfl} lds"
    return [[f"s_mov_b32 m0, s{sWM}", "s_nop 0", w(vWE, WSr[par], 0)], [w(vWO, WSr[par], 1024)], [w(vWE, WS2r[par], 2048)], [w(vWO, WS2r[par], 3072)]]
def x_dma(p, nX):
    out = []
    for m in range(nX):
        g = [f"s_mov_b32 m0, s{sXM}", "s_nop 0"] if m == 0 else []
        g.append(f"buffer_load_dwordx4 v{vX}, s[{sX}:{sX+3}], s{sXS} offen offset:{2048*(m & 1)} {p.xfl} lds")
        if m + 1 < nX:
            g.append(f"s_add_u32 s{sXS}, s{sXS}, {16384 if m % 2 == 0 else 20480}")
            if m % 2 == 1: g.append("s_add_u32 m0, m0, 4096")
        out.append(g)
    return out
def kv_dma(p):
    out = []
    for j in range(2 * p.ppe):
        g = [f"s_mov_b32 m0, s{sKM}", "s_nop 0"] if j == 0 else []
        if j == 4: g = [f"s_add_u32 m0, s{sKM}, 4096", f"s_add_u32 s{sKS}, s{sKS}, 4096"]
        g.append(f"buffer_load_dwordx4 v{vE if j % 2 == 0 else vO_}, s[{sKV}:{sKV+3}], s{sKS} offen offset:{1024*(j % 4)} {p.kvfl} lds")
        out.append(g)
    return out
def kv_book(p):
    return [[f"s_ashr_i32 s{sKN}, s{sIT}, 1", f"s_sub_u32 s{sKN}, s{sKN}, s{sS0}", f"s_mul_i32 s{sKN}, s{sKN}, {p.ppe}"],
            [f"s_lshr_b32 s{sT}, s{sKN}, 1", f"s_add_u32 s{sKS}, s{sT}, s{sROT}"] + ([f"s_and_b32 s{sT}, s{sT}, 2", f"s_add_u32 s{sKS}, s{sKS}, s{sT}"] if p.par8 else []) + [f"s_and_b32 s{sKS}, s{sKS}, 31"],
            [f"s_lshl_b32 s{sKS}, s{sKS}, 12", f"s_and_b32 s{sT}, s{sKN}, 1", f"s_lshl_b32 s{sT}, s{sT}, 11", f"s_add_u32 s{sKS}, s{sKS}, s{sT}"],
            [f"s_lshr_b32 s{sKM}, s{sKN}, 2", f"s_lshl_b32 s{sKM}, s{sKM}, 14", f"s_and_b32 s{sT}, s{sKN}, 3", f"s_lshl_b32 s{sT}, s{sT}, 11"],
            [f"s_add_u32 s{sKM}, s{sKM}, s{sT}", f"s_add_u32 s{sKM}, s{sKM}, s{sT2}"],
            [f"s_cmp_ge_u32 s{sKN}, 8", f"s_cselect_b32 s{sKM}, {LDSOOB}, s{sKM}", f"s_cselect_b32 s{sKS}, {OOB}, s{sKS}"]]
def x_book(p):
    return [[f"s_add_u32 s{sT}, s{sIT}, 3", f"s_lshr_b32 s{sT}, s{sT}, 1", f"s_add_u32 s{sXS}, s{sT}, s{sKROT}"],
            [f"s_sub_u32 s{sXM}, s{sXS}, {8 if p.c0 else 9}", f"s_cmp_lt_u32 s{sXS}, 9", f"s_cselect_b32 s{sXS}, s{sXS}, s{sXM}", f"s_lshl_b32 s{sXS}, s{sXS}, 7"],
            [f"s_add_u32 s{sXS}, s{sXS}, s{sXS0}", f"s_and_b32 s{sT}, s{sT}, 1", f"s_mul_i32 s{sT}, s{sT}, 18432"],
            [f"s_add_u32 s{sXM}, s{sXM0}, s{sT}"],
            [f"s_cmp_ge_u32 s{sIT}, 15", f"s_cselect_b32 s{sXM}, {LDSOOB}, s{sXM}", f"s_cselect_b32 s{sXS}, {OOB}, s{sXS}"]]
def w_adv(p, src=sWS, dst=sWS):
    return [f"s_add_u32 s{dst}, s{src}, {32*8192}", f"s_cmp_ge_u32 s{dst}, s{sWEND}", f"s_cselect_b32 s{dst}, s78, s{dst}"]
def q_reads(T, par, ks):
    rd = [f"ds_read_b128 {ar(aXB[par] + 4*t)}, v{vXA + ks} offset:{2048*t}" for t in range(T)]
    for dt in range(8):
        rd.append(f"ds_read_b64_tr_b16 {ar(aWA[par] + 4*dt, 2)}, v{vVA+dt}")
        rd.append(f"ds_read_b64_tr_b16 {ar(aWA[par] + 4*dt + 2, 2)}, v{vVA+dt} offset:2048")
    return rd
def qstep(a, p, T, par):
    A_, B_ = aWA[par], aXB[par]
    e = 2 * p.ppe
    mf = []
    for dt in range(8):
        for u in range(5):
            if T == 5:
                if u == 4 and dt >= 4: continue
                t = u
            else:
                if u == 0 and dt < 4: continue
                t = (u - 1) % 5
            mf.append(f"{MF} {vr(acc(t, dt))}, {ar(A_ + 4*dt)}, {ar(B_ + 4*u)}, {vr(acc(t, dt))}")
    if not p.exp & 128: a("s_waitcnt lgkmcnt(0)")
    if not p.exp & 64: a(f"s_waitcnt vmcnt({e + 4 + (T - p.wsh if par == 0 else 0)})")
    if not p.exp & 32: a("s_barrier")
    if p.qprof: a(f"s_sub_u32 s98, s{sIT}, {p.qprof - 1}\ns_min_u32 m0, s98, 63\nv_writelane_b32 v31, s96, m0\n{'s_memtime' if p.cyc else 's_memrealtime'} s[96:97]")
    upd = [f"v_add_u32 v{vVA+d}, s{WDr[par]}, v{vVA+d}" for d in range(8)]
    if par == 0: upd = [f"v_add_u32 v{vXA}, s{sXD}, v{vXA}", f"v_add_u32 v{vXA+1}, s{sXD}, v{vXA+1}"] + upd
    rd = q_reads(5, par ^ 1, par ^ 1)
    dma = (x_dma(p, T) + w_dma(p, 1)[:4 - p.wsh]) if par == 1 else (w_dma(p, 1)[4 - p.wsh:] + w_dma(p, 0) + kv_dma(p))
    q = par ^ 1
    book = [[f"s_add_u32 s{sIT}, s{sIT}, 1"]] + (kv_book(p) if par == 1 else x_book(p)) + \
           [[f"s_add_u32 s{sWSL}, s{sWSL}, 8192", f"s_cmp_eq_u32 s{sWSL}, 24576", f"s_cselect_b32 s{sWSL}, 0, s{sWSL}"],
            [f"s_cmp_eq_u32 s{sWSL}, 8192", f"s_cselect_b32 s{WDr[q]}, s{sNEG}, s{sC}"],
            w_adv(p, WSr[par], WSr[q]) + [f"s_add_u32 s65, s{sWSL}, s{sXB}"],
            [f"s_cmp_ge_u32 s{sIT}, 15", f"s_cselect_b32 s65, {LDSOOB}, s65", f"s_cselect_b32 s{WSr[q]}, {OOB}, s{WSr[q]}"],
            [f"s_add_u32 s{WS2r[q]}, s{WSr[q]}, {4*8192 - 2048}", f"s_mov_b32 s{sWM}, s65"] + ([f"s_sub_u32 s{sXD}, 0, s{sXD}"] if par == 0 else [])]
    n = len(mf)
    pos = [1 + i * (n - p.qb) // len(dma) for i in range(len(dma))]
    if par == 1 and p.xsp:
        x0 = 1 + p.xsp * T + 2
        pos = [1 + p.xsp * i for i in range(T)] + [x0 + i * (n - p.qb - x0) // (len(dma) - T) for i in range(len(dma) - T)]
    rp = read_pos(len(rd), 0, n - p.qr, set(pos))
    if p.exp & 8: dma = [[x for x in g if not x.startswith("buffer")] for g in dma]
    if p.exp & 16: rd = []
    flo = [It(x, q, q + 1) for x, q in zip(rd, rp)] + [It(x, p.vlo, n - 1) for x in upd] + flat_dma(dma, pos) + [It(x, 0, n - 1) for g in book for x in g]
    gaps, over = schedule(n, [], flo)
    if VERB: print(f"qstep T{T} par{par} over", over, file=sys.stderr)
    weave(a, mf, gaps)

def kv_tile_dma(p, sm, ss, parts=(0, 1, 2, 3), plain=False):
    out = []
    d1, d2 = (sK, sV) if plain or not p.swap else (sKV, sW)
    for half, (srd, lo) in enumerate(((d1, 0), (d1, 4096), (d2, 8192), (d2, 12288))):
        if half not in parts: continue
        so = ss if (half & 1) == 0 else sT
        for j in range(4):
            g = []
            if j == 0:
                g = [f"s_xor_b32 m0, s{sm}, {lo}"]
                g += [f"s_add_u32 s{sT}, s{ss}, 4096", f"s_bitset0_b32 s{sT}, 17"] if half == 0 else ["s_nop 0"]
            if p.lim and (j % p.limg == 0): g.append(f"s_waitcnt vmcnt({p.lim - p.limg})")
            g.append(f"buffer_load_dwordx4 v{vE if j % 2 == 0 else vO_}, s[{srd}:{srd+3}], s{so} offen offset:{1024*j} {p.kvfl} lds")
            out.append(g)
    return out
def frag_reads(par, off):
    rd = [f"ds_read_b128 {ar(aK[par] + (kt*4+s)*4)}, v{vKA+s} offset:{off + 4096*kt}" for kt in range(2) for s in range(4)]
    for dt in range(8):
        rd.append(f"ds_read_b64_tr_b16 {ar(aV[par] + 4*dt, 2)}, v{vVA+dt} offset:{off}")
        rd.append(f"ds_read_b64_tr_b16 {ar(aV[par] + 4*dt + 2, 2)}, v{vVA+dt} offset:{off + 4096}")
    return rd
def soft2(S, t):
    ad = [f"v_add_f32 v{vL+t}, v{vL+t}, v{S+j}" for j in range(8)]
    cv = [f"v_cvt_pk_bf16_f32 v{S+j}, v{S+2*j}, v{S+2*j+1}" for j in range(4)]
    return ad[:4] + cv + ad[4:]
def qk(S, Kc, t, c0):
    return [f"{MF} {vr(S + 4*kt)}, {ar(Kc + (kt*4+s)*4)}, {ar(aQ + (t*4+s)*4)}, {c0 if s == 0 else vr(S + 4*kt)}" for kt in range(2) for s in range(4)]
def pv(S, Vc, t):
    return [f"{MF} {vr(acc(t, dt))}, {ar(Vc + 4*dt)}, {vr(S)}, {vr(acc(t, dt))}" for dt in range(8)]
def block(a, p, T, par, loader, top, mid, ins=None):
    mf, fixed = [], []
    for t in range(T):
        n = par * T + t
        S, Sp = vS[n & 1], vS[(n & 1) ^ 1]
        tp = (t - 1) % T
        mf += qk(S, aK[par], t, "0") + pv(Sp, aV[par ^ 1] if t == 0 else aV[par], tp)
        v2 = soft2(Sp, tp)
        fixed += [v2[0:1], v2[1:3], v2[3:4], v2[4:6], v2[6:7], v2[7:9], v2[9:10], v2[10:12]]
        fixed += [[f"v_exp_f32 v{S+j}, v{S+j}"] for j in range(8)]
    n = 16 * T
    free = [16*t + j for t in range(T) for j in (0, 2, 4, 6)]
    dma = kv_tile_dma(p, sKM, sKS) if loader else []
    top(a)
    if not p.late:
        rd = frag_reads(par ^ 1, 16384 * (par ^ 1))
        tog = [f"v_xor_b32 v{r}, 0x10000, v{r}" for r in list(range(vKA, vKA+4)) + list(range(vVA, vVA+8))] if par == 0 else []
        lim = n - 12
        slots = [g for g in free if g < lim]
        extra = [g for g in range(lim) if g not in slots]
        need = len(rd) + len(dma) - len(slots)
        if need > 0: slots = sorted(slots + [extra[(2*i + 1) * len(extra) // (2*need)] for i in range(need)])
        dpos = [slots[(i * len(slots)) // len(dma)] for i in range(len(dma))] if dma else []
        rpos = [g for g in slots if g not in dpos]
        rpos = [max(g, 16) if i >= 8 else g for i, g in enumerate(rpos[:len(rd)])]
        flo = [It(x, q, q + 1) for x, q in zip(rd, rpos)] + flat_dma(dma, dpos) + [It(x, 0, n - 1 - (len(tog) - 1 - i)) for i, x in enumerate(tog)]
        gaps, over = schedule(n, fixed, flo)
        weave(a, mf, gaps)
    else:
        m = n - 16
        rv = frag_reads(par, 16384 * par)[8:]
        vpos = [0, 1, 2, 3, 4, 5, 6, 7, 9, 11, 13, 15, 16, 17, 18, 20]
        togv = [f"v_xor_b32 v{r}, 0x10000, v{r}" for r in range(vVA, vVA+8)] if par == 1 else []
        togk = [f"v_xor_b32 v{r}, 0x10000, v{r}" for r in range(vKA, vKA+4)] if par == 1 else []
        cand = [g for g in range(24 if p.fc else 21, m - 1)]
        dpos = [cand[(i * len(cand)) // len(dma)] for i in range(len(dma))] if dma else []
        flo = [It(x, q, q) for x, q in zip(rv, vpos)] + [It("s_waitcnt lgkmcnt(0)", 23, 23)] + flat_dma(dma, dpos) + \
              [It(x, 22, m - 1 - (11 - i)) for i, x in enumerate(togv + togk)]
        gaps, over = schedule(m, fixed[:m], flo)
        assert any("lgkmcnt" in x for x in gaps[23])
        if loader and p.fc: gaps[23] += [f"s_cmp_eq_u32 s{sWAVE}, 1", f"s_cbranch_scc1 L_fc{par}", f"L_fcb{par}:"]
        if ins:
            for t in range(1, T):
                x = A(); ins(x, t)
                gaps[16*t - 1] += [y.strip() for y in x.l]
        weave(a, mf[:m], gaps)
        mid(a)
        rk = frag_reads(par ^ 1, 16384 * (par ^ 1))[:8]
        gaps, o2 = schedule(16, fixed[m:], [It(x, i, i) for i, x in enumerate(rk)])
        over += o2
        weave(a, mf[m:], gaps)
    if VERB: print(f"block T{T} par{par} over", over, file=sys.stderr)

def wo_touch(a, p, t1=sT, t2=sT2, fl=None):
    if p.notouch: return
    for f in ([fl] if fl is not None else ["nt", ""] if p.tw2 == 1 else ["nt"] if p.tw2 else [p.twfl]):
        a(f"""s_add_u32 s{t2}, s{sTW}, 8192
        s_add_u32 s{t1}, s{sTW}, 10240
        buffer_load_dword v{vDUM}, v{vTCH}, s[{sWO}:{sWO+3}], s{sTW} offen {f}
        buffer_load_dword v{vDUM}, v{vTCH}, s[{sWO}:{sWO+3}], s{t2} offen {f}
        buffer_load_dword v{vDUM}, v{vTCH}, s[{sWO}:{sWO+3}], s{t1} offen {f}""")
        if p.tw2 == 3 and fl is None:
            a("s_waitcnt vmcnt(0)")
            wo_touch(a, p, t1, t2, "")

vT1, vT2 = 28, 29
def wo_touch_setup(a):
    a(f"""v_and_b32 v1, 63, v0
    v_mul_u32_u24 v2, 43, v1
    v_lshrrev_b32 v2, 7, v2
    v_mul_u32_u24 v3, 3, v2
    v_sub_u32 v3, v1, v3
    v_and_b32 v4, 7, v2
    s_lshl_b32 s{sT}, s5, 3
    v_add_u32 v4, s{sT}, v4
    v_mul_u32_u24 v4, 1152, v4
    v_lshl_add_u32 v4, v3, 7, v4
    s_and_b32 s{sT}, s3, 3
    s_mul_i32 s{sT}, s{sT}, {1024*1152}
    s_lshl_b32 s80, s4, 8
    s_add_u32 s{sT}, s{sT}, s80
    v_add_u32 v4, s{sT}, v4
    v_lshrrev_b32 v2, 3, v2
    s_mov_b32 s{sT}, 73728
    v_mad_u32_u24 v{vT1}, v2, s{sT}, v4
    v_mad_u32_u24 v{vT2}, v2, s{sT}, v{vT1}
    v_mov_b32 v3, {OOB}
    v_cmp_gt_u32 vcc, 48, v1
    s_nop 1
    v_cndmask_b32 v{vT1}, v3, v{vT1}, vcc
    v_cndmask_b32 v{vT2}, v3, v{vT2}, vcc""")
def wo_touch_part(a, p, part):
    for r0, r1, v in (((0, 2, vT1), (4, 8, vT2)) if part == 0 else ((12, 5, vT2), (9, 13, vT2))):
        a(f"""s_mul_i32 s{sT}, s{sHL}, {r1 - r0}
        s_add_u32 s{sT}, s{sT}, s{gP4}
        s_add_u32 s{sT}, s{sT}, {r0}
        s_and_b32 s{sT}, s{sT}, 15
        s_mul_i32 s{sT}, s{sT}, 73728
        s_nop 0
        buffer_load_dword v{vDUM}, v{v}, s[{sWO}:{sWO+3}], s{sT} offen {p.twfl}""")
def g_dma(fl):
    out = []
    for j in range(9):
        g = [f"s_add_u32 m0, s{gM0}, {1024*j}", "s_nop 0"] if j % 4 == 0 else []
        g.append(f"buffer_load_dwordx4 v{v2VO+j}, s[{sX}:{sX+3}], s{gSO} offen offset:{1024*(j % 4)} {fl} lds")
        out.append(g)
    return out
def g_stage_now(a, fl, st):
    a(f"s_add_u32 s{gSO}, s{gP4}, {REL[st]}\ns_and_b32 s{gSO}, s{gSO}, 15\ns_mul_i32 s{gSO}, s{gSO}, s{gSTR}\ns_add_u32 s{gSO}, s{gSO}, s{gLO}")
    a(f"s_add_u32 s{gM0}, s{gDL2}, {(st & 3)*STG}")
    emit(a, g_dma(fl), nop=False)
def o_touch(a, p, half):
    if not p.rb: return
    for o in (0, 8192, 10240):
        a(f"s_add_u32 s{sT}, s{sOB}, {half*18432 + o}\ns_nop 0\nbuffer_load_dword v{vDUM}, v{vTCH}, s[{sO}:{sO+3}], s{sT} offen")

KEEP = [16, 20, 24, 28, 192, 196, 200, 204, 224, 228]
def o_store(p, t, s, d):
    return [f"s_add_u32 s{sT}, s{sOB}, {s*9216 + (4096 if t == 4 else 0)}", "s_nop 0",
            f"buffer_store_dwordx4 {vr(d)}, v{vST}, s[{sO}:{sO+3}], s{sT} offen offset:{1024*(t & 3)} {p.ofl}"]
def lanesum(a, T, op):
    for sw in ("v_permlane32_swap_b32", "v_permlane16_swap_b32"):
        for t in range(T): a(f"v_mov_b32 v{1+t}, v{vL+t}")
        a("s_nop 1")
        for t in range(T): a(f"{sw} v{1+t}, v{vL+t}")
        a("s_nop 1")
        for t in range(T): a(f"{op} v{vL+t}, v{vL+t}, v{1+t}")

def wave_front(a, p, T, loader, tag):
    TAB = sum(REL[4+i] << (4*i) for i in range(12))
    e = 2 * p.ppe
    a(f"s_waitcnt vmcnt({4 if p.early else 4 + e + T + 4})\ns_waitcnt lgkmcnt(0)\ns_barrier")
    stamp(a, p, 1)
    for x in q_reads(5, 0, 0): a(x)
    if p.early: p.batch2(a, T)
    for dt in range(8): a(f"v_add_u32 v{vVA+dt}, s{sWD}, v{vVA+dt}")
    align(a, p)
    a(f"L_q{tag}:")
    if p.twq >= 0 and not loader:
        a(f"s_cmp_eq_u32 s{sIT}, s79\ns_cbranch_scc1 L_tq\nL_tqb:")
    KT = [tuple(int(y) for y in x.split(":")) for x in p.kt.split(",") if x]
    if KT: a(f"s_bitcmp1_b32 s79, s{sIT}\ns_cbranch_scc1 L_kt{tag}\nL_ktb{tag}:")
    qstep(a, p, T, 0)
    qstep(a, p, T, 1)
    a(f"s_cmp_lt_u32 s{sIT}, 18\ns_cbranch_scc1 L_q{tag}")
    stamp(a, p, 2)
    a(f"""v_and_b32 v1, 63, v0
    v_lshrrev_b32 v2, 4, v1
    v_bfe_u32 v3, v1, 2, 2
    v_lshl_add_u32 v2, v2, 2, v3
    v_and_b32 v3, 7, v2
    v_lshlrev_b32 v3, 1, v3
    v_bfe_u32 v4, v1, 1, 1
    v_xor_b32 v3, v3, v4
    v_lshlrev_b32 v3, 4, v3
    v_and_b32 v4, 1, v1
    v_lshl_add_u32 v3, v4, 3, v3
    v_lshl_add_u32 v3, v2, 8, v3
    s_add_u32 s{sT}, s{sRB}, 8192
    v_add_u32 v{vVA}, s{sT}, v3""")
    for dt in range(1, 8): a(f"v_xor_b32 v{vVA+dt}, {32*dt}, v{vVA}")
    dma = []
    if loader:
        if p.swap:
            a(f"""{f"s_bitcmp1_b32 s2, {p.swap}" if p.swap < 99 else f"s_bitcmp1_b32 s{sHL}, 0"}
            s_cselect_b32 s{sKV}, s{sV}, s{sK}
            s_cselect_b32 s{sKV+1}, s{sV+1}, s{sK+1}
            s_cselect_b32 s{sW}, s{sK}, s{sV}
            s_cselect_b32 s{sW+1}, s{sK+1}, s{sV+1}
            s_cselect_b32 s{sXB}, 8192, 0
            s_mov_b32 s{sW+2}, 131072
            s_add_u32 s{sXB}, s{sXB}, s{sRB}""")
        else: a(f"s_mov_b32 s{sXB}, s{sRB}")
        for n in range(2, p.kvd - (1 if p.late and not p.t3 else 0)):
            dma.append([f"s_add_u32 s{sKS}, s{sROT}, {(4 if p.par8 else 2)*n}", f"s_and_b32 s{sKS}, s{sKS}, 31", f"s_lshl_b32 s{sKS}, s{sKS}, 12",
                        f"s_add_u32 s{sKM}, s{sXB}, {65536 + 16384*(n & 1)}"])
            dma += kv_tile_dma(p, sKM, sKS)
    di = 0
    a(f"s_load_dword s{sNONCE}, s[6:7], 0")
    if p.warm and not loader:
        flag_addr(a, 1, FA)
        a(f"s_add_u32 s{sT}, s{sT}, 64\ns_load_dword s{sKN}, s[82:83], s{sT}")
    a(f"v_and_b32 v1, 63, v0\ns_lshl_b32 s{sT}, s{sHL}, 11\ns_add_u32 s{sT}, s{sT}, {QX}\nv_lshl_add_u32 v1, v1, 4, s{sT}")
    units = [(t, s) for t in range(4) for s in range(4)]
    units = ([(4, 2), (4, 3)] + units) if loader else (units + [(4, 0), (4, 1)])
    def conv(a, t, s):
        A0, B0 = acc(t, 2*s), acc(t, 2*s+1)
        for r in range(0, 8, 2): a(f"v_pk_mul_f32 {vr(A0+r, 2)}, {vr(A0+r, 2)}, s[{sSC-1}:{sSC}] op_sel:[0,1] op_sel_hi:[1,1]")
        a(f"v_cvt_pk_bf16_f32 v4, v{A0}, v{A0+1}\nv_cvt_pk_bf16_f32 v5, v{A0+2}, v{A0+3}\nv_cvt_pk_bf16_f32 v6, v{B0}, v{B0+1}\nv_cvt_pk_bf16_f32 v7, v{B0+2}, v{B0+3}")
        for r in range(0, 4, 2): a(f"v_pk_mov_b32 {vr(A0+r, 2)}, 0, 0")
        a("v_permlane32_swap_b32 v4, v6\nv_permlane32_swap_b32 v5, v7")
        for r in range(0, 4, 2): a(f"v_pk_mov_b32 {vr(B0+r, 2)}, 0, 0")
        a("v_permlane16_swap_b32 v4, v6\nv_permlane16_swap_b32 v5, v7\ns_nop 0")
        if loader and t == 4:
            a(f"ds_write_b128 v1, v[4:7] offset:{1024*(s - 2)}\ns_nop 1")
        else:
            q = aQ + (t*4+s)*4
            for r in (0, 2, 1, 3): a(f"v_accvgpr_write_b32 a{q+r}, v{4+r}")
    nb = 6 if p.soft else 10
    later = units[nb:] if p.soft else []
    for n, (t, s) in enumerate(units + [(None, None)]):
        if n == nb:
            assert di == len(dma)
            if loader and p.tst >= 0: a(f"s_bitcmp1_b32 s2, {p.tst}\ns_cbranch_scc0 L_ts\ns_waitcnt vmcnt({p.tsw})\nL_ts:")
            a(f"s_waitcnt lgkmcnt(0)\ns_waitcnt vmcnt({16*(p.kvd - 2 - (1 if p.late and not p.t3 else 0)) if loader else 0})\ns_barrier")
            if not loader:
                for s2 in (2, 3): a(f"ds_read_b128 {ar(aQ + (16 + s2)*4)}, v1 offset:{1024*(s2 - 2)}")
            for x in frag_reads(0, 0)[:8 if p.late else 24]: a(x)
            if p.soft: break
        if t is None: break
        for _ in range(6 if p.soft and p.t3 else 4 if not p.soft else 3):
            if di < len(dma):
                for x in dma[di]: a(x)
                di += 1
        conv(a, t, s)
    for t in range(T): a(f"v_mov_b32 v{vL+t}, 0")
    for j in range(8): a(f"v_mov_b32 v{vS[1]+j}, 0")
    if loader:
        a(f"""s_mov_b32 s{sX}, s{sWO}
        s_mov_b32 s{sX+1}, s{sWO+1}
        s_mov_b32 s{sX+2}, s{sWO+2}
        s_and_b32 s{gLO}, s3, 3
        s_lshl_b32 s{gLO}, s{gLO}, 10
        s_lshl_b32 s{sT}, s{sHL}, 5
        s_add_u32 s{gLO}, s{gLO}, s{sT}
        s_mul_i32 s{gLO}, s{gLO}, 1152
        s_mul_i32 s{sT}, s4, 288
        s_add_u32 s{gLO}, s{gLO}, s{sT}
        s_mov_b32 s{gSTR}, {0 if p.exp & 1 else 73728}
        s_mul_i32 s{gDL2}, s{sHL}, 9216
        s_add_u32 s{gDL2}, s{gDL2}, 18432""")
    else:
        a(f"""s_mov_b32 s{sX}, s{sO}
        s_mov_b32 s{sX+1}, s{sO+1}
        s_mov_b32 s{sX+2}, s{sO+2}
        s_lshl_b32 s{sT}, s4, 1
        s_add_u32 s{sT}, s{sT}, s{sHL}
        s_mul_i32 s{sT}, s{sT}, {4*9216}
        s_sub_u32 s{gLO}, s{sOB}, s{sT}
        s_mul_i32 s{gDL2}, s{sHL}, 9216
        s_add_u32 s{gLO}, s{gLO}, s{gDL2}
        s_movk_i32 s{gSTR}, {0 if p.exp & 2 else 18432}""")
    a(f"""s_lshl_b32 s{gP4}, s4, 2
    s_mov_b32 s{gTAB}, {TAB & 0xffffffff:#x}
    s_mov_b32 s{gTAB+1}, {TAB >> 32:#x}
    s_mov_b32 s{gREDO}, 0
    s_mov_b32 s{sNEG}, {(127+40) << 23:#x}
    s_mov_b32 s{sIT}, 0
    s_mov_b32 s{sHI}, 0""")
    if p.warm and not loader:
        flag_addr(a, 1, FA)
        a(f"""s_add_u32 s{sT}, s{sT}, 64
        v_and_b32 v1, 7, v0
        s_lshr_b32 s80, s3, 2
        s_lshl_b32 s80, s80, 3
        s_add_u32 s80, s80, s5
        s_lshl_b32 s80, s80, 2
        s_add_u32 s80, s80, s4
        s_mul_i32 s80, s80, {PBLK}
        s_add_u32 s80, s80, {P_OFF}
        s_mov_b32 s81, {64*PBLK}
        v_mad_u32_u24 v2, v1, s81, v1
        v_sub_u32 v2, v2, v1
        v_add_u32 v2, s80, v2
        v_mov_b32 v3, s{sT}
        v_cmp_gt_u32 vcc, 4, v1
        s_nop 1
        v_cndmask_b32 v2, v3, v2, vcc
        global_load_dword v{vDUM}, v2, s[82:83] sc1""")
    a(f"s_cmp_eq_u32 s{sNONCE}, 0\ns_cbranch_scc1 L_tag{tag}\nL_tagb{tag}:")
    if loader and p.pace >= 0:
        a(f"s_lshr_b32 s{sSW}, s2, 3\ns_mul_i32 s{sSW+1}, s3, {p.pmul}\ns_add_u32 s{sSW}, s{sSW}, s{sSW+1}\ns_and_b32 s{sSW}, s{sSW}, {p.pmask}\ns_add_u32 s{sSW}, s{sSW}, {p.pace}\ns_sub_u32 s{sSW+1}, s{sSW}, 1")
    if loader and p.fc:
        a(f"""s_lshr_b32 s{sPA}, s2, 3
        s_lshl_b32 s{sPA}, s{sPA}, 7
        s_add_u32 s{sPA}, s{sPA}, {FP}
        s_lshl_b32 s{sT}, s3, 2
        s_add_u32 s{sT}, s{sT}, s{sPA}
        v_mov_b32 v{vFL}, s{sT}""")
    out = A()
    out(f"""L_tag{tag}:
    s_memrealtime s[80:81]
    v_mov_b32 v1, 0
    v_mov_b32 v3, 0
    s_waitcnt lgkmcnt(0)
    s_or_b32 s80, s80, 1
    v_mov_b32 v2, s80
    s_mov_b64 exec, 1
    global_atomic_cmpswap v4, v1, v[2:3], s[6:7] sc0 sc1
    s_waitcnt vmcnt(0)
    s_mov_b64 exec, -1
    v_readfirstlane_b32 s{sNONCE}, v4
    s_nop 1
    s_cmp_eq_u32 s{sNONCE}, 0
    s_cselect_b32 s{sNONCE}, s80, s{sNONCE}
    s_branch L_tagb{tag}""")
    if KT:
        out(f"L_kt{tag}:\ns_mul_i32 s81, s4, {p.ktst}\ns_sub_u32 s81, s{sIT}, s81")
        for i, (st, f0, cnt) in enumerate(KT):
            out(f"s_cmp_eq_u32 s81, {st}\ns_cbranch_scc0 L_kt{tag}{i}")
            for n in range(f0, f0 + cnt):
                out(f"s_add_u32 s80, s{sROT}, {2*n}\ns_and_b32 s80, s80, 31\ns_lshl_b32 s80, s80, 12\ns_nop 0\nbuffer_load_dword v{vDUM}, v{vTCH}, s[{sKV}:{sKV+3}], s80 offen {p.ktfl}")
            out(f"L_kt{tag}{i}:")
        out(f"s_branch L_ktb{tag}")
    if p.twq >= 0 and not loader:
        out("L_tq:")
        wo_touch(out, p, 80, 81)
        out("s_branch L_tqb")
    seq = ([(0, True)] if p.soft else []) + [(0, False), (1, False)]
    for par, peeled in seq:
        if par == 0 and not peeled:
            if p.soft: a(f"s_branch L_a1{tag}")
            align(a, p)
            a(f"L_a{tag}:")
        if par == 1: a(f"L_a1{tag}:")
        dist = p.kvd - (1 if p.late else 0)
        def kvbook(a):
            e0 = p.late and p.t3 and par == 0
            if p.par8: a(f"s_add_u32 s{sT}, s{sIT}, {dist+par}\ns_lshl_b32 s{sKS}, s{sT}, 2\ns_lshr_b32 s{sT}, s{sT}, 2\ns_and_b32 s{sT}, s{sT}, 2\ns_add_u32 s{sKS}, s{sKS}, s{sT}")
            else: a(f"s_lshl_b32 s{sKS}, s{sIT}, 1\ns_add_u32 s{sKS}, s{sKS}, {2*(dist+par)}")
            a(f"""s_add_u32 s{sKS}, s{sKS}, s{sROT}
            s_and_b32 s{sKS}, s{sKS}, 31
            s_lshl_b32 s{sKS}, s{sKS}, 12
            s_xor_b32 s{sKM}, s{sHI}, {0x10000 * (((dist + par) >> 1) & 1)}
            s_add_u32 s{sKM}, s{sKM}, s{sXB}
            s_add_u32 s{sKM}, s{sKM}, {16384*((dist + par) & 1)}
            {f"s_sub_u32 s{sT}, s{sIT}, 1" if e0 else ""}
            s_cmp_ge_u32 s{sT if e0 else sIT}, {16 - dist - par - (1 if e0 else 0)}
            s_cselect_b32 s{sKM}, {LDSOOB}, s{sKM}
            s_cselect_b32 s{sKS}, {OOB}, s{sKS}""")
        def hooks(a):
            if loader:
                a(f"s_cmp_ge_u32 s{sIT}, {14 - 2*par}\ns_cbranch_scc1 L_w{par}\nL_wb{par}:")
                out(f"L_w{par}:")
                if par == 0: g_stage_now(out, p.wofl, 1)
                else:
                    out(f"s_cmp_eq_u32 s{sIT}, 12\ns_cbranch_scc0 L_w1b")
                    g_stage_now(out, p.wofl, 0)
                    out("s_branch L_wb1\nL_w1b:")
                    g_stage_now(out, p.wofl, 2)
                    g_stage_now(out, p.wofl, 3)
                out(f"s_branch L_wb{par}")
            elif par == 0 and p.twown >= 0:
                a(f"""s_cmp_eq_u32 s{sIT}, {p.twown}
                s_cbranch_scc0 L_nt{tag}
                s_and_b32 s{sT}, s3, 3
                s_lshl_b32 s{sT}, s{sT}, 2
                s_add_u32 s{sT}, s{sT}, s4
                s_lshl_b32 s{sT}, s{sT}, 3
                s_add_u32 s{sT}, s{sT}, s5
                s_lshl_b32 s{sT}, s{sT}, 1
                s_add_u32 s{sT}, s{sT}, s{sHL}
                s_mul_i32 s{sT}, s{sT}, {16*1152}
                s_mul_i32 s{sT2}, s4, 288
                s_and_b32 s{sT2}, s{sT2}, 0xff80
                s_add_u32 s{sT}, s{sT}, s{sT2}
                v_and_b32 v1, 63, v0
                v_lshrrev_b32 v2, 2, v1
                v_mul_u32_u24 v2, 1152, v2
                v_and_b32 v1, 3, v1
                v_lshl_add_u32 v1, v1, 7, v2
                buffer_load_dword v{vDUM}, v1, s[{sWO}:{sWO+3}], s{sT} offen {p.twfl}
                L_nt{tag}:""")
            elif par == 0 and p.twpos < 15:
                a(f"s_cmp_eq_u32 s{sIT}, {p.twpos}\ns_cbranch_scc0 L_nt{tag}")
                if p.tsplit >= 0:
                    wo_touch_part(a, p, 0)
                else: wo_touch(a, p)
                a(f"L_nt{tag}:")
            elif par == 1 and p.tw2 == 2:
                a(f"s_cmp_eq_u32 s{sIT}, {p.twpos}\ns_cbranch_scc0 L_nu{tag}")
                wo_touch(a, p, fl="")
                a(f"L_nu{tag}:")
        def top(a):
            if loader: kvbook(a)
            a("s_waitcnt lgkmcnt(0)")
            if loader and p.fc:
                out(f"""L_fc{par}:
                s_add_u32 s74, s{sIT}, {par}
                s_add_u32 s75, s74, s{sNONCE}
                v_mov_b32 v2, s75
                s_mov_b64 exec, 1
                global_store_dword v{vFL}, v2, s[82:83] sc1
                s_mov_b64 exec, -1
                s_mov_b32 s76, 0
                s_cmp_lt_u32 s74, {p.fc + 1}
                s_cbranch_scc1 L_fce{par}
                L_fcl{par}:""")
                for j in range(8): out(f"s_sub_u32 s{sPG+j}, s{sPG+j}, s{sNONCE}\ns_cmp_gt_u32 s{sPG+j}, 31\ns_cselect_b32 s{sPG+j}, 0, s{sPG+j}")
                for j in range(1, 8): out(f"s_min_u32 s{sPG}, s{sPG}, s{sPG+j}")
                out(f"""s_add_u32 s{sPG}, s{sPG}, {p.fc}
                s_cmp_ge_u32 s{sPG}, s74
                s_cbranch_scc1 L_fce{par}
                s_add_u32 s76, s76, 1
                s_cmp_ge_u32 s76, {p.fcs}
                s_cbranch_scc1 L_fce{par}
                s_load_dwordx8 s[{sPG}:{sPG+7}], s[82:83], s{sPA} glc
                s_waitcnt lgkmcnt(0)
                s_branch L_fcl{par}
                L_fce{par}:
                s_load_dwordx8 s[{sPG}:{sPG+7}], s[82:83], s{sPA} glc
                s_branch L_fcb{par}""")
            if not p.late:
                if loader: a(f"s_waitcnt vmcnt({16*(p.kvd - 2)})")
                a("s_barrier")
                hooks(a)
        def mid(a):
            if loader and p.pace >= 0:
                a(f"s_cmp_lt_i32 s{sIT}, s{sSW + par}\ns_cbranch_scc0 L_pc{par}\ns_waitcnt vmcnt({p.pw2})")
                if p.pw3 >= 0: a(f"s_bitcmp1_b32 s2, {p.pbit}\ns_cbranch_scc0 L_pc{par}\ns_waitcnt vmcnt({p.pw3})")
                if p.st0 >= 0 and par == 0: a(f"s_cmp_eq_u32 s{sIT}, 0\ns_cbranch_scc0 L_pc{par}\ns_bitcmp1_b32 s2, {p.pbit}\ns_cbranch_scc0 L_pc{par}\ns_waitcnt vmcnt({p.st0})")
                a(f"L_pc{par}:")
            if loader: a(f"s_waitcnt vmcnt({16*(dist - 1)})")
            a("s_barrier")
            if p.aprof: a(f"s_add_u32 s98, s{sIT}, {par}\ns_mov_b32 s99, m0\ns_mov_b32 m0, s98\nv_writelane_b32 v31, s96, m0\ns_memrealtime s[96:97]\ns_mov_b32 m0, s99")
            hooks(a)
        if peeled:
            assert p.late and not p.fc
            def top0(a):
                if loader: kvbook(a)
                a("s_waitcnt lgkmcnt(0)")
            def mid0(a):
                if loader: a(f"s_waitcnt vmcnt({p.pw2 if p.pace >= 1 else 16*(dist - 1)})")
                a("s_barrier")
                if p.aprof: a("s_memrealtime s[96:97]")
            def ins(a, t):
                for u in later:
                    if u[0] == t: conv(a, *u)
            block(a, p, T, 0, loader, top0, mid0, ins)
            continue
        block(a, p, T, par, loader, top, mid)
    a(f"s_xor_b32 s{sHI}, s{sHI}, 0x10000\ns_add_u32 s{sIT}, s{sIT}, 2\ns_cmp_lt_u32 s{sIT}, 16\ns_cbranch_scc1 L_a{tag}")
    S = vS[(2*T - 1) & 1]
    a("s_nop 0")
    for x in soft2(S, T-1): a(x)
    ls = A(); lanesum(ls, T, "v_add_f32")
    ls = [x.strip() for x in ls.l]
    per = -(-len(ls) // 8)
    weave(a, pv(S, aV[1], T-1), [ls[i*per:(i+1)*per] for i in range(8)])
    stamp(a, p, 3)
    a(f"L_e{tag}:")
    if not loader and p.twpos == 16: wo_touch(a, p)
    a(f"v_mov_b32 v6, v{vL}\nv_mov_b32 v7, v{vL}")
    for t in range(1, T): a(f"v_min_u32 v6, v6, v{vL+t}\nv_max_u32 v7, v7, v{vL+t}")
    a(f"""v_cmp_gt_u32 vcc, {(127-20) << 23:#x}, v6
    v_cmp_lt_u32 s[80:81], s{sNEG}, v7
    s_nop 1
    s_or_b64 vcc, vcc, s[80:81]
    {'s_mov_b64 vcc, -1' if p.force else ''}
    s_cbranch_vccz L_ok{tag}
    v_mov_b32 v6, {LFLAG}
    v_mov_b32 v7, 1
    ds_write_b32 v6, v7
    L_ok{tag}:""")
    for t in range(T): a(f"v_rcp_f32 v{vL+t}, v{vL+t}")
    a("s_nop 0")
    buf = 0
    for sp in range(2):
        for n, (t, s) in enumerate([(t, 2*sp + k) for t in range(T) for k in range(2)]):
            A0 = acc(t, 2*s)
            rp = (vL + t) & ~1
            sel = (vL + t) & 1
            for r in range(0, 8, 2): a(f"v_pk_mul_f32 {vr(A0+r, 2)}, {vr(A0+r, 2)}, {vr(rp, 2)} op_sel:[0,{sel}] op_sel_hi:[1,{sel}]")
            if sp == 0 or not p.defer: d = (8, 12, 80, 84)[buf & 3]; buf += 1
            else: d = KEEP[n]
            for r in range(4): a(f"v_cvt_pk_bf16_f32 v{d+r}, v{A0+2*r}, v{A0+2*r+1}")
            a(f"ds_write_b128 v{vOW}, {vr(d)} offset:{(s >> 1)*STG + (s & 1)*9216 + 1024*t}")
            if sp == 0 or not p.defer:
                for x in o_store(p, t, s, d): a(x)
            for r in range(0, 8, 2):
                if A0 + r < v2ACC + 84: a(f"v_pk_mov_b32 {vr(A0+r, 2)}, 0, 0")
    if not loader and p.twpos == 17: wo_touch(a, p)
    a(f"""s_mov_b32 s{gST}, 0
    s_mov_b32 s{gRI}, 0
    s_mov_b32 s{gC1}, {STG}
    s_mov_b32 s{gC2}, {-3*STG}
    s_mov_b32 s{gDL}, {STG}
    s_mov_b32 s{gM0}, {LDSOOB}
    s_mov_b32 m0, {LDSOOB}
    s_mov_b32 s{gSO}, {OOB}
    s_mov_b32 s{gDST}, s{gDL2}
    v_mov_b32 v1, {LFLAG}""")
    if True:
        flag_addr(a, 1, FA)
        CHK = 0x3cf
        a(f"""s_add_u32 s{gFP}, s82, s{sT}
        s_addc_u32 s{gFP+1}, s83, 0
        s_lshl_b32 s{sT}, s4, 2
        v_mov_b32 v{vPA}, s{sT}
        v_mov_b32 v{vNZ}, s{sNONCE}
        s_mov_b32 s{gOFF}, 0
        s_mov_b32 s{gCHK}, {CHK}
        s_cmp_eq_u32 s{sWAVE}, 0
        s_cselect_b32 s{gPOST}, {16 if p.defer else 8}, 0
        s_add_u32 s64, s{sOB}, 18432
        s_add_u32 s65, s{sOB}, 27648
        s_add_u32 s66, s{sOB}, 22528
        s_add_u32 s61, s{sOB}, 31744
        s_mov_b32 s{gMASK}, {7 if loader else CHK | CHK >> 1}
        s_mov_b64 s[{gF}:{gF+1}], 0""")
    a(f"s_waitcnt lgkmcnt(0)\ns_waitcnt vmcnt({4*T if p.exp & 512 else (0 if p.pa < 0 and p.defer else 2*T) + (3 if not loader and p.twpos == 17 else 0)})")
    a("s_branch L_gemm")
    a.l += out.l
    a(f"L_redo{tag}:")
    a(f"s_waitcnt vmcnt(0) lgkmcnt(0)\ns_barrier\nv_mov_b32 v6, {LFLAG}\nv_mov_b32 v7, 0\nds_write_b32 v6, v7")
    for r in list(range(vKA, vKA+4)) + list(range(vVA, vVA+8)): a(f"v_and_b32 v{r}, 0xffff, v{r}")
    for t in range(T): a(f"v_mov_b32 v{vL+t}, 0xff800000")
    for ps in range(2):
        a(f"s_mov_b32 s{sKS}, 0\nL_r{ps}{tag}:")
        if loader:
            emit(a, kv_tile_dma(p, sRB, sKS, (0, 1) if ps == 0 else (0, 1, 2, 3), plain=True), nop=False)
        a("s_waitcnt vmcnt(0)\ns_barrier")
        for x in frag_reads(0, 0)[:8 if ps == 0 else 24]: a(x)
        a("s_waitcnt lgkmcnt(0)\ns_barrier")
        for t in range(T):
            S = vS[0]
            for x in qk(S, aK[0], t, "0" if ps == 0 else vr(vNM + 4*t)): a(x)
            a("s_nop 7")
            if ps == 0:
                for j in range(0, 8, 2): a(f"v_max3_f32 v{vL+t}, v{vL+t}, v{S+j}, v{S+j+1}")
            else:
                for j in range(8): a(f"v_exp_f32 v{S+j}, v{S+j}")
                for x in soft2(S, t) + pv(S, aV[0], t): a(x)
        a(f"s_add_u32 s{sKS}, s{sKS}, 8192\ns_cmp_lt_u32 s{sKS}, 131072\ns_cbranch_scc1 L_r{ps}{tag}")
        if ps == 0:
            lanesum(a, T, "v_max_f32")
            for t in range(T):
                for r in range(4): a(f"v_sub_f32 v{vNM + 4*t + r}, 0, v{vL+t}")
                a(f"v_mov_b32 v{vL+t}, 0")
            for r in range(32 * T): a(f"v_mov_b32 v{vACC+r}, 0")
    a("s_barrier")
    if loader:
        for st in range(4): g_stage_now(a, p.wofl, st)
    lanesum(a, T, "v_add_f32")
    a(f"s_mov_b32 s{gREDO}, 1\ns_branch L_e{tag}")

def g_reads(par, off):
    A_, B_ = a2A[par], a2B[par]
    rd = []
    for nt in range(3):
        reg, o = (v2A, 32 * nt) if nt < 2 else (v2A + 1, 0)
        rd.append(f"ds_read_b64_tr_b16 {ar(A_ + 4*nt, 2)}, v{reg} offset:{off + o}")
        rd.append(f"ds_read_b64_tr_b16 {ar(A_ + 4*nt + 2, 2)}, v{reg} offset:{off + o + 4608}")
    for u in range(9):
        reg, o = (v2B, 1024 * u) if u < 3 else (v2B + 1 + (u - 3) // 2, 1024 * ((u - 3) & 1))
        rd.append(f"ds_read_b128 {ar(B_ + 4*u)}, v{reg} offset:{off + o}" if not (EXP & 256 and u >= 6) else "s_nop 0")
    return rd
def g_mf(par, n3=3):
    return [f"{MF} {vr(acc2(nt, u))}, {ar(a2A[par] + 4*nt)}, {ar(a2B[par] + 4*u)}, {vr(acc2(nt, u))}" for u in range(9) for nt in range(3 if u < n3 else 2)]

def flag_addr(a, hop, base):
    if hop == 1: a(f"s_lshr_b32 s{sT}, s2, 5\ns_lshl_b32 s{sT}, s{sT}, 3\ns_add_u32 s{sT}, s{sT}, s3")
    else: a(f"s_lshr_b32 s{sT}, s2, 2")
    a(f"s_lshl_b32 s{sT}, s{sT}, {8 if hop == 1 else 7}\ns_add_u32 s{sT}, s{sT}, {base}")
def poll_issue(a):
    a(f"s_load_dwordx4 s[{gF}:{gF+3}], s[82:83], s{sT} glc")
def poll(a, tag, hop, base, issued=False, lim=SPIN, fail=None):
    flag_addr(a, hop, base)
    a(f"s_mov_b32 s{sT2}, 0")
    if issued: a(f"s_branch L_pc{tag}")
    a(f"L_p{tag}:")
    poll_issue(a)
    a(f"""L_pc{tag}:
    s_waitcnt lgkmcnt(0)
    s_xor_b32 s{gF}, s{gF}, s{sNONCE}
    s_xor_b32 s{gF+1}, s{gF+1}, s{sNONCE}
    s_xor_b32 s{gF+2}, s{gF+2}, s{sNONCE}
    s_xor_b32 s{gF+3}, s{gF+3}, s{sNONCE}
    s_or_b64 s[{gF}:{gF+1}], s[{gF}:{gF+1}], s[{gF+2}:{gF+3}]
    s_cbranch_scc0 L_pd{tag}
    s_add_u32 s{sT2}, s{sT2}, 1
    s_cmp_lt_u32 s{sT2}, {lim}
    s_cbranch_scc1 L_p{tag}
    {f"s_cmp_eq_u32 {lim}, 0" if fail else ""}
    {f"s_cbranch_scc1 {fail}" if fail else ""}
    L_pd{tag}:""")
def vpoll(a, tag, hop, base):
    flag_addr(a, hop, base)
    a(f"""v_and_b32 v1, 3, v0
    v_lshl_add_u32 v1, v1, 2, s{sT}
    s_mov_b32 s{sT}, 0
    L_p{tag}:
    global_load_dword v2, v1, s[82:83] sc1
    s_add_u32 s{sT}, s{sT}, 1
    s_waitcnt vmcnt(0)
    v_cmp_ne_u32 vcc, s{sNONCE}, v2
    s_cmp_lt_u32 s{sT}, {SPIN}
    s_cbranch_vccz L_pd{tag}
    s_cbranch_scc1 L_p{tag}
    L_pd{tag}:""")
def post(a, hop, base):
    flag_addr(a, hop, base)
    if hop == 1: a(f"s_lshl_b32 s{sT2}, s4, 2")
    else: a(f"s_and_b32 s{sT2}, s2, 3\ns_lshl_b32 s{sT2}, s{sT2}, 2")
    a(f"""s_add_u32 s{sT}, s{sT}, s{sT2}
    v_mov_b32 v1, s{sT}
    v_mov_b32 v2, s{sNONCE}
    s_mov_b64 exec, 1
    global_store_dword v1, v2, s[82:83] sc1
    s_mov_b64 exec, -1""")

gRET = 54
OSO = {(2, 0): 64, (3, 0): 65, (2, 1): 66, (3, 1): 61}
PSETUP = f"""s_and_b32 s{sT}, s3, 3
s_lshl_b32 s60, s{sT}, 4
s_lshr_b32 s61, s3, 2
s_lshl_b32 s61, s61, 3
s_add_u32 s61, s61, s5
s_add_u32 s60, s60, s61
s_lshl_b32 s60, s60, 2
s_add_u32 s60, s60, s4
s_mul_i32 s60, s60, {PBLK}
s_add_u32 s{sW}, s82, {P_OFF}
s_addc_u32 s{sW+1}, s83, 0
s_mov_b32 s{sW+2}, {256*PBLK}
s_mul_i32 s62, s{sWAVE}, 9216
s_add_u32 s62, s62, s60
s_lshl_b32 s63, s{sWAVE}, 1
s_cmp_eq_u32 s{sWAVE}, 0
s_cselect_b32 s{gQ1}, 3, 0
s_cmp_lt_u32 s{sWAVE}, 2
s_cselect_b32 s{gQ2}, 5, 2
s_cmp_lt_u32 s{sWAVE}, 3
s_cselect_b32 s{gQ3}, 7, 4""".split("\n")
def gemm_stage(a, p, role, un, stores, pub=False, start=0, d0=True, d1=True, hook=True, vm=None, last=False, extra=()):
    fl = p.wofl if role == "w" else p.olfl
    d = g_dma(fl)
    n3 = 2 if role == "o" and p.dd else 3
    n = 18 + n3
    sto = lambda n, q: [It(stores[n], q, q)] if n < len(stores) else []
    a("s_waitcnt lgkmcnt(6)")
    r = g_reads(1, 9216)
    upd = [f"v_add_u32 v{x}, s{gDL}, v{x}" for x in (v2A, v2A + 1, v2B, v2B + 1, v2B + 2, v2B + 3)]
    book0 = [f"s_add_u32 s{gRI}, s{gRI}, 1", f"s_and_b32 s{gRI}, s{gRI}, 3", f"s_cmp_eq_u32 s{gRI}, 3", f"s_cselect_b32 s{gDL}, s{gC2}, s{gC1}"]
    book2 = [f"s_and_b32 s{gSRC}, s{gTAB}, 15", f"s_lshr_b64 s[{gTAB}:{gTAB+1}], s[{gTAB}:{gTAB+1}], 4", f"s_add_u32 s{gSRC}, s{gSRC}, s{gP4}",
             f"s_and_b32 s{gSRC}, s{gSRC}, 15", f"s_mul_i32 s{gSRC}, s{gSRC}, s{gSTR}", f"s_add_u32 s{gSRC}, s{gSRC}, s{gLO}"]
    book1 = book2 + [f"s_cmp_ge_u32 s{gST}, 12", f"s_cselect_b32 s{gM0}, {LDSOOB}, s{gDST}", f"s_cselect_b32 s{gSO}, {OOB}, s{gSRC}",
             f"s_add_u32 s{gDST}, s{gDST}, s{gDL}"] + book0 + ([] if un else [f"s_bitcmp1_b32 s{gMASK}, s{gST}"])
    rp = [0, 0, 1, 1, 2, 2, 3, 5, 6, 8, 9, 11, 12, 14, 15]
    dm = flat_dma(d[3:], [4, 7, 10, 13, 16, 19])
    k = next(i for i, x in enumerate(dm) if x.k == "M" and x.lo == 7)
    k2 = next(i for i, x in enumerate(dm) if x.k == "M" and x.lo == 19)
    dm = dm[:k] + sto(0, 5 if role == "o" else 6) + dm[k:k2] + sto(1, 17 if role == "o" else 18) + dm[k2:]
    if not d0: dm = [x for x in dm if x.t.startswith("buffer_store")]
    flo = [It(x, q, q) for x, q in zip(r[:9], rp)] + [It("s_waitcnt lgkmcnt(9)", 7, 8) if n3 == 3 else It("s_waitcnt lgkmcnt(8)", 6, 6)] + [It(x, q, q) for x, q in zip(r[9:], rp[9:])] + \
          dm + sto(3, n - 1) + [It(x, 0, n - 1) for x in upd]
    flo[9].W = {"x"}; flo[9].R = set()
    if n3 == 2: flo[8], flo[9] = flo[9], flo[8]
    for it in flo[7 + n3:16]: it.R = it.R | {"x"}
    gaps, over = schedule(n, [], flo)
    assert any("lgkmcnt" in x for g in gaps[6:6 + n3] for x in g)
    if VERB: print("gemm step0 over", over, file=sys.stderr)
    weave(a, g_mf(0, n3), gaps)
    mf = g_mf(1, n3)
    a("s_waitcnt lgkmcnt(6)")
    if vm is not None or last: book1 = book0
    gaps, over = schedule(6, [], [It(x, 0, 5) for x in book1])
    weave(a, mf[:6], gaps)
    if pub:
        a(f"s_waitcnt vmcnt({sum(1 for x in a.l[start:] if x.strip().startswith('buffer_'))})")
    if vm is not None: a(f"s_waitcnt vmcnt({vm})")
    if last: a("s_waitcnt lgkmcnt(0)\ns_barrier")
    elif un: a(f"s_call_b64 s[{gRET}:{gRET+1}], L_ho" if role == "o" and hook else "s_waitcnt lgkmcnt(0)\ns_barrier")
    if pub and role == "o": a(f"s_lshr_b32 exec_lo, s{gPOST}, 4\ns_mov_b32 exec_hi, 0\nglobal_store_dword v{vPA}, v{vNZ}, s[{gFP}:{gFP+1}] sc1\ns_mov_b64 exec, -1")
    if un: pass
    elif role == "o": a(f"s_cbranch_scc1 L_ho\ns_waitcnt lgkmcnt(0)\ns_waitcnt vmcnt(18)\ns_barrier\nL_hc{role}:")
    elif p.defer: a("s_waitcnt lgkmcnt(0)\ns_waitcnt vmcnt(18)\ns_barrier")
    else: a(f"s_waitcnt lgkmcnt(0)\ns_cbranch_scc1 L_hw\ns_waitcnt vmcnt(18)\nL_hw:\ns_barrier\nL_hc{role}:")
    if p.gprof: a(f"s_mov_b32 m0, s{gST}\nv_writelane_b32 v31, s98, m0\n{'s_memtime' if p.cyc else 's_memrealtime'} s[98:99]")
    r = g_reads(0, 0)
    rp = [0, 0, 1, 1, 2, 2, 3, 4, 5, 7, 8, 10, 11, 13, 14] if n3 == 3 else [0, 0, 1, 1, 2, 2, 3, 4, 5, 7, 8, 10, 11, 13, 13]
    if last: r = []
    gaps, over = schedule(n - 6, [], [It(x, 0, n - 7) for x in extra] + [It(x, q, q) for x, q in zip(r, rp)] + sto(2, 3 if role == "o" else 4) + (flat_dma(d[:3], [6, 9, 12]) if d1 else []) +
                          ([] if last else [It(f"s_add_u32 s{gST}, s{gST}, 1", 7, n - 7)]) + ([] if un else [It(f"s_cmp_lt_u32 s{gST}, {12 if p.tail else 16}", 7, n - 7)]))
    if VERB: print("gemm step1 over", over, file=sys.stderr)
    weave(a, mf[6:], gaps)

def gemm_loop(a, out, p, role):
    fl = p.wofl if role == "w" else p.olfl
    a(f"L_gs{role}:")
    if p.defer:
        T = 5 if role == "o" else 4
        st = [f"buffer_store_dwordx4 {vr(KEEP[n])}, v{vST}, s[{sO}:{sO+3}], s{OSO[(s, int(t == 4))]} offen offset:{1024*(t & 3)} {p.ofl}"
              for n, (t, s) in enumerate([(t, 2 + k) for t in range(T) for k in range(2)])]
        cuts = [0, 4, 7, 10] if T == 5 else [0, 3, 6, 8]
        start = len(a.l)
        for i in range(3):
            o = role == "o"
            gemm_stage(a, p, role, True, st[cuts[i]:cuts[i+1]], p.pa == i, start, d0=not o and i > 0, d1=not o or i == 2, hook=i == 2)
            if o and i == 1:
                j = max(j for j, x in enumerate(a.l) if x.strip() == "s_barrier")
                a.l.insert(j + 1, f"  s_load_dwordx4 s[{gF}:{gF+3}], s[{gFP}:{gFP+1}], s{gOFF} glc")
    elif p.nod:
        if role == "o":
            gemm_stage(a, p, role, True, [], d0=False, d1=False, hook=False)
            gemm_stage(a, p, role, True, [], d0=False, d1=False, hook=False)
            i = max(j for j, x in enumerate(a.l) if x.strip() == "s_barrier")
            a.l.insert(i + 1, f"  s_load_dwordx4 s[{gF}:{gF+3}], s[{gFP}:{gFP+1}], s{gOFF} glc")
            gemm_stage(a, p, role, True, [], d0=False)
        else: gemm_stage(a, p, role, True, [], d0=False)
    if role == "o": a(f"s_getpc_b64 s[{gRET}:{gRET+1}]\nL_gp:\ns_add_u32 s{gRET}, s{gRET}, L_hco-L_gp\ns_addc_u32 s{gRET+1}, s{gRET+1}, 0")
    align(a, p)
    a(f"L_g{role}:")
    gemm_stage(a, p, role, False, [])
    a(f"s_cbranch_scc1 L_g{role}")
    if p.tail:
        gemm_stage(a, p, role, True, [], d1=False, hook=False, vm=18)
        gemm_stage(a, p, role, True, [], d0=False, d1=False, hook=False, vm=9)
        gemm_stage(a, p, role, True, [], d0=False, d1=False, hook=False, vm=0)
        gemm_stage(a, p, role, True, [], d0=False, d1=False, hook=False, last=True, extra=PSETUP)
    if role == "w": return
    out(f"""L_ho:
    s_waitcnt lgkmcnt(0)
    s_bitcmp1_b32 s{gCHK}, s{gST}
    s_cbranch_scc0 L_hx
    s_mov_b32 s{sT2}, 0
    L_hk:
    s_xor_b64 s[{gF}:{gF+1}], s[{gF}:{gF+1}], s[{gNN}:{gNN+1}]
    s_xor_b64 s[{gF+2}:{gF+3}], s[{gF+2}:{gF+3}], s[{gNN}:{gNN+1}]
    s_or_b64 s[{gF}:{gF+1}], s[{gF}:{gF+1}], s[{gF+2}:{gF+3}]
    s_cbranch_scc0 L_hr
    s_bitcmp1_b32 {p.spm:#x}, s{gST}
    s_cbranch_scc1 L_hs
    s_mov_b32 s{gM0}, {LDSOOB}
    s_mov_b32 s{gSO}, {OOB}
    L_hx:
    s_cmp_lt_u32 s{gST}, 3
    s_cbranch_scc1 L_hn
    s_waitcnt vmcnt(18)
    L_hn:
    s_barrier
    s_lshr_b32 s{sT}, s{gCHK}, 1
    s_bitcmp1_b32 s{sT}, s{gST}
    s_cbranch_scc0 L_hp
    s_load_dwordx4 s[{gF}:{gF+3}], s[{gFP}:{gFP+1}], s{gOFF} glc
    L_hp:
    {f"s_cmp_eq_u32 s{gST}, {p.tsplit}" if p.tsplit >= 0 else ""}
    {"s_cbranch_scc1 L_ht" if p.tsplit >= 0 else ""}
    L_hq:
    s_bitcmp1_b32 s{gPOST}, s{gST}
    s_cbranch_scc0 L_hz
    s_mov_b64 exec, 1
    global_store_dword v{vPA}, v{vNZ}, s[{gFP}:{gFP+1}] offset:128 sc1
    s_mov_b64 exec, -1
    L_hz:
    s_setpc_b64 s[{gRET}:{gRET+1}]
    L_hs:
    s_add_u32 s{sT2}, s{sT2}, 1
    s_cmp_ge_u32 s{sT2}, {SPIN}
    s_cbranch_scc1 L_hr
    s_load_dwordx4 s[{gF}:{gF+3}], s[{gFP}:{gFP+1}], s{gOFF} glc
    s_waitcnt lgkmcnt(0)
    s_branch L_hk
    L_hr:
    s_mov_b32 s44, s{gM0}
    s_mov_b32 s45, s{gSO}
    s_cmp_eq_u32 s{gOFF}, 0
    s_cbranch_scc0 L_hr1""")
    for ph, lo in enumerate((0, 6)):
        out(f"L_hr{ph}:")
        if ph == 0: stamp(out, p, 5)
        out(f"s_movk_i32 s{gOFF}, 128\ns_and_b32 s{gCHK}, s{gCHK}, {0x3c0 if ph == 0 else 0}\ns_mov_b32 s{gMASK}, {(0x3ff if p.defer else 0x3ef) if ph == 0 else 0}")
        for j in range(3):
            out(f"s_cmp_gt_u32 s{gST}, {lo + j}\ns_cbranch_scc0 L_hy")
            g_stage_now(out, fl, lo + 4 + j)
        if ph == 0: out("s_branch L_hy")
    out(f"L_hy:\ns_mov_b32 s{gM0}, s44\ns_mov_b32 s{gSO}, s45\ns_branch L_hx")
    if p.tsplit >= 0:
        out("L_ht:")
        wo_touch_part(out, p, 1)
        out("s_branch L_hq")

def back(a, p):
    out = A()
    a(f"""L_gemm:
    s_barrier""")
    stamp(a, p, 4)
    a("ds_read_b32 v2, v1")
    rd0 = g_reads(0, 0)
    for x in rd0[:12]: a(x)
    a(f"""s_waitcnt lgkmcnt(12)
    v_readfirstlane_b32 s{sT}, v2
    {rd0[12]}
    {rd0[13]}
    {rd0[14]}
    s_andn2_b32 s{sT}, s{sT}, s{gREDO}
    s_cbranch_scc1 L_redo
    s_mov_b32 s{gNN}, s{sNONCE}
    s_mov_b32 s{gNN+1}, s{sNONCE}
    s_bitcmp1_b32 s{sWAVE}, 0
    s_cbranch_scc1 L_gsw
""")
    if p.pa < 0: a(f"""s_lshr_b32 exec_lo, s{gPOST}, {4 if p.defer else 3}
    s_mov_b32 exec_hi, 0
    global_store_dword v{vPA}, v{vNZ}, s[{gFP}:{gFP+1}] sc1
    s_mov_b64 exec, -1""")
    if p.twpos == 18: wo_touch(a, p)
    o_touch(a, p, 0)
    out(f"""L_redo:
    s_bitcmp1_b32 s{sWAVE}, 0
    s_cbranch_scc1 L_redos
    s_branch L_redob""")
    gemm_loop(a, out, p, "o")
    a("s_branch L_ge")
    gemm_loop(a, out, p, "w")
    a("L_ge:")
    stamp(a, p, 6)
    if not p.tail:
        for x in PSETUP: a(x)
    a("""v_and_b32 v2, 63, v0\nv_lshlrev_b32 v3, 4, v2\nv_lshlrev_b32 v4, 3, v2""")
    qs = [63, 63, 63, gQ1, gQ1, gQ2, gQ2, gQ3, gQ3]
    qo = [0, 1, 2, 0, 1, 0, 1, 0, 1]
    a(f"s_and_b32 s{sT}, s3, 3\ns_cmp_eq_u32 s{sT}, s{sWAVE}\ns_cbranch_scc1 L_own")
    for own in range(2):
        if own: a(f"s_branch L_pe\nL_own:")
        for u in range(9):
            d = 8 + 4 * (u & 3)
            A0, B0 = acc2(0, u), acc2(1, u)
            a(f"v_cvt_pk_bf16_f32 v{d}, v{A0}, v{A0+1}\nv_cvt_pk_bf16_f32 v{d+1}, v{A0+2}, v{A0+3}\nv_cvt_pk_bf16_f32 v{d+2}, v{B0}, v{B0+1}\nv_cvt_pk_bf16_f32 v{d+3}, v{B0+2}, v{B0+3}")
            if own:
                if qo[u] == 0: a(f"s_lshl_b32 s{sT}, s{qs[u]}, 10\nv_add_u32 v5, s{sT}, v3")
                a(f"ds_write_b128 v5, {vr(d)} offset:{PL + 1024*qo[u]}")
            else:
                a(f"s_lshl_b32 s{sT}, s{qs[u]}, 10\ns_add_u32 s{sT}, s{sT}, s62")
                a(f"buffer_store_dwordx4 {vr(d)}, v3, s[{sW}:{sW+3}], s{sT} offen offset:{1024*qo[u]} {p.pfl}")
        if not own: a(f"s_lshl_b32 s{sT}, s63, 9\ns_add_u32 s{sT}, s{sT}, s60\ns_add_u32 s{sT}, s{sT}, 36864")
        for u in range(3):
            d = 24 + 2 * u
            A0 = acc2(2, u)
            if u == 2 and not own: a(f"s_cmp_eq_u32 s{sWAVE}, 3\ns_cbranch_scc0 L_pe")
            a(f"v_cvt_pk_bf16_f32 v{d}, v{A0}, v{A0+1}\nv_cvt_pk_bf16_f32 v{d+1}, v{A0+2}, v{A0+3}")
            if own: a(f"ds_write_b64 v4, {vr(d, 2)} offset:{PL + 9216 + 512*u}")
            else: a(f"buffer_store_dwordx2 {vr(d, 2)}, v4, s[{sW}:{sW+3}], s{sT} offen offset:{512*u} {p.pfl}")
    a("L_pe:")
    a("s_load_dwordx2 s[68:69], s[0:1], 80")
    a(f"""s_and_b32 s64, s3, 3
    s_lshl_b32 s65, s61, 2
    s_add_u32 s65, s65, s4
    s_mul_i32 s65, s65, {PBLK}
    s_mul_i32 s66, s64, 9216
    s_add_u32 s66, s66, s65
    s_lshl_b32 s{sT}, s{sWAVE}, 10
    s_add_u32 s66, s66, s{sT}
    s_lshl_b32 s67, s64, 1
    s_add_u32 s67, s67, s{sWAVE}
    s_sub_u32 s67, s67, 1
    s_lshl_b32 s72, s67, 9
    s_add_u32 s72, s72, s65
    s_add_u32 s72, s72, 36864
    s_lshr_b32 s73, s3, 2
    s_mul_i32 s73, s73, 1152
    s_mul_i32 s{sT}, s4, 288
    s_add_u32 s73, s73, s{sT}
    s_mul_i32 s{sT}, s5, {144*2304}
    s_add_u32 s73, s73, s{sT}
    s_mul_i32 s74, s67, {16*2304}
    s_add_u32 s74, s74, s73
    s_add_u32 s74, s74, 256
    s_lshl_b32 s{sT}, s64, 6
    s_add_u32 s73, s73, s{sT}
    s_mul_i32 s{sT}, s{sWAVE}, {16*2304}
    s_add_u32 s73, s73, s{sT}
    s_cmp_eq_u32 s{sWAVE}, 3
    s_cselect_b32 s75, 8, s67
    s_cmp_eq_u32 s75, s67
    s_cselect_b32 s72, s72, {OOB}
    s_cselect_b32 s74, s74, {OOB}
    v_and_b32 v5, 15, v2
    s_movk_i32 s{sT}, 2304
    v_lshrrev_b32 v6, 4, v2
    v_lshlrev_b32 v6, 3, v6
    v_mad_u32_u24 v7, v5, s{sT}, v6
    s_mov_b32 s70, {8*144*1152*2}
    s_mov_b32 s71, 0x20000
    s_add_u32 s76, s64, 1
    s_add_u32 s77, s64, 2
    s_add_u32 s78, s64, 3
    s_and_b32 s76, s76, 3
    s_and_b32 s77, s77, 3
    s_and_b32 s78, s78, 3
    s_mul_i32 s76, s76, {64*PBLK}
    s_mul_i32 s77, s77, {64*PBLK}
    s_mul_i32 s78, s78, {64*PBLK}
    v_add_u32 v9, 4096, v3
    s_lshl_b32 s{sT}, s{sWAVE}, 10
    v_add_u32 v10, s{sT}, v3
    s_lshl_b32 s{sT}, s{sWAVE}, 9
    v_add_u32 v11, s{sT}, v4
    s_waitcnt vmcnt(0) lgkmcnt(0)
    s_barrier
    s_cmp_eq_u32 s{sWAVE}, 0
    s_cbranch_scc0 L_n1""")
    post(a, 2, F2)
    a(f"ds_read_b128 v[128:131], v3 offset:{PL + 8192}\ns_branch L_n2\nL_n1:\nds_read_b64 v[128:129], v11 offset:{PL + 9216 - 512}\nL_n2:")
    a(f"ds_read_b128 v[96:99], v10 offset:{PL}\nds_read_b128 v[112:115], v10 offset:{PL + 4096}")
    if p.vp2: vpoll(a, "2", 2, F2)
    else: poll(a, "2", 2, F2)
    stamp(a, p, 7)
    def red(src, stride, n, dst):
        for i in range(n):
            for k in range(4):
                r = src + stride * k + i
                if k == 0: a(f"v_lshlrev_b32 v80, 16, v{r}\nv_and_b32 v81, 0xffff0000, v{r}")
                else: a(f"v_lshlrev_b32 v82, 16, v{r}\nv_and_b32 v83, 0xffff0000, v{r}\nv_pk_add_f32 v[80:81], v[80:81], v[82:83]")
            a(f"v_cvt_pk_bf16_f32 v{dst+i}, v80, v81")
    for u in range(2):
        for k in range(3):
            a(f"s_add_u32 s{sT}, s66, s{76+k}\nbuffer_load_dwordx4 {vr(100 + 16*u + 4*k)}, v{3 if u == 0 else 9}, s[{sW}:{sW+3}], s{sT} offen {p.plfl}")
    a(f"s_cmp_eq_u32 s{sWAVE}, 0\ns_cbranch_scc0 L_r3\ns_add_u32 s66, s66, 8192")
    for k in range(3):
        a(f"s_add_u32 s{sT}, s66, s{76+k}\nbuffer_load_dwordx4 {vr(132 + 4*k)}, v3, s[{sW}:{sW+3}], s{sT} offen {p.plfl}")
    a("s_branch L_r4\nL_r3:")
    for k in range(3):
        a(f"s_add_u32 s{sT}, s72, s{76+k}\nbuffer_load_dwordx2 {vr(132 + 4*k, 2)}, v4, s[{sW}:{sW+3}], s{sT} offen {p.plfl}")
    a("L_r4:\ns_waitcnt lgkmcnt(0)")
    for u in range(2):
        a(f"s_waitcnt vmcnt({6 - u})")
        red(96 + 16*u, 4, 4, 12 + 4*u)
        a(f"buffer_store_dwordx2 {vr(12+4*u, 2)}, v7, s[68:71], s73 offen {p.outfl}\nbuffer_store_dwordx2 {vr(14+4*u, 2)}, v7, s[68:71], s73 offen offset:32 {p.outfl}")
        a(f"s_add_u32 s73, s73, {64*2304}")
    a("s_waitcnt vmcnt(4)")
    a(f"s_cmp_eq_u32 s{sWAVE}, 0\ns_cbranch_scc0 L_r5")
    red(128, 4, 4, 20)
    a(f"buffer_store_dwordx2 v[20:21], v7, s[68:71], s73 offen {p.outfl}\nbuffer_store_dwordx2 v[22:23], v7, s[68:71], s73 offen offset:32 {p.outfl}\ns_branch L_r6\nL_r5:")
    red(128, 4, 2, 20)
    a(f"buffer_store_dwordx2 v[20:21], v7, s[68:71], s74 offen {p.outfl}\nL_r6:")
    if p.stamps:
        a("s_waitcnt vmcnt(0)")
        if not p.pst: stamp(a, p, 8)
        stamp_store(a, p)
    a("L_end:\ns_endpgm")
    a.l += out.l

def kernel(p, K):
    a = A()
    a("s_cmp_ge_u32 s2, 256\ns_cbranch_scc1 L_end")
    if p.perm == 1: a("s_mul_i32 s2, s2, 37\ns_add_u32 s2, s2, 11\ns_and_b32 s2, s2, 255")
    if p.perm == 2: a("s_lshr_b32 s3, s2, 3\ns_and_b32 s2, s2, 7\ns_lshl_b32 s2, s2, 5\ns_or_b32 s2, s2, s3")
    if p.perm == 3: a("s_lshr_b32 s3, s2, 5\ns_and_b32 s2, s2, 31\ns_lshl_b32 s2, s2, 3\ns_or_b32 s2, s2, s3")
    stamp(a, p, 0)
    a(f"""
    s_load_dwordx8 s[52:59], s[0:1], 0
    s_load_dwordx8 s[60:67], s[0:1], 40
    s_load_dwordx2 s[82:83], s[0:1], 96
    s_load_dwordx2 s[94:95], s[0:1], 32
    s_load_dwordx2 s[96:97], s[0:1], 72
    s_load_dwordx2 s[98:99], s[0:1], 88
    v_lshrrev_b32 v1, 6, v0
    v_and_b32 v2, 63, v0
    v_readfirstlane_b32 s{sWAVE}, v1
    s_and_b32 s3, s2, 7
    s_lshr_b32 s4, s2, 3
    s_lshr_b32 s5, s4, 2
    s_and_b32 s4, s4, 3
    s_and_b32 s6, s3, 3
    s_lshl_b32 s6, s6, 3
    s_lshl_b32 s7, s4, 1
    s_add_u32 s6, s6, s7
    s_lshr_b32 s{sHL}, s{sWAVE}, 1
    s_add_u32 s7, s6, s{sHL}
    s_lshl_b32 s{sRB}, s{sHL}, 15
    """)
    if p.rotm == 0: a(f"s_lshr_b32 s{sROT}, s2, 2\ns_and_b32 s{sROT}, s{sROT}, 14\ns_add_u32 s{sROT}, s{sROT}, s{sHL}\ns_lshl_b32 s{sROT}, s{sROT}, 1")
    elif p.rotm == 1: a(f"s_lshr_b32 s{sROT}, s2, 2\ns_and_b32 s{sROT}, s{sROT}, 30\ns_add_u32 s{sROT}, s{sROT}, s{sHL}")
    elif p.rotm == 2: a(f"s_lshr_b32 s{sROT}, s2, 3\ns_lshl_b32 s{sT}, s{sHL}, 4\ns_add_u32 s{sROT}, s{sROT}, s{sT}")
    elif p.rotm == 3: a(f"s_lshl_b32 s{sROT}, s2, 1\ns_add_u32 s{sROT}, s{sROT}, s{sHL}\ns_mul_i32 s{sROT}, s{sROT}, 0x9e3779b1\ns_lshr_b32 s{sROT}, s{sROT}, 27")
    elif p.rotm == 4: a(f"s_lshr_b32 s{sROT}, s2, 2\ns_and_b32 s{sROT}, s{sROT}, 14\ns_add_u32 s{sROT}, s{sROT}, s{sHL}\ns_lshl_b32 s{sROT}, s{sROT}, 1\ns_bfe_u32 s{sT}, s2, 0x10006\ns_add_u32 s{sROT}, s{sROT}, s{sT}")
    a(f"""
    v_lshrrev_b32 v3, 4, v2
    v_and_b32 v4, 15, v2
    v_lshlrev_b32 v5, 1, v3
    v_xor_b32 v5, v5, v4
    v_lshlrev_b32 v5, 4, v5
    v_lshl_add_u32 v{vE}, v3, 8, v5
    v_xor_b32 v{vO_}, 128, v{vE}
    v_lshl_add_u32 v{vWE}, v3, 13, v5
    s_lshl_b32 s{sT}, s7, 8
    v_add_u32 v{vWE}, s{sT}, v{vWE}
    v_xor_b32 v{vWO}, 128, v{vWE}
    v_add_u32 v{vWO}, {8*8192 - 1024}, v{vWO}
    s_lshl_b32 s{sT}, s{sHL}, 2
    v_add_u32 v5, s{sT}, v3
    v_and_b32 v6, 7, v2
    v_xor_b32 v5, v5, v6
    v_lshlrev_b32 v5, 4, v5
    v_lshrrev_b32 v6, 3, v2
    s_lshl_b32 s{sT}, s{sHL}, 3
    v_add_u32 v6, s{sT}, v6
    s_movk_i32 s{sT}, 1152
    v_mad_u32_u24 v{vX}, v6, s{sT}, v5
    s_waitcnt lgkmcnt(0)
    s_cmp_ge_u32 s3, 4
    s_cselect_b32 s52, s60, s52
    s_cselect_b32 s53, s61, s53
    s_cselect_b32 s54, s62, s54
    s_cselect_b32 s55, s63, s55
    s_cselect_b32 s56, s64, s56
    s_cselect_b32 s57, s65, s57
    s_cselect_b32 s58, s66, s58
    s_cselect_b32 s59, s67, s59
    s_cselect_b32 s94, s96, s94
    s_cselect_b32 s95, s97, s95
    s_mul_i32 s{sT}, s5, 165888
    s_add_u32 s{sX}, s52, s{sT}
    s_addc_u32 s{sX+1}, s53, 0
    s_mov_b32 s{sX+2}, 165888
    s_mov_b32 s{sX+3}, 0x20000
    s_mov_b32 s{sW}, s58
    s_mov_b32 s{sW+1}, s59
    s_mov_b32 s{sW+2}, 4718592
    s_mov_b32 s{sW+3}, 0x20000
    s_and_b32 s76, s{sWAVE}, 1
    s_mul_i32 s{sXB}, s{sHL}, 24576
    s_add_u32 s{sXB}, s{sXB}, {WQB}
    s_mul_i32 s{sXS0}, s76, {5*18432}
    s_mul_i32 s{sXM0}, s76, {5*2048}
    s_lshl_b32 s{sT}, s{sHL}, 10
    s_add_u32 s{sXM0}, s{sXM0}, s{sT}
    s_add_u32 s{sXM0}, s{sXM0}, {XBUF}
    s_lshl_b32 s77, s76, 12
    s_add_u32 s77, s77, s{sXB}
    s_lshl_b32 s78, s76, 17
    """)
    def xload(c, a=a, T=None):
        if p.c0: a(f"s_mov_b32 s{sXS}, 0" if c == 0 else f"s_add_u32 s{sXS}, s{sKROT}, 1\ns_lshl_b32 s{sXS}, s{sXS}, 7")
        else: a(f"s_add_u32 s{sXS}, s{sKROT}, {c}\ns_sub_u32 s{sXM}, s{sXS}, 9\ns_cselect_b32 s{sXS}, s{sXS}, s{sXM}\ns_lshl_b32 s{sXS}, s{sXS}, 7")
        a(f"s_add_u32 s{sXM}, s{sXM0}, {18432*c}\ns_add_u32 s{sXS}, s{sXS0}, s{sXS}")
        if T: return emit(a, x_dma(p, T))
        g = x_dma(p, 5)
        emit(a, g[:4])
        a(f"s_cmp_eq_u32 s76, 1\ns_cbranch_scc1 L_x{c}")
        emit(a, g[4:])
        a(f"L_x{c}:")
    def wload(k, a=a):
        a(f"s_add_u32 s{sWM}, s77, {8192*k}\ns_add_u32 s{sWS2}, s{sWS}, {4*8192 - 2048}")
        emit(a, w_dma(p), nop=False)
        emit(a, [w_adv(p)], nop=False)
    a(f"s_mov_b32 s60, s54\ns_mov_b32 s61, s55")
    if p.krot: a(f"s_lshr_b32 s{sKROT}, s4, {p.ksh}\ns_mul_i32 s{sKROT}, s{sKROT}, {p.kc}\ns_add_u32 s{sKROT}, s{sKROT}, s5\n" + (f"s_and_b32 s{sKROT}, s{sKROT}, 7" if p.c0 else f"s_sub_u32 s{sT}, s{sKROT}, 9\ns_cselect_b32 s{sKROT}, s{sKROT}, s{sT}"))
    else: a(f"s_mov_b32 s{sKROT}, 0")
    if p.c0: a(f"s_mov_b32 s{sWS}, s78\ns_add_u32 s{sWEND}, s78, {576*8192}")
    else: a(f"s_lshl_b32 s{sWS}, s{sKROT}, 19\ns_add_u32 s{sWS}, s{sWS}, s78\ns_add_u32 s{sWEND}, s78, {576*8192}")
    if p.rotm == 9:
        a(f"s_lshl_b32 s{sT}, s2, 1\ns_add_u32 s{sT}, s{sT}, s{sHL}\ns_lshl_b32 s{sT}, s{sT}, 2\ns_add_u32 s{sT}, s{sT}, {220 << 20}\ns_load_dword s{sROT}, s[82:83], s{sT}\ns_waitcnt lgkmcnt(0)")
    if p.pst == 1: stamp(a, p, 8)
    xload(0); wload(0)
    if p.pst == 2: stamp(a, p, 8)
    if p.pw >= 0: a(f"s_waitcnt vmcnt({p.pw})")
    wload(1)
    a(f"""
    s_mul_i32 s{sS0}, s4, {p.stag}
    s_add_u32 s{sS0}, s{sS0}, {p.s0}
    s_lshl_b32 s{sT}, s5, 5
    s_add_u32 s{sT}, s{sT}, s7
    s_lshl_b32 s{sT2}, {'s3' if p.kvsame else f's{sT}'}, 17
    s_add_u32 s{sK}, s60, s{sT2}
    s_addc_u32 s{sK+1}, s61, 0
    s_mov_b32 s{sK+2}, 131072
    s_mov_b32 s{sK+3}, 0x20000
    s_add_u32 s{sV}, s56, s{sT2}
    s_addc_u32 s{sV+1}, s57, 0
    s_mov_b32 s{sV+2}, 131072
    s_mov_b32 s{sV+3}, 0x20000
    s_mov_b32 s{sO}, s82
    s_mov_b32 s{sO+1}, s83
    s_mov_b32 s{sO+2}, {O_BYTES}
    s_mov_b32 s{sO+3}, 0x20000
    s_lshr_b32 s{sT2}, s3, 2
    s_lshl_b32 s{sT2}, s{sT2}, 8
    s_add_u32 s{sT}, s{sT}, s{sT2}
    s_mul_i32 s{sOB}, s{sT}, {4*9216}
    s_mov_b32 s{sWO}, s94
    s_mov_b32 s{sWO+1}, s95
    s_mov_b32 s{sWO+2}, 4718592
    s_mov_b32 s{sWO+3}, 0x20000
    s_and_b32 s{sTW}, s3, 3
    s_lshl_b32 s{sTW}, s{sTW}, 5
    s_lshr_b32 s{sT}, s2, 3
    s_add_u32 s{sTW}, s{sTW}, s{sT}
    s_lshl_b32 s{sTW}, s{sTW}, 1
    s_add_u32 s{sTW}, s{sTW}, s{sHL}
    s_mul_i32 s{sTW}, s{sTW}, 18432
    s_cmp_eq_u32 s76, 1
    s_cselect_b32 s{sKV}, s{sV}, s{sK}
    s_cselect_b32 s{sKV+1}, s{sV+1}, s{sK+1}
    s_mov_b32 s{sKV+2}, 131072
    s_mov_b32 s{sKV+3}, 0x20000
    s_lshl_b32 s{sT2}, s76, 13
    s_add_u32 s{sT2}, s{sT2}, s{sRB}
    s_mov_b32 s6, s98
    s_mov_b32 s7, s99
    v_lshlrev_b32 v{vTCH}, 7, v2
    s_mov_b32 s{sIT}, -2
    """)
    def batch2(a, T):
        emit(a, kv_book(p), nop=False); emit(a, kv_dma(p), nop=False)
        xload(1, a, T)
        if p.c0: a(f"s_add_u32 s78, s78, {64*8192}\ns_lshl_b32 s{sWS}, s{sKROT}, 19\ns_add_u32 s{sWS}, s{sWS}, s78")
        a(f"s_add_u32 s{sWM}, s77, {8192*2}\ns_mov_b32 s{WSr[1]}, s{sWS}\ns_add_u32 s{WS2r[1]}, s{sWS}, {4*8192 - 2048}")
        emit(a, w_dma(p, 1)[:4 - p.wsh], nop=False)
        emit(a, [w_adv(p)], nop=False)
        a(f"s_mov_b32 s{sIT}, 0")
        emit(a, kv_book(p), nop=False)
        a(f"s_mov_b32 s{sWM}, s77\ns_add_u32 s{sWS2}, s{sWS}, {4*8192 - 2048}")
    if not p.early: batch2(a, None)
    p.batch2 = batch2
    a(f"s_cmp_eq_u32 s{sWAVE}, 0\ns_cbranch_scc0 L_nc")
    if p.touch_code:
        a(f"""s_getpc_b64 s[80:81]
        L_pc:
        s_sub_u32 s80, s80, L_pc-{K}
        s_subb_u32 s81, s81, 0
        s_lshr_b32 s{sT}, s2, 3
        s_and_b32 s{sT}, s{sT}, 7
        s_lshl_b32 s{sT}, s{sT}, 13
        v_add_u32 v8, s{sT}, v{vTCH}
        s_mov_b32 s{sT}, L_codeend-{K}-4
        v_min_u32 v8, s{sT}, v8
        global_load_dword v{vDUM}, v8, s[80:81]""")
    a(f"""v_mov_b32 v8, {LFLAG}
    v_mov_b32 v9, 0
    ds_write_b32 v8, v9
    s_cmp_lt_u32 s2, 8
    s_cbranch_scc0 L_nc
    s_memrealtime s[80:81]
    v_mov_b32 v11, 0
    s_waitcnt lgkmcnt(0)
    s_or_b32 s80, s80, 1
    v_mov_b32 v10, s80
    s_mov_b64 exec, 1
    global_atomic_cmpswap v9, v[10:11], s[6:7] sc1
    s_mov_b64 exec, -1
    L_nc:""")
    a(f"""
    v_and_b32 v5, 7, v4
    v_lshlrev_b32 v5, 1, v5
    v_xor_b32 v5, v5, v3
    v_lshlrev_b32 v5, 4, v5
    v_lshl_add_u32 v5, v4, 8, v5
    v_add_u32 v{vKA}, s{sRB}, v5
    v_xor_b32 v{vKA+1}, 64, v{vKA}
    v_xor_b32 v{vKA+2}, 128, v{vKA}
    v_xor_b32 v{vKA+3}, 192, v{vKA}
    v_bfe_u32 v5, v2, 2, 2
    v_and_b32 v6, 1, v3
    v_lshl_add_u32 v5, v6, 2, v5
    v_lshrrev_b32 v6, 1, v3
    v_lshl_add_u32 v6, v6, 4, v5
    v_lshlrev_b32 v5, 1, v5
    v_bfe_u32 v7, v2, 1, 1
    v_xor_b32 v5, v5, v7
    v_lshlrev_b32 v5, 4, v5
    v_and_b32 v7, 1, v2
    v_lshl_add_u32 v5, v7, 3, v5
    v_lshl_add_u32 v5, v6, 8, v5
    v_add_u32 v{vVA}, s{sXB}, v5
    s_mov_b32 s{sXB}, s77""")
    for dt in range(1, 8): a(f"v_xor_b32 v{vVA+dt}, {32*dt}, v{vVA}")
    a(f"""
    v_lshrrev_b32 v5, 1, v4
    v_xor_b32 v5, v5, v3
    v_lshlrev_b32 v5, 4, v5
    v_lshl_add_u32 v5, v4, 7, v5
    s_mul_i32 s79, s76, {4*2048}
    s_add_u32 s79, s79, {XBUF}
    v_add_u32 v{vXA}, s79, v5
    v_xor_b32 v{vXA+1}, 64, v{vXA}
    s_mul_i32 s79, s76, {5*1024}
    v_lshl_add_u32 v{vST}, v2, 4, s79
    s_mul_i32 s79, s{sHL}, {2*STG}
    v_add_u32 v{vOW}, s79, v{vST}
    s_mov_b32 s{sSC}, 0x3e0293ee
    s_mov_b32 s{sWSL}, 0
    s_mov_b32 s{sC}, 8192
    s_mov_b32 s{sNEG}, -16384
    s_mov_b32 s{sWD}, 8192
    s_mov_b32 s{sXD}, 18432
    """)
    a(f"s_movk_i32 s79, 3641\ns_mul_i32 s80, s76, 864")
    for j in range(9):
        a(f"""v_add_u32 v5, {64*j}, v2
        v_mul_u32_u24 v6, s79, v5
        v_lshrrev_b32 v6, 16, v6
        v_lshlrev_b32 v5, 4, v5
        v_mad_u32_u24 v5, v6, s80, v5
        v_subrev_u32 v{v2VO+j}, {1024*(j % 4)}, v5""")
    a(f"""
    v_lshrrev_b32 v5, 2, v2
    v_and_b32 v6, 3, v2
    v_lshlrev_b32 v6, 3, v6
    s_movk_i32 s79, 288
    v_mad_u32_u24 v5, v5, s79, v6
    v_add_u32 v{v2A+1}, {18432 + 256}, v5
    s_lshl_b32 s79, s{sWAVE}, 6
    s_add_u32 s79, s79, 18432
    v_add_u32 v{v2A}, s79, v5
    v_lshlrev_b32 v5, 4, v2
    s_lshl_b32 s79, s{sWAVE}, 11
    v_add_u32 v{v2B}, s79, v5
    s_cmp_eq_u32 s{sWAVE}, 0
    s_cselect_b32 s79, 3072, 0
    v_add_u32 v{v2B+1}, s79, v5
    s_cmp_lt_u32 s{sWAVE}, 2
    s_movk_i32 s79, 2048
    s_cselect_b32 s79, 5120, s79
    v_add_u32 v{v2B+2}, s79, v5
    s_cmp_lt_u32 s{sWAVE}, 3
    s_movk_i32 s79, 4096
    s_cselect_b32 s79, 7168, s79
    v_add_u32 v{v2B+3}, s79, v5
    """)
    if p.twq >= 0: a(f"s_mul_i32 s79, s4, {p.twstag}\ns_add_u32 s79, s79, {p.twq}")
    if p.kt: a(f"s_mul_i32 s80, s4, {p.ktst}\ns_lshl_b32 s79, {sum(1 << int(x.split(':')[0]) for x in p.kt.split(','))}, s80")
    if p.tsplit >= 0: wo_touch_setup(a)
    for r in range(0, 160, 2): a(f"v_pk_mov_b32 {vr(vACC+r, 2)}, 0, 0")
    if p.pst == 4: stamp(a, p, 8)
    a(f"s_bitcmp1_b32 s{sWAVE}, 0\ns_cbranch_scc1 L_small")
    wave_front(a, p, 5, False, "b")
    a("L_small:")
    wave_front(a, p, 4, True, "s")
    back(a, p)
    a("L_codeend:")
    return a.text()

def build(p):
    K = KNAME + "_kernel"
    hdr = open("cdna_kernels/" + KNAME + ".s.ref").read().split("; Override launch geometry")[0]
    return hdr + header(["; @launch grid=(256,1,1) block=(256,1,1) lds=163840"]) + kstart(K) + kernel(p, K) + RODATA + kdesc(K, 512, 256)

if __name__ == "__main__":
    ap = argparse.ArgumentParser()
    ap.add_argument("out")
    ap.add_argument("opts", nargs="*")
    x = ap.parse_args()
    p = P()
    VERB = True
    for o in x.opts:
        k, v = o.split("=")
        cur = getattr(p, k)
        setattr(p, k, (v == "1") if isinstance(cur, bool) else int(v) if isinstance(cur, int) else v.replace("+", " "))
    if p.twq >= 0: p.twpos = 15
    EXP = p.exp
    open(x.out, "w").write(build(p))
```

```python
import sys, argparse
sys.path.insert(0, "tools")
from asmlib import *
sys.path.insert(0, 'gen')
from sched import It, schedule
VERB = False
EXP = 0

class P:
    stamps = False
    cyc = False
    xfl = ""; wfl = ""; kvfl = "nt"
    ofl = "sc1"; olfl = "sc1"; wofl = ""; twfl = ""; pfl = "sc1"; plfl = "sc1"; outfl = ""
    s0 = 1; ppe = 2; stag = 0
    rot = True; krot = True
    kvd = 4
    twpos = 12
    rb = False
    fb = 3
    sh = 2
    qb = 4; qr = 6; vlo = 6
    touch_code = True
    force = False
    kvsame = False
    lim = 0
    notouch = False
    limg = 2
    gprof = False
    pa = -1
    kbs = 1
    pb0 = -1
    pb1 = -1
    px = True
    tail = True
    dd = True
    spm = 0x208
    nod = True
    soft = False
    tst = -1
    tsw = 0
    aprof = False
    st0 = -1
    pmul = 0
    pace = 4
    pmask = 7
    pw2 = 8
    pw3 = -1
    pbit = 6
    c0 = False
    kt = ''
    ktfl = ''
    ktst = 0
    tsplit = -1
    tw2 = 0
    dbgst = False
    al = 0
    sh4 = 0
    xsp = 2
    wsh = 0
    qprof = 0
    par8 = False
    fc = 0
    fcs = 64
    twown = -1
    perm = 0
    kc = 4
    ksh = 1
    early = True
    pst = 0
    rotm = 0
    swap = 3
    t3 = False
    vp2 = True
    s1 = 1
    defer = False
    warm = True
    exp = 0
    late = False
    twq = -1
    twstag = 0
    pw = -1

MF = "v_mfma_f32_16x16x32_bf16"
OOB = 0x40000000
LDSOOB = 0x30000
STAMPOFF = 200 << 20
O_BYTES = 16 * 32 * 4 * 9216
P_OFF = 32 << 20
F_OFF = 48 << 20
PBLK = 41472
STG = 36864
LFLAG = 163836
SPIN = 1 << 18
PL = 0

def vr(b, n=4): return f"v[{b}:{b+n-1}]"
def ar(b, n=4): return f"a[{b}:{b+n-1}]"
def weave(a, mfmas, gaps):
    assert len(gaps) <= len(mfmas)
    for i, m in enumerate(mfmas):
        a(m)
        if i < len(gaps):
            for x in gaps[i]: a(x)
def align(a, p):
    if p.al: a(f".p2align {p.al}")
    for _ in range(p.sh4): a("s_nop 0")
def emit(a, gs, nop=True):
    for g in gs:
        for x in g: a(x)
        if nop: a("s_nop 0")
NST = 9
def stamp(a, p, idx):
    if p.stamps: a(f"{'s_memtime' if p.cyc else 's_memrealtime'} s[{84+2*idx}:{85+2*idx}]")
def stamp_store(a, p):
    if not p.stamps: return
    a("s_waitcnt lgkmcnt(0)")
    if p.dbgst:
        a("v_mov_b32 v1, 0\nv_cmp_eq_u32 vcc, 0, v0\ns_and_saveexec_b64 s[44:45], vcc")
        for j in range(NST):
            a(f"s_sub_u32 s46, s{84+2*j}, s{sNONCE}\ns_add_u32 s46, s46, 500\nv_mov_b32 v2, s46\nglobal_atomic_umax v1, v2, s[6:7] offset:{4+4*j} sc1\ns_nop 1")
        a("s_mov_b64 exec, s[44:45]")
        return
    a(f"s_mul_i32 s80, s2, 128\ns_add_u32 s82, s82, s80\ns_addc_u32 s83, s83, 0\ns_add_u32 s82, s82, {STAMPOFF}\ns_addc_u32 s83, s83, 0")
    a("v_mov_b32 v1, 0\nv_cmp_eq_u32 vcc, 0, v0\ns_and_saveexec_b64 s[80:81], vcc")
    for j in range(NST):
        a(f"v_mov_b32 v2, s{84+2*j}\nv_mov_b32 v3, s{85+2*j}\nglobal_store_dwordx2 v1, v[2:3], s[82:83] offset:{8*j}\ns_nop 1")
    a("s_mov_b64 exec, s[80:81]")
    if p.gprof or p.qprof or p.aprof:
        a("v_and_b32 v1, 63, v0\nv_lshlrev_b32 v1, 2, v1\nv_cmp_gt_u32 vcc, 14, v0\ns_and_saveexec_b64 s[80:81], vcc\nglobal_store_dword v1, v31, s[82:83] offset:72\ns_mov_b64 exec, s[80:81]")

vACC = 96; vS = (80, 88); vL = 72; vVA = 64; vKA = 60; vXA = 58
vE, vO_, vWE, vWO, vX, vST, vTCH, vDUM, vOW, vFL = 56, 57, 54, 55, 53, 52, 51, 50, 49, 48
v2VO, v2B, v2A = 32, 41, 45
vNM = 8
aQ = 0; aK = (80, 112); aV = (144, 176); aXB = (208, 228); aWA = (0, 32)
vVB = 8
a2A = (80, 92); a2B = (104, 140)
v2ACC = 96
sX, sW, sK, sV, sO, sKV, sWO = 8, 12, 16, 20, 24, 68, 56
sWAVE, sHL, sROT, sNONCE = 28, 29, 30, 31
sWS, sWM, sXS, sXM, sWD, sXD, sT, sT2, sIT = 32, 33, 34, 35, 36, 37, 38, 39, 40
sKN, sKM, sKS, sRB, sHI, sWSL, sXB = 41, 42, 43, 44, 45, 46, 47
sC, sSC, sOB, sNEG, sKROT, sS0, sWEND, sTW = 48, 49, 50, 51, 52, 53, 54, 55
sWS2, sXM0, sXS0 = 72, 74, 75
gSRC, gSTR, gDST, gST, gQ1, gQ2, gQ3, gRI = 60, 52, 62, 63, 64, 65, 66, 67
gC1, gC2, gDL, gM0, gSO, gDL2, gLO, gHIW = 72, 73, 74, 75, 76, 77, 78, 79
gLOW, gLIM, gREDO, gMASK, gTAB, gP4 = 32, 33, 34, 35, 36, 79
gF = 40
REL = [0, 1, 2, 3, 4, 6, 8, 10, 12, 14, 5, 7, 9, 11, 13, 15]
FA, F2, FP = F_OFF, F_OFF + 32768, F_OFF + 49152
gFP, gOFF, gCHK, gPOST, gNN = 80, 33, 32, 53, 46
vPA, vNZ = 47, 48
sPG = 60
sPA, sPM = 73, 74
sSW = 62
XBUF = 65536
WQB = XBUF + 2 * 18432
QX = 155648
def acc(t, dt): return vACC + (t * 8 + dt) * 4
def acc2(nt, u): return v2ACC + 4 * (nt * 9 + u)

def flat_dma(groups, pos):
    out = []
    for g, q in zip(groups, pos):
        for x in g:
            if x.startswith("s_nop"): continue
            out.append(It(x, q, q + 1) if x.startswith("buffer_") else It(x))
    return out
def read_pos(nrd, start, end, taken):
    free = [i for i in range(start, end) if i not in taken]
    dbl = max(0, nrd - len(free))
    pos = []
    for i in free:
        pos.append(i)
        if dbl > 0: pos.append(i); dbl -= 1
    assert len(pos) >= nrd
    return pos[:nrd]

WDr, WSr, WS2r = (sWD, 62), (sWS, 63), (sWS2, 64)
def w_dma(p, par=0):
    w = lambda v, so, o: f"buffer_load_dwordx4 v{v}, s[{sW}:{sW+3}], s{so} offen offset:{o} {p.wfl} lds"
    return [[f"s_mov_b32 m0, s{sWM}", "s_nop 0", w(vWE, WSr[par], 0)], [w(vWO, WSr[par], 1024)], [w(vWE, WS2r[par], 2048)], [w(vWO, WS2r[par], 3072)]]
def x_dma(p, nX):
    out = []
    for m in range(nX):
        g = [f"s_mov_b32 m0, s{sXM}", "s_nop 0"] if m == 0 else []
        g.append(f"buffer_load_dwordx4 v{vX}, s[{sX}:{sX+3}], s{sXS} offen offset:{2048*(m & 1)} {p.xfl} lds")
        if m + 1 < nX:
            g.append(f"s_add_u32 s{sXS}, s{sXS}, {16384 if m % 2 == 0 else 20480}")
            if m % 2 == 1: g.append("s_add_u32 m0, m0, 4096")
        out.append(g)
    return out
def kv_dma(p):
    out = []
    for j in range(2 * p.ppe):
        g = [f"s_mov_b32 m0, s{sKM}", "s_nop 0"] if j == 0 else []
        if j == 4: g = [f"s_add_u32 m0, s{sKM}, 4096", f"s_add_u32 s{sKS}, s{sKS}, 4096"]
        g.append(f"buffer_load_dwordx4 v{vE if j % 2 == 0 else vO_}, s[{sKV}:{sKV+3}], s{sKS} offen offset:{1024*(j % 4)} {p.kvfl} lds")
        out.append(g)
    return out
def kv_book(p):
    return [[f"s_ashr_i32 s{sKN}, s{sIT}, 1", f"s_sub_u32 s{sKN}, s{sKN}, s{sS0}", f"s_mul_i32 s{sKN}, s{sKN}, {p.ppe}"],
            [f"s_lshr_b32 s{sT}, s{sKN}, 1", f"s_add_u32 s{sKS}, s{sT}, s{sROT}"] + ([f"s_and_b32 s{sT}, s{sT}, 2", f"s_add_u32 s{sKS}, s{sKS}, s{sT}"] if p.par8 else []) + [f"s_and_b32 s{sKS}, s{sKS}, 31"],
            [f"s_lshl_b32 s{sKS}, s{sKS}, 12", f"s_and_b32 s{sT}, s{sKN}, 1", f"s_lshl_b32 s{sT}, s{sT}, 11", f"s_add_u32 s{sKS}, s{sKS}, s{sT}"],
            [f"s_bfe_u32 s{sKM}, s{sKN}, 0x10002", f"s_lshl_b32 s{sKM}, s{sKM}, 14", f"s_and_b32 s{sT}, s{sKN}, 3", f"s_lshl_b32 s{sT}, s{sT}, 11"],
            [f"s_add_u32 s{sKM}, s{sKM}, s{sT}", f"s_add_u32 s{sKM}, s{sKM}, s{sT2}"],
            [f"s_cmp_ge_u32 s{sKN}, {16 if p.px else 8}", f"s_cselect_b32 s{sKM}, {LDSOOB}, s{sKM}", f"s_cselect_b32 s{sKS}, {OOB}, s{sKS}"]]
def x_book(p):
    return [[f"s_add_u32 s{sT}, s{sIT}, 3", f"s_lshr_b32 s{sT}, s{sT}, 1", f"s_add_u32 s{sXS}, s{sT}, s{sKROT}"],
            [f"s_sub_u32 s{sXM}, s{sXS}, {8 if p.c0 else 9}", f"s_cmp_lt_u32 s{sXS}, 9", f"s_cselect_b32 s{sXS}, s{sXS}, s{sXM}", f"s_lshl_b32 s{sXS}, s{sXS}, 7"],
            [f"s_add_u32 s{sXS}, s{sXS}, s{sXS0}", f"s_and_b32 s{sT}, s{sT}, 1", f"s_mul_i32 s{sT}, s{sT}, 18432"],
            [f"s_add_u32 s{sXM}, s{sXM0}, s{sT}"],
            [f"s_cmp_ge_u32 s{sIT}, 15", f"s_cselect_b32 s{sXM}, {LDSOOB}, s{sXM}", f"s_cselect_b32 s{sXS}, {OOB}, s{sXS}"]]
def w_adv(p, src=sWS, dst=sWS):
    return [f"s_add_u32 s{dst}, s{src}, {32*8192}", f"s_cmp_ge_u32 s{dst}, s{sWEND}", f"s_cselect_b32 s{dst}, s78, s{dst}"]
def q_reads(T, par, ks):
    rd = [f"ds_read_b128 {ar(aXB[par] + 4*t)}, v{vXA + ks} offset:{2048*t}" for t in range(T)]
    for dt in range(8):
        rd.append(f"ds_read_b64_tr_b16 {ar(aWA[par] + 4*dt, 2)}, v{vVA+dt}")
        rd.append(f"ds_read_b64_tr_b16 {ar(aWA[par] + 4*dt + 2, 2)}, v{vVA+dt} offset:2048")
    return rd
def qstep(a, p, T, par, more=()):
    A_, B_ = aWA[par], aXB[par]
    e = 2 * p.ppe
    mf = []
    for dt in range(8):
        for u in range(5):
            if T == 5:
                if u == 4 and dt >= 4: continue
                t = u
            else:
                if u == 0 and dt < 4: continue
                t = (u - 1) % 5
            mf.append(f"{MF} {vr(acc(t, dt))}, {ar(A_ + 4*dt)}, {ar(B_ + 4*u)}, {vr(acc(t, dt))}")
    if not p.exp & 128: a("s_waitcnt lgkmcnt(0)")
    if not p.exp & 64: a(f"s_waitcnt vmcnt({e + 4 + (T - p.wsh if par == 0 else 0)})")
    if not p.exp & 32: a("s_barrier")
    if p.qprof: a(f"s_sub_u32 s98, s{sIT}, {p.qprof - 1}\ns_min_u32 m0, s98, 63\nv_writelane_b32 v31, s96, m0\n{'s_memtime' if p.cyc else 's_memrealtime'} s[96:97]")
    upd = [f"v_add_u32 v{vVA+d}, s{WDr[par]}, v{vVA+d}" for d in range(8)]
    if par == 0: upd = [f"v_add_u32 v{vXA}, s{sXD}, v{vXA}", f"v_add_u32 v{vXA+1}, s{sXD}, v{vXA+1}"] + upd
    rd = q_reads(5, par ^ 1, par ^ 1) + list(more)
    dma = (x_dma(p, T) + w_dma(p, 1)[:4 - p.wsh]) if par == 1 else (w_dma(p, 1)[4 - p.wsh:] + w_dma(p, 0) + kv_dma(p))
    q = par ^ 1
    book = [[f"s_add_u32 s{sIT}, s{sIT}, 1"]] + (kv_book(p) if par == 1 else x_book(p)) + \
           [[f"s_add_u32 s{sWSL}, s{sWSL}, 8192", f"s_cmp_eq_u32 s{sWSL}, 24576", f"s_cselect_b32 s{sWSL}, 0, s{sWSL}"],
            [f"s_cmp_eq_u32 s{sWSL}, 8192", f"s_cselect_b32 s{WDr[q]}, s{sNEG}, s{sC}"],
            w_adv(p, WSr[par], WSr[q]) + [f"s_add_u32 s65, s{sWSL}, s{sXB}"],
            [f"s_cmp_ge_u32 s{sIT}, 15", f"s_cselect_b32 s65, {LDSOOB}, s65", f"s_cselect_b32 s{WSr[q]}, {OOB}, s{WSr[q]}"],
            [f"s_add_u32 s{WS2r[q]}, s{WSr[q]}, {4*8192 - 2048}", f"s_mov_b32 s{sWM}, s65"] + ([f"s_sub_u32 s{sXD}, 0, s{sXD}"] if par == 0 else [])]
    n = len(mf)
    pos = [1 + i * (n - p.qb) // len(dma) for i in range(len(dma))]
    if par == 1 and p.xsp:
        x0 = 1 + p.xsp * T + 2
        pos = [1 + p.xsp * i for i in range(T)] + [x0 + i * (n - p.qb - x0) // (len(dma) - T) for i in range(len(dma) - T)]
    rp = read_pos(len(rd), 0, n - p.qr, set(pos))
    if p.exp & 8: dma = [[x for x in g if not x.startswith("buffer")] for g in dma]
    if p.exp & 16: rd = []
    flo = [It(x, q, q + 1) for x, q in zip(rd, rp)] + [It(x, p.vlo, n - 1) for x in upd] + flat_dma(dma, pos) + [It(x, 0, n - 1) for g in book for x in g]
    gaps, over = schedule(n, [], flo)
    if VERB: print(f"qstep T{T} par{par} over", over, file=sys.stderr)
    weave(a, mf, gaps)

def kv_tile_dma(p, sm, ss, parts=(0, 1, 2, 3), plain=False):
    out = []
    d1, d2 = (sK, sV) if plain or not p.swap else (sKV, sW)
    for half, (srd, lo) in enumerate(((d1, 0), (d1, 4096), (d2, 8192), (d2, 12288))):
        if half not in parts: continue
        so = ss if (half & 1) == 0 else sT
        for j in range(4):
            g = []
            if j == 0:
                g = [f"s_xor_b32 m0, s{sm}, {lo}"]
                g += [f"s_add_u32 s{sT}, s{ss}, 4096", f"s_bitset0_b32 s{sT}, 17"] if half == 0 else ["s_nop 0"]
            if p.lim and (j % p.limg == 0): g.append(f"s_waitcnt vmcnt({p.lim - p.limg})")
            g.append(f"buffer_load_dwordx4 v{vE if j % 2 == 0 else vO_}, s[{srd}:{srd+3}], s{so} offen offset:{1024*j} {p.kvfl} lds")
            out.append(g)
    return out
def frag_reads(par, off, vVA=vVA):
    rd = [f"ds_read_b128 {ar(aK[par] + (kt*4+s)*4)}, v{vKA+s} offset:{off + 4096*kt}" for kt in range(2) for s in range(4)]
    for dt in range(8):
        rd.append(f"ds_read_b64_tr_b16 {ar(aV[par] + 4*dt, 2)}, v{vVA+dt} offset:{off}")
        rd.append(f"ds_read_b64_tr_b16 {ar(aV[par] + 4*dt + 2, 2)}, v{vVA+dt} offset:{off + 4096}")
    return rd
def soft2(S, t):
    ad = [f"v_add_f32 v{vL+t}, v{vL+t}, v{S+j}" for j in range(8)]
    cv = [f"v_cvt_pk_bf16_f32 v{S+j}, v{S+2*j}, v{S+2*j+1}" for j in range(4)]
    return ad[:4] + cv + ad[4:]
def qk(S, Kc, t, c0):
    return [f"{MF} {vr(S + 4*kt)}, {ar(Kc + (kt*4+s)*4)}, {ar(aQ + (t*4+s)*4)}, {c0 if s == 0 else vr(S + 4*kt)}" for kt in range(2) for s in range(4)]
def pv(S, Vc, t):
    return [f"{MF} {vr(acc(t, dt))}, {ar(Vc + 4*dt)}, {vr(S)}, {vr(acc(t, dt))}" for dt in range(8)]
def block(a, p, T, par, loader, top, mid, ins=None, nodma=False, nord=False):
    mf, fixed = [], []
    for t in range(T):
        n = par * T + t
        S, Sp = vS[n & 1], vS[(n & 1) ^ 1]
        tp = (t - 1) % T
        mf += qk(S, aK[par], t, "0") + pv(Sp, aV[par ^ 1] if t == 0 else aV[par], tp)
        v2 = soft2(Sp, tp)
        fixed += [v2[0:1], v2[1:3], v2[3:4], v2[4:6], v2[6:7], v2[7:9], v2[9:10], v2[10:12]]
        fixed += [[f"v_exp_f32 v{S+j}, v{S+j}"] for j in range(8)]
    n = 16 * T
    free = [16*t + j for t in range(T) for j in (0, 2, 4, 6)]
    dma = kv_tile_dma(p, sKM, sKS) if loader and not nodma else []
    top(a)
    if not p.late:
        rd = frag_reads(par ^ 1, 16384 * (par ^ 1))
        tog = [f"v_xor_b32 v{r}, 0x10000, v{r}" for r in list(range(vKA, vKA+4)) + list(range(vVA, vVA+8))] if par == 0 else []
        if nord: rd, tog = [], []
        lim = n - 12
        slots = [g for g in free if g < lim]
        extra = [g for g in range(lim) if g not in slots]
        need = len(rd) + len(dma) - len(slots)
        if need > 0: slots = sorted(slots + [extra[(2*i + 1) * len(extra) // (2*need)] for i in range(need)])
        dpos = [slots[(i * len(slots)) // len(dma)] for i in range(len(dma))] if dma else []
        rpos = [g for g in slots if g not in dpos]
        rpos = [max(g, 16) if i >= 8 else g for i, g in enumerate(rpos[:len(rd)])]
        flo = [It(x, q, q + 1) for x, q in zip(rd, rpos)] + flat_dma(dma, dpos) + [It(x, 0, n - 1 - (len(tog) - 1 - i)) for i, x in enumerate(tog)]
        gaps, over = schedule(n, fixed, flo)
        weave(a, mf, gaps)
    else:
        m = n - 16
        rv = frag_reads(par, 16384 * par)[8:]
        vpos = [0, 1, 2, 3, 4, 5, 6, 7, 9, 11, 13, 15, 16, 17, 18, 20]
        togv = [f"v_xor_b32 v{r}, 0x10000, v{r}" for r in range(vVA, vVA+8)] if par == 1 else []
        togk = [f"v_xor_b32 v{r}, 0x10000, v{r}" for r in range(vKA, vKA+4)] if par == 1 else []
        cand = [g for g in range(24 if p.fc else 21, m - 1)]
        dpos = [cand[(i * len(cand)) // len(dma)] for i in range(len(dma))] if dma else []
        flo = [It(x, q, q) for x, q in zip(rv, vpos)] + [It("s_waitcnt lgkmcnt(0)", 23, 23)] + flat_dma(dma, dpos) + \
              [It(x, 22, m - 1 - (11 - i)) for i, x in enumerate(togv + togk)]
        gaps, over = schedule(m, fixed[:m], flo)
        assert any("lgkmcnt" in x for x in gaps[23])
        if loader and p.fc: gaps[23] += [f"s_cmp_eq_u32 s{sWAVE}, 1", f"s_cbranch_scc1 L_fc{par}", f"L_fcb{par}:"]
        if ins:
            for t in range(1, T):
                x = A(); ins(x, t)
                gaps[16*t - 1] += [y.strip() for y in x.l]
        weave(a, mf[:m], gaps)
        mid(a)
        rk = frag_reads(par ^ 1, 16384 * (par ^ 1))[:8]
        gaps, o2 = schedule(16, fixed[m:], [It(x, i, i) for i, x in enumerate(rk)])
        over += o2
        weave(a, mf[m:], gaps)
    if VERB: print(f"block T{T} par{par} over", over, file=sys.stderr)

def wo_touch(a, p, t1=sT, t2=sT2, fl=None):
    if p.notouch: return
    for f in ([fl] if fl is not None else ["nt", ""] if p.tw2 == 1 else ["nt"] if p.tw2 else [p.twfl]):
        a(f"""s_add_u32 s{t2}, s{sTW}, 8192
        s_add_u32 s{t1}, s{sTW}, 10240
        buffer_load_dword v{vDUM}, v{vTCH}, s[{sWO}:{sWO+3}], s{sTW} offen {f}
        buffer_load_dword v{vDUM}, v{vTCH}, s[{sWO}:{sWO+3}], s{t2} offen {f}
        buffer_load_dword v{vDUM}, v{vTCH}, s[{sWO}:{sWO+3}], s{t1} offen {f}""")
        if p.tw2 == 3 and fl is None:
            a("s_waitcnt vmcnt(0)")
            wo_touch(a, p, t1, t2, "")

vT1, vT2 = 28, 29
def wo_touch_setup(a):
    a(f"""v_and_b32 v1, 63, v0
    v_mul_u32_u24 v2, 43, v1
    v_lshrrev_b32 v2, 7, v2
    v_mul_u32_u24 v3, 3, v2
    v_sub_u32 v3, v1, v3
    v_and_b32 v4, 7, v2
    s_lshl_b32 s{sT}, s5, 3
    v_add_u32 v4, s{sT}, v4
    v_mul_u32_u24 v4, 1152, v4
    v_lshl_add_u32 v4, v3, 7, v4
    s_and_b32 s{sT}, s3, 3
    s_mul_i32 s{sT}, s{sT}, {1024*1152}
    s_lshl_b32 s80, s4, 8
    s_add_u32 s{sT}, s{sT}, s80
    v_add_u32 v4, s{sT}, v4
    v_lshrrev_b32 v2, 3, v2
    s_mov_b32 s{sT}, 73728
    v_mad_u32_u24 v{vT1}, v2, s{sT}, v4
    v_mad_u32_u24 v{vT2}, v2, s{sT}, v{vT1}
    v_mov_b32 v3, {OOB}
    v_cmp_gt_u32 vcc, 48, v1
    s_nop 1
    v_cndmask_b32 v{vT1}, v3, v{vT1}, vcc
    v_cndmask_b32 v{vT2}, v3, v{vT2}, vcc""")
def wo_touch_part(a, p, part):
    for r0, r1, v in (((0, 2, vT1), (4, 8, vT2)) if part == 0 else ((12, 5, vT2), (9, 13, vT2))):
        a(f"""s_mul_i32 s{sT}, s{sHL}, {r1 - r0}
        s_add_u32 s{sT}, s{sT}, s{gP4}
        s_add_u32 s{sT}, s{sT}, {r0}
        s_and_b32 s{sT}, s{sT}, 15
        s_mul_i32 s{sT}, s{sT}, 73728
        s_nop 0
        buffer_load_dword v{vDUM}, v{v}, s[{sWO}:{sWO+3}], s{sT} offen {p.twfl}""")
def g_dma(fl):
    out = []
    for j in range(9):
        g = [f"s_add_u32 m0, s{gM0}, {1024*j}", "s_nop 0"] if j % 4 == 0 else []
        g.append(f"buffer_load_dwordx4 v{v2VO+j}, s[{sX}:{sX+3}], s{gSO} offen offset:{1024*(j % 4)} {fl} lds")
        out.append(g)
    return out
def g_stage_now(a, fl, st):
    a(f"s_add_u32 s{gSO}, s{gP4}, {REL[st]}\ns_and_b32 s{gSO}, s{gSO}, 15\ns_mul_i32 s{gSO}, s{gSO}, s{gSTR}\ns_add_u32 s{gSO}, s{gSO}, s{gLO}")
    a(f"s_add_u32 s{gM0}, s{gDL2}, {(st & 3)*STG}")
    emit(a, g_dma(fl), nop=False)
def o_touch(a, p, half):
    if not p.rb: return
    for o in (0, 8192, 10240):
        a(f"s_add_u32 s{sT}, s{sOB}, {half*18432 + o}\ns_nop 0\nbuffer_load_dword v{vDUM}, v{vTCH}, s[{sO}:{sO+3}], s{sT} offen")

KEEP = [16, 20, 24, 28, 192, 196, 200, 204, 224, 228]
def o_store(p, t, s, d):
    return [f"s_add_u32 s{sT}, s{sOB}, {s*9216 + (4096 if t == 4 else 0)}", "s_nop 0",
            f"buffer_store_dwordx4 {vr(d)}, v{vST}, s[{sO}:{sO+3}], s{sT} offen offset:{1024*(t & 3)} {p.ofl}"]
def lanesum(a, T, op):
    for sw in ("v_permlane32_swap_b32", "v_permlane16_swap_b32"):
        for t in range(T): a(f"v_mov_b32 v{1+t}, v{vL+t}")
        a("s_nop 1")
        for t in range(T): a(f"{sw} v{1+t}, v{vL+t}")
        a("s_nop 1")
        for t in range(T): a(f"{op} v{vL+t}, v{vL+t}, v{1+t}")

def wave_front(a, p, T, loader, tag):
    TAB = sum(REL[4+i] << (4*i) for i in range(12))
    e = 2 * p.ppe
    a(f"s_waitcnt vmcnt({4 if p.early else 4 + e + T + 4})\ns_waitcnt lgkmcnt(0)\ns_barrier")
    stamp(a, p, 1)
    for x in q_reads(5, 0, 0): a(x)
    if p.early: p.batch2(a, T)
    for dt in range(8): a(f"v_add_u32 v{vVA+dt}, s{sWD}, v{vVA+dt}")
    align(a, p)
    a(f"L_q{tag}:")
    if p.twq >= 0 and not loader:
        a(f"s_cmp_eq_u32 s{sIT}, s79\ns_cbranch_scc1 L_tq\nL_tqb:")
    KT = [tuple(int(y) for y in x.split(":")) for x in p.kt.split(",") if x]
    if KT: a(f"s_bitcmp1_b32 s79, s{sIT}\ns_cbranch_scc1 L_kt{tag}\nL_ktb{tag}:")
    qstep(a, p, T, 0)
    qstep(a, p, T, 1)
    if p.px:
        assert p.ppe == 2 and p.s0 in (1, 2) and not p.stag and not p.late
        a(f"s_cmp_eq_u32 s{sIT}, 18\ns_cbranch_scc1 L_qe{tag}\ns_cmp_eq_u32 s{sIT}, {4 + 2*p.s0}\ns_cbranch_scc0 L_q{tag}")
        for tile in range(2):
            r = frag_reads(tile, 16384 * tile, vVB)
            qstep(a, p, T, 0); qstep(a, p, T, 1, r[:12]); qstep(a, p, T, 0, r[12:]); qstep(a, p, T, 1)
        a(f"s_branch L_q{tag}\nL_qe{tag}:")
        if p.s0 == 2: emit(a, kv_dma(p), nop=False)
    else: a(f"s_cmp_lt_u32 s{sIT}, 18\ns_cbranch_scc1 L_q{tag}")
    stamp(a, p, 2)
    a("s_waitcnt lgkmcnt(0)")
    for dt in range(8): a(f"v_mov_b32 v{vVA+dt}, v{vVB+dt}")
    dma = []
    if loader:
        if p.swap:
            a(f"""{f"s_bitcmp1_b32 s2, {p.swap}" if p.swap < 99 else f"s_bitcmp1_b32 s{sHL}, 0"}
            s_cselect_b32 s{sKV}, s{sV}, s{sK}
            s_cselect_b32 s{sKV+1}, s{sV+1}, s{sK+1}
            s_cselect_b32 s{sW}, s{sK}, s{sV}
            s_cselect_b32 s{sW+1}, s{sK+1}, s{sV+1}
            s_cselect_b32 s{sXB}, 8192, 0
            s_mov_b32 s{sW+2}, 131072
            s_add_u32 s{sXB}, s{sXB}, s{sRB}""")
        else: a(f"s_mov_b32 s{sXB}, s{sRB}")
        for n in range(2, p.kvd - (1 if p.late and not p.t3 else 0)):
            dma.append([f"s_add_u32 s{sKS}, s{sROT}, {(4 if p.par8 else 2)*(n + (2 if p.px else 0))}", f"s_and_b32 s{sKS}, s{sKS}, 31", f"s_lshl_b32 s{sKS}, s{sKS}, 12",
                        f"s_add_u32 s{sKM}, s{sXB}, {65536 + 16384*(n & 1)}"])
            dma += kv_tile_dma(p, sKM, sKS)
    di = 0
    a(f"s_load_dword s{sNONCE}, s[6:7], 0")
    if p.warm and not loader:
        flag_addr(a, 1, FA)
        a(f"s_add_u32 s{sT}, s{sT}, 64\ns_load_dword s{sKN}, s[82:83], s{sT}")
    a(f"v_and_b32 v1, 63, v0\ns_lshl_b32 s{sT}, s{sHL}, 11\ns_add_u32 s{sT}, s{sT}, {QX}\nv_lshl_add_u32 v1, v1, 4, s{sT}")
    units = [(t, s) for t in range(4) for s in range(4)]
    units = ([(4, 2), (4, 3)] + units) if loader else (units + [(4, 0), (4, 1)])
    def conv(a, t, s):
        A0, B0 = acc(t, 2*s), acc(t, 2*s+1)
        for r in range(0, 8, 2): a(f"v_pk_mul_f32 {vr(A0+r, 2)}, {vr(A0+r, 2)}, s[{sSC-1}:{sSC}] op_sel:[0,1] op_sel_hi:[1,1]")
        a(f"v_cvt_pk_bf16_f32 v4, v{A0}, v{A0+1}\nv_cvt_pk_bf16_f32 v5, v{A0+2}, v{A0+3}\nv_cvt_pk_bf16_f32 v6, v{B0}, v{B0+1}\nv_cvt_pk_bf16_f32 v7, v{B0+2}, v{B0+3}")
        for r in range(0, 4, 2): a(f"v_pk_mov_b32 {vr(A0+r, 2)}, 0, 0")
        a("v_permlane32_swap_b32 v4, v6\nv_permlane32_swap_b32 v5, v7")
        for r in range(0, 4, 2): a(f"v_pk_mov_b32 {vr(B0+r, 2)}, 0, 0")
        a("v_permlane16_swap_b32 v4, v6\nv_permlane16_swap_b32 v5, v7\ns_nop 0")
        if loader and t == 4:
            a(f"ds_write_b128 v1, v[4:7] offset:{1024*(s - 2)}\ns_nop 1")
        else:
            q = aQ + (t*4+s)*4
            for r in (0, 2, 1, 3): a(f"v_accvgpr_write_b32 a{q+r}, v{4+r}")
    nb = 6 if p.soft else 10
    later = units[nb:] if p.soft else []
    for n, (t, s) in enumerate(units + [(None, None)]):
        if n == nb:
            assert di == len(dma)
            if loader and p.tst >= 0: a(f"s_bitcmp1_b32 s2, {p.tst}\ns_cbranch_scc0 L_ts\ns_waitcnt vmcnt({p.tsw})\nL_ts:")
            a(f"s_waitcnt lgkmcnt(0)\ns_waitcnt vmcnt({(16*(p.kvd - 2 - (1 if p.late and not p.t3 else 0)) if loader else 0) + (4 if p.px and p.s0 == 2 else 0)})\ns_barrier")
            if not loader:
                for s2 in (2, 3): a(f"ds_read_b128 {ar(aQ + (16 + s2)*4)}, v1 offset:{1024*(s2 - 2)}")
            for x in frag_reads(0, 0)[:0 if p.px else 8 if p.late else 24]: a(x)
            if p.soft: break
        if t is None: break
        for _ in range(6 if p.soft and p.t3 else 4 if not p.soft else 3):
            if di < len(dma):
                for x in dma[di]: a(x)
                di += 1
        conv(a, t, s)
    for t in range(T): a(f"v_mov_b32 v{vL+t}, 0")
    for j in range(8): a(f"v_mov_b32 v{vS[1]+j}, 0")
    if not p.px:
        for j in range(32): a(f"v_accvgpr_write_b32 a{aV[1]+j}, 0")
    if loader:
        a(f"""s_mov_b32 s{sX}, s{sWO}
        s_mov_b32 s{sX+1}, s{sWO+1}
        s_mov_b32 s{sX+2}, s{sWO+2}
        s_and_b32 s{gLO}, s3, 3
        s_lshl_b32 s{gLO}, s{gLO}, 10
        s_lshl_b32 s{sT}, s{sHL}, 5
        s_add_u32 s{gLO}, s{gLO}, s{sT}
        s_mul_i32 s{gLO}, s{gLO}, 1152
        s_mul_i32 s{sT}, s4, 288
        s_add_u32 s{gLO}, s{gLO}, s{sT}
        s_mov_b32 s{gSTR}, {0 if p.exp & 1 else 73728}
        s_mul_i32 s{gDL2}, s{sHL}, 9216
        s_add_u32 s{gDL2}, s{gDL2}, 18432""")
    else:
        a(f"""s_mov_b32 s{sX}, s{sO}
        s_mov_b32 s{sX+1}, s{sO+1}
        s_mov_b32 s{sX+2}, s{sO+2}
        s_lshl_b32 s{sT}, s4, 1
        s_add_u32 s{sT}, s{sT}, s{sHL}
        s_mul_i32 s{sT}, s{sT}, {4*9216}
        s_sub_u32 s{gLO}, s{sOB}, s{sT}
        s_mul_i32 s{gDL2}, s{sHL}, 9216
        s_add_u32 s{gLO}, s{gLO}, s{gDL2}
        s_movk_i32 s{gSTR}, {0 if p.exp & 2 else 18432}""")
    a(f"""s_lshl_b32 s{gP4}, s4, 2
    s_mov_b32 s{gTAB}, {TAB & 0xffffffff:#x}
    s_mov_b32 s{gTAB+1}, {TAB >> 32:#x}
    s_mov_b32 s{gREDO}, 0
    s_mov_b32 s{sNEG}, {(127+40) << 23:#x}
    s_mov_b32 s{sIT}, 0
    s_mov_b32 s{sHI}, 0""")
    if p.warm and not loader:
        flag_addr(a, 1, FA)
        a(f"""s_add_u32 s{sT}, s{sT}, 64
        v_and_b32 v1, 7, v0
        s_lshr_b32 s80, s3, 2
        s_lshl_b32 s80, s80, 3
        s_add_u32 s80, s80, s5
        s_lshl_b32 s80, s80, 2
        s_add_u32 s80, s80, s4
        s_mul_i32 s80, s80, {PBLK}
        s_add_u32 s80, s80, {P_OFF}
        s_mov_b32 s81, {64*PBLK}
        v_mad_u32_u24 v2, v1, s81, v1
        v_sub_u32 v2, v2, v1
        v_add_u32 v2, s80, v2
        v_mov_b32 v3, s{sT}
        v_cmp_gt_u32 vcc, 4, v1
        s_nop 1
        v_cndmask_b32 v2, v3, v2, vcc
        global_load_dword v{vDUM}, v2, s[82:83] sc1""")
    a(f"s_cmp_eq_u32 s{sNONCE}, 0\ns_cbranch_scc1 L_tag{tag}\nL_tagb{tag}:")
    if loader and p.pace >= 0:
        a(f"s_lshr_b32 s{sSW}, s2, 3\ns_mul_i32 s{sSW+1}, s3, {p.pmul}\ns_add_u32 s{sSW}, s{sSW}, s{sSW+1}\ns_and_b32 s{sSW}, s{sSW}, {p.pmask}\ns_add_u32 s{sSW}, s{sSW}, {p.pace}\ns_sub_u32 s{sSW+1}, s{sSW}, 1")
    if loader and p.fc:
        a(f"""s_lshr_b32 s{sPA}, s2, 3
        s_lshl_b32 s{sPA}, s{sPA}, 7
        s_add_u32 s{sPA}, s{sPA}, {FP}
        s_lshl_b32 s{sT}, s3, 2
        s_add_u32 s{sT}, s{sT}, s{sPA}
        v_mov_b32 v{vFL}, s{sT}""")
    out = A()
    out(f"""L_tag{tag}:
    s_memrealtime s[80:81]
    v_mov_b32 v1, 0
    v_mov_b32 v3, 0
    s_waitcnt lgkmcnt(0)
    s_or_b32 s80, s80, 1
    v_mov_b32 v2, s80
    s_mov_b64 exec, 1
    global_atomic_cmpswap v4, v1, v[2:3], s[6:7] sc0 sc1
    s_waitcnt vmcnt(0)
    s_mov_b64 exec, -1
    v_readfirstlane_b32 s{sNONCE}, v4
    s_nop 1
    s_cmp_eq_u32 s{sNONCE}, 0
    s_cselect_b32 s{sNONCE}, s80, s{sNONCE}
    s_branch L_tagb{tag}""")
    if KT:
        out(f"L_kt{tag}:\ns_mul_i32 s81, s4, {p.ktst}\ns_sub_u32 s81, s{sIT}, s81")
        for i, (st, f0, cnt) in enumerate(KT):
            out(f"s_cmp_eq_u32 s81, {st}\ns_cbranch_scc0 L_kt{tag}{i}")
            for n in range(f0, f0 + cnt):
                out(f"s_add_u32 s80, s{sROT}, {2*n}\ns_and_b32 s80, s80, 31\ns_lshl_b32 s80, s80, 12\ns_nop 0\nbuffer_load_dword v{vDUM}, v{vTCH}, s[{sKV}:{sKV+3}], s80 offen {p.ktfl}")
            out(f"L_kt{tag}{i}:")
        out(f"s_branch L_ktb{tag}")
    if p.twq >= 0 and not loader:
        out("L_tq:")
        wo_touch(out, p, 80, 81)
        out("s_branch L_tqb")
    if p.px:
        assert not p.late
        for par in range(2): block(a, p, T, par, loader, lambda a: a("s_waitcnt lgkmcnt(0)" + (f"\ns_waitcnt vmcnt({p.pb[par]})\ns_barrier" if p.pb[par] >= 0 else "")), None, nodma=True, nord=par == 0)
        a(f"s_mov_b32 s{sIT}, 2")
        if p.s0 == 2 and not loader: a("s_waitcnt vmcnt(0)")
    seq = ([(0, True)] if p.soft else []) + [(0, False), (1, False)]
    for par, peeled in seq:
        if par == 0 and not peeled:
            if p.soft: a(f"s_branch L_a1{tag}")
            align(a, p)
            a(f"L_a{tag}:")
        if par == 1: a(f"L_a1{tag}:")
        dist = p.kvd - (1 if p.late else 0)
        def kvbook(a):
            e0 = p.late and p.t3 and par == 0
            if p.par8: a(f"s_add_u32 s{sT}, s{sIT}, {dist+par}\ns_lshl_b32 s{sKS}, s{sT}, 2\ns_lshr_b32 s{sT}, s{sT}, 2\ns_and_b32 s{sT}, s{sT}, 2\ns_add_u32 s{sKS}, s{sKS}, s{sT}")
            else: a(f"s_lshl_b32 s{sKS}, s{sIT}, 1\ns_add_u32 s{sKS}, s{sKS}, {2*(dist+par)}")
            a(f"""s_add_u32 s{sKS}, s{sKS}, s{sROT}
            s_and_b32 s{sKS}, s{sKS}, 31
            s_lshl_b32 s{sKS}, s{sKS}, 12
            s_xor_b32 s{sKM}, s{sHI}, {0x10000 * (((dist + par) >> 1) & 1)}
            s_add_u32 s{sKM}, s{sKM}, s{sXB}
            s_add_u32 s{sKM}, s{sKM}, {16384*((dist + par) & 1)}
            {f"s_sub_u32 s{sT}, s{sIT}, 1" if e0 else ""}
            s_cmp_ge_u32 s{sT if e0 else sIT}, {16 - dist - par - (1 if e0 else 0)}
            s_cselect_b32 s{sKM}, {LDSOOB}, s{sKM}
            s_cselect_b32 s{sKS}, {OOB}, s{sKS}""")
        def hooks(a):
            if loader and p.px:
                if par == 1:
                    a(f"s_cmp_ge_u32 s{sIT}, 12\ns_cbranch_scc1 L_w1\nL_wb1:")
                    out(f"L_w1:\ns_cmp_eq_u32 s{sIT}, 12\ns_cbranch_scc0 L_w1b")
                    g_stage_now(out, p.wofl, 2); g_stage_now(out, p.wofl, 3)
                    out("s_branch L_wb1\nL_w1b:")
                    g_stage_now(out, p.wofl, 0); g_stage_now(out, p.wofl, 1)
                    out("s_branch L_wb1")
            elif loader:
                a(f"s_cmp_ge_u32 s{sIT}, {14 - 2*par}\ns_cbranch_scc1 L_w{par}\nL_wb{par}:")
                out(f"L_w{par}:")
                if par == 0: g_stage_now(out, p.wofl, 1)
                else:
                    out(f"s_cmp_eq_u32 s{sIT}, 12\ns_cbranch_scc0 L_w1b")
                    g_stage_now(out, p.wofl, 0)
                    out("s_branch L_wb1\nL_w1b:")
                    g_stage_now(out, p.wofl, 2)
                    g_stage_now(out, p.wofl, 3)
                out(f"s_branch L_wb{par}")
            elif par == 0 and p.twown >= 0:
                a(f"""s_cmp_eq_u32 s{sIT}, {p.twown}
                s_cbranch_scc0 L_nt{tag}
                s_and_b32 s{sT}, s3, 3
                s_lshl_b32 s{sT}, s{sT}, 2
                s_add_u32 s{sT}, s{sT}, s4
                s_lshl_b32 s{sT}, s{sT}, 3
                s_add_u32 s{sT}, s{sT}, s5
                s_lshl_b32 s{sT}, s{sT}, 1
                s_add_u32 s{sT}, s{sT}, s{sHL}
                s_mul_i32 s{sT}, s{sT}, {16*1152}
                s_mul_i32 s{sT2}, s4, 288
                s_and_b32 s{sT2}, s{sT2}, 0xff80
                s_add_u32 s{sT}, s{sT}, s{sT2}
                v_and_b32 v1, 63, v0
                v_lshrrev_b32 v2, 2, v1
                v_mul_u32_u24 v2, 1152, v2
                v_and_b32 v1, 3, v1
                v_lshl_add_u32 v1, v1, 7, v2
                buffer_load_dword v{vDUM}, v1, s[{sWO}:{sWO+3}], s{sT} offen {p.twfl}
                L_nt{tag}:""")
                if p.twpos < 15:
                    a(f"s_cmp_eq_u32 s{sIT}, {p.twpos}\ns_cbranch_scc0 L_nv{tag}")
                    wo_touch(a, p)
                    a(f"L_nv{tag}:")
            elif par == 0 and p.twpos < 15:
                a(f"s_cmp_eq_u32 s{sIT}, {p.twpos}\ns_cbranch_scc0 L_nt{tag}")
                if p.tsplit >= 0:
                    wo_touch_part(a, p, 0)
                else: wo_touch(a, p)
                a(f"L_nt{tag}:")
            elif par == 1 and p.tw2 == 2:
                a(f"s_cmp_eq_u32 s{sIT}, {p.twpos}\ns_cbranch_scc0 L_nu{tag}")
                wo_touch(a, p, fl="")
                a(f"L_nu{tag}:")
        def top(a):
            if loader: kvbook(a)
            a("s_waitcnt lgkmcnt(0)")
            if loader and p.fc:
                out(f"""L_fc{par}:
                s_add_u32 s74, s{sIT}, {par}
                s_add_u32 s75, s74, s{sNONCE}
                v_mov_b32 v2, s75
                s_mov_b64 exec, 1
                global_store_dword v{vFL}, v2, s[82:83] sc1
                s_mov_b64 exec, -1
                s_mov_b32 s76, 0
                s_cmp_lt_u32 s74, {p.fc + 1}
                s_cbranch_scc1 L_fce{par}
                L_fcl{par}:""")
                for j in range(8): out(f"s_sub_u32 s{sPG+j}, s{sPG+j}, s{sNONCE}\ns_cmp_gt_u32 s{sPG+j}, 31\ns_cselect_b32 s{sPG+j}, 0, s{sPG+j}")
                for j in range(1, 8): out(f"s_min_u32 s{sPG}, s{sPG}, s{sPG+j}")
                out(f"""s_add_u32 s{sPG}, s{sPG}, {p.fc}
                s_cmp_ge_u32 s{sPG}, s74
                s_cbranch_scc1 L_fce{par}
                s_add_u32 s76, s76, 1
                s_cmp_ge_u32 s76, {p.fcs}
                s_cbranch_scc1 L_fce{par}
                s_load_dwordx8 s[{sPG}:{sPG+7}], s[82:83], s{sPA} glc
                s_waitcnt lgkmcnt(0)
                s_branch L_fcl{par}
                L_fce{par}:
                s_load_dwordx8 s[{sPG}:{sPG+7}], s[82:83], s{sPA} glc
                s_branch L_fcb{par}""")
            if not p.late:
                if loader and p.pace >= 0: a(f"s_cmp_lt_i32 s{sIT}, s{sSW + par}\ns_cbranch_scc0 L_pc{par}\ns_waitcnt vmcnt({p.pw2})\nL_pc{par}:")
                if loader: a(f"s_waitcnt vmcnt({16*(p.kvd - 2)})")
                a("s_barrier")
                if p.aprof: a(f"s_add_u32 s98, s{sIT}, {par - (2 if p.px else 0)}\ns_mov_b32 s99, m0\ns_mov_b32 m0, s98\nv_writelane_b32 v31, s96, m0\ns_memrealtime s[96:97]\ns_mov_b32 m0, s99")
                hooks(a)
        def mid(a):
            if loader and p.pace >= 0:
                a(f"s_cmp_lt_i32 s{sIT}, s{sSW + par}\ns_cbranch_scc0 L_pc{par}\ns_waitcnt vmcnt({p.pw2})")
                if p.pw3 >= 0: a(f"s_bitcmp1_b32 s2, {p.pbit}\ns_cbranch_scc0 L_pc{par}\ns_waitcnt vmcnt({p.pw3})")
                if p.st0 >= 0 and par == 0: a(f"s_cmp_eq_u32 s{sIT}, 0\ns_cbranch_scc0 L_pc{par}\ns_bitcmp1_b32 s2, {p.pbit}\ns_cbranch_scc0 L_pc{par}\ns_waitcnt vmcnt({p.st0})")
                a(f"L_pc{par}:")
            if loader: a(f"s_waitcnt vmcnt({16*(dist - 1)})")
            a("s_barrier")
            if p.aprof: a(f"s_add_u32 s98, s{sIT}, {par}\ns_mov_b32 s99, m0\ns_mov_b32 m0, s98\nv_writelane_b32 v31, s96, m0\ns_memrealtime s[96:97]\ns_mov_b32 m0, s99")
            hooks(a)
        if peeled:
            assert p.late and not p.fc
            def top0(a):
                if loader: kvbook(a)
                a("s_waitcnt lgkmcnt(0)")
            def mid0(a):
                if loader: a(f"s_waitcnt vmcnt({p.pw2 if p.pace >= 1 else 16*(dist - 1)})")
                a("s_barrier")
                if p.aprof: a("s_memrealtime s[96:97]")
            def ins(a, t):
                for u in later:
                    if u[0] == t: conv(a, *u)
            block(a, p, T, 0, loader, top0, mid0, ins)
            continue
        block(a, p, T, par, loader, top, mid)
    a(f"s_xor_b32 s{sHI}, s{sHI}, 0x10000\ns_add_u32 s{sIT}, s{sIT}, 2\ns_cmp_lt_u32 s{sIT}, 16\ns_cbranch_scc1 L_a{tag}")
    S = vS[(2*T - 1) & 1]
    a("s_nop 0")
    for x in soft2(S, T-1): a(x)
    ls = A(); lanesum(ls, T, "v_add_f32")
    ls = [x.strip() for x in ls.l]
    per = -(-len(ls) // 8)
    weave(a, pv(S, aV[1], T-1), [ls[i*per:(i+1)*per] for i in range(8)])
    stamp(a, p, 3)
    a(f"L_e{tag}:")
    if not loader and p.twpos == 16: wo_touch(a, p)
    a(f"v_mov_b32 v6, v{vL}\nv_mov_b32 v7, v{vL}")
    for t in range(1, T): a(f"v_min_u32 v6, v6, v{vL+t}\nv_max_u32 v7, v7, v{vL+t}")
    a(f"""v_cmp_gt_u32 vcc, {(127-20) << 23:#x}, v6
    v_cmp_lt_u32 s[80:81], s{sNEG}, v7
    s_nop 1
    s_or_b64 vcc, vcc, s[80:81]
    {'s_mov_b64 vcc, -1' if p.force else ''}
    s_cbranch_vccz L_ok{tag}
    v_mov_b32 v6, {LFLAG}
    v_mov_b32 v7, 1
    ds_write_b32 v6, v7
    L_ok{tag}:""")
    for t in range(T): a(f"v_rcp_f32 v{vL+t}, v{vL+t}")
    a("s_nop 0")
    buf = 0
    for sp in range(2):
        for n, (t, s) in enumerate([(t, 2*sp + k) for t in range(T) for k in range(2)]):
            A0 = acc(t, 2*s)
            rp = (vL + t) & ~1
            sel = (vL + t) & 1
            for r in range(0, 8, 2): a(f"v_pk_mul_f32 {vr(A0+r, 2)}, {vr(A0+r, 2)}, {vr(rp, 2)} op_sel:[0,{sel}] op_sel_hi:[1,{sel}]")
            if sp == 0 or not p.defer: d = (8, 12, 80, 84)[buf & 3]; buf += 1
            else: d = KEEP[n]
            for r in range(4): a(f"v_cvt_pk_bf16_f32 v{d+r}, v{A0+2*r}, v{A0+2*r+1}")
            a(f"ds_write_b128 v{vOW}, {vr(d)} offset:{(s >> 1)*STG + (s & 1)*9216 + 1024*t}")
            if sp == 0 or not p.defer:
                for x in o_store(p, t, s, d): a(x)
            for r in range(0, 8, 2):
                if A0 + r < v2ACC + 84: a(f"v_pk_mov_b32 {vr(A0+r, 2)}, 0, 0")
    if not loader and p.twpos == 17: wo_touch(a, p)
    a(f"""s_mov_b32 s{gST}, 0
    s_mov_b32 s{gRI}, 0
    s_mov_b32 s{gC1}, {STG}
    s_mov_b32 s{gC2}, {-3*STG}
    s_mov_b32 s{gDL}, {STG}
    s_mov_b32 s{gM0}, {LDSOOB}
    s_mov_b32 m0, {LDSOOB}
    s_mov_b32 s{gSO}, {OOB}
    s_mov_b32 s{gDST}, s{gDL2}
    v_mov_b32 v1, {LFLAG}""")
    if True:
        flag_addr(a, 1, FA)
        CHK = 0x3cf
        a(f"""s_add_u32 s{gFP}, s82, s{sT}
        s_addc_u32 s{gFP+1}, s83, 0
        s_lshl_b32 s{sT}, s4, 2
        v_mov_b32 v{vPA}, s{sT}
        v_mov_b32 v{vNZ}, s{sNONCE}
        s_mov_b32 s{gOFF}, 0
        s_mov_b32 s{gCHK}, {CHK}
        s_cmp_eq_u32 s{sWAVE}, 0
        s_cselect_b32 s{gPOST}, {16 if p.defer else 8}, 0
        s_add_u32 s64, s{sOB}, 18432
        s_add_u32 s65, s{sOB}, 27648
        s_add_u32 s66, s{sOB}, 22528
        s_add_u32 s61, s{sOB}, 31744
        s_mov_b32 s{gMASK}, {7 if loader else CHK | CHK >> 1}
        s_mov_b64 s[{gF}:{gF+1}], 0""")
    a(f"s_waitcnt lgkmcnt(0)\ns_waitcnt vmcnt({4*T if p.exp & 512 else (0 if p.pa < 0 and p.defer else 2*T) + (3 if not loader and p.twpos == 17 else 0)})")
    a("s_branch L_gemm")
    a.l += out.l
    a(f"L_redo{tag}:")
    a(f"s_waitcnt vmcnt(0) lgkmcnt(0)\ns_barrier\nv_mov_b32 v6, {LFLAG}\nv_mov_b32 v7, 0\nds_write_b32 v6, v7")
    for r in list(range(vKA, vKA+4)) + list(range(vVA, vVA+8)): a(f"v_and_b32 v{r}, 0xffff, v{r}")
    for t in range(T): a(f"v_mov_b32 v{vL+t}, 0xff800000")
    for ps in range(2):
        a(f"s_mov_b32 s{sKS}, 0\nL_r{ps}{tag}:")
        if loader:
            emit(a, kv_tile_dma(p, sRB, sKS, (0, 1) if ps == 0 else (0, 1, 2, 3), plain=True), nop=False)
        a("s_waitcnt vmcnt(0)\ns_barrier")
        for x in frag_reads(0, 0)[:8 if ps == 0 else 24]: a(x)
        a("s_waitcnt lgkmcnt(0)\ns_barrier")
        for t in range(T):
            S = vS[0]
            for x in qk(S, aK[0], t, "0" if ps == 0 else vr(vNM + 4*t)): a(x)
            a("s_nop 7")
            if ps == 0:
                for j in range(0, 8, 2): a(f"v_max3_f32 v{vL+t}, v{vL+t}, v{S+j}, v{S+j+1}")
            else:
                for j in range(8): a(f"v_exp_f32 v{S+j}, v{S+j}")
                for x in soft2(S, t) + pv(S, aV[0], t): a(x)
        a(f"s_add_u32 s{sKS}, s{sKS}, 8192\ns_cmp_lt_u32 s{sKS}, 131072\ns_cbranch_scc1 L_r{ps}{tag}")
        if ps == 0:
            lanesum(a, T, "v_max_f32")
            for t in range(T):
                for r in range(4): a(f"v_sub_f32 v{vNM + 4*t + r}, 0, v{vL+t}")
                a(f"v_mov_b32 v{vL+t}, 0")
            for r in range(32 * T): a(f"v_mov_b32 v{vACC+r}, 0")
    a("s_barrier")
    if loader:
        for st in range(4): g_stage_now(a, p.wofl, st)
    lanesum(a, T, "v_add_f32")
    a(f"s_mov_b32 s{gREDO}, 1\ns_branch L_e{tag}")

def g_reads(par, off):
    A_, B_ = a2A[par], a2B[par]
    rd = []
    for nt in range(3):
        reg, o = (v2A, 32 * nt) if nt < 2 else (v2A + 1, 0)
        rd.append(f"ds_read_b64_tr_b16 {ar(A_ + 4*nt, 2)}, v{reg} offset:{off + o}")
        rd.append(f"ds_read_b64_tr_b16 {ar(A_ + 4*nt + 2, 2)}, v{reg} offset:{off + o + 4608}")
    for u in range(9):
        reg, o = (v2B, 1024 * u) if u < 3 else (v2B + 1 + (u - 3) // 2, 1024 * ((u - 3) & 1))
        rd.append(f"ds_read_b128 {ar(B_ + 4*u)}, v{reg} offset:{off + o}" if not (EXP & 256 and u >= 6) else "s_nop 0")
    return rd
def g_mf(par, n3=3):
    return [f"{MF} {vr(acc2(nt, u))}, {ar(a2A[par] + 4*nt)}, {ar(a2B[par] + 4*u)}, {vr(acc2(nt, u))}" for u in range(9) for nt in range(3 if u < n3 else 2)]

def flag_addr(a, hop, base):
    if hop == 1: a(f"s_lshr_b32 s{sT}, s2, 5\ns_lshl_b32 s{sT}, s{sT}, 3\ns_add_u32 s{sT}, s{sT}, s3")
    else: a(f"s_lshr_b32 s{sT}, s2, 2")
    a(f"s_lshl_b32 s{sT}, s{sT}, {8 if hop == 1 else 7}\ns_add_u32 s{sT}, s{sT}, {base}")
def poll_issue(a):
    a(f"s_load_dwordx4 s[{gF}:{gF+3}], s[82:83], s{sT} glc")
def poll(a, tag, hop, base, issued=False, lim=SPIN, fail=None):
    flag_addr(a, hop, base)
    a(f"s_mov_b32 s{sT2}, 0")
    if issued: a(f"s_branch L_pc{tag}")
    a(f"L_p{tag}:")
    poll_issue(a)
    a(f"""L_pc{tag}:
    s_waitcnt lgkmcnt(0)
    s_xor_b32 s{gF}, s{gF}, s{sNONCE}
    s_xor_b32 s{gF+1}, s{gF+1}, s{sNONCE}
    s_xor_b32 s{gF+2}, s{gF+2}, s{sNONCE}
    s_xor_b32 s{gF+3}, s{gF+3}, s{sNONCE}
    s_or_b64 s[{gF}:{gF+1}], s[{gF}:{gF+1}], s[{gF+2}:{gF+3}]
    s_cbranch_scc0 L_pd{tag}
    s_add_u32 s{sT2}, s{sT2}, 1
    s_cmp_lt_u32 s{sT2}, {lim}
    s_cbranch_scc1 L_p{tag}
    {f"s_cmp_eq_u32 {lim}, 0" if fail else ""}
    {f"s_cbranch_scc1 {fail}" if fail else ""}
    L_pd{tag}:""")
def vpoll(a, tag, hop, base):
    flag_addr(a, hop, base)
    a(f"""v_and_b32 v1, 3, v0
    v_lshl_add_u32 v1, v1, 2, s{sT}
    s_mov_b32 s{sT}, 0
    L_p{tag}:
    global_load_dword v2, v1, s[82:83] sc1
    s_add_u32 s{sT}, s{sT}, 1
    s_waitcnt vmcnt(0)
    v_cmp_ne_u32 vcc, s{sNONCE}, v2
    s_cmp_lt_u32 s{sT}, {SPIN}
    s_cbranch_vccz L_pd{tag}
    s_cbranch_scc1 L_p{tag}
    L_pd{tag}:""")
def post(a, hop, base):
    flag_addr(a, hop, base)
    if hop == 1: a(f"s_lshl_b32 s{sT2}, s4, 2")
    else: a(f"s_and_b32 s{sT2}, s2, 3\ns_lshl_b32 s{sT2}, s{sT2}, 2")
    a(f"""s_add_u32 s{sT}, s{sT}, s{sT2}
    v_mov_b32 v1, s{sT}
    v_mov_b32 v2, s{sNONCE}
    s_mov_b64 exec, 1
    global_store_dword v1, v2, s[82:83] sc1
    s_mov_b64 exec, -1""")

gRET = 54
OSO = {(2, 0): 64, (3, 0): 65, (2, 1): 66, (3, 1): 61}
PSETUP = f"""s_and_b32 s{sT}, s3, 3
s_lshl_b32 s60, s{sT}, 4
s_lshr_b32 s61, s3, 2
s_lshl_b32 s61, s61, 3
s_add_u32 s61, s61, s5
s_add_u32 s60, s60, s61
s_lshl_b32 s60, s60, 2
s_add_u32 s60, s60, s4
s_mul_i32 s60, s60, {PBLK}
s_add_u32 s{sW}, s82, {P_OFF}
s_addc_u32 s{sW+1}, s83, 0
s_mov_b32 s{sW+2}, {256*PBLK}
s_mul_i32 s62, s{sWAVE}, 9216
s_add_u32 s62, s62, s60
s_lshl_b32 s63, s{sWAVE}, 1
s_cmp_eq_u32 s{sWAVE}, 0
s_cselect_b32 s{gQ1}, 3, 0
s_cmp_lt_u32 s{sWAVE}, 2
s_cselect_b32 s{gQ2}, 5, 2
s_cmp_lt_u32 s{sWAVE}, 3
s_cselect_b32 s{gQ3}, 7, 4""".split("\n")
def gemm_stage(a, p, role, un, stores, pub=False, start=0, d0=True, d1=True, hook=True, vm=None, last=False, extra=()):
    fl = p.wofl if role == "w" else p.olfl
    d = g_dma(fl)
    n3 = 2 if role == "o" and p.dd else 3
    n = 18 + n3
    sto = lambda n, q: [It(stores[n], q, q)] if n < len(stores) else []
    a("s_waitcnt lgkmcnt(6)")
    r = g_reads(1, 9216)
    upd = [f"v_add_u32 v{x}, s{gDL}, v{x}" for x in (v2A, v2A + 1, v2B, v2B + 1, v2B + 2, v2B + 3)]
    book0 = [f"s_add_u32 s{gRI}, s{gRI}, 1", f"s_and_b32 s{gRI}, s{gRI}, 3", f"s_cmp_eq_u32 s{gRI}, 3", f"s_cselect_b32 s{gDL}, s{gC2}, s{gC1}"]
    book2 = [f"s_and_b32 s{gSRC}, s{gTAB}, 15", f"s_lshr_b64 s[{gTAB}:{gTAB+1}], s[{gTAB}:{gTAB+1}], 4", f"s_add_u32 s{gSRC}, s{gSRC}, s{gP4}",
             f"s_and_b32 s{gSRC}, s{gSRC}, 15", f"s_mul_i32 s{gSRC}, s{gSRC}, s{gSTR}", f"s_add_u32 s{gSRC}, s{gSRC}, s{gLO}"]
    book1 = book2 + [f"s_cmp_ge_u32 s{gST}, 12", f"s_cselect_b32 s{gM0}, {LDSOOB}, s{gDST}", f"s_cselect_b32 s{gSO}, {OOB}, s{gSRC}",
             f"s_add_u32 s{gDST}, s{gDST}, s{gDL}"] + book0 + ([] if un else [f"s_bitcmp1_b32 s{gMASK}, s{gST}"])
    rp = [0, 0, 1, 1, 2, 2, 3, 5, 6, 8, 9, 11, 12, 14, 15]
    dm = flat_dma(d[3:], [4, 7, 10, 13, 16, 19])
    k = next(i for i, x in enumerate(dm) if x.k == "M" and x.lo == 7)
    k2 = next(i for i, x in enumerate(dm) if x.k == "M" and x.lo == 19)
    dm = dm[:k] + sto(0, 5 if role == "o" else 6) + dm[k:k2] + sto(1, 17 if role == "o" else 18) + dm[k2:]
    if not d0: dm = [x for x in dm if x.t.startswith("buffer_store")]
    flo = [It(x, q, q) for x, q in zip(r[:9], rp)] + [It("s_waitcnt lgkmcnt(9)", 7, 8) if n3 == 3 else It("s_waitcnt lgkmcnt(8)", 6, 6)] + [It(x, q, q) for x, q in zip(r[9:], rp[9:])] + \
          dm + sto(3, n - 1) + [It(x, 0, n - 1) for x in upd]
    flo[9].W = {"x"}; flo[9].R = set()
    if n3 == 2: flo[8], flo[9] = flo[9], flo[8]
    for it in flo[7 + n3:16]: it.R = it.R | {"x"}
    gaps, over = schedule(n, [], flo)
    assert any("lgkmcnt" in x for g in gaps[6:6 + n3] for x in g)
    if VERB: print("gemm step0 over", over, file=sys.stderr)
    weave(a, g_mf(0, n3), gaps)
    mf = g_mf(1, n3)
    a("s_waitcnt lgkmcnt(6)")
    if vm is not None or last: book1 = book0
    gaps, over = schedule(6, [], [It(x, 0, 5) for x in book1])
    weave(a, mf[:6], gaps)
    if pub:
        a(f"s_waitcnt vmcnt({sum(1 for x in a.l[start:] if x.strip().startswith('buffer_'))})")
    if vm is not None: a(f"s_waitcnt vmcnt({vm})")
    if last: a("s_waitcnt lgkmcnt(0)\ns_barrier")
    elif un: a(f"s_call_b64 s[{gRET}:{gRET+1}], L_ho" if role == "o" and hook else "s_waitcnt lgkmcnt(0)\ns_barrier")
    if pub and role == "o": a(f"s_lshr_b32 exec_lo, s{gPOST}, 4\ns_mov_b32 exec_hi, 0\nglobal_store_dword v{vPA}, v{vNZ}, s[{gFP}:{gFP+1}] sc1\ns_mov_b64 exec, -1")
    if un: pass
    elif role == "o": a(f"s_cbranch_scc1 L_ho\ns_waitcnt lgkmcnt(0)\ns_waitcnt vmcnt(18)\ns_barrier\nL_hc{role}:")
    elif p.defer: a("s_waitcnt lgkmcnt(0)\ns_waitcnt vmcnt(18)\ns_barrier")
    else: a(f"s_waitcnt lgkmcnt(0)\ns_cbranch_scc1 L_hw\ns_waitcnt vmcnt(18)\nL_hw:\ns_barrier\nL_hc{role}:")
    if p.gprof: a(f"s_mov_b32 m0, s{gST}\nv_writelane_b32 v31, s98, m0\n{'s_memtime' if p.cyc else 's_memrealtime'} s[98:99]")
    r = g_reads(0, 0)
    rp = [0, 0, 1, 1, 2, 2, 3, 4, 5, 7, 8, 10, 11, 13, 14] if n3 == 3 else [0, 0, 1, 1, 2, 2, 3, 4, 5, 7, 8, 10, 11, 13, 13]
    if last: r = []
    gaps, over = schedule(n - 6, [], [It(x, 0, n - 7) for x in extra] + [It(x, q, q) for x, q in zip(r, rp)] + sto(2, 3 if role == "o" else 4) + (flat_dma(d[:3], [6, 9, 12]) if d1 else []) +
                          ([] if last else [It(f"s_add_u32 s{gST}, s{gST}, 1", 7, n - 7)]) + ([] if un else [It(f"s_cmp_lt_u32 s{gST}, {12 if p.tail else 16}", 7, n - 7)]))
    if VERB: print("gemm step1 over", over, file=sys.stderr)
    weave(a, mf[6:], gaps)

def gemm_loop(a, out, p, role):
    fl = p.wofl if role == "w" else p.olfl
    a(f"L_gs{role}:")
    if p.defer:
        T = 5 if role == "o" else 4
        st = [f"buffer_store_dwordx4 {vr(KEEP[n])}, v{vST}, s[{sO}:{sO+3}], s{OSO[(s, int(t == 4))]} offen offset:{1024*(t & 3)} {p.ofl}"
              for n, (t, s) in enumerate([(t, 2 + k) for t in range(T) for k in range(2)])]
        cuts = [0, 4, 7, 10] if T == 5 else [0, 3, 6, 8]
        start = len(a.l)
        for i in range(3):
            o = role == "o"
            gemm_stage(a, p, role, True, st[cuts[i]:cuts[i+1]], p.pa == i, start, d0=not o and i > 0, d1=not o or i == 2, hook=i == 2)
            if o and i == 1:
                j = max(j for j, x in enumerate(a.l) if x.strip() == "s_barrier")
                a.l.insert(j + 1, f"  s_load_dwordx4 s[{gF}:{gF+3}], s[{gFP}:{gFP+1}], s{gOFF} glc")
    elif p.nod:
        if role == "o":
            gemm_stage(a, p, role, True, [], d0=False, d1=False, hook=False)
            gemm_stage(a, p, role, True, [], d0=False, d1=False, hook=False)
            i = max(j for j, x in enumerate(a.l) if x.strip() == "s_barrier")
            a.l.insert(i + 1, f"  s_load_dwordx4 s[{gF}:{gF+3}], s[{gFP}:{gFP+1}], s{gOFF} glc")
            gemm_stage(a, p, role, True, [], d0=False)
        else: gemm_stage(a, p, role, True, [], d0=False)
    if role == "o": a(f"s_getpc_b64 s[{gRET}:{gRET+1}]\nL_gp:\ns_add_u32 s{gRET}, s{gRET}, L_hco-L_gp\ns_addc_u32 s{gRET+1}, s{gRET+1}, 0")
    align(a, p)
    a(f"L_g{role}:")
    gemm_stage(a, p, role, False, [])
    a(f"s_cbranch_scc1 L_g{role}")
    if p.tail:
        gemm_stage(a, p, role, True, [], d1=False, hook=False, vm=18)
        gemm_stage(a, p, role, True, [], d0=False, d1=False, hook=False, vm=9)
        gemm_stage(a, p, role, True, [], d0=False, d1=False, hook=False, vm=0)
        gemm_stage(a, p, role, True, [], d0=False, d1=False, hook=False, last=True, extra=PSETUP)
    if role == "w": return
    out(f"""L_ho:
    s_waitcnt lgkmcnt(0)
    s_bitcmp1_b32 s{gCHK}, s{gST}
    s_cbranch_scc0 L_hx
    s_mov_b32 s{sT2}, 0
    L_hk:
    s_xor_b64 s[{gF}:{gF+1}], s[{gF}:{gF+1}], s[{gNN}:{gNN+1}]
    s_xor_b64 s[{gF+2}:{gF+3}], s[{gF+2}:{gF+3}], s[{gNN}:{gNN+1}]
    s_or_b64 s[{gF}:{gF+1}], s[{gF}:{gF+1}], s[{gF+2}:{gF+3}]
    s_cbranch_scc0 L_hr
    s_bitcmp1_b32 {p.spm:#x}, s{gST}
    s_cbranch_scc1 L_hs
    s_mov_b32 s{gM0}, {LDSOOB}
    s_mov_b32 s{gSO}, {OOB}
    L_hx:
    s_cmp_lt_u32 s{gST}, 3
    s_cbranch_scc1 L_hn
    s_waitcnt vmcnt(18)
    L_hn:
    s_barrier
    s_lshr_b32 s{sT}, s{gCHK}, 1
    s_bitcmp1_b32 s{sT}, s{gST}
    s_cbranch_scc0 L_hp
    s_load_dwordx4 s[{gF}:{gF+3}], s[{gFP}:{gFP+1}], s{gOFF} glc
    L_hp:
    {f"s_cmp_eq_u32 s{gST}, {p.tsplit}" if p.tsplit >= 0 else ""}
    {"s_cbranch_scc1 L_ht" if p.tsplit >= 0 else ""}
    L_hq:
    s_bitcmp1_b32 s{gPOST}, s{gST}
    s_cbranch_scc0 L_hz
    s_mov_b64 exec, 1
    global_store_dword v{vPA}, v{vNZ}, s[{gFP}:{gFP+1}] offset:128 sc1
    s_mov_b64 exec, -1
    L_hz:
    s_setpc_b64 s[{gRET}:{gRET+1}]
    L_hs:
    s_add_u32 s{sT2}, s{sT2}, 1
    s_cmp_ge_u32 s{sT2}, {SPIN}
    s_cbranch_scc1 L_hr
    s_load_dwordx4 s[{gF}:{gF+3}], s[{gFP}:{gFP+1}], s{gOFF} glc
    s_waitcnt lgkmcnt(0)
    s_branch L_hk
    L_hr:
    s_mov_b32 s44, s{gM0}
    s_mov_b32 s45, s{gSO}
    s_cmp_eq_u32 s{gOFF}, 0
    s_cbranch_scc0 L_hr1""")
    for ph, lo in enumerate((0, 6)):
        out(f"L_hr{ph}:")
        if ph == 0: stamp(out, p, 5)
        out(f"s_movk_i32 s{gOFF}, 128\ns_and_b32 s{gCHK}, s{gCHK}, {0x3c0 if ph == 0 else 0}\ns_mov_b32 s{gMASK}, {(0x3ff if p.defer else 0x3ef) if ph == 0 else 0}")
        for j in range(3):
            out(f"s_cmp_gt_u32 s{gST}, {lo + j}\ns_cbranch_scc0 L_hy")
            g_stage_now(out, fl, lo + 4 + j)
        if ph == 0: out("s_branch L_hy")
    out(f"L_hy:\ns_mov_b32 s{gM0}, s44\ns_mov_b32 s{gSO}, s45\ns_branch L_hx")
    if p.tsplit >= 0:
        out("L_ht:")
        wo_touch_part(out, p, 1)
        out("s_branch L_hq")

def back(a, p):
    out = A()
    a(f"""L_gemm:
    s_barrier""")
    stamp(a, p, 4)
    a("ds_read_b32 v2, v1")
    rd0 = g_reads(0, 0)
    for x in rd0[:12]: a(x)
    a(f"""s_waitcnt lgkmcnt(12)
    v_readfirstlane_b32 s{sT}, v2
    {rd0[12]}
    {rd0[13]}
    {rd0[14]}
    s_andn2_b32 s{sT}, s{sT}, s{gREDO}
    s_cbranch_scc1 L_redo
    s_mov_b32 s{gNN}, s{sNONCE}
    s_mov_b32 s{gNN+1}, s{sNONCE}
    s_bitcmp1_b32 s{sWAVE}, 0
    s_cbranch_scc1 L_gsw
""")
    if p.pa < 0: a(f"""s_lshr_b32 exec_lo, s{gPOST}, {4 if p.defer else 3}
    s_mov_b32 exec_hi, 0
    global_store_dword v{vPA}, v{vNZ}, s[{gFP}:{gFP+1}] sc1
    s_mov_b64 exec, -1""")
    if p.twpos == 18: wo_touch(a, p)
    o_touch(a, p, 0)
    out(f"""L_redo:
    s_bitcmp1_b32 s{sWAVE}, 0
    s_cbranch_scc1 L_redos
    s_branch L_redob""")
    gemm_loop(a, out, p, "o")
    a("s_branch L_ge")
    gemm_loop(a, out, p, "w")
    a("L_ge:")
    stamp(a, p, 6)
    if not p.tail:
        for x in PSETUP: a(x)
    a("""v_and_b32 v2, 63, v0\nv_lshlrev_b32 v3, 4, v2\nv_lshlrev_b32 v4, 3, v2""")
    qs = [63, 63, 63, gQ1, gQ1, gQ2, gQ2, gQ3, gQ3]
    qo = [0, 1, 2, 0, 1, 0, 1, 0, 1]
    a(f"s_and_b32 s{sT}, s3, 3\ns_cmp_eq_u32 s{sT}, s{sWAVE}\ns_cbranch_scc1 L_own")
    for own in range(2):
        if own: a(f"s_branch L_pe\nL_own:")
        for u in range(9):
            d = 8 + 4 * (u & 3)
            A0, B0 = acc2(0, u), acc2(1, u)
            a(f"v_cvt_pk_bf16_f32 v{d}, v{A0}, v{A0+1}\nv_cvt_pk_bf16_f32 v{d+1}, v{A0+2}, v{A0+3}\nv_cvt_pk_bf16_f32 v{d+2}, v{B0}, v{B0+1}\nv_cvt_pk_bf16_f32 v{d+3}, v{B0+2}, v{B0+3}")
            if own:
                if qo[u] == 0: a(f"s_lshl_b32 s{sT}, s{qs[u]}, 10\nv_add_u32 v5, s{sT}, v3")
                a(f"ds_write_b128 v5, {vr(d)} offset:{PL + 1024*qo[u]}")
            else:
                a(f"s_lshl_b32 s{sT}, s{qs[u]}, 10\ns_add_u32 s{sT}, s{sT}, s62")
                a(f"buffer_store_dwordx4 {vr(d)}, v3, s[{sW}:{sW+3}], s{sT} offen offset:{1024*qo[u]} {p.pfl}")
        if not own: a(f"s_lshl_b32 s{sT}, s63, 9\ns_add_u32 s{sT}, s{sT}, s60\ns_add_u32 s{sT}, s{sT}, 36864")
        for u in range(3):
            d = 24 + 2 * u
            A0 = acc2(2, u)
            if u == 2 and not own: a(f"s_cmp_eq_u32 s{sWAVE}, 3\ns_cbranch_scc0 L_pe")
            a(f"v_cvt_pk_bf16_f32 v{d}, v{A0}, v{A0+1}\nv_cvt_pk_bf16_f32 v{d+1}, v{A0+2}, v{A0+3}")
            if own: a(f"ds_write_b64 v4, {vr(d, 2)} offset:{PL + 9216 + 512*u}")
            else: a(f"buffer_store_dwordx2 {vr(d, 2)}, v4, s[{sW}:{sW+3}], s{sT} offen offset:{512*u} {p.pfl}")
    a("L_pe:")
    a("s_load_dwordx2 s[68:69], s[0:1], 80")
    a(f"""s_and_b32 s64, s3, 3
    s_lshl_b32 s65, s61, 2
    s_add_u32 s65, s65, s4
    s_mul_i32 s65, s65, {PBLK}
    s_mul_i32 s66, s64, 9216
    s_add_u32 s66, s66, s65
    s_lshl_b32 s{sT}, s{sWAVE}, 10
    s_add_u32 s66, s66, s{sT}
    s_lshl_b32 s67, s64, 1
    s_add_u32 s67, s67, s{sWAVE}
    s_sub_u32 s67, s67, 1
    s_lshl_b32 s72, s67, 9
    s_add_u32 s72, s72, s65
    s_add_u32 s72, s72, 36864
    s_lshr_b32 s73, s3, 2
    s_mul_i32 s73, s73, 1152
    s_mul_i32 s{sT}, s4, 288
    s_add_u32 s73, s73, s{sT}
    s_mul_i32 s{sT}, s5, {144*2304}
    s_add_u32 s73, s73, s{sT}
    s_mul_i32 s74, s67, {16*2304}
    s_add_u32 s74, s74, s73
    s_add_u32 s74, s74, 256
    s_lshl_b32 s{sT}, s64, 6
    s_add_u32 s73, s73, s{sT}
    s_mul_i32 s{sT}, s{sWAVE}, {16*2304}
    s_add_u32 s73, s73, s{sT}
    s_cmp_eq_u32 s{sWAVE}, 3
    s_cselect_b32 s75, 8, s67
    s_cmp_eq_u32 s75, s67
    s_cselect_b32 s72, s72, {OOB}
    s_cselect_b32 s74, s74, {OOB}
    v_and_b32 v5, 15, v2
    s_movk_i32 s{sT}, 2304
    v_lshrrev_b32 v6, 4, v2
    v_lshlrev_b32 v6, 3, v6
    v_mad_u32_u24 v7, v5, s{sT}, v6
    s_mov_b32 s70, {8*144*1152*2}
    s_mov_b32 s71, 0x20000
    s_add_u32 s76, s64, 1
    s_add_u32 s77, s64, 2
    s_add_u32 s78, s64, 3
    s_and_b32 s76, s76, 3
    s_and_b32 s77, s77, 3
    s_and_b32 s78, s78, 3
    s_mul_i32 s76, s76, {64*PBLK}
    s_mul_i32 s77, s77, {64*PBLK}
    s_mul_i32 s78, s78, {64*PBLK}
    v_add_u32 v9, 4096, v3
    s_lshl_b32 s{sT}, s{sWAVE}, 10
    v_add_u32 v10, s{sT}, v3
    s_lshl_b32 s{sT}, s{sWAVE}, 9
    v_add_u32 v11, s{sT}, v4
    s_waitcnt vmcnt(0) lgkmcnt(0)
    s_barrier
    s_cmp_eq_u32 s{sWAVE}, 0
    s_cbranch_scc0 L_n1""")
    post(a, 2, F2)
    a(f"ds_read_b128 v[128:131], v3 offset:{PL + 8192}\ns_branch L_n2\nL_n1:\nds_read_b64 v[128:129], v11 offset:{PL + 9216 - 512}\nL_n2:")
    a(f"ds_read_b128 v[96:99], v10 offset:{PL}\nds_read_b128 v[112:115], v10 offset:{PL + 4096}")
    if p.vp2: vpoll(a, "2", 2, F2)
    else: poll(a, "2", 2, F2)
    stamp(a, p, 7)
    def red(src, stride, n, dst):
        for i in range(n):
            for k in range(4):
                r = src + stride * k + i
                if k == 0: a(f"v_lshlrev_b32 v80, 16, v{r}\nv_and_b32 v81, 0xffff0000, v{r}")
                else: a(f"v_lshlrev_b32 v82, 16, v{r}\nv_and_b32 v83, 0xffff0000, v{r}\nv_pk_add_f32 v[80:81], v[80:81], v[82:83]")
            a(f"v_cvt_pk_bf16_f32 v{dst+i}, v80, v81")
    for u in range(2):
        for k in range(3):
            a(f"s_add_u32 s{sT}, s66, s{76+k}\nbuffer_load_dwordx4 {vr(100 + 16*u + 4*k)}, v{3 if u == 0 else 9}, s[{sW}:{sW+3}], s{sT} offen {p.plfl}")
    a(f"s_cmp_eq_u32 s{sWAVE}, 0\ns_cbranch_scc0 L_r3\ns_add_u32 s66, s66, 8192")
    for k in range(3):
        a(f"s_add_u32 s{sT}, s66, s{76+k}\nbuffer_load_dwordx4 {vr(132 + 4*k)}, v3, s[{sW}:{sW+3}], s{sT} offen {p.plfl}")
    a("s_branch L_r4\nL_r3:")
    for k in range(3):
        a(f"s_add_u32 s{sT}, s72, s{76+k}\nbuffer_load_dwordx2 {vr(132 + 4*k, 2)}, v4, s[{sW}:{sW+3}], s{sT} offen {p.plfl}")
    a("L_r4:\ns_waitcnt lgkmcnt(0)")
    for u in range(2):
        a(f"s_waitcnt vmcnt({6 - u})")
        red(96 + 16*u, 4, 4, 12 + 4*u)
        a(f"buffer_store_dwordx2 {vr(12+4*u, 2)}, v7, s[68:71], s73 offen {p.outfl}\nbuffer_store_dwordx2 {vr(14+4*u, 2)}, v7, s[68:71], s73 offen offset:32 {p.outfl}")
        a(f"s_add_u32 s73, s73, {64*2304}")
    a("s_waitcnt vmcnt(4)")
    a(f"s_cmp_eq_u32 s{sWAVE}, 0\ns_cbranch_scc0 L_r5")
    red(128, 4, 4, 20)
    a(f"buffer_store_dwordx2 v[20:21], v7, s[68:71], s73 offen {p.outfl}\nbuffer_store_dwordx2 v[22:23], v7, s[68:71], s73 offen offset:32 {p.outfl}\ns_branch L_r6\nL_r5:")
    red(128, 4, 2, 20)
    a(f"buffer_store_dwordx2 v[20:21], v7, s[68:71], s74 offen {p.outfl}\nL_r6:")
    if p.stamps:
        a("s_waitcnt vmcnt(0)")
        if not p.pst: stamp(a, p, 8)
        stamp_store(a, p)
    a("L_end:\ns_endpgm")
    a.l += out.l

def kernel(p, K):
    a = A()
    a("s_cmp_ge_u32 s2, 256\ns_cbranch_scc1 L_end")
    if p.perm == 1: a("s_mul_i32 s2, s2, 37\ns_add_u32 s2, s2, 11\ns_and_b32 s2, s2, 255")
    if p.perm == 2: a("s_lshr_b32 s3, s2, 3\ns_and_b32 s2, s2, 7\ns_lshl_b32 s2, s2, 5\ns_or_b32 s2, s2, s3")
    if p.perm == 3: a("s_lshr_b32 s3, s2, 5\ns_and_b32 s2, s2, 31\ns_lshl_b32 s2, s2, 3\ns_or_b32 s2, s2, s3")
    stamp(a, p, 0)
    a(f"""
    s_load_dwordx8 s[52:59], s[0:1], 0
    s_load_dwordx8 s[60:67], s[0:1], 40
    s_load_dwordx2 s[82:83], s[0:1], 96
    s_load_dwordx2 s[94:95], s[0:1], 32
    s_load_dwordx2 s[96:97], s[0:1], 72
    s_load_dwordx2 s[98:99], s[0:1], 88
    v_lshrrev_b32 v1, 6, v0
    v_and_b32 v2, 63, v0
    v_readfirstlane_b32 s{sWAVE}, v1
    s_and_b32 s3, s2, 7
    s_lshr_b32 s4, s2, 3
    s_lshr_b32 s5, s4, 2
    s_and_b32 s4, s4, 3
    s_and_b32 s6, s3, 3
    s_lshl_b32 s6, s6, 3
    s_lshl_b32 s7, s4, 1
    s_add_u32 s6, s6, s7
    s_lshr_b32 s{sHL}, s{sWAVE}, 1
    s_add_u32 s7, s6, s{sHL}
    s_lshl_b32 s{sRB}, s{sHL}, 15
    """)
    if p.rotm == 0: a(f"s_lshr_b32 s{sROT}, s2, 2\ns_and_b32 s{sROT}, s{sROT}, 14\ns_add_u32 s{sROT}, s{sROT}, s{sHL}\ns_lshl_b32 s{sROT}, s{sROT}, 1")
    elif p.rotm == 1: a(f"s_lshr_b32 s{sROT}, s2, 2\ns_and_b32 s{sROT}, s{sROT}, 30\ns_add_u32 s{sROT}, s{sROT}, s{sHL}")
    elif p.rotm == 2: a(f"s_lshr_b32 s{sROT}, s2, 3\ns_lshl_b32 s{sT}, s{sHL}, 4\ns_add_u32 s{sROT}, s{sROT}, s{sT}")
    elif p.rotm == 3: a(f"s_lshl_b32 s{sROT}, s2, 1\ns_add_u32 s{sROT}, s{sROT}, s{sHL}\ns_mul_i32 s{sROT}, s{sROT}, 0x9e3779b1\ns_lshr_b32 s{sROT}, s{sROT}, 27")
    elif p.rotm == 4: a(f"s_lshr_b32 s{sROT}, s2, 2\ns_and_b32 s{sROT}, s{sROT}, 14\ns_add_u32 s{sROT}, s{sROT}, s{sHL}\ns_lshl_b32 s{sROT}, s{sROT}, 1\ns_bfe_u32 s{sT}, s2, 0x10006\ns_add_u32 s{sROT}, s{sROT}, s{sT}")
    a(f"""
    v_lshrrev_b32 v3, 4, v2
    v_and_b32 v4, 15, v2
    v_lshlrev_b32 v5, 1, v3
    v_xor_b32 v5, v5, v4
    v_lshlrev_b32 v5, 4, v5
    v_lshl_add_u32 v{vE}, v3, 8, v5
    v_xor_b32 v{vO_}, 128, v{vE}
    v_lshl_add_u32 v{vWE}, v3, 13, v5
    s_lshl_b32 s{sT}, s7, 8
    v_add_u32 v{vWE}, s{sT}, v{vWE}
    v_xor_b32 v{vWO}, 128, v{vWE}
    v_add_u32 v{vWO}, {8*8192 - 1024}, v{vWO}
    s_lshl_b32 s{sT}, s{sHL}, 2
    v_add_u32 v5, s{sT}, v3
    v_and_b32 v6, 7, v2
    v_xor_b32 v5, v5, v6
    v_lshlrev_b32 v5, 4, v5
    v_lshrrev_b32 v6, 3, v2
    s_lshl_b32 s{sT}, s{sHL}, 3
    v_add_u32 v6, s{sT}, v6
    s_movk_i32 s{sT}, 1152
    v_mad_u32_u24 v{vX}, v6, s{sT}, v5
    s_waitcnt lgkmcnt(0)
    s_cmp_ge_u32 s3, 4
    s_cselect_b32 s52, s60, s52
    s_cselect_b32 s53, s61, s53
    s_cselect_b32 s54, s62, s54
    s_cselect_b32 s55, s63, s55
    s_cselect_b32 s56, s64, s56
    s_cselect_b32 s57, s65, s57
    s_cselect_b32 s58, s66, s58
    s_cselect_b32 s59, s67, s59
    s_cselect_b32 s94, s96, s94
    s_cselect_b32 s95, s97, s95
    s_mul_i32 s{sT}, s5, 165888
    s_add_u32 s{sX}, s52, s{sT}
    s_addc_u32 s{sX+1}, s53, 0
    s_mov_b32 s{sX+2}, 165888
    s_mov_b32 s{sX+3}, 0x20000
    s_mov_b32 s{sW}, s58
    s_mov_b32 s{sW+1}, s59
    s_mov_b32 s{sW+2}, 4718592
    s_mov_b32 s{sW+3}, 0x20000
    s_and_b32 s76, s{sWAVE}, 1
    s_mul_i32 s{sXB}, s{sHL}, 24576
    s_add_u32 s{sXB}, s{sXB}, {WQB}
    s_mul_i32 s{sXS0}, s76, {5*18432}
    s_mul_i32 s{sXM0}, s76, {5*2048}
    s_lshl_b32 s{sT}, s{sHL}, 10
    s_add_u32 s{sXM0}, s{sXM0}, s{sT}
    s_add_u32 s{sXM0}, s{sXM0}, {XBUF}
    s_lshl_b32 s77, s76, 12
    s_add_u32 s77, s77, s{sXB}
    s_lshl_b32 s78, s76, 17
    """)
    def xload(c, a=a, T=None):
        if p.c0: a(f"s_mov_b32 s{sXS}, 0" if c == 0 else f"s_add_u32 s{sXS}, s{sKROT}, 1\ns_lshl_b32 s{sXS}, s{sXS}, 7")
        else: a(f"s_add_u32 s{sXS}, s{sKROT}, {c}\ns_sub_u32 s{sXM}, s{sXS}, 9\ns_cselect_b32 s{sXS}, s{sXS}, s{sXM}\ns_lshl_b32 s{sXS}, s{sXS}, 7")
        a(f"s_add_u32 s{sXM}, s{sXM0}, {18432*c}\ns_add_u32 s{sXS}, s{sXS0}, s{sXS}")
        if T: return emit(a, x_dma(p, T))
        g = x_dma(p, 5)
        emit(a, g[:4])
        a(f"s_cmp_eq_u32 s76, 1\ns_cbranch_scc1 L_x{c}")
        emit(a, g[4:])
        a(f"L_x{c}:")
    def wload(k, a=a):
        a(f"s_add_u32 s{sWM}, s77, {8192*k}\ns_add_u32 s{sWS2}, s{sWS}, {4*8192 - 2048}")
        emit(a, w_dma(p), nop=False)
        emit(a, [w_adv(p)], nop=False)
    a(f"s_mov_b32 s60, s54\ns_mov_b32 s61, s55")
    if p.krot: a(f"s_lshr_b32 s{sKROT}, s4, {p.ksh}\ns_mul_i32 s{sKROT}, s{sKROT}, {p.kc}\ns_andn2_b32 s{sT}, s5, {(1 << p.kbs) - 1}\ns_add_u32 s{sKROT}, s{sKROT}, s{sT}\n" + (f"s_and_b32 s{sKROT}, s{sKROT}, 7" if p.c0 else f"s_sub_u32 s{sT}, s{sKROT}, 9\ns_cselect_b32 s{sKROT}, s{sKROT}, s{sT}"))
    else: a(f"s_mov_b32 s{sKROT}, 0")
    if p.c0: a(f"s_mov_b32 s{sWS}, s78\ns_add_u32 s{sWEND}, s78, {576*8192}")
    else: a(f"s_lshl_b32 s{sWS}, s{sKROT}, 19\ns_add_u32 s{sWS}, s{sWS}, s78\ns_add_u32 s{sWEND}, s78, {576*8192}")
    if p.rotm == 9:
        a(f"s_lshl_b32 s{sT}, s2, 1\ns_add_u32 s{sT}, s{sT}, s{sHL}\ns_lshl_b32 s{sT}, s{sT}, 2\ns_add_u32 s{sT}, s{sT}, {220 << 20}\ns_load_dword s{sROT}, s[82:83], s{sT}\ns_waitcnt lgkmcnt(0)")
    if p.pst == 1: stamp(a, p, 8)
    xload(0); wload(0)
    if p.pst == 2: stamp(a, p, 8)
    if p.pw >= 0: a(f"s_waitcnt vmcnt({p.pw})")
    wload(1)
    a(f"""
    s_mul_i32 s{sS0}, s4, {p.stag}
    s_add_u32 s{sS0}, s{sS0}, {p.s0}
    s_lshl_b32 s{sT}, s5, 5
    s_add_u32 s{sT}, s{sT}, s7
    s_lshl_b32 s{sT2}, {'s3' if p.kvsame else f's{sT}'}, 17
    s_add_u32 s{sK}, s60, s{sT2}
    s_addc_u32 s{sK+1}, s61, 0
    s_mov_b32 s{sK+2}, 131072
    s_mov_b32 s{sK+3}, 0x20000
    s_add_u32 s{sV}, s56, s{sT2}
    s_addc_u32 s{sV+1}, s57, 0
    s_mov_b32 s{sV+2}, 131072
    s_mov_b32 s{sV+3}, 0x20000
    s_mov_b32 s{sO}, s82
    s_mov_b32 s{sO+1}, s83
    s_mov_b32 s{sO+2}, {O_BYTES}
    s_mov_b32 s{sO+3}, 0x20000
    s_lshr_b32 s{sT2}, s3, 2
    s_lshl_b32 s{sT2}, s{sT2}, 8
    s_add_u32 s{sT}, s{sT}, s{sT2}
    s_mul_i32 s{sOB}, s{sT}, {4*9216}
    s_mov_b32 s{sWO}, s94
    s_mov_b32 s{sWO+1}, s95
    s_mov_b32 s{sWO+2}, 4718592
    s_mov_b32 s{sWO+3}, 0x20000
    s_and_b32 s{sTW}, s3, 3
    s_lshl_b32 s{sTW}, s{sTW}, 5
    s_lshr_b32 s{sT}, s2, 3
    s_add_u32 s{sTW}, s{sTW}, s{sT}
    s_lshl_b32 s{sTW}, s{sTW}, 1
    s_add_u32 s{sTW}, s{sTW}, s{sHL}
    s_mul_i32 s{sTW}, s{sTW}, 18432
    s_cmp_eq_u32 s76, 1
    s_cselect_b32 s{sKV}, s{sV}, s{sK}
    s_cselect_b32 s{sKV+1}, s{sV+1}, s{sK+1}
    s_mov_b32 s{sKV+2}, 131072
    s_mov_b32 s{sKV+3}, 0x20000
    s_lshl_b32 s{sT2}, s76, 13
    s_add_u32 s{sT2}, s{sT2}, s{sRB}
    s_mov_b32 s6, s98
    s_mov_b32 s7, s99
    v_lshlrev_b32 v{vTCH}, 7, v2
    s_mov_b32 s{sIT}, -2
    """)
    def batch2(a, T):
        emit(a, kv_book(p), nop=False); emit(a, kv_dma(p), nop=False)
        xload(1, a, T)
        if p.c0: a(f"s_add_u32 s78, s78, {64*8192}\ns_lshl_b32 s{sWS}, s{sKROT}, 19\ns_add_u32 s{sWS}, s{sWS}, s78")
        a(f"s_add_u32 s{sWM}, s77, {8192*2}\ns_mov_b32 s{WSr[1]}, s{sWS}\ns_add_u32 s{WS2r[1]}, s{sWS}, {4*8192 - 2048}")
        emit(a, w_dma(p, 1)[:4 - p.wsh], nop=False)
        emit(a, [w_adv(p)], nop=False)
        a(f"s_mov_b32 s{sIT}, 0")
        emit(a, kv_book(p), nop=False)
        a(f"s_mov_b32 s{sWM}, s77\ns_add_u32 s{sWS2}, s{sWS}, {4*8192 - 2048}")
    if not p.early: batch2(a, None)
    p.batch2 = batch2
    a(f"s_cmp_eq_u32 s{sWAVE}, 0\ns_cbranch_scc0 L_nc")
    if p.touch_code:
        a(f"""s_getpc_b64 s[80:81]
        L_pc:
        s_sub_u32 s80, s80, L_pc-{K}
        s_subb_u32 s81, s81, 0
        s_lshr_b32 s{sT}, s2, 3
        s_and_b32 s{sT}, s{sT}, 7
        s_lshl_b32 s{sT}, s{sT}, 13
        v_add_u32 v8, s{sT}, v{vTCH}
        s_mov_b32 s{sT}, L_codeend-{K}-4
        v_min_u32 v8, s{sT}, v8
        global_load_dword v{vDUM}, v8, s[80:81]""")
    a(f"""v_mov_b32 v8, {LFLAG}
    v_mov_b32 v9, 0
    ds_write_b32 v8, v9
    s_cmp_lt_u32 s2, 8
    s_cbranch_scc0 L_nc
    s_memrealtime s[80:81]
    v_mov_b32 v11, 0
    s_waitcnt lgkmcnt(0)
    s_or_b32 s80, s80, 1
    v_mov_b32 v10, s80
    s_mov_b64 exec, 1
    global_atomic_cmpswap v9, v[10:11], s[6:7] sc1
    s_mov_b64 exec, -1
    L_nc:""")
    a(f"""
    v_and_b32 v5, 7, v4
    v_lshlrev_b32 v5, 1, v5
    v_xor_b32 v5, v5, v3
    v_lshlrev_b32 v5, 4, v5
    v_lshl_add_u32 v5, v4, 8, v5
    v_add_u32 v{vKA}, s{sRB}, v5
    v_xor_b32 v{vKA+1}, 64, v{vKA}
    v_xor_b32 v{vKA+2}, 128, v{vKA}
    v_xor_b32 v{vKA+3}, 192, v{vKA}
    v_bfe_u32 v5, v2, 2, 2
    v_and_b32 v6, 1, v3
    v_lshl_add_u32 v5, v6, 2, v5
    v_lshrrev_b32 v6, 1, v3
    v_lshl_add_u32 v6, v6, 4, v5
    v_lshlrev_b32 v5, 1, v5
    v_bfe_u32 v7, v2, 1, 1
    v_xor_b32 v5, v5, v7
    v_lshlrev_b32 v5, 4, v5
    v_and_b32 v7, 1, v2
    v_lshl_add_u32 v5, v7, 3, v5
    v_lshl_add_u32 v5, v6, 8, v5
    v_add_u32 v{vVA}, s{sXB}, v5
    s_mov_b32 s{sXB}, s77""")
    for dt in range(1, 8): a(f"v_xor_b32 v{vVA+dt}, {32*dt}, v{vVA}")
    a(f"""
    v_lshrrev_b32 v5, 1, v4
    v_xor_b32 v5, v5, v3
    v_lshlrev_b32 v5, 4, v5
    v_lshl_add_u32 v5, v4, 7, v5
    s_mul_i32 s79, s76, {4*2048}
    s_add_u32 s79, s79, {XBUF}
    v_add_u32 v{vXA}, s79, v5
    v_xor_b32 v{vXA+1}, 64, v{vXA}
    s_mul_i32 s79, s76, {5*1024}
    v_lshl_add_u32 v{vST}, v2, 4, s79
    s_mul_i32 s79, s{sHL}, {2*STG}
    v_add_u32 v{vOW}, s79, v{vST}
    s_mov_b32 s{sSC}, 0x3e0293ee
    s_mov_b32 s{sWSL}, 0
    s_mov_b32 s{sC}, 8192
    s_mov_b32 s{sNEG}, -16384
    s_mov_b32 s{sWD}, 8192
    s_mov_b32 s{sXD}, 18432
    """)
    a(f"s_movk_i32 s79, 3641\ns_mul_i32 s80, s76, 864")
    for j in range(9):
        a(f"""v_add_u32 v5, {64*j}, v2
        v_mul_u32_u24 v6, s79, v5
        v_lshrrev_b32 v6, 16, v6
        v_lshlrev_b32 v5, 4, v5
        v_mad_u32_u24 v5, v6, s80, v5
        v_subrev_u32 v{v2VO+j}, {1024*(j % 4)}, v5""")
    a(f"""
    v_lshrrev_b32 v5, 2, v2
    v_and_b32 v6, 3, v2
    v_lshlrev_b32 v6, 3, v6
    s_movk_i32 s79, 288
    v_mad_u32_u24 v5, v5, s79, v6
    v_add_u32 v{v2A+1}, {18432 + 256}, v5
    s_lshl_b32 s79, s{sWAVE}, 6
    s_add_u32 s79, s79, 18432
    v_add_u32 v{v2A}, s79, v5
    v_lshlrev_b32 v5, 4, v2
    s_lshl_b32 s79, s{sWAVE}, 11
    v_add_u32 v{v2B}, s79, v5
    s_cmp_eq_u32 s{sWAVE}, 0
    s_cselect_b32 s79, 3072, 0
    v_add_u32 v{v2B+1}, s79, v5
    s_cmp_lt_u32 s{sWAVE}, 2
    s_movk_i32 s79, 2048
    s_cselect_b32 s79, 5120, s79
    v_add_u32 v{v2B+2}, s79, v5
    s_cmp_lt_u32 s{sWAVE}, 3
    s_movk_i32 s79, 4096
    s_cselect_b32 s79, 7168, s79
    v_add_u32 v{v2B+3}, s79, v5
    """)
    if p.twq >= 0: a(f"s_mul_i32 s79, s4, {p.twstag}\ns_add_u32 s79, s79, {p.twq}")
    if p.kt: a(f"s_mul_i32 s80, s4, {p.ktst}\ns_lshl_b32 s79, {sum(1 << int(x.split(':')[0]) for x in p.kt.split(','))}, s80")
    a(f"""v_lshrrev_b32 v5, 2, v2
    v_and_b32 v6, 7, v5
    v_lshlrev_b32 v6, 1, v6
    v_bfe_u32 v7, v2, 1, 1
    v_xor_b32 v6, v6, v7
    v_lshlrev_b32 v6, 4, v6
    v_and_b32 v7, 1, v2
    v_lshl_add_u32 v6, v7, 3, v6
    v_lshl_add_u32 v6, v5, 8, v6
    s_add_u32 s80, s{sRB}, 8192
    v_add_u32 v{vVB}, s80, v6""")
    for dt in range(1, 8): a(f"v_xor_b32 v{vVB+dt}, {32*dt}, v{vVB}")
    if p.tsplit >= 0: wo_touch_setup(a)
    for r in range(0, 160, 2): a(f"v_pk_mov_b32 {vr(vACC+r, 2)}, 0, 0")
    if p.pst == 4: stamp(a, p, 8)
    a(f"s_bitcmp1_b32 s{sWAVE}, 0\ns_cbranch_scc1 L_small")
    wave_front(a, p, 5, False, "b")
    a("L_small:")
    wave_front(a, p, 4, True, "s")
    back(a, p)
    a("L_codeend:")
    return a.text()

def build(p):
    K = KNAME + "_kernel"
    hdr = open("cdna_kernels/" + KNAME + ".s.ref").read().split("; Override launch geometry")[0]
    return hdr + header(["; @launch grid=(256,1,1) block=(256,1,1) lds=163840"]) + kstart(K) + kernel(p, K) + RODATA + kdesc(K, 512, 256)

if __name__ == "__main__":
    ap = argparse.ArgumentParser()
    ap.add_argument("out")
    ap.add_argument("opts", nargs="*")
    x = ap.parse_args()
    p = P()
    VERB = True
    for o in x.opts:
        k, v = o.split("=")
        cur = getattr(p, k)
        setattr(p, k, (v == "1") if isinstance(cur, bool) else int(v) if isinstance(cur, int) else v.replace("+", " "))
    if p.twq >= 0: p.twpos = 15
    EXP = p.exp
    p.pb = (p.pb0, p.pb1)
    open(x.out, "w").write(build(p))
```

```python
import sys, argparse
sys.path.insert(0, "tools")
from asmlib import *
sys.path.insert(0, 'gen')
from sched import It, schedule
VERB = False
EXP = 0

class P:
    stamps = False
    cyc = False
    xfl = ""; wfl = ""; kvfl = "nt"
    ofl = "sc1"; olfl = "sc1"; wofl = ""; twfl = ""; pfl = "sc1"; plfl = "sc1"; outfl = ""
    s0 = 1; ppe = 2; stag = 0
    rot = True; krot = True
    kvd = 4
    twpos = 12
    rb = False
    fb = 3
    sh = 2
    qb = 4; qr = 6; vlo = 6
    touch_code = True
    force = False
    kvsame = False
    lim = 0
    notouch = False
    limg = 2
    gprof = False
    pa = -1
    esp = 2
    t5 = 1
    zc = True
    lrg = 32
    tws = '14,14,14'
    l14 = True
    kbs = 1
    pb0 = -1
    pb1 = -1
    px = True
    tail = True
    dd = True
    spm = 0x208
    nod = True
    soft = False
    tst = -1
    tsw = 0
    aprof = False
    st0 = -1
    pmul = 0
    dsw = True
    pace = 3
    pmask = 7
    pw2 = 8
    pw3 = -1
    pbit = 6
    c0 = False
    kt = ''
    ktfl = ''
    ktst = 0
    tsplit = -1
    tw2 = 0
    dbgst = False
    al = 0
    sh4 = 0
    xsp = 2
    wsh = 0
    qprof = 0
    par8 = False
    fc = 0
    fcs = 64
    twown = -1
    perm = 0
    kc = 4
    ksh = 1
    early = True
    pst = 0
    rotm = 0
    swap = 3
    t3 = False
    vp2 = True
    s1 = 1
    defer = False
    warm = True
    exp = 0
    late = False
    twq = -1
    twstag = 0
    pw = -1

MF = "v_mfma_f32_16x16x32_bf16"
OOB = 0x40000000
LDSOOB = 0x30000
STAMPOFF = 200 << 20
O_BYTES = 16 * 32 * 4 * 9216
P_OFF = 32 << 20
F_OFF = 48 << 20
PBLK = 41472
STG = 36864
LFLAG = 163836
SPIN = 1 << 18
PL = 0

def vr(b, n=4): return f"v[{b}:{b+n-1}]"
def ar(b, n=4): return f"a[{b}:{b+n-1}]"
def weave(a, mfmas, gaps):
    assert len(gaps) <= len(mfmas)
    for i, m in enumerate(mfmas):
        a(m)
        if i < len(gaps):
            for x in gaps[i]: a(x)
def align(a, p):
    if p.al: a(f".p2align {p.al}")
    for _ in range(p.sh4): a("s_nop 0")
def emit(a, gs, nop=True):
    for g in gs:
        for x in g: a(x)
        if nop: a("s_nop 0")
NST = 9
def stamp(a, p, idx):
    if p.stamps: a(f"{'s_memtime' if p.cyc else 's_memrealtime'} s[{84+2*idx}:{85+2*idx}]")
def stamp_store(a, p):
    if not p.stamps: return
    a("s_waitcnt lgkmcnt(0)")
    if p.dbgst:
        a("v_mov_b32 v1, 0\nv_cmp_eq_u32 vcc, 0, v0\ns_and_saveexec_b64 s[44:45], vcc")
        for j in range(NST):
            a(f"s_sub_u32 s46, s{84+2*j}, s{sNONCE}\ns_add_u32 s46, s46, 500\nv_mov_b32 v2, s46\nglobal_atomic_umax v1, v2, s[6:7] offset:{4+4*j} sc1\ns_nop 1")
        a("s_mov_b64 exec, s[44:45]")
        return
    a(f"s_mul_i32 s80, s2, 128\ns_add_u32 s82, s82, s80\ns_addc_u32 s83, s83, 0\ns_add_u32 s82, s82, {STAMPOFF}\ns_addc_u32 s83, s83, 0")
    a("v_mov_b32 v1, 0\nv_cmp_eq_u32 vcc, 0, v0\ns_and_saveexec_b64 s[80:81], vcc")
    for j in range(NST):
        a(f"v_mov_b32 v2, s{84+2*j}\nv_mov_b32 v3, s{85+2*j}\nglobal_store_dwordx2 v1, v[2:3], s[82:83] offset:{8*j}\ns_nop 1")
    a("s_mov_b64 exec, s[80:81]")
    if p.gprof or p.qprof or p.aprof:
        a("v_and_b32 v1, 63, v0\nv_lshlrev_b32 v1, 2, v1\nv_cmp_gt_u32 vcc, 14, v0\ns_and_saveexec_b64 s[80:81], vcc\nglobal_store_dword v1, v31, s[82:83] offset:72\ns_mov_b64 exec, s[80:81]")

vACC = 96; vS = (80, 88); vL = 72; vVA = 64; vKA = 60; vXA = 58
vE, vO_, vWE, vWO, vX, vST, vTCH, vDUM, vOW, vFL = 56, 57, 54, 55, 53, 52, 51, 50, 49, 48
v2VO, v2B, v2A = 32, 41, 45
vNM = 8
aQ = 0; aK = (80, 112); aV = (144, 176); aXB = (208, 228); aWA = (0, 32)
vVB = 8
a2A = (80, 92); a2B = (104, 140)
v2ACC = 96
sX, sW, sK, sV, sO, sKV, sWO = 8, 12, 16, 20, 24, 68, 56
sWAVE, sHL, sROT, sNONCE = 28, 29, 30, 31
sWS, sWM, sXS, sXM, sWD, sXD, sT, sT2, sIT = 32, 33, 34, 35, 36, 37, 38, 39, 40
sKN, sKM, sKS, sRB, sHI, sWSL, sXB = 41, 42, 43, 44, 45, 46, 47
sC, sSC, sOB, sNEG, sKROT, sS0, sWEND, sTW = 48, 49, 50, 51, 52, 53, 54, 55
sWS2, sXM0, sXS0 = 72, 74, 75
gSRC, gSTR, gDST, gST, gQ1, gQ2, gQ3, gRI = 60, 52, 62, 63, 64, 65, 66, 67
gC1, gC2, gDL, gM0, gSO, gDL2, gLO, gHIW = 72, 73, 74, 75, 76, 77, 78, 79
gLOW, gLIM, gREDO, gMASK, gTAB, gP4 = 32, 33, 34, 35, 36, 79
gF = 40
REL = [0, 1, 2, 3, 4, 6, 8, 10, 12, 14, 5, 7, 9, 11, 13, 15]
FA, F2, FP = F_OFF, F_OFF + 32768, F_OFF + 49152
gFP, gOFF, gCHK, gPOST, gNN = 80, 33, 32, 53, 46
vPA, vNZ = 47, 48
sPG = 60
sPA, sPM = 73, 74
sSW = 62
XBUF = 65536
WQB = XBUF + 2 * 18432
QX = 155648
def acc(t, dt): return vACC + (t * 8 + dt) * 4
def acc2(nt, u): return v2ACC + 4 * (nt * 9 + u)

def flat_dma(groups, pos):
    out = []
    for g, q in zip(groups, pos):
        for x in g:
            if x.startswith("s_nop"): continue
            out.append(It(x, q, q + 1) if x.startswith("buffer_") else It(x))
    return out
def read_pos(nrd, start, end, taken):
    free = [i for i in range(start, end) if i not in taken]
    dbl = max(0, nrd - len(free))
    pos = []
    for i in free:
        pos.append(i)
        if dbl > 0: pos.append(i); dbl -= 1
    assert len(pos) >= nrd
    return pos[:nrd]

WDr, WSr, WS2r = (sWD, 62), (sWS, 63), (sWS2, 64)
def w_dma(p, par=0):
    w = lambda v, so, o: f"buffer_load_dwordx4 v{v}, s[{sW}:{sW+3}], s{so} offen offset:{o} {p.wfl} lds"
    return [[f"s_mov_b32 m0, s{sWM}", "s_nop 0", w(vWE, WSr[par], 0)], [w(vWO, WSr[par], 1024)], [w(vWE, WS2r[par], 2048)], [w(vWO, WS2r[par], 3072)]]
def x_dma(p, nX):
    out = []
    for m in range(nX):
        g = [f"s_mov_b32 m0, s{sXM}", "s_nop 0"] if m == 0 else []
        g.append(f"buffer_load_dwordx4 v{vX}, s[{sX}:{sX+3}], s{sXS} offen offset:{2048*(m & 1)} {p.xfl} lds")
        if m + 1 < nX:
            g.append(f"s_add_u32 s{sXS}, s{sXS}, {16384 if m % 2 == 0 else 20480}")
            if m % 2 == 1: g.append("s_add_u32 m0, m0, 4096")
        out.append(g)
    return out
def kv_dma(p):
    out = []
    for j in range(2 * p.ppe):
        g = [f"s_mov_b32 m0, s{sKM}", "s_nop 0"] if j == 0 else []
        if j == 4: g = [f"s_add_u32 m0, s{sKM}, 4096", f"s_add_u32 s{sKS}, s{sKS}, 4096"]
        g.append(f"buffer_load_dwordx4 v{vE if j % 2 == 0 else vO_}, s[{sKV}:{sKV+3}], s{sKS} offen offset:{1024*(j % 4)} {p.kvfl} lds")
        out.append(g)
    return out
def kv_book(p):
    return [[f"s_ashr_i32 s{sKN}, s{sIT}, 1", f"s_sub_u32 s{sKN}, s{sKN}, s{sS0}", f"s_mul_i32 s{sKN}, s{sKN}, {p.ppe}"],
            [f"s_lshr_b32 s{sT}, s{sKN}, 1", f"s_add_u32 s{sKS}, s{sT}, s{sROT}"] + ([f"s_and_b32 s{sT}, s{sT}, 2", f"s_add_u32 s{sKS}, s{sKS}, s{sT}"] if p.par8 else []) + [f"s_and_b32 s{sKS}, s{sKS}, 31"],
            [f"s_lshl_b32 s{sKS}, s{sKS}, 12", f"s_and_b32 s{sT}, s{sKN}, 1", f"s_lshl_b32 s{sT}, s{sT}, 11", f"s_add_u32 s{sKS}, s{sKS}, s{sT}"],
            [f"s_bfe_u32 s{sKM}, s{sKN}, 0x10002", f"s_lshl_b32 s{sKM}, s{sKM}, 14", f"s_and_b32 s{sT}, s{sKN}, 3", f"s_lshl_b32 s{sT}, s{sT}, 11"],
            [f"s_add_u32 s{sKM}, s{sKM}, s{sT}", f"s_add_u32 s{sKM}, s{sKM}, s{sT2}"],
            [f"s_cmp_ge_u32 s{sKN}, {16 if p.px else 8}", f"s_cselect_b32 s{sKM}, {LDSOOB}, s{sKM}", f"s_cselect_b32 s{sKS}, {OOB}, s{sKS}"]]
def x_book(p):
    return [[f"s_add_u32 s{sT}, s{sIT}, 3", f"s_lshr_b32 s{sT}, s{sT}, 1", f"s_add_u32 s{sXS}, s{sT}, s{sKROT}"],
            [f"s_sub_u32 s{sXM}, s{sXS}, {8 if p.c0 else 9}", f"s_cmp_lt_u32 s{sXS}, 9", f"s_cselect_b32 s{sXS}, s{sXS}, s{sXM}", f"s_lshl_b32 s{sXS}, s{sXS}, 7"],
            [f"s_add_u32 s{sXS}, s{sXS}, s{sXS0}", f"s_and_b32 s{sT}, s{sT}, 1", f"s_mul_i32 s{sT}, s{sT}, 18432"],
            [f"s_add_u32 s{sXM}, s{sXM0}, s{sT}"],
            [f"s_cmp_ge_u32 s{sIT}, 15", f"s_cselect_b32 s{sXM}, {LDSOOB}, s{sXM}", f"s_cselect_b32 s{sXS}, {OOB}, s{sXS}"]]
def w_adv(p, src=sWS, dst=sWS):
    return [f"s_add_u32 s{dst}, s{src}, {32*8192}", f"s_cmp_ge_u32 s{dst}, s{sWEND}", f"s_cselect_b32 s{dst}, s78, s{dst}"]
def q_reads(T, par, ks):
    rd = [f"ds_read_b128 {ar(aXB[par] + 4*t)}, v{vXA + ks} offset:{2048*t}" for t in range(T)]
    for dt in range(8):
        rd.append(f"ds_read_b64_tr_b16 {ar(aWA[par] + 4*dt, 2)}, v{vVA+dt}")
        rd.append(f"ds_read_b64_tr_b16 {ar(aWA[par] + 4*dt + 2, 2)}, v{vVA+dt} offset:2048")
    return rd
def qstep(a, p, T, par, more=()):
    A_, B_ = aWA[par], aXB[par]
    e = 2 * p.ppe
    mf = []
    for dt in range(8):
        for u in range(5):
            if T == 5:
                if u == 4 and dt >= 4: continue
                t = u
            else:
                if u == 0 and dt < 4: continue
                t = (u - 1) % 5
            mf.append(f"{MF} {vr(acc(t, dt))}, {ar(A_ + 4*dt)}, {ar(B_ + 4*u)}, {vr(acc(t, dt))}")
    if not p.exp & 128: a("s_waitcnt lgkmcnt(0)")
    if not p.exp & 64: a(f"s_waitcnt vmcnt({e + 4 + (T - p.wsh if par == 0 else 0)})")
    if not p.exp & 32: a("s_barrier")
    if p.qprof: a(f"s_sub_u32 s98, s{sIT}, {p.qprof - 1}\ns_min_u32 m0, s98, 63\nv_writelane_b32 v31, s96, m0\n{'s_memtime' if p.cyc else 's_memrealtime'} s[96:97]")
    upd = [f"v_add_u32 v{vVA+d}, s{WDr[par]}, v{vVA+d}" for d in range(8)]
    if par == 0: upd = [f"v_add_u32 v{vXA}, s{sXD}, v{vXA}", f"v_add_u32 v{vXA+1}, s{sXD}, v{vXA+1}"] + upd
    rd = q_reads(5, par ^ 1, par ^ 1) + list(more)
    dma = (x_dma(p, T) + w_dma(p, 1)[:4 - p.wsh]) if par == 1 else (w_dma(p, 1)[4 - p.wsh:] + w_dma(p, 0) + kv_dma(p))
    q = par ^ 1
    book = [[f"s_add_u32 s{sIT}, s{sIT}, 1"]] + (kv_book(p) if par == 1 else x_book(p)) + \
           [[f"s_add_u32 s{sWSL}, s{sWSL}, 8192", f"s_cmp_eq_u32 s{sWSL}, 24576", f"s_cselect_b32 s{sWSL}, 0, s{sWSL}"],
            [f"s_cmp_eq_u32 s{sWSL}, 8192", f"s_cselect_b32 s{WDr[q]}, s{sNEG}, s{sC}"],
            w_adv(p, WSr[par], WSr[q]) + [f"s_add_u32 s65, s{sWSL}, s{sXB}"],
            [f"s_cmp_ge_u32 s{sIT}, 15", f"s_cselect_b32 s65, {LDSOOB}, s65", f"s_cselect_b32 s{WSr[q]}, {OOB}, s{WSr[q]}"],
            [f"s_add_u32 s{WS2r[q]}, s{WSr[q]}, {4*8192 - 2048}", f"s_mov_b32 s{sWM}, s65"] + ([f"s_sub_u32 s{sXD}, 0, s{sXD}"] if par == 0 else [])]
    n = len(mf)
    pos = [1 + i * (n - p.qb) // len(dma) for i in range(len(dma))]
    if par == 0 and p.esp: pos = [1 + p.esp * i for i in range(len(dma))]
    if par == 1 and p.xsp:
        x0 = 1 + p.xsp * T + 2
        pos = [1 + p.xsp * i for i in range(T)] + [x0 + i * (n - p.qb - x0) // (len(dma) - T) for i in range(len(dma) - T)]
    rp = read_pos(len(rd), 0, n - p.qr, set(pos))
    if p.exp & 8: dma = [[x for x in g if not x.startswith("buffer")] for g in dma]
    if p.exp & 16: rd = []
    flo = [It(x, q, q + 1) for x, q in zip(rd, rp)] + [It(x, p.vlo, n - 1) for x in upd] + flat_dma(dma, pos) + [It(x, 0, n - 1) for g in book for x in g]
    gaps, over = schedule(n, [], flo)
    if VERB: print(f"qstep T{T} par{par} over", over, file=sys.stderr)
    weave(a, mf, gaps)

def kv_tile_dma(p, sm, ss, parts=(0, 1, 2, 3), plain=False):
    out = []
    d1, d2 = (sK, sV) if plain or not p.swap else (sKV, sW)
    for half, (srd, lo) in enumerate(((d1, 0), (d1, 4096), (d2, 8192), (d2, 12288))):
        if half not in parts: continue
        so = ss if (half & 1) == 0 else sT
        for j in range(4):
            g = []
            if j == 0:
                g = [f"s_xor_b32 m0, s{sm}, {lo}"]
                g += [f"s_add_u32 s{sT}, s{ss}, 4096", f"s_bitset0_b32 s{sT}, 17"] if half == 0 else ["s_nop 0"]
            if p.lim and (j % p.limg == 0): g.append(f"s_waitcnt vmcnt({p.lim - p.limg})")
            g.append(f"buffer_load_dwordx4 v{vE if j % 2 == 0 else vO_}, s[{srd}:{srd+3}], s{so} offen offset:{1024*j} {p.kvfl} lds")
            out.append(g)
    return out
def frag_reads(par, off, vVA=vVA):
    rd = [f"ds_read_b128 {ar(aK[par] + (kt*4+s)*4)}, v{vKA+s} offset:{off + 4096*kt}" for kt in range(2) for s in range(4)]
    for dt in range(8):
        rd.append(f"ds_read_b64_tr_b16 {ar(aV[par] + 4*dt, 2)}, v{vVA+dt} offset:{off}")
        rd.append(f"ds_read_b64_tr_b16 {ar(aV[par] + 4*dt + 2, 2)}, v{vVA+dt} offset:{off + 4096}")
    return rd
def soft2(S, t):
    ad = [f"v_add_f32 v{vL+t}, v{vL+t}, v{S+j}" for j in range(8)]
    cv = [f"v_cvt_pk_bf16_f32 v{S+j}, v{S+2*j}, v{S+2*j+1}" for j in range(4)]
    return ad[:4] + cv + ad[4:]
def qk(S, Kc, t, c0):
    return [f"{MF} {vr(S + 4*kt)}, {ar(Kc + (kt*4+s)*4)}, {ar(aQ + (t*4+s)*4)}, {c0 if s == 0 else vr(S + 4*kt)}" for kt in range(2) for s in range(4)]
def pv(S, Vc, t, zero=False):
    return [f"{MF} {vr(acc(t, dt))}, {ar(Vc + 4*dt)}, {vr(S)}, {'0' if zero else vr(acc(t, dt))}" for dt in range(8)]
def block(a, p, T, par, loader, top, mid, ins=None, nodma=False, nord=False, lr=False, first=False):
    mf, fixed = [], []
    for t in range(T):
        n = par * T + t
        S, Sp = vS[n & 1], vS[(n & 1) ^ 1]
        tp = (t - 1) % T
        mf += qk(S, aK[par], t, "0") + pv(Sp, aV[par ^ 1] if t == 0 else aV[par], tp, first and (par == 0 or t == 0))
        v2 = soft2(Sp, tp)
        fixed += [v2[0:1], v2[1:3], v2[3:4], v2[4:6], v2[6:7], v2[7:9], v2[9:10], v2[10:12]]
        fixed += [[f"v_exp_f32 v{S+j}, v{S+j}"] for j in range(8)]
    n = 16 * T
    if first and par == 0:
        mf[8:16] = ["s_nop 3"] + ["s_nop 0"] * 7
        fixed[0:8] = [[] for _ in range(8)]
    free = [16*t + j for t in range(T) for j in (0, 2, 4, 6)]
    dma = kv_tile_dma(p, sKM, sKS) if loader and not nodma else []
    top(a)
    if lr:
        m = n - p.lrg
        weave(a, mf[:m], fixed[:m])
        mid(a)
        rd = frag_reads(par ^ 1, 16384 * (par ^ 1))
        k = p.lrg - 8
        gaps, over = schedule(n - m, fixed[m:], [It(x, i * k // 24, i * k // 24) for i, x in enumerate(rd)])
        weave(a, mf[m:], gaps)
    elif not p.late:
        rd = frag_reads(par ^ 1, 16384 * (par ^ 1))
        tog = [f"v_xor_b32 v{r}, 0x10000, v{r}" for r in list(range(vKA, vKA+4)) + list(range(vVA, vVA+8))] if par == 0 else []
        if nord: rd, tog = [], []
        lim = n - 12
        slots = [g for g in free if g < lim]
        extra = [g for g in range(lim) if g not in slots]
        need = len(rd) + len(dma) - len(slots)
        if need > 0: slots = sorted(slots + [extra[(2*i + 1) * len(extra) // (2*need)] for i in range(need)])
        dpos = [slots[(i * len(slots)) // len(dma)] for i in range(len(dma))] if dma else []
        rpos = [g for g in slots if g not in dpos]
        rpos = [max(g, 16) if i >= 8 else g for i, g in enumerate(rpos[:len(rd)])]
        flo = [It(x, q, q + 1) for x, q in zip(rd, rpos)] + flat_dma(dma, dpos) + [It(x, 0, n - 1 - (len(tog) - 1 - i)) for i, x in enumerate(tog)]
        gaps, over = schedule(n, fixed, flo)
        weave(a, mf, gaps)
    else:
        m = n - 16
        rv = frag_reads(par, 16384 * par)[8:]
        vpos = [0, 1, 2, 3, 4, 5, 6, 7, 9, 11, 13, 15, 16, 17, 18, 20]
        togv = [f"v_xor_b32 v{r}, 0x10000, v{r}" for r in range(vVA, vVA+8)] if par == 1 else []
        togk = [f"v_xor_b32 v{r}, 0x10000, v{r}" for r in range(vKA, vKA+4)] if par == 1 else []
        cand = [g for g in range(24 if p.fc else 21, m - 1)]
        dpos = [cand[(i * len(cand)) // len(dma)] for i in range(len(dma))] if dma else []
        flo = [It(x, q, q) for x, q in zip(rv, vpos)] + [It("s_waitcnt lgkmcnt(0)", 23, 23)] + flat_dma(dma, dpos) + \
              [It(x, 22, m - 1 - (11 - i)) for i, x in enumerate(togv + togk)]
        gaps, over = schedule(m, fixed[:m], flo)
        assert any("lgkmcnt" in x for x in gaps[23])
        if loader and p.fc: gaps[23] += [f"s_cmp_eq_u32 s{sWAVE}, 1", f"s_cbranch_scc1 L_fc{par}", f"L_fcb{par}:"]
        if ins:
            for t in range(1, T):
                x = A(); ins(x, t)
                gaps[16*t - 1] += [y.strip() for y in x.l]
        weave(a, mf[:m], gaps)
        mid(a)
        rk = frag_reads(par ^ 1, 16384 * (par ^ 1))[:8]
        gaps, o2 = schedule(16, fixed[m:], [It(x, i, i) for i, x in enumerate(rk)])
        over += o2
        weave(a, mf[m:], gaps)
    if VERB: print(f"block T{T} par{par} over", over, file=sys.stderr)

def wo_touch(a, p, t1=sT, t2=sT2, fl=None):
    if p.notouch: return
    for f in ([fl] if fl is not None else ["nt", ""] if p.tw2 == 1 else ["nt"] if p.tw2 else [p.twfl]):
        a(f"""s_add_u32 s{t2}, s{sTW}, 8192
        s_add_u32 s{t1}, s{sTW}, 10240
        buffer_load_dword v{vDUM}, v{vTCH}, s[{sWO}:{sWO+3}], s{sTW} offen {f}
        buffer_load_dword v{vDUM}, v{vTCH}, s[{sWO}:{sWO+3}], s{t2} offen {f}
        buffer_load_dword v{vDUM}, v{vTCH}, s[{sWO}:{sWO+3}], s{t1} offen {f}""")
        if p.tw2 == 3 and fl is None:
            a("s_waitcnt vmcnt(0)")
            wo_touch(a, p, t1, t2, "")

vT1, vT2 = 28, 29
def wo_touch_setup(a):
    a(f"""v_and_b32 v1, 63, v0
    v_mul_u32_u24 v2, 43, v1
    v_lshrrev_b32 v2, 7, v2
    v_mul_u32_u24 v3, 3, v2
    v_sub_u32 v3, v1, v3
    v_and_b32 v4, 7, v2
    s_lshl_b32 s{sT}, s5, 3
    v_add_u32 v4, s{sT}, v4
    v_mul_u32_u24 v4, 1152, v4
    v_lshl_add_u32 v4, v3, 7, v4
    s_and_b32 s{sT}, s3, 3
    s_mul_i32 s{sT}, s{sT}, {1024*1152}
    s_lshl_b32 s80, s4, 8
    s_add_u32 s{sT}, s{sT}, s80
    v_add_u32 v4, s{sT}, v4
    v_lshrrev_b32 v2, 3, v2
    s_mov_b32 s{sT}, 73728
    v_mad_u32_u24 v{vT1}, v2, s{sT}, v4
    v_mad_u32_u24 v{vT2}, v2, s{sT}, v{vT1}
    v_mov_b32 v3, {OOB}
    v_cmp_gt_u32 vcc, 48, v1
    s_nop 1
    v_cndmask_b32 v{vT1}, v3, v{vT1}, vcc
    v_cndmask_b32 v{vT2}, v3, v{vT2}, vcc""")
def wo_touch_part(a, p, part):
    for r0, r1, v in (((0, 2, vT1), (4, 8, vT2)) if part == 0 else ((12, 5, vT2), (9, 13, vT2))):
        a(f"""s_mul_i32 s{sT}, s{sHL}, {r1 - r0}
        s_add_u32 s{sT}, s{sT}, s{gP4}
        s_add_u32 s{sT}, s{sT}, {r0}
        s_and_b32 s{sT}, s{sT}, 15
        s_mul_i32 s{sT}, s{sT}, 73728
        s_nop 0
        buffer_load_dword v{vDUM}, v{v}, s[{sWO}:{sWO+3}], s{sT} offen {p.twfl}""")
def g_dma(fl):
    out = []
    for j in range(9):
        g = [f"s_add_u32 m0, s{gM0}, {1024*j}", "s_nop 0"] if j % 4 == 0 else []
        g.append(f"buffer_load_dwordx4 v{v2VO+j}, s[{sX}:{sX+3}], s{gSO} offen offset:{1024*(j % 4)} {fl} lds")
        out.append(g)
    return out
def g_stage_now(a, fl, st):
    a(f"s_add_u32 s{gSO}, s{gP4}, {REL[st]}\ns_and_b32 s{gSO}, s{gSO}, 15\ns_mul_i32 s{gSO}, s{gSO}, s{gSTR}\ns_add_u32 s{gSO}, s{gSO}, s{gLO}")
    a(f"s_add_u32 s{gM0}, s{gDL2}, {(st & 3)*STG}")
    emit(a, g_dma(fl), nop=False)
def o_touch(a, p, half):
    if not p.rb: return
    for o in (0, 8192, 10240):
        a(f"s_add_u32 s{sT}, s{sOB}, {half*18432 + o}\ns_nop 0\nbuffer_load_dword v{vDUM}, v{vTCH}, s[{sO}:{sO+3}], s{sT} offen")

KEEP = [16, 20, 24, 28, 192, 196, 200, 204, 224, 228]
def o_store(p, t, s, d):
    return [f"s_add_u32 s{sT}, s{sOB}, {s*9216 + (4096 if t == 4 else 0)}", "s_nop 0",
            f"buffer_store_dwordx4 {vr(d)}, v{vST}, s[{sO}:{sO+3}], s{sT} offen offset:{1024*(t & 3)} {p.ofl}"]
def lanesum(a, T, op):
    for sw in ("v_permlane32_swap_b32", "v_permlane16_swap_b32"):
        for t in range(T): a(f"v_mov_b32 v{1+t}, v{vL+t}")
        a("s_nop 1")
        for t in range(T): a(f"{sw} v{1+t}, v{vL+t}")
        a("s_nop 1")
        for t in range(T): a(f"{op} v{vL+t}, v{vL+t}, v{1+t}")

def wave_front(a, p, T, loader, tag):
    TAB = sum(REL[4+i] << (4*i) for i in range(12))
    e = 2 * p.ppe
    a(f"s_waitcnt vmcnt({4 if p.early else 4 + e + T + 4})\ns_waitcnt lgkmcnt(0)\ns_barrier")
    stamp(a, p, 1)
    for x in q_reads(5, 0, 0): a(x)
    if p.early: p.batch2(a, T)
    for dt in range(8): a(f"v_add_u32 v{vVA+dt}, s{sWD}, v{vVA+dt}")
    align(a, p)
    a(f"L_q{tag}:")
    if p.twq >= 0 and not loader:
        a(f"s_cmp_eq_u32 s{sIT}, s79\ns_cbranch_scc1 L_tq\nL_tqb:")
    KT = [tuple(int(y) for y in x.split(":")) for x in p.kt.split(",") if x]
    if KT: a(f"s_bitcmp1_b32 s79, s{sIT}\ns_cbranch_scc1 L_kt{tag}\nL_ktb{tag}:")
    qstep(a, p, T, 0)
    qstep(a, p, T, 1)
    if p.px:
        assert p.ppe == 2 and p.s0 in (1, 2) and not p.stag and not p.late
        a(f"s_cmp_eq_u32 s{sIT}, 18\ns_cbranch_scc1 L_qe{tag}\ns_cmp_eq_u32 s{sIT}, {4 + 2*p.s0}\ns_cbranch_scc0 L_q{tag}")
        for tile in range(2):
            r = frag_reads(tile, 16384 * tile, vVB)
            qstep(a, p, T, 0); qstep(a, p, T, 1, r[:12]); qstep(a, p, T, 0, r[12:]); qstep(a, p, T, 1)
        a(f"s_branch L_q{tag}\nL_qe{tag}:")
        if p.s0 == 2: emit(a, kv_dma(p), nop=False)
    else: a(f"s_cmp_lt_u32 s{sIT}, 18\ns_cbranch_scc1 L_q{tag}")
    stamp(a, p, 2)
    a("s_waitcnt lgkmcnt(0)")
    for dt in range(8): a(f"v_mov_b32 v{vVA+dt}, v{vVB+dt}")
    dma = []
    if loader:
        if p.swap:
            a(f"""{f"s_bitcmp1_b32 s2, {p.swap}" if p.swap < 99 else f"s_bitcmp1_b32 s{sHL}, 0"}
            s_cselect_b32 s{sKV}, s{sV}, s{sK}
            s_cselect_b32 s{sKV+1}, s{sV+1}, s{sK+1}
            s_cselect_b32 s{sW}, s{sK}, s{sV}
            s_cselect_b32 s{sW+1}, s{sK+1}, s{sV+1}
            s_cselect_b32 s{sXB}, 8192, 0
            s_mov_b32 s{sW+2}, 131072
            s_add_u32 s{sXB}, s{sXB}, s{sRB}""")
        else: a(f"s_mov_b32 s{sXB}, s{sRB}")
        for n in range(2, p.kvd - (p.t5 if p.px else 1 if p.late and not p.t3 else 0)):
            dma.append([f"s_add_u32 s{sKS}, s{sROT}, {(4 if p.par8 else 2)*(n + (2 if p.px else 0))}", f"s_and_b32 s{sKS}, s{sKS}, 31", f"s_lshl_b32 s{sKS}, s{sKS}, 12",
                        f"s_add_u32 s{sKM}, s{sXB}, {65536 + 16384*(n & 1)}"])
            dma += kv_tile_dma(p, sKM, sKS)
    di = 0
    a(f"s_load_dword s{sNONCE}, s[6:7], 0")
    if p.warm and not loader:
        flag_addr(a, 1, FA)
        a(f"s_add_u32 s{sT}, s{sT}, 64\ns_load_dword s{sKN}, s[82:83], s{sT}")
    a(f"v_and_b32 v1, 63, v0\ns_lshl_b32 s{sT}, s{sHL}, 11\ns_add_u32 s{sT}, s{sT}, {QX}\nv_lshl_add_u32 v1, v1, 4, s{sT}")
    units = [(t, s) for t in range(4) for s in range(4)]
    units = ([(4, 2), (4, 3)] + units) if loader else (units + [(4, 0), (4, 1)])
    def conv(a, t, s):
        A0, B0 = acc(t, 2*s), acc(t, 2*s+1)
        for r in range(0, 8, 2): a(f"v_pk_mul_f32 {vr(A0+r, 2)}, {vr(A0+r, 2)}, s[{sSC-1}:{sSC}] op_sel:[0,1] op_sel_hi:[1,1]")
        a(f"v_cvt_pk_bf16_f32 v4, v{A0}, v{A0+1}\nv_cvt_pk_bf16_f32 v5, v{A0+2}, v{A0+3}\nv_cvt_pk_bf16_f32 v6, v{B0}, v{B0+1}\nv_cvt_pk_bf16_f32 v7, v{B0+2}, v{B0+3}")
        if p.zc and p.px: a("s_nop 1")
        else:
            for r in range(0, 4, 2): a(f"v_pk_mov_b32 {vr(A0+r, 2)}, 0, 0")
        a("v_permlane32_swap_b32 v4, v6\nv_permlane32_swap_b32 v5, v7")
        if p.zc and p.px: a("s_nop 0")
        else:
            for r in range(0, 4, 2): a(f"v_pk_mov_b32 {vr(B0+r, 2)}, 0, 0")
        a("v_permlane16_swap_b32 v4, v6\nv_permlane16_swap_b32 v5, v7\ns_nop 0")
        if loader and t == 4:
            a(f"ds_write_b128 v1, v[4:7] offset:{1024*(s - 2)}\ns_nop 1")
        else:
            q = aQ + (t*4+s)*4
            for r in (0, 2, 1, 3): a(f"v_accvgpr_write_b32 a{q+r}, v{4+r}")
    if p.zc and p.px:
        def s1(n):
            t, s_ = units[n]; A0, d = acc(t, 2*s_), 4 + 16 * (n & 1)
            return [f"v_pk_mul_f32 {vr(A0+r, 2)}, {vr(A0+r, 2)}, s[{sSC-1}:{sSC}] op_sel:[0,1] op_sel_hi:[1,1]" for r in range(0, 8, 2)] + \
                   [f"v_cvt_pk_bf16_f32 v{d+r}, v{A0+2*r}, v{A0+2*r+1}" for r in range(4)]
        def conv(a, t, s):
            n = units.index((t, s)); d = 4 + 16 * (n & 1)
            if n == 0:
                for x in s1(0): a(x)
            nx = s1(n + 1) if n + 1 < len(units) else ["s_nop 0"] * 5
            a(f"{nx[0]}\n{nx[1]}\nv_permlane32_swap_b32 v{d}, v{d+2}\nv_permlane32_swap_b32 v{d+1}, v{d+3}\n{nx[2]}\n{nx[3]}")
            a(f"v_permlane16_swap_b32 v{d}, v{d+2}\nv_permlane16_swap_b32 v{d+1}, v{d+3}\n{nx[4]}")
            if loader and t == 4: a(f"ds_write_b128 v1, {vr(d)} offset:{1024*(s - 2)}")
            else:
                for r in (0, 2, 1, 3): a(f"v_accvgpr_write_b32 a{aQ + (t*4+s)*4 + r}, v{d+r}")
            for x in nx[5:]: a(x)
    nb = 6 if p.soft else 10
    later = units[nb:] if p.soft else []
    for n, (t, s) in enumerate(units + [(None, None)]):
        if n == nb:
            assert di == len(dma)
            if loader and p.tst >= 0: a(f"s_bitcmp1_b32 s2, {p.tst}\ns_cbranch_scc0 L_ts\ns_waitcnt vmcnt({p.tsw})\nL_ts:")
            a(f"s_waitcnt lgkmcnt(0)\ns_waitcnt vmcnt({(16*(p.kvd - 2 - (p.t5 if p.px else 1 if p.late and not p.t3 else 0)) if loader else 0) + (4 if p.px and p.s0 == 2 else 0)})\ns_barrier")
            if not loader:
                for s2 in (2, 3): a(f"ds_read_b128 {ar(aQ + (16 + s2)*4)}, v1 offset:{1024*(s2 - 2)}")
            for x in frag_reads(0, 0)[:0 if p.px else 8 if p.late else 24]: a(x)
            if p.soft: break
        if t is None: break
        for _ in range(6 if p.soft and p.t3 else 4 if not p.soft else 3):
            if di < len(dma):
                for x in dma[di]: a(x)
                di += 1
        conv(a, t, s)
    for t in range(T): a(f"v_mov_b32 v{vL+t}, 0")
    for j in range(8): a(f"v_mov_b32 v{vS[1]+j}, 0")
    if not p.px:
        for j in range(32): a(f"v_accvgpr_write_b32 a{aV[1]+j}, 0")
    if loader:
        a(f"""s_mov_b32 s{sX}, s{sWO}
        s_mov_b32 s{sX+1}, s{sWO+1}
        s_mov_b32 s{sX+2}, s{sWO+2}
        s_and_b32 s{gLO}, s3, 3
        s_lshl_b32 s{gLO}, s{gLO}, 10
        s_lshl_b32 s{sT}, s{sHL}, 5
        s_add_u32 s{gLO}, s{gLO}, s{sT}
        s_mul_i32 s{gLO}, s{gLO}, 1152
        s_mul_i32 s{sT}, s4, 288
        s_add_u32 s{gLO}, s{gLO}, s{sT}
        s_mov_b32 s{gSTR}, {0 if p.exp & 1 else 73728}
        s_mul_i32 s{gDL2}, s{sHL}, 9216
        s_add_u32 s{gDL2}, s{gDL2}, 18432""")
    else:
        a(f"""s_mov_b32 s{sX}, s{sO}
        s_mov_b32 s{sX+1}, s{sO+1}
        s_mov_b32 s{sX+2}, s{sO+2}
        s_lshl_b32 s{sT}, s4, 1
        s_add_u32 s{sT}, s{sT}, s{sHL}
        s_mul_i32 s{sT}, s{sT}, {4*9216}
        s_sub_u32 s{gLO}, s{sOB}, s{sT}
        s_mul_i32 s{gDL2}, s{sHL}, 9216
        s_add_u32 s{gLO}, s{gLO}, s{gDL2}
        s_movk_i32 s{gSTR}, {0 if p.exp & 2 else 18432}""")
    a(f"""s_lshl_b32 s{gP4}, s4, 2
    s_mov_b32 s{gTAB}, {TAB & 0xffffffff:#x}
    s_mov_b32 s{gTAB+1}, {TAB >> 32:#x}
    s_mov_b32 s{gREDO}, 0
    s_mov_b32 s{sNEG}, {(127+40) << 23:#x}
    s_mov_b32 s{sIT}, 0
    s_mov_b32 s{sHI}, 0""")
    if p.warm and not loader:
        flag_addr(a, 1, FA)
        a(f"""s_add_u32 s{sT}, s{sT}, 64
        v_and_b32 v1, 7, v0
        s_lshr_b32 s80, s3, 2
        s_lshl_b32 s80, s80, 3
        s_add_u32 s80, s80, s5
        s_lshl_b32 s80, s80, 2
        s_add_u32 s80, s80, s4
        s_mul_i32 s80, s80, {PBLK}
        s_add_u32 s80, s80, {P_OFF}
        s_mov_b32 s81, {64*PBLK}
        v_mad_u32_u24 v2, v1, s81, v1
        v_sub_u32 v2, v2, v1
        v_add_u32 v2, s80, v2
        v_mov_b32 v3, s{sT}
        v_cmp_gt_u32 vcc, 4, v1
        s_nop 1
        v_cndmask_b32 v2, v3, v2, vcc
        global_load_dword v{vDUM}, v2, s[82:83] sc1""")
    a(f"s_cmp_eq_u32 s{sNONCE}, 0\ns_cbranch_scc1 L_tag{tag}\nL_tagb{tag}:")
    if loader and p.pace >= 0:
        a(f"s_lshr_b32 s{sSW}, s2, 3\ns_mul_i32 s{sSW+1}, s3, {p.pmul}\ns_add_u32 s{sSW}, s{sSW}, s{sSW+1}\ns_and_b32 s{sSW}, s{sSW}, {p.pmask}\ns_add_u32 s{sSW}, s{sSW}, {p.pace}\ns_sub_u32 s{sSW+1}, s{sSW}, 1")
    if loader and p.fc:
        a(f"""s_lshr_b32 s{sPA}, s2, 3
        s_lshl_b32 s{sPA}, s{sPA}, 7
        s_add_u32 s{sPA}, s{sPA}, {FP}
        s_lshl_b32 s{sT}, s3, 2
        s_add_u32 s{sT}, s{sT}, s{sPA}
        v_mov_b32 v{vFL}, s{sT}""")
    out = A()
    out(f"""L_tag{tag}:
    s_memrealtime s[80:81]
    v_mov_b32 v1, 0
    v_mov_b32 v3, 0
    s_waitcnt lgkmcnt(0)
    s_or_b32 s80, s80, 1
    v_mov_b32 v2, s80
    s_mov_b64 exec, 1
    global_atomic_cmpswap v4, v1, v[2:3], s[6:7] sc0 sc1
    s_waitcnt vmcnt(0)
    s_mov_b64 exec, -1
    v_readfirstlane_b32 s{sNONCE}, v4
    s_nop 1
    s_cmp_eq_u32 s{sNONCE}, 0
    s_cselect_b32 s{sNONCE}, s80, s{sNONCE}
    s_branch L_tagb{tag}""")
    if KT:
        out(f"L_kt{tag}:\ns_mul_i32 s81, s4, {p.ktst}\ns_sub_u32 s81, s{sIT}, s81")
        for i, (st, f0, cnt) in enumerate(KT):
            out(f"s_cmp_eq_u32 s81, {st}\ns_cbranch_scc0 L_kt{tag}{i}")
            for n in range(f0, f0 + cnt):
                out(f"s_add_u32 s80, s{sROT}, {2*n}\ns_and_b32 s80, s80, 31\ns_lshl_b32 s80, s80, 12\ns_nop 0\nbuffer_load_dword v{vDUM}, v{vTCH}, s[{sKV}:{sKV+3}], s80 offen {p.ktfl}")
            out(f"L_kt{tag}{i}:")
        out(f"s_branch L_ktb{tag}")
    if p.twq >= 0 and not loader:
        out("L_tq:")
        wo_touch(out, p, 80, 81)
        out("s_branch L_tqb")
    if p.px:
        assert not p.late
        for par in range(2):
            n = {1: (5, None), 2: (4, 5), 0: (None, None)}[p.t5][par]
            if n and loader: a(f"s_add_u32 s{sKS}, s{sROT}, {2*n}\ns_and_b32 s{sKS}, s{sKS}, 31\ns_lshl_b32 s{sKS}, s{sKS}, 12\ns_add_u32 s{sKM}, s{sXB}, {65536 + 16384*(n & 1)}")
            block(a, p, T, par, loader, lambda a: a("s_waitcnt lgkmcnt(0)" + (f"\ns_waitcnt vmcnt({p.pb[par]})\ns_barrier" if p.pb[par] >= 0 else "")), None, nodma=not n, nord=par == 0, first=p.zc)
        a(f"s_mov_b32 s{sIT}, 2")
        if p.s0 == 2 and not loader: a("s_waitcnt vmcnt(0)")
    hk = {}
    seq = ([(0, True)] if p.soft else []) + [(0, False), (1, False)]
    for par, peeled in seq:
        if par == 0 and not peeled:
            if p.soft: a(f"s_branch L_a1{tag}")
            align(a, p)
            a(f"L_a{tag}:")
        if par == 1: a(f"L_a1{tag}:")
        dist = p.kvd - (1 if p.late else 0)
        def kvbook(a):
            if p.px and p.dsw:
                a(f"""s_cmp_gt_i32 s{sIT}, s{sSW + par}
                s_cselect_b32 s{sT}, {3 + par}, {4 + par}
                s_add_u32 s{sT}, s{sT}, s{sIT}
                s_lshl_b32 s{sKS}, s{sT}, 1
                s_add_u32 s{sKS}, s{sKS}, s{sROT}
                s_and_b32 s{sKS}, s{sKS}, 31
                s_lshl_b32 s{sKS}, s{sKS}, 12
                s_and_b32 s{sKM}, s{sT}, 1
                s_lshl_b32 s{sKM}, s{sKM}, 14
                s_add_u32 s{sKM}, s{sKM}, s{sXB}
                s_andn2_b32 s{sKN}, 2, s{sT}
                s_lshl_b32 s{sKN}, s{sKN}, 15
                s_add_u32 s{sKM}, s{sKM}, s{sKN}
                s_cmp_eq_u32 s{sIT}, s{sSW + par}
                s_cselect_b32 s{sT}, 16, s{sT}
                s_cmp_ge_u32 s{sT}, 16
                s_cselect_b32 s{sKM}, {LDSOOB}, s{sKM}
                s_cselect_b32 s{sKS}, {OOB}, s{sKS}""")
                return
            e0 = p.late and p.t3 and par == 0
            if p.par8: a(f"s_add_u32 s{sT}, s{sIT}, {dist+par}\ns_lshl_b32 s{sKS}, s{sT}, 2\ns_lshr_b32 s{sT}, s{sT}, 2\ns_and_b32 s{sT}, s{sT}, 2\ns_add_u32 s{sKS}, s{sKS}, s{sT}")
            else: a(f"s_lshl_b32 s{sKS}, s{sIT}, 1\ns_add_u32 s{sKS}, s{sKS}, {2*(dist+par)}")
            a(f"""s_add_u32 s{sKS}, s{sKS}, s{sROT}
            s_and_b32 s{sKS}, s{sKS}, 31
            s_lshl_b32 s{sKS}, s{sKS}, 12
            s_xor_b32 s{sKM}, s{sHI}, {0x10000 * (((dist + par) >> 1) & 1)}
            s_add_u32 s{sKM}, s{sKM}, s{sXB}
            s_add_u32 s{sKM}, s{sKM}, {16384*((dist + par) & 1)}
            {f"s_sub_u32 s{sT}, s{sIT}, 1" if e0 else ""}
            s_cmp_ge_u32 s{sT if e0 else sIT}, {16 - dist - par - (1 if e0 else 0)}
            s_cselect_b32 s{sKM}, {LDSOOB}, s{sKM}
            s_cselect_b32 s{sKS}, {OOB}, s{sKS}""")
        def hooks(a, tailblk=False, par=par):
            if loader and p.px and p.l14:
                if par == 1 and tailblk: g_stage_now(a, p.wofl, 0); g_stage_now(a, p.wofl, 1)
                elif par == 1:
                    a(f"s_cmp_eq_u32 s{sIT}, 12\ns_cbranch_scc1 L_w1\nL_wb1:")
                    out("L_w1:")
                    g_stage_now(out, p.wofl, 2); g_stage_now(out, p.wofl, 3)
                    out("s_branch L_wb1")
            elif loader and p.px:
                if par == 1:
                    a(f"s_cmp_ge_u32 s{sIT}, 12\ns_cbranch_scc1 L_w1\nL_wb1:")
                    out(f"L_w1:\ns_cmp_eq_u32 s{sIT}, 12\ns_cbranch_scc0 L_w1b")
                    g_stage_now(out, p.wofl, 2); g_stage_now(out, p.wofl, 3)
                    out("s_branch L_wb1\nL_w1b:")
                    g_stage_now(out, p.wofl, 0); g_stage_now(out, p.wofl, 1)
                    out("s_branch L_wb1")
            elif loader:
                a(f"s_cmp_ge_u32 s{sIT}, {14 - 2*par}\ns_cbranch_scc1 L_w{par}\nL_wb{par}:")
                out(f"L_w{par}:")
                if par == 0: g_stage_now(out, p.wofl, 1)
                else:
                    out(f"s_cmp_eq_u32 s{sIT}, 12\ns_cbranch_scc0 L_w1b")
                    g_stage_now(out, p.wofl, 0)
                    out("s_branch L_wb1\nL_w1b:")
                    g_stage_now(out, p.wofl, 2)
                    g_stage_now(out, p.wofl, 3)
                out(f"s_branch L_wb{par}")
            elif p.tws:
                blks = [int(x) for x in p.tws.split(",")]
                for bk in sorted(set(blks)):
                    if bk & 1 != par or (p.l14 and bk >= 14) != tailblk or bk > 15: continue
                    if not tailblk: a(f"s_cmp_eq_u32 s{sIT}, {bk & ~1}\ns_cbranch_scc0 L_nt{tag}{bk}")
                    for j, o in enumerate((0, 8192, 10240)):
                        if blks[j] == bk: a(f"s_add_u32 s{sT}, s{sTW}, {o}\ns_nop 0\nbuffer_load_dword v{vDUM}, v{vTCH}, s[{sWO}:{sWO+3}], s{sT} offen {p.twfl}")
                    a(f"L_nt{tag}{bk}:")
            elif par == 0 and p.twown >= 0:
                a(f"""s_cmp_eq_u32 s{sIT}, {p.twown}
                s_cbranch_scc0 L_nt{tag}
                s_and_b32 s{sT}, s3, 3
                s_lshl_b32 s{sT}, s{sT}, 2
                s_add_u32 s{sT}, s{sT}, s4
                s_lshl_b32 s{sT}, s{sT}, 3
                s_add_u32 s{sT}, s{sT}, s5
                s_lshl_b32 s{sT}, s{sT}, 1
                s_add_u32 s{sT}, s{sT}, s{sHL}
                s_mul_i32 s{sT}, s{sT}, {16*1152}
                s_mul_i32 s{sT2}, s4, 288
                s_and_b32 s{sT2}, s{sT2}, 0xff80
                s_add_u32 s{sT}, s{sT}, s{sT2}
                v_and_b32 v1, 63, v0
                v_lshrrev_b32 v2, 2, v1
                v_mul_u32_u24 v2, 1152, v2
                v_and_b32 v1, 3, v1
                v_lshl_add_u32 v1, v1, 7, v2
                buffer_load_dword v{vDUM}, v1, s[{sWO}:{sWO+3}], s{sT} offen {p.twfl}
                L_nt{tag}:""")
                if p.twpos < 15:
                    a(f"s_cmp_eq_u32 s{sIT}, {p.twpos}\ns_cbranch_scc0 L_nv{tag}")
                    wo_touch(a, p)
                    a(f"L_nv{tag}:")
            elif tailblk: pass
            elif par == 0 and p.twpos < 15:
                a(f"s_cmp_eq_u32 s{sIT}, {p.twpos}\ns_cbranch_scc0 L_nt{tag}")
                if p.tsplit >= 0:
                    wo_touch_part(a, p, 0)
                else: wo_touch(a, p)
                a(f"L_nt{tag}:")
            elif par == 1 and p.tw2 == 2:
                a(f"s_cmp_eq_u32 s{sIT}, {p.twpos}\ns_cbranch_scc0 L_nu{tag}")
                wo_touch(a, p, fl="")
                a(f"L_nu{tag}:")
        def top(a):
            if loader: kvbook(a)
            a("s_waitcnt lgkmcnt(0)")
            if loader and p.fc:
                out(f"""L_fc{par}:
                s_add_u32 s74, s{sIT}, {par}
                s_add_u32 s75, s74, s{sNONCE}
                v_mov_b32 v2, s75
                s_mov_b64 exec, 1
                global_store_dword v{vFL}, v2, s[82:83] sc1
                s_mov_b64 exec, -1
                s_mov_b32 s76, 0
                s_cmp_lt_u32 s74, {p.fc + 1}
                s_cbranch_scc1 L_fce{par}
                L_fcl{par}:""")
                for j in range(8): out(f"s_sub_u32 s{sPG+j}, s{sPG+j}, s{sNONCE}\ns_cmp_gt_u32 s{sPG+j}, 31\ns_cselect_b32 s{sPG+j}, 0, s{sPG+j}")
                for j in range(1, 8): out(f"s_min_u32 s{sPG}, s{sPG}, s{sPG+j}")
                out(f"""s_add_u32 s{sPG}, s{sPG}, {p.fc}
                s_cmp_ge_u32 s{sPG}, s74
                s_cbranch_scc1 L_fce{par}
                s_add_u32 s76, s76, 1
                s_cmp_ge_u32 s76, {p.fcs}
                s_cbranch_scc1 L_fce{par}
                s_load_dwordx8 s[{sPG}:{sPG+7}], s[82:83], s{sPA} glc
                s_waitcnt lgkmcnt(0)
                s_branch L_fcl{par}
                L_fce{par}:
                s_load_dwordx8 s[{sPG}:{sPG+7}], s[82:83], s{sPA} glc
                s_branch L_fcb{par}""")
            if not p.late:
                if loader and p.pace >= 0: a(f"s_cmp_lt_i32 s{sIT}, s{sSW + par}\ns_cbranch_scc0 L_pc{par}\ns_waitcnt vmcnt({p.pw2})\nL_pc{par}:")
                if loader and p.px and p.dsw: a(f"s_sub_u32 s{sT2}, s{sIT}, 3\ns_cmp_ge_i32 s{sT2}, s{sSW + par}\ns_cbranch_scc0 L_pd{par}\ns_waitcnt vmcnt(16)\nL_pd{par}:")
                if loader: a(f"s_waitcnt vmcnt({16*(p.kvd - 2)})")
                a("s_barrier")
                if p.aprof: a(f"s_add_u32 s98, s{sIT}, {par - (2 if p.px else 0)}\ns_mov_b32 s99, m0\ns_mov_b32 m0, s98\nv_writelane_b32 v31, s96, m0\ns_memrealtime s[96:97]\ns_mov_b32 m0, s99")
                hooks(a)
        def mid(a):
            if loader and p.pace >= 0:
                a(f"s_cmp_lt_i32 s{sIT}, s{sSW + par}\ns_cbranch_scc0 L_pc{par}\ns_waitcnt vmcnt({p.pw2})")
                if p.pw3 >= 0: a(f"s_bitcmp1_b32 s2, {p.pbit}\ns_cbranch_scc0 L_pc{par}\ns_waitcnt vmcnt({p.pw3})")
                if p.st0 >= 0 and par == 0: a(f"s_cmp_eq_u32 s{sIT}, 0\ns_cbranch_scc0 L_pc{par}\ns_bitcmp1_b32 s2, {p.pbit}\ns_cbranch_scc0 L_pc{par}\ns_waitcnt vmcnt({p.st0})")
                a(f"L_pc{par}:")
            if loader: a(f"s_waitcnt vmcnt({16*(dist - 1)})")
            a("s_barrier")
            if p.aprof: a(f"s_add_u32 s98, s{sIT}, {par}\ns_mov_b32 s99, m0\ns_mov_b32 m0, s98\nv_writelane_b32 v31, s96, m0\ns_memrealtime s[96:97]\ns_mov_b32 m0, s99")
            hooks(a)
        if peeled:
            assert p.late and not p.fc
            def top0(a):
                if loader: kvbook(a)
                a("s_waitcnt lgkmcnt(0)")
            def mid0(a):
                if loader: a(f"s_waitcnt vmcnt({p.pw2 if p.pace >= 1 else 16*(dist - 1)})")
                a("s_barrier")
                if p.aprof: a("s_memrealtime s[96:97]")
            def ins(a, t):
                for u in later:
                    if u[0] == t: conv(a, *u)
            block(a, p, T, 0, loader, top0, mid0, ins)
            continue
        block(a, p, T, par, loader, top, mid)
        hk[par] = hooks
    a(f"s_xor_b32 s{sHI}, s{sHI}, 0x10000\ns_add_u32 s{sIT}, s{sIT}, 2\ns_cmp_lt_u32 s{sIT}, {14 if p.l14 else 16}\ns_cbranch_scc1 L_a{tag}")
    if p.l14:
        assert p.px
        pr = lambda k: f"\nv_writelane_b32 v31, s96, {k}\ns_memrealtime s[96:97]" if p.aprof else ""
        def mid14(a):
            a(("s_waitcnt vmcnt(34)\n" if loader else "") + "s_barrier" + pr(12))
            if not loader and p.tws:
                for j, o in enumerate((0, 8192, 10240)):
                    if p.tws.split(",")[j] == "20": a(f"s_add_u32 s{sT}, s{sTW}, {o}\ns_nop 0\nbuffer_load_dword v{vDUM}, v{vTCH}, s[{sWO}:{sWO+3}], s{sT} offen {p.twfl}")
        block(a, p, T, 0, loader, lambda a: (a("s_waitcnt lgkmcnt(0)"), hk[0](a, True)), mid14, nodma=True, lr=True)
        block(a, p, T, 1, loader, lambda a: (a("s_waitcnt lgkmcnt(0)\ns_barrier" + pr(13)), hk[1](a, True)), None, nodma=True, nord=True)
    S = vS[(2*T - 1) & 1]
    a("s_nop 0")
    for x in soft2(S, T-1): a(x)
    ls = A(); lanesum(ls, T, "v_add_f32")
    ls = [x.strip() for x in ls.l]
    per = -(-len(ls) // 8)
    weave(a, pv(S, aV[1], T-1), [ls[i*per:(i+1)*per] for i in range(8)])
    stamp(a, p, 3)
    a(f"L_e{tag}:")
    if not loader and p.twpos == 16: wo_touch(a, p)
    a(f"v_mov_b32 v6, v{vL}\nv_mov_b32 v7, v{vL}")
    for t in range(1, T): a(f"v_min_u32 v6, v6, v{vL+t}\nv_max_u32 v7, v7, v{vL+t}")
    a(f"""v_cmp_gt_u32 vcc, {(127-20) << 23:#x}, v6
    v_cmp_lt_u32 s[80:81], s{sNEG}, v7
    s_nop 1
    s_or_b64 vcc, vcc, s[80:81]
    {'s_mov_b64 vcc, -1' if p.force else ''}
    s_cbranch_vccz L_ok{tag}
    v_mov_b32 v6, {LFLAG}
    v_mov_b32 v7, 1
    ds_write_b32 v6, v7
    L_ok{tag}:""")
    for t in range(T): a(f"v_rcp_f32 v{vL+t}, v{vL+t}")
    a("s_nop 0")
    buf = 0
    for sp in range(2):
        for n, (t, s) in enumerate([(t, 2*sp + k) for t in range(T) for k in range(2)]):
            A0 = acc(t, 2*s)
            rp = (vL + t) & ~1
            sel = (vL + t) & 1
            for r in range(0, 8, 2): a(f"v_pk_mul_f32 {vr(A0+r, 2)}, {vr(A0+r, 2)}, {vr(rp, 2)} op_sel:[0,{sel}] op_sel_hi:[1,{sel}]")
            if sp == 0 or not p.defer: d = (8, 12, 80, 84)[buf & 3]; buf += 1
            else: d = KEEP[n]
            for r in range(4): a(f"v_cvt_pk_bf16_f32 v{d+r}, v{A0+2*r}, v{A0+2*r+1}")
            a(f"ds_write_b128 v{vOW}, {vr(d)} offset:{(s >> 1)*STG + (s & 1)*9216 + 1024*t}")
            if sp == 0 or not p.defer:
                for x in o_store(p, t, s, d): a(x)
            for r in range(0, 8, 2):
                if A0 + r < v2ACC + 84: a(f"v_pk_mov_b32 {vr(A0+r, 2)}, 0, 0")
    if not loader and p.twpos == 17: wo_touch(a, p)
    a(f"""s_mov_b32 s{gST}, 0
    s_mov_b32 s{gRI}, 0
    s_mov_b32 s{gC1}, {STG}
    s_mov_b32 s{gC2}, {-3*STG}
    s_mov_b32 s{gDL}, {STG}
    s_mov_b32 s{gM0}, {LDSOOB}
    s_mov_b32 m0, {LDSOOB}
    s_mov_b32 s{gSO}, {OOB}
    s_mov_b32 s{gDST}, s{gDL2}
    v_mov_b32 v1, {LFLAG}""")
    if True:
        flag_addr(a, 1, FA)
        CHK = 0x3cf
        a(f"""s_add_u32 s{gFP}, s82, s{sT}
        s_addc_u32 s{gFP+1}, s83, 0
        s_lshl_b32 s{sT}, s4, 2
        v_mov_b32 v{vPA}, s{sT}
        v_mov_b32 v{vNZ}, s{sNONCE}
        s_mov_b32 s{gOFF}, 0
        s_mov_b32 s{gCHK}, {CHK}
        s_cmp_eq_u32 s{sWAVE}, 0
        s_cselect_b32 s{gPOST}, {16 if p.defer else 8}, 0
        s_add_u32 s64, s{sOB}, 18432
        s_add_u32 s65, s{sOB}, 27648
        s_add_u32 s66, s{sOB}, 22528
        s_add_u32 s61, s{sOB}, 31744
        s_mov_b32 s{gMASK}, {7 if loader else CHK | CHK >> 1}
        s_mov_b64 s[{gF}:{gF+1}], 0""")
    a(f"s_waitcnt lgkmcnt(0)\ns_waitcnt vmcnt({4*T if p.exp & 512 else (0 if p.pa < 0 and p.defer else 2*T) + (3 if not loader and p.twpos == 17 else 0)})")
    a("s_branch L_gemm")
    a.l += out.l
    a(f"L_redo{tag}:")
    a(f"s_waitcnt vmcnt(0) lgkmcnt(0)\ns_barrier\nv_mov_b32 v6, {LFLAG}\nv_mov_b32 v7, 0\nds_write_b32 v6, v7")
    for r in list(range(vKA, vKA+4)) + list(range(vVA, vVA+8)): a(f"v_and_b32 v{r}, 0xffff, v{r}")
    for t in range(T): a(f"v_mov_b32 v{vL+t}, 0xff800000")
    for ps in range(2):
        a(f"s_mov_b32 s{sKS}, 0\nL_r{ps}{tag}:")
        if loader:
            emit(a, kv_tile_dma(p, sRB, sKS, (0, 1) if ps == 0 else (0, 1, 2, 3), plain=True), nop=False)
        a("s_waitcnt vmcnt(0)\ns_barrier")
        for x in frag_reads(0, 0)[:8 if ps == 0 else 24]: a(x)
        a("s_waitcnt lgkmcnt(0)\ns_barrier")
        for t in range(T):
            S = vS[0]
            for x in qk(S, aK[0], t, "0" if ps == 0 else vr(vNM + 4*t)): a(x)
            a("s_nop 7")
            if ps == 0:
                for j in range(0, 8, 2): a(f"v_max3_f32 v{vL+t}, v{vL+t}, v{S+j}, v{S+j+1}")
            else:
                for j in range(8): a(f"v_exp_f32 v{S+j}, v{S+j}")
                for x in soft2(S, t) + pv(S, aV[0], t): a(x)
        a(f"s_add_u32 s{sKS}, s{sKS}, 8192\ns_cmp_lt_u32 s{sKS}, 131072\ns_cbranch_scc1 L_r{ps}{tag}")
        if ps == 0:
            lanesum(a, T, "v_max_f32")
            for t in range(T):
                for r in range(4): a(f"v_sub_f32 v{vNM + 4*t + r}, 0, v{vL+t}")
                a(f"v_mov_b32 v{vL+t}, 0")
            for r in range(32 * T): a(f"v_mov_b32 v{vACC+r}, 0")
    a("s_barrier")
    if loader:
        for st in range(4): g_stage_now(a, p.wofl, st)
    lanesum(a, T, "v_add_f32")
    a(f"s_mov_b32 s{gREDO}, 1\ns_branch L_e{tag}")

def g_reads(par, off):
    A_, B_ = a2A[par], a2B[par]
    rd = []
    for nt in range(3):
        reg, o = (v2A, 32 * nt) if nt < 2 else (v2A + 1, 0)
        rd.append(f"ds_read_b64_tr_b16 {ar(A_ + 4*nt, 2)}, v{reg} offset:{off + o}")
        rd.append(f"ds_read_b64_tr_b16 {ar(A_ + 4*nt + 2, 2)}, v{reg} offset:{off + o + 4608}")
    for u in range(9):
        reg, o = (v2B, 1024 * u) if u < 3 else (v2B + 1 + (u - 3) // 2, 1024 * ((u - 3) & 1))
        rd.append(f"ds_read_b128 {ar(B_ + 4*u)}, v{reg} offset:{off + o}" if not (EXP & 256 and u >= 6) else "s_nop 0")
    return rd
def g_mf(par, n3=3):
    return [f"{MF} {vr(acc2(nt, u))}, {ar(a2A[par] + 4*nt)}, {ar(a2B[par] + 4*u)}, {vr(acc2(nt, u))}" for u in range(9) for nt in range(3 if u < n3 else 2)]

def flag_addr(a, hop, base):
    if hop == 1: a(f"s_lshr_b32 s{sT}, s2, 5\ns_lshl_b32 s{sT}, s{sT}, 3\ns_add_u32 s{sT}, s{sT}, s3")
    else: a(f"s_lshr_b32 s{sT}, s2, 2")
    a(f"s_lshl_b32 s{sT}, s{sT}, {8 if hop == 1 else 7}\ns_add_u32 s{sT}, s{sT}, {base}")
def poll_issue(a):
    a(f"s_load_dwordx4 s[{gF}:{gF+3}], s[82:83], s{sT} glc")
def poll(a, tag, hop, base, issued=False, lim=SPIN, fail=None):
    flag_addr(a, hop, base)
    a(f"s_mov_b32 s{sT2}, 0")
    if issued: a(f"s_branch L_pc{tag}")
    a(f"L_p{tag}:")
    poll_issue(a)
    a(f"""L_pc{tag}:
    s_waitcnt lgkmcnt(0)
    s_xor_b32 s{gF}, s{gF}, s{sNONCE}
    s_xor_b32 s{gF+1}, s{gF+1}, s{sNONCE}
    s_xor_b32 s{gF+2}, s{gF+2}, s{sNONCE}
    s_xor_b32 s{gF+3}, s{gF+3}, s{sNONCE}
    s_or_b64 s[{gF}:{gF+1}], s[{gF}:{gF+1}], s[{gF+2}:{gF+3}]
    s_cbranch_scc0 L_pd{tag}
    s_add_u32 s{sT2}, s{sT2}, 1
    s_cmp_lt_u32 s{sT2}, {lim}
    s_cbranch_scc1 L_p{tag}
    {f"s_cmp_eq_u32 {lim}, 0" if fail else ""}
    {f"s_cbranch_scc1 {fail}" if fail else ""}
    L_pd{tag}:""")
def vpoll(a, tag, hop, base):
    flag_addr(a, hop, base)
    a(f"""v_and_b32 v1, 3, v0
    v_lshl_add_u32 v1, v1, 2, s{sT}
    s_mov_b32 s{sT}, 0
    L_p{tag}:
    global_load_dword v2, v1, s[82:83] sc1
    s_add_u32 s{sT}, s{sT}, 1
    s_waitcnt vmcnt(0)
    v_cmp_ne_u32 vcc, s{sNONCE}, v2
    s_cmp_lt_u32 s{sT}, {SPIN}
    s_cbranch_vccz L_pd{tag}
    s_cbranch_scc1 L_p{tag}
    L_pd{tag}:""")
def post(a, hop, base):
    flag_addr(a, hop, base)
    if hop == 1: a(f"s_lshl_b32 s{sT2}, s4, 2")
    else: a(f"s_and_b32 s{sT2}, s2, 3\ns_lshl_b32 s{sT2}, s{sT2}, 2")
    a(f"""s_add_u32 s{sT}, s{sT}, s{sT2}
    v_mov_b32 v1, s{sT}
    v_mov_b32 v2, s{sNONCE}
    s_mov_b64 exec, 1
    global_store_dword v1, v2, s[82:83] sc1
    s_mov_b64 exec, -1""")

gRET = 54
OSO = {(2, 0): 64, (3, 0): 65, (2, 1): 66, (3, 1): 61}
PSETUP = f"""s_and_b32 s{sT}, s3, 3
s_lshl_b32 s60, s{sT}, 4
s_lshr_b32 s61, s3, 2
s_lshl_b32 s61, s61, 3
s_add_u32 s61, s61, s5
s_add_u32 s60, s60, s61
s_lshl_b32 s60, s60, 2
s_add_u32 s60, s60, s4
s_mul_i32 s60, s60, {PBLK}
s_add_u32 s{sW}, s82, {P_OFF}
s_addc_u32 s{sW+1}, s83, 0
s_mov_b32 s{sW+2}, {256*PBLK}
s_mul_i32 s62, s{sWAVE}, 9216
s_add_u32 s62, s62, s60
s_lshl_b32 s63, s{sWAVE}, 1
s_cmp_eq_u32 s{sWAVE}, 0
s_cselect_b32 s{gQ1}, 3, 0
s_cmp_lt_u32 s{sWAVE}, 2
s_cselect_b32 s{gQ2}, 5, 2
s_cmp_lt_u32 s{sWAVE}, 3
s_cselect_b32 s{gQ3}, 7, 4""".split("\n")
def gemm_stage(a, p, role, un, stores, pub=False, start=0, d0=True, d1=True, hook=True, vm=None, last=False, extra=()):
    fl = p.wofl if role == "w" else p.olfl
    d = g_dma(fl)
    n3 = 2 if role == "o" and p.dd else 3
    n = 18 + n3
    sto = lambda n, q: [It(stores[n], q, q)] if n < len(stores) else []
    a("s_waitcnt lgkmcnt(6)")
    r = g_reads(1, 9216)
    upd = [f"v_add_u32 v{x}, s{gDL}, v{x}" for x in (v2A, v2A + 1, v2B, v2B + 1, v2B + 2, v2B + 3)]
    book0 = [f"s_add_u32 s{gRI}, s{gRI}, 1", f"s_and_b32 s{gRI}, s{gRI}, 3", f"s_cmp_eq_u32 s{gRI}, 3", f"s_cselect_b32 s{gDL}, s{gC2}, s{gC1}"]
    book2 = [f"s_and_b32 s{gSRC}, s{gTAB}, 15", f"s_lshr_b64 s[{gTAB}:{gTAB+1}], s[{gTAB}:{gTAB+1}], 4", f"s_add_u32 s{gSRC}, s{gSRC}, s{gP4}",
             f"s_and_b32 s{gSRC}, s{gSRC}, 15", f"s_mul_i32 s{gSRC}, s{gSRC}, s{gSTR}", f"s_add_u32 s{gSRC}, s{gSRC}, s{gLO}"]
    book1 = book2 + [f"s_cmp_ge_u32 s{gST}, 12", f"s_cselect_b32 s{gM0}, {LDSOOB}, s{gDST}", f"s_cselect_b32 s{gSO}, {OOB}, s{gSRC}",
             f"s_add_u32 s{gDST}, s{gDST}, s{gDL}"] + book0 + ([] if un else [f"s_bitcmp1_b32 s{gMASK}, s{gST}"])
    rp = [0, 0, 1, 1, 2, 2, 3, 5, 6, 8, 9, 11, 12, 14, 15]
    dm = flat_dma(d[3:], [4, 7, 10, 13, 16, 19])
    k = next(i for i, x in enumerate(dm) if x.k == "M" and x.lo == 7)
    k2 = next(i for i, x in enumerate(dm) if x.k == "M" and x.lo == 19)
    dm = dm[:k] + sto(0, 5 if role == "o" else 6) + dm[k:k2] + sto(1, 17 if role == "o" else 18) + dm[k2:]
    if not d0: dm = [x for x in dm if x.t.startswith("buffer_store")]
    flo = [It(x, q, q) for x, q in zip(r[:9], rp)] + [It("s_waitcnt lgkmcnt(9)", 7, 8) if n3 == 3 else It("s_waitcnt lgkmcnt(8)", 6, 6)] + [It(x, q, q) for x, q in zip(r[9:], rp[9:])] + \
          dm + sto(3, n - 1) + [It(x, 0, n - 1) for x in upd]
    flo[9].W = {"x"}; flo[9].R = set()
    if n3 == 2: flo[8], flo[9] = flo[9], flo[8]
    for it in flo[7 + n3:16]: it.R = it.R | {"x"}
    gaps, over = schedule(n, [], flo)
    assert any("lgkmcnt" in x for g in gaps[6:6 + n3] for x in g)
    if VERB: print("gemm step0 over", over, file=sys.stderr)
    weave(a, g_mf(0, n3), gaps)
    mf = g_mf(1, n3)
    a("s_waitcnt lgkmcnt(6)")
    if vm is not None or last: book1 = book0
    gaps, over = schedule(6, [], [It(x, 0, 5) for x in book1])
    weave(a, mf[:6], gaps)
    if pub:
        a(f"s_waitcnt vmcnt({sum(1 for x in a.l[start:] if x.strip().startswith('buffer_'))})")
    if vm is not None: a(f"s_waitcnt vmcnt({vm})")
    if last: a("s_waitcnt lgkmcnt(0)\ns_barrier")
    elif un: a(f"s_call_b64 s[{gRET}:{gRET+1}], L_ho" if role == "o" and hook else "s_waitcnt lgkmcnt(0)\ns_barrier")
    if pub and role == "o": a(f"s_lshr_b32 exec_lo, s{gPOST}, 4\ns_mov_b32 exec_hi, 0\nglobal_store_dword v{vPA}, v{vNZ}, s[{gFP}:{gFP+1}] sc1\ns_mov_b64 exec, -1")
    if un: pass
    elif role == "o": a(f"s_cbranch_scc1 L_ho\ns_waitcnt lgkmcnt(0)\ns_waitcnt vmcnt(18)\ns_barrier\nL_hc{role}:")
    elif p.defer: a("s_waitcnt lgkmcnt(0)\ns_waitcnt vmcnt(18)\ns_barrier")
    else: a(f"s_waitcnt lgkmcnt(0)\ns_cbranch_scc1 L_hw\ns_waitcnt vmcnt(18)\nL_hw:\ns_barrier\nL_hc{role}:")
    if p.gprof: a(f"s_mov_b32 m0, s{gST}\nv_writelane_b32 v31, s98, m0\n{'s_memtime' if p.cyc else 's_memrealtime'} s[98:99]")
    r = g_reads(0, 0)
    rp = [0, 0, 1, 1, 2, 2, 3, 4, 5, 7, 8, 10, 11, 13, 14] if n3 == 3 else [0, 0, 1, 1, 2, 2, 3, 4, 5, 7, 8, 10, 11, 13, 13]
    if last: r = []
    gaps, over = schedule(n - 6, [], [It(x, 0, n - 7) for x in extra] + [It(x, q, q) for x, q in zip(r, rp)] + sto(2, 3 if role == "o" else 4) + (flat_dma(d[:3], [6, 9, 12]) if d1 else []) +
                          ([] if last else [It(f"s_add_u32 s{gST}, s{gST}, 1", 7, n - 7)]) + ([] if un else [It(f"s_cmp_lt_u32 s{gST}, {12 if p.tail else 16}", 7, n - 7)]))
    if VERB: print("gemm step1 over", over, file=sys.stderr)
    weave(a, mf[6:], gaps)

def gemm_loop(a, out, p, role):
    fl = p.wofl if role == "w" else p.olfl
    a(f"L_gs{role}:")
    if p.defer:
        T = 5 if role == "o" else 4
        st = [f"buffer_store_dwordx4 {vr(KEEP[n])}, v{vST}, s[{sO}:{sO+3}], s{OSO[(s, int(t == 4))]} offen offset:{1024*(t & 3)} {p.ofl}"
              for n, (t, s) in enumerate([(t, 2 + k) for t in range(T) for k in range(2)])]
        cuts = [0, 4, 7, 10] if T == 5 else [0, 3, 6, 8]
        start = len(a.l)
        for i in range(3):
            o = role == "o"
            gemm_stage(a, p, role, True, st[cuts[i]:cuts[i+1]], p.pa == i, start, d0=not o and i > 0, d1=not o or i == 2, hook=i == 2)
            if o and i == 1:
                j = max(j for j, x in enumerate(a.l) if x.strip() == "s_barrier")
                a.l.insert(j + 1, f"  s_load_dwordx4 s[{gF}:{gF+3}], s[{gFP}:{gFP+1}], s{gOFF} glc")
    elif p.nod:
        if role == "o":
            gemm_stage(a, p, role, True, [], d0=False, d1=False, hook=False)
            gemm_stage(a, p, role, True, [], d0=False, d1=False, hook=False)
            i = max(j for j, x in enumerate(a.l) if x.strip() == "s_barrier")
            a.l.insert(i + 1, f"  s_load_dwordx4 s[{gF}:{gF+3}], s[{gFP}:{gFP+1}], s{gOFF} glc")
            gemm_stage(a, p, role, True, [], d0=False)
        else: gemm_stage(a, p, role, True, [], d0=False)
    if role == "o": a(f"s_getpc_b64 s[{gRET}:{gRET+1}]\nL_gp:\ns_add_u32 s{gRET}, s{gRET}, L_hco-L_gp\ns_addc_u32 s{gRET+1}, s{gRET+1}, 0")
    align(a, p)
    a(f"L_g{role}:")
    gemm_stage(a, p, role, False, [])
    a(f"s_cbranch_scc1 L_g{role}")
    if p.tail:
        gemm_stage(a, p, role, True, [], d1=False, hook=False, vm=18)
        gemm_stage(a, p, role, True, [], d0=False, d1=False, hook=False, vm=9)
        gemm_stage(a, p, role, True, [], d0=False, d1=False, hook=False, vm=0)
        gemm_stage(a, p, role, True, [], d0=False, d1=False, hook=False, last=True, extra=PSETUP)
    if role == "w": return
    out(f"""L_ho:
    s_waitcnt lgkmcnt(0)
    s_bitcmp1_b32 s{gCHK}, s{gST}
    s_cbranch_scc0 L_hx
    s_mov_b32 s{sT2}, 0
    L_hk:
    s_xor_b64 s[{gF}:{gF+1}], s[{gF}:{gF+1}], s[{gNN}:{gNN+1}]
    s_xor_b64 s[{gF+2}:{gF+3}], s[{gF+2}:{gF+3}], s[{gNN}:{gNN+1}]
    s_or_b64 s[{gF}:{gF+1}], s[{gF}:{gF+1}], s[{gF+2}:{gF+3}]
    s_cbranch_scc0 L_hr
    s_bitcmp1_b32 {p.spm:#x}, s{gST}
    s_cbranch_scc1 L_hs
    s_mov_b32 s{gM0}, {LDSOOB}
    s_mov_b32 s{gSO}, {OOB}
    L_hx:
    s_cmp_lt_u32 s{gST}, 3
    s_cbranch_scc1 L_hn
    s_waitcnt vmcnt(18)
    L_hn:
    s_barrier
    s_lshr_b32 s{sT}, s{gCHK}, 1
    s_bitcmp1_b32 s{sT}, s{gST}
    s_cbranch_scc0 L_hp
    s_load_dwordx4 s[{gF}:{gF+3}], s[{gFP}:{gFP+1}], s{gOFF} glc
    L_hp:
    {f"s_cmp_eq_u32 s{gST}, {p.tsplit}" if p.tsplit >= 0 else ""}
    {"s_cbranch_scc1 L_ht" if p.tsplit >= 0 else ""}
    L_hq:
    s_bitcmp1_b32 s{gPOST}, s{gST}
    s_cbranch_scc0 L_hz
    s_mov_b64 exec, 1
    global_store_dword v{vPA}, v{vNZ}, s[{gFP}:{gFP+1}] offset:128 sc1
    s_mov_b64 exec, -1
    L_hz:
    s_setpc_b64 s[{gRET}:{gRET+1}]
    L_hs:
    s_add_u32 s{sT2}, s{sT2}, 1
    s_cmp_ge_u32 s{sT2}, {SPIN}
    s_cbranch_scc1 L_hr
    s_load_dwordx4 s[{gF}:{gF+3}], s[{gFP}:{gFP+1}], s{gOFF} glc
    s_waitcnt lgkmcnt(0)
    s_branch L_hk
    L_hr:
    s_mov_b32 s44, s{gM0}
    s_mov_b32 s45, s{gSO}
    s_cmp_eq_u32 s{gOFF}, 0
    s_cbranch_scc0 L_hr1""")
    for ph, lo in enumerate((0, 6)):
        out(f"L_hr{ph}:")
        if ph == 0: stamp(out, p, 5)
        out(f"s_movk_i32 s{gOFF}, 128\ns_and_b32 s{gCHK}, s{gCHK}, {0x3c0 if ph == 0 else 0}\ns_mov_b32 s{gMASK}, {(0x3ff if p.defer else 0x3ef) if ph == 0 else 0}")
        for j in range(3):
            out(f"s_cmp_gt_u32 s{gST}, {lo + j}\ns_cbranch_scc0 L_hy")
            g_stage_now(out, fl, lo + 4 + j)
        if ph == 0: out("s_branch L_hy")
    out(f"L_hy:\ns_mov_b32 s{gM0}, s44\ns_mov_b32 s{gSO}, s45\ns_branch L_hx")
    if p.tsplit >= 0:
        out("L_ht:")
        wo_touch_part(out, p, 1)
        out("s_branch L_hq")

def back(a, p):
    out = A()
    a(f"""L_gemm:
    s_barrier""")
    stamp(a, p, 4)
    a("ds_read_b32 v2, v1")
    rd0 = g_reads(0, 0)
    for x in rd0[:12]: a(x)
    a(f"""s_waitcnt lgkmcnt(12)
    v_readfirstlane_b32 s{sT}, v2
    {rd0[12]}
    {rd0[13]}
    {rd0[14]}
    s_andn2_b32 s{sT}, s{sT}, s{gREDO}
    s_cbranch_scc1 L_redo
    s_mov_b32 s{gNN}, s{sNONCE}
    s_mov_b32 s{gNN+1}, s{sNONCE}
    s_bitcmp1_b32 s{sWAVE}, 0
    s_cbranch_scc1 L_gsw
""")
    if p.pa < 0: a(f"""s_lshr_b32 exec_lo, s{gPOST}, {4 if p.defer else 3}
    s_mov_b32 exec_hi, 0
    global_store_dword v{vPA}, v{vNZ}, s[{gFP}:{gFP+1}] sc1
    s_mov_b64 exec, -1""")
    if p.twpos == 18: wo_touch(a, p)
    o_touch(a, p, 0)
    out(f"""L_redo:
    s_bitcmp1_b32 s{sWAVE}, 0
    s_cbranch_scc1 L_redos
    s_branch L_redob""")
    gemm_loop(a, out, p, "o")
    a("s_branch L_ge")
    gemm_loop(a, out, p, "w")
    a("L_ge:")
    stamp(a, p, 6)
    if not p.tail:
        for x in PSETUP: a(x)
    a("""v_and_b32 v2, 63, v0\nv_lshlrev_b32 v3, 4, v2\nv_lshlrev_b32 v4, 3, v2""")
    qs = [63, 63, 63, gQ1, gQ1, gQ2, gQ2, gQ3, gQ3]
    qo = [0, 1, 2, 0, 1, 0, 1, 0, 1]
    a(f"s_and_b32 s{sT}, s3, 3\ns_cmp_eq_u32 s{sT}, s{sWAVE}\ns_cbranch_scc1 L_own")
    for own in range(2):
        if own: a(f"s_branch L_pe\nL_own:")
        for u in range(9):
            d = 8 + 4 * (u & 3)
            A0, B0 = acc2(0, u), acc2(1, u)
            a(f"v_cvt_pk_bf16_f32 v{d}, v{A0}, v{A0+1}\nv_cvt_pk_bf16_f32 v{d+1}, v{A0+2}, v{A0+3}\nv_cvt_pk_bf16_f32 v{d+2}, v{B0}, v{B0+1}\nv_cvt_pk_bf16_f32 v{d+3}, v{B0+2}, v{B0+3}")
            if own:
                if qo[u] == 0: a(f"s_lshl_b32 s{sT}, s{qs[u]}, 10\nv_add_u32 v5, s{sT}, v3")
                a(f"ds_write_b128 v5, {vr(d)} offset:{PL + 1024*qo[u]}")
            else:
                a(f"s_lshl_b32 s{sT}, s{qs[u]}, 10\ns_add_u32 s{sT}, s{sT}, s62")
                a(f"buffer_store_dwordx4 {vr(d)}, v3, s[{sW}:{sW+3}], s{sT} offen offset:{1024*qo[u]} {p.pfl}")
        if not own: a(f"s_lshl_b32 s{sT}, s63, 9\ns_add_u32 s{sT}, s{sT}, s60\ns_add_u32 s{sT}, s{sT}, 36864")
        for u in range(3):
            d = 24 + 2 * u
            A0 = acc2(2, u)
            if u == 2 and not own: a(f"s_cmp_eq_u32 s{sWAVE}, 3\ns_cbranch_scc0 L_pe")
            a(f"v_cvt_pk_bf16_f32 v{d}, v{A0}, v{A0+1}\nv_cvt_pk_bf16_f32 v{d+1}, v{A0+2}, v{A0+3}")
            if own: a(f"ds_write_b64 v4, {vr(d, 2)} offset:{PL + 9216 + 512*u}")
            else: a(f"buffer_store_dwordx2 {vr(d, 2)}, v4, s[{sW}:{sW+3}], s{sT} offen offset:{512*u} {p.pfl}")
    a("L_pe:")
    a("s_load_dwordx2 s[68:69], s[0:1], 80")
    a(f"""s_and_b32 s64, s3, 3
    s_lshl_b32 s65, s61, 2
    s_add_u32 s65, s65, s4
    s_mul_i32 s65, s65, {PBLK}
    s_mul_i32 s66, s64, 9216
    s_add_u32 s66, s66, s65
    s_lshl_b32 s{sT}, s{sWAVE}, 10
    s_add_u32 s66, s66, s{sT}
    s_lshl_b32 s67, s64, 1
    s_add_u32 s67, s67, s{sWAVE}
    s_sub_u32 s67, s67, 1
    s_lshl_b32 s72, s67, 9
    s_add_u32 s72, s72, s65
    s_add_u32 s72, s72, 36864
    s_lshr_b32 s73, s3, 2
    s_mul_i32 s73, s73, 1152
    s_mul_i32 s{sT}, s4, 288
    s_add_u32 s73, s73, s{sT}
    s_mul_i32 s{sT}, s5, {144*2304}
    s_add_u32 s73, s73, s{sT}
    s_mul_i32 s74, s67, {16*2304}
    s_add_u32 s74, s74, s73
    s_add_u32 s74, s74, 256
    s_lshl_b32 s{sT}, s64, 6
    s_add_u32 s73, s73, s{sT}
    s_mul_i32 s{sT}, s{sWAVE}, {16*2304}
    s_add_u32 s73, s73, s{sT}
    s_cmp_eq_u32 s{sWAVE}, 3
    s_cselect_b32 s75, 8, s67
    s_cmp_eq_u32 s75, s67
    s_cselect_b32 s72, s72, {OOB}
    s_cselect_b32 s74, s74, {OOB}
    v_and_b32 v5, 15, v2
    s_movk_i32 s{sT}, 2304
    v_lshrrev_b32 v6, 4, v2
    v_lshlrev_b32 v6, 3, v6
    v_mad_u32_u24 v7, v5, s{sT}, v6
    s_mov_b32 s70, {8*144*1152*2}
    s_mov_b32 s71, 0x20000
    s_add_u32 s76, s64, 1
    s_add_u32 s77, s64, 2
    s_add_u32 s78, s64, 3
    s_and_b32 s76, s76, 3
    s_and_b32 s77, s77, 3
    s_and_b32 s78, s78, 3
    s_mul_i32 s76, s76, {64*PBLK}
    s_mul_i32 s77, s77, {64*PBLK}
    s_mul_i32 s78, s78, {64*PBLK}
    v_add_u32 v9, 4096, v3
    s_lshl_b32 s{sT}, s{sWAVE}, 10
    v_add_u32 v10, s{sT}, v3
    s_lshl_b32 s{sT}, s{sWAVE}, 9
    v_add_u32 v11, s{sT}, v4
    s_waitcnt vmcnt(0) lgkmcnt(0)
    s_barrier
    s_cmp_eq_u32 s{sWAVE}, 0
    s_cbranch_scc0 L_n1""")
    post(a, 2, F2)
    a(f"ds_read_b128 v[128:131], v3 offset:{PL + 8192}\ns_branch L_n2\nL_n1:\nds_read_b64 v[128:129], v11 offset:{PL + 9216 - 512}\nL_n2:")
    a(f"ds_read_b128 v[96:99], v10 offset:{PL}\nds_read_b128 v[112:115], v10 offset:{PL + 4096}")
    if p.vp2: vpoll(a, "2", 2, F2)
    else: poll(a, "2", 2, F2)
    stamp(a, p, 7)
    def red(src, stride, n, dst):
        for i in range(n):
            for k in range(4):
                r = src + stride * k + i
                if k == 0: a(f"v_lshlrev_b32 v80, 16, v{r}\nv_and_b32 v81, 0xffff0000, v{r}")
                else: a(f"v_lshlrev_b32 v82, 16, v{r}\nv_and_b32 v83, 0xffff0000, v{r}\nv_pk_add_f32 v[80:81], v[80:81], v[82:83]")
            a(f"v_cvt_pk_bf16_f32 v{dst+i}, v80, v81")
    for u in range(2):
        for k in range(3):
            a(f"s_add_u32 s{sT}, s66, s{76+k}\nbuffer_load_dwordx4 {vr(100 + 16*u + 4*k)}, v{3 if u == 0 else 9}, s[{sW}:{sW+3}], s{sT} offen {p.plfl}")
    a(f"s_cmp_eq_u32 s{sWAVE}, 0\ns_cbranch_scc0 L_r3\ns_add_u32 s66, s66, 8192")
    for k in range(3):
        a(f"s_add_u32 s{sT}, s66, s{76+k}\nbuffer_load_dwordx4 {vr(132 + 4*k)}, v3, s[{sW}:{sW+3}], s{sT} offen {p.plfl}")
    a("s_branch L_r4\nL_r3:")
    for k in range(3):
        a(f"s_add_u32 s{sT}, s72, s{76+k}\nbuffer_load_dwordx2 {vr(132 + 4*k, 2)}, v4, s[{sW}:{sW+3}], s{sT} offen {p.plfl}")
    a("L_r4:\ns_waitcnt lgkmcnt(0)")
    for u in range(2):
        a(f"s_waitcnt vmcnt({6 - u})")
        red(96 + 16*u, 4, 4, 12 + 4*u)
        a(f"buffer_store_dwordx2 {vr(12+4*u, 2)}, v7, s[68:71], s73 offen {p.outfl}\nbuffer_store_dwordx2 {vr(14+4*u, 2)}, v7, s[68:71], s73 offen offset:32 {p.outfl}")
        a(f"s_add_u32 s73, s73, {64*2304}")
    a("s_waitcnt vmcnt(4)")
    a(f"s_cmp_eq_u32 s{sWAVE}, 0\ns_cbranch_scc0 L_r5")
    red(128, 4, 4, 20)
    a(f"buffer_store_dwordx2 v[20:21], v7, s[68:71], s73 offen {p.outfl}\nbuffer_store_dwordx2 v[22:23], v7, s[68:71], s73 offen offset:32 {p.outfl}\ns_branch L_r6\nL_r5:")
    red(128, 4, 2, 20)
    a(f"buffer_store_dwordx2 v[20:21], v7, s[68:71], s74 offen {p.outfl}\nL_r6:")
    if p.stamps:
        a("s_waitcnt vmcnt(0)")
        if not p.pst: stamp(a, p, 8)
        stamp_store(a, p)
    a("L_end:\ns_endpgm")
    a.l += out.l

def kernel(p, K):
    a = A()
    a("s_cmp_ge_u32 s2, 256\ns_cbranch_scc1 L_end")
    if p.perm == 1: a("s_mul_i32 s2, s2, 37\ns_add_u32 s2, s2, 11\ns_and_b32 s2, s2, 255")
    if p.perm == 2: a("s_lshr_b32 s3, s2, 3\ns_and_b32 s2, s2, 7\ns_lshl_b32 s2, s2, 5\ns_or_b32 s2, s2, s3")
    if p.perm == 3: a("s_lshr_b32 s3, s2, 5\ns_and_b32 s2, s2, 31\ns_lshl_b32 s2, s2, 3\ns_or_b32 s2, s2, s3")
    stamp(a, p, 0)
    a(f"""
    s_load_dwordx8 s[52:59], s[0:1], 0
    s_load_dwordx8 s[60:67], s[0:1], 40
    s_load_dwordx2 s[82:83], s[0:1], 96
    s_load_dwordx2 s[94:95], s[0:1], 32
    s_load_dwordx2 s[96:97], s[0:1], 72
    s_load_dwordx2 s[98:99], s[0:1], 88
    v_lshrrev_b32 v1, 6, v0
    v_and_b32 v2, 63, v0
    v_readfirstlane_b32 s{sWAVE}, v1
    s_and_b32 s3, s2, 7
    s_lshr_b32 s4, s2, 3
    s_lshr_b32 s5, s4, 2
    s_and_b32 s4, s4, 3
    s_and_b32 s6, s3, 3
    s_lshl_b32 s6, s6, 3
    s_lshl_b32 s7, s4, 1
    s_add_u32 s6, s6, s7
    s_lshr_b32 s{sHL}, s{sWAVE}, 1
    s_add_u32 s7, s6, s{sHL}
    s_lshl_b32 s{sRB}, s{sHL}, 15
    """)
    if p.rotm == 0: a(f"s_lshr_b32 s{sROT}, s2, 2\ns_and_b32 s{sROT}, s{sROT}, 14\ns_add_u32 s{sROT}, s{sROT}, s{sHL}\ns_lshl_b32 s{sROT}, s{sROT}, 1")
    elif p.rotm == 1: a(f"s_lshr_b32 s{sROT}, s2, 2\ns_and_b32 s{sROT}, s{sROT}, 30\ns_add_u32 s{sROT}, s{sROT}, s{sHL}")
    elif p.rotm == 2: a(f"s_lshr_b32 s{sROT}, s2, 3\ns_lshl_b32 s{sT}, s{sHL}, 4\ns_add_u32 s{sROT}, s{sROT}, s{sT}")
    elif p.rotm == 3: a(f"s_lshl_b32 s{sROT}, s2, 1\ns_add_u32 s{sROT}, s{sROT}, s{sHL}\ns_mul_i32 s{sROT}, s{sROT}, 0x9e3779b1\ns_lshr_b32 s{sROT}, s{sROT}, 27")
    elif p.rotm == 4: a(f"s_lshr_b32 s{sROT}, s2, 2\ns_and_b32 s{sROT}, s{sROT}, 14\ns_add_u32 s{sROT}, s{sROT}, s{sHL}\ns_lshl_b32 s{sROT}, s{sROT}, 1\ns_bfe_u32 s{sT}, s2, 0x10006\ns_add_u32 s{sROT}, s{sROT}, s{sT}")
    a(f"""
    v_lshrrev_b32 v3, 4, v2
    v_and_b32 v4, 15, v2
    v_lshlrev_b32 v5, 1, v3
    v_xor_b32 v5, v5, v4
    v_lshlrev_b32 v5, 4, v5
    v_lshl_add_u32 v{vE}, v3, 8, v5
    v_xor_b32 v{vO_}, 128, v{vE}
    v_lshl_add_u32 v{vWE}, v3, 13, v5
    s_lshl_b32 s{sT}, s7, 8
    v_add_u32 v{vWE}, s{sT}, v{vWE}
    v_xor_b32 v{vWO}, 128, v{vWE}
    v_add_u32 v{vWO}, {8*8192 - 1024}, v{vWO}
    s_lshl_b32 s{sT}, s{sHL}, 2
    v_add_u32 v5, s{sT}, v3
    v_and_b32 v6, 7, v2
    v_xor_b32 v5, v5, v6
    v_lshlrev_b32 v5, 4, v5
    v_lshrrev_b32 v6, 3, v2
    s_lshl_b32 s{sT}, s{sHL}, 3
    v_add_u32 v6, s{sT}, v6
    s_movk_i32 s{sT}, 1152
    v_mad_u32_u24 v{vX}, v6, s{sT}, v5
    s_waitcnt lgkmcnt(0)
    s_cmp_ge_u32 s3, 4
    s_cselect_b32 s52, s60, s52
    s_cselect_b32 s53, s61, s53
    s_cselect_b32 s54, s62, s54
    s_cselect_b32 s55, s63, s55
    s_cselect_b32 s56, s64, s56
    s_cselect_b32 s57, s65, s57
    s_cselect_b32 s58, s66, s58
    s_cselect_b32 s59, s67, s59
    s_cselect_b32 s94, s96, s94
    s_cselect_b32 s95, s97, s95
    s_mul_i32 s{sT}, s5, 165888
    s_add_u32 s{sX}, s52, s{sT}
    s_addc_u32 s{sX+1}, s53, 0
    s_mov_b32 s{sX+2}, 165888
    s_mov_b32 s{sX+3}, 0x20000
    s_mov_b32 s{sW}, s58
    s_mov_b32 s{sW+1}, s59
    s_mov_b32 s{sW+2}, 4718592
    s_mov_b32 s{sW+3}, 0x20000
    s_and_b32 s76, s{sWAVE}, 1
    s_mul_i32 s{sXB}, s{sHL}, 24576
    s_add_u32 s{sXB}, s{sXB}, {WQB}
    s_mul_i32 s{sXS0}, s76, {5*18432}
    s_mul_i32 s{sXM0}, s76, {5*2048}
    s_lshl_b32 s{sT}, s{sHL}, 10
    s_add_u32 s{sXM0}, s{sXM0}, s{sT}
    s_add_u32 s{sXM0}, s{sXM0}, {XBUF}
    s_lshl_b32 s77, s76, 12
    s_add_u32 s77, s77, s{sXB}
    s_lshl_b32 s78, s76, 17
    """)
    def xload(c, a=a, T=None):
        if p.c0: a(f"s_mov_b32 s{sXS}, 0" if c == 0 else f"s_add_u32 s{sXS}, s{sKROT}, 1\ns_lshl_b32 s{sXS}, s{sXS}, 7")
        else: a(f"s_add_u32 s{sXS}, s{sKROT}, {c}\ns_sub_u32 s{sXM}, s{sXS}, 9\ns_cselect_b32 s{sXS}, s{sXS}, s{sXM}\ns_lshl_b32 s{sXS}, s{sXS}, 7")
        a(f"s_add_u32 s{sXM}, s{sXM0}, {18432*c}\ns_add_u32 s{sXS}, s{sXS0}, s{sXS}")
        if T: return emit(a, x_dma(p, T))
        g = x_dma(p, 5)
        emit(a, g[:4])
        a(f"s_cmp_eq_u32 s76, 1\ns_cbranch_scc1 L_x{c}")
        emit(a, g[4:])
        a(f"L_x{c}:")
    def wload(k, a=a):
        a(f"s_add_u32 s{sWM}, s77, {8192*k}\ns_add_u32 s{sWS2}, s{sWS}, {4*8192 - 2048}")
        emit(a, w_dma(p), nop=False)
        emit(a, [w_adv(p)], nop=False)
    a(f"s_mov_b32 s60, s54\ns_mov_b32 s61, s55")
    if p.krot: a(f"s_lshr_b32 s{sKROT}, s4, {p.ksh}\ns_mul_i32 s{sKROT}, s{sKROT}, {p.kc}\ns_andn2_b32 s{sT}, s5, {(1 << p.kbs) - 1}\ns_add_u32 s{sKROT}, s{sKROT}, s{sT}\n" + (f"s_and_b32 s{sKROT}, s{sKROT}, 7" if p.c0 else f"s_sub_u32 s{sT}, s{sKROT}, 9\ns_cselect_b32 s{sKROT}, s{sKROT}, s{sT}"))
    else: a(f"s_mov_b32 s{sKROT}, 0")
    if p.c0: a(f"s_mov_b32 s{sWS}, s78\ns_add_u32 s{sWEND}, s78, {576*8192}")
    else: a(f"s_lshl_b32 s{sWS}, s{sKROT}, 19\ns_add_u32 s{sWS}, s{sWS}, s78\ns_add_u32 s{sWEND}, s78, {576*8192}")
    if p.rotm == 9:
        a(f"s_lshl_b32 s{sT}, s2, 1\ns_add_u32 s{sT}, s{sT}, s{sHL}\ns_lshl_b32 s{sT}, s{sT}, 2\ns_add_u32 s{sT}, s{sT}, {220 << 20}\ns_load_dword s{sROT}, s[82:83], s{sT}\ns_waitcnt lgkmcnt(0)")
    if p.pst == 1: stamp(a, p, 8)
    xload(0); wload(0)
    if p.pst == 2: stamp(a, p, 8)
    if p.pw >= 0: a(f"s_waitcnt vmcnt({p.pw})")
    wload(1)
    a(f"""
    s_mul_i32 s{sS0}, s4, {p.stag}
    s_add_u32 s{sS0}, s{sS0}, {p.s0}
    s_lshl_b32 s{sT}, s5, 5
    s_add_u32 s{sT}, s{sT}, s7
    s_lshl_b32 s{sT2}, {'s3' if p.kvsame else f's{sT}'}, 17
    s_add_u32 s{sK}, s60, s{sT2}
    s_addc_u32 s{sK+1}, s61, 0
    s_mov_b32 s{sK+2}, 131072
    s_mov_b32 s{sK+3}, 0x20000
    s_add_u32 s{sV}, s56, s{sT2}
    s_addc_u32 s{sV+1}, s57, 0
    s_mov_b32 s{sV+2}, 131072
    s_mov_b32 s{sV+3}, 0x20000
    s_mov_b32 s{sO}, s82
    s_mov_b32 s{sO+1}, s83
    s_mov_b32 s{sO+2}, {O_BYTES}
    s_mov_b32 s{sO+3}, 0x20000
    s_lshr_b32 s{sT2}, s3, 2
    s_lshl_b32 s{sT2}, s{sT2}, 8
    s_add_u32 s{sT}, s{sT}, s{sT2}
    s_mul_i32 s{sOB}, s{sT}, {4*9216}
    s_mov_b32 s{sWO}, s94
    s_mov_b32 s{sWO+1}, s95
    s_mov_b32 s{sWO+2}, 4718592
    s_mov_b32 s{sWO+3}, 0x20000
    s_and_b32 s{sTW}, s3, 3
    s_lshl_b32 s{sTW}, s{sTW}, 5
    s_lshr_b32 s{sT}, s2, 3
    s_add_u32 s{sTW}, s{sTW}, s{sT}
    s_lshl_b32 s{sTW}, s{sTW}, 1
    s_add_u32 s{sTW}, s{sTW}, s{sHL}
    s_mul_i32 s{sTW}, s{sTW}, 18432
    s_cmp_eq_u32 s76, 1
    s_cselect_b32 s{sKV}, s{sV}, s{sK}
    s_cselect_b32 s{sKV+1}, s{sV+1}, s{sK+1}
    s_mov_b32 s{sKV+2}, 131072
    s_mov_b32 s{sKV+3}, 0x20000
    s_lshl_b32 s{sT2}, s76, 13
    s_add_u32 s{sT2}, s{sT2}, s{sRB}
    s_mov_b32 s6, s98
    s_mov_b32 s7, s99
    v_lshlrev_b32 v{vTCH}, 7, v2
    s_mov_b32 s{sIT}, -2
    """)
    def batch2(a, T):
        emit(a, kv_book(p), nop=False); emit(a, kv_dma(p), nop=False)
        xload(1, a, T)
        if p.c0: a(f"s_add_u32 s78, s78, {64*8192}\ns_lshl_b32 s{sWS}, s{sKROT}, 19\ns_add_u32 s{sWS}, s{sWS}, s78")
        a(f"s_add_u32 s{sWM}, s77, {8192*2}\ns_mov_b32 s{WSr[1]}, s{sWS}\ns_add_u32 s{WS2r[1]}, s{sWS}, {4*8192 - 2048}")
        emit(a, w_dma(p, 1)[:4 - p.wsh], nop=False)
        emit(a, [w_adv(p)], nop=False)
        a(f"s_mov_b32 s{sIT}, 0")
        emit(a, kv_book(p), nop=False)
        a(f"s_mov_b32 s{sWM}, s77\ns_add_u32 s{sWS2}, s{sWS}, {4*8192 - 2048}")
    if not p.early: batch2(a, None)
    p.batch2 = batch2
    a(f"s_cmp_eq_u32 s{sWAVE}, 0\ns_cbranch_scc0 L_nc")
    if p.touch_code:
        a(f"""s_getpc_b64 s[80:81]
        L_pc:
        s_sub_u32 s80, s80, L_pc-{K}
        s_subb_u32 s81, s81, 0
        s_lshr_b32 s{sT}, s2, 3
        s_and_b32 s{sT}, s{sT}, 15
        s_lshl_b32 s{sT}, s{sT}, 13
        v_add_u32 v8, s{sT}, v{vTCH}
        s_mov_b32 s{sT}, L_codeend-{K}-4
        v_min_u32 v8, s{sT}, v8
        global_load_dword v{vDUM}, v8, s[80:81]""")
    a(f"""v_mov_b32 v8, {LFLAG}
    v_mov_b32 v9, 0
    ds_write_b32 v8, v9
    s_cmp_lt_u32 s2, 8
    s_cbranch_scc0 L_nc
    s_memrealtime s[80:81]
    v_mov_b32 v11, 0
    s_waitcnt lgkmcnt(0)
    s_or_b32 s80, s80, 1
    v_mov_b32 v10, s80
    s_mov_b64 exec, 1
    global_atomic_cmpswap v9, v[10:11], s[6:7] sc1
    s_mov_b64 exec, -1
    L_nc:""")
    a(f"""
    v_and_b32 v5, 7, v4
    v_lshlrev_b32 v5, 1, v5
    v_xor_b32 v5, v5, v3
    v_lshlrev_b32 v5, 4, v5
    v_lshl_add_u32 v5, v4, 8, v5
    v_add_u32 v{vKA}, s{sRB}, v5
    v_xor_b32 v{vKA+1}, 64, v{vKA}
    v_xor_b32 v{vKA+2}, 128, v{vKA}
    v_xor_b32 v{vKA+3}, 192, v{vKA}
    v_bfe_u32 v5, v2, 2, 2
    v_and_b32 v6, 1, v3
    v_lshl_add_u32 v5, v6, 2, v5
    v_lshrrev_b32 v6, 1, v3
    v_lshl_add_u32 v6, v6, 4, v5
    v_lshlrev_b32 v5, 1, v5
    v_bfe_u32 v7, v2, 1, 1
    v_xor_b32 v5, v5, v7
    v_lshlrev_b32 v5, 4, v5
    v_and_b32 v7, 1, v2
    v_lshl_add_u32 v5, v7, 3, v5
    v_lshl_add_u32 v5, v6, 8, v5
    v_add_u32 v{vVA}, s{sXB}, v5
    s_mov_b32 s{sXB}, s77""")
    for dt in range(1, 8): a(f"v_xor_b32 v{vVA+dt}, {32*dt}, v{vVA}")
    a(f"""
    v_lshrrev_b32 v5, 1, v4
    v_xor_b32 v5, v5, v3
    v_lshlrev_b32 v5, 4, v5
    v_lshl_add_u32 v5, v4, 7, v5
    s_mul_i32 s79, s76, {4*2048}
    s_add_u32 s79, s79, {XBUF}
    v_add_u32 v{vXA}, s79, v5
    v_xor_b32 v{vXA+1}, 64, v{vXA}
    s_mul_i32 s79, s76, {5*1024}
    v_lshl_add_u32 v{vST}, v2, 4, s79
    s_mul_i32 s79, s{sHL}, {2*STG}
    v_add_u32 v{vOW}, s79, v{vST}
    s_mov_b32 s{sSC}, 0x3e0293ee
    s_mov_b32 s{sWSL}, 0
    s_mov_b32 s{sC}, 8192
    s_mov_b32 s{sNEG}, -16384
    s_mov_b32 s{sWD}, 8192
    s_mov_b32 s{sXD}, 18432
    """)
    a(f"s_movk_i32 s79, 3641\ns_mul_i32 s80, s76, 864")
    for j in range(9):
        a(f"""v_add_u32 v5, {64*j}, v2
        v_mul_u32_u24 v6, s79, v5
        v_lshrrev_b32 v6, 16, v6
        v_lshlrev_b32 v5, 4, v5
        v_mad_u32_u24 v5, v6, s80, v5
        v_subrev_u32 v{v2VO+j}, {1024*(j % 4)}, v5""")
    a(f"""
    v_lshrrev_b32 v5, 2, v2
    v_and_b32 v6, 3, v2
    v_lshlrev_b32 v6, 3, v6
    s_movk_i32 s79, 288
    v_mad_u32_u24 v5, v5, s79, v6
    v_add_u32 v{v2A+1}, {18432 + 256}, v5
    s_lshl_b32 s79, s{sWAVE}, 6
    s_add_u32 s79, s79, 18432
    v_add_u32 v{v2A}, s79, v5
    v_lshlrev_b32 v5, 4, v2
    s_lshl_b32 s79, s{sWAVE}, 11
    v_add_u32 v{v2B}, s79, v5
    s_cmp_eq_u32 s{sWAVE}, 0
    s_cselect_b32 s79, 3072, 0
    v_add_u32 v{v2B+1}, s79, v5
    s_cmp_lt_u32 s{sWAVE}, 2
    s_movk_i32 s79, 2048
    s_cselect_b32 s79, 5120, s79
    v_add_u32 v{v2B+2}, s79, v5
    s_cmp_lt_u32 s{sWAVE}, 3
    s_movk_i32 s79, 4096
    s_cselect_b32 s79, 7168, s79
    v_add_u32 v{v2B+3}, s79, v5
    """)
    if p.twq >= 0: a(f"s_mul_i32 s79, s4, {p.twstag}\ns_add_u32 s79, s79, {p.twq}")
    if p.kt: a(f"s_mul_i32 s80, s4, {p.ktst}\ns_lshl_b32 s79, {sum(1 << int(x.split(':')[0]) for x in p.kt.split(','))}, s80")
    a(f"""v_lshrrev_b32 v5, 2, v2
    v_and_b32 v6, 7, v5
    v_lshlrev_b32 v6, 1, v6
    v_bfe_u32 v7, v2, 1, 1
    v_xor_b32 v6, v6, v7
    v_lshlrev_b32 v6, 4, v6
    v_and_b32 v7, 1, v2
    v_lshl_add_u32 v6, v7, 3, v6
    v_lshl_add_u32 v6, v5, 8, v6
    s_add_u32 s80, s{sRB}, 8192
    v_add_u32 v{vVB}, s80, v6""")
    for dt in range(1, 8): a(f"v_xor_b32 v{vVB+dt}, {32*dt}, v{vVB}")
    if p.tsplit >= 0: wo_touch_setup(a)
    for r in range(0, 160, 2): a(f"v_pk_mov_b32 {vr(vACC+r, 2)}, 0, 0")
    if p.pst == 4: stamp(a, p, 8)
    a(f"s_bitcmp1_b32 s{sWAVE}, 0\ns_cbranch_scc1 L_small")
    wave_front(a, p, 5, False, "b")
    a("L_small:")
    wave_front(a, p, 4, True, "s")
    back(a, p)
    a("L_codeend:")
    return a.text()

def build(p):
    K = KNAME + "_kernel"
    hdr = open("cdna_kernels/" + KNAME + ".s.ref").read().split("; Override launch geometry")[0]
    return hdr + header(["; @launch grid=(256,1,1) block=(256,1,1) lds=163840"]) + kstart(K) + kernel(p, K) + RODATA + kdesc(K, 512, 256)

if __name__ == "__main__":
    ap = argparse.ArgumentParser()
    ap.add_argument("out")
    ap.add_argument("opts", nargs="*")
    x = ap.parse_args()
    p = P()
    VERB = True
    for o in x.opts:
        k, v = o.split("=")
        cur = getattr(p, k)
        setattr(p, k, (v == "1") if isinstance(cur, bool) else int(v) if isinstance(cur, int) else v.replace("+", " "))
    if p.twq >= 0: p.twpos = 15
    EXP = p.exp
    p.pb = (p.pb0, p.pb1)
    open(x.out, "w").write(build(p))
```

```python
import sys, argparse
sys.path.insert(0, "tools")
from asmlib import *
sys.path.insert(0, 'gen')
from sched import It, schedule
VERB = False
EXP = 0

class P:
    stamps = False
    cyc = False
    xfl = ""; wfl = ""; kvfl = "nt"
    ofl = "sc1"; olfl = "sc1"; wofl = ""; twfl = ""; pfl = "sc1"; plfl = "sc1"; outfl = ""
    s0 = 1; ppe = 2; stag = 0
    rot = True; krot = True
    kvd = 4
    twpos = 12
    rb = False
    fb = 3
    sh = 2
    qb = 4; qr = 6; vlo = 6
    touch_code = True
    force = False
    kvsame = False
    lim = 0
    notouch = False
    limg = 2
    gprof = False
    pa = -1
    esp = 2
    dyn = False
    pw4 = 24
    x6 = False
    p6 = False
    t5 = 1
    zc = True
    lrg = 32
    tws = '14,14,14'
    l14 = True
    kbs = 1
    pb0 = -1
    pb1 = -1
    px = True
    tail = True
    dd = True
    spm = 0x208
    nod = True
    soft = False
    tst = -1
    tsw = 0
    aprof = False
    st0 = -1
    pmul = 0
    dsw = True
    pace = 3
    pmask = 7
    pw2 = 8
    pw3 = -1
    pbit = 6
    c0 = False
    kt = ''
    ktfl = ''
    ktst = 0
    tsplit = -1
    tw2 = 0
    dbgst = False
    al = 0
    sh4 = 0
    xsp = 2
    wsh = 0
    qprof = 0
    par8 = False
    fc = 0
    fcs = 64
    twown = -1
    perm = 0
    kc = 4
    ksh = 1
    early = True
    pst = 0
    rotm = 0
    swap = 3
    t3 = False
    vp2 = True
    s1 = 1
    defer = False
    warm = True
    exp = 0
    late = False
    twq = -1
    twstag = 0
    pw = -1

MF = "v_mfma_f32_16x16x32_bf16"
OOB = 0x40000000
LDSOOB = 0x30000
STAMPOFF = 200 << 20
O_BYTES = 16 * 32 * 4 * 9216
P_OFF = 32 << 20
F_OFF = 48 << 20
PBLK = 41472
STG = 36864
LFLAG = 163836
SPIN = 1 << 18
PL = 0

def vr(b, n=4): return f"v[{b}:{b+n-1}]"
def ar(b, n=4): return f"a[{b}:{b+n-1}]"
def weave(a, mfmas, gaps):
    assert len(gaps) <= len(mfmas)
    for i, m in enumerate(mfmas):
        a(m)
        if i < len(gaps):
            for x in gaps[i]: a(x)
def align(a, p):
    if p.al: a(f".p2align {p.al}")
    for _ in range(p.sh4): a("s_nop 0")
def emit(a, gs, nop=True):
    for g in gs:
        for x in g: a(x)
        if nop: a("s_nop 0")
NST = 9
def stamp(a, p, idx):
    if p.stamps: a(f"{'s_memtime' if p.cyc else 's_memrealtime'} s[{84+2*idx}:{85+2*idx}]")
def stamp_store(a, p):
    if not p.stamps: return
    a("s_waitcnt lgkmcnt(0)")
    if p.dbgst:
        a("v_mov_b32 v1, 0\nv_cmp_eq_u32 vcc, 0, v0\ns_and_saveexec_b64 s[44:45], vcc")
        for j in range(NST):
            a(f"s_sub_u32 s46, s{84+2*j}, s{sNONCE}\ns_add_u32 s46, s46, 500\nv_mov_b32 v2, s46\nglobal_atomic_umax v1, v2, s[6:7] offset:{4+4*j} sc1\ns_nop 1")
        a("s_mov_b64 exec, s[44:45]")
        return
    a(f"s_mul_i32 s80, s2, 128\ns_add_u32 s82, s82, s80\ns_addc_u32 s83, s83, 0\ns_add_u32 s82, s82, {STAMPOFF}\ns_addc_u32 s83, s83, 0")
    a("v_mov_b32 v1, 0\nv_cmp_eq_u32 vcc, 0, v0\ns_and_saveexec_b64 s[80:81], vcc")
    for j in range(NST):
        a(f"v_mov_b32 v2, s{84+2*j}\nv_mov_b32 v3, s{85+2*j}\nglobal_store_dwordx2 v1, v[2:3], s[82:83] offset:{8*j}\ns_nop 1")
    a("s_mov_b64 exec, s[80:81]")
    if p.gprof or p.qprof or p.aprof:
        a("v_and_b32 v1, 63, v0\nv_lshlrev_b32 v1, 2, v1\nv_cmp_gt_u32 vcc, 14, v0\ns_and_saveexec_b64 s[80:81], vcc\nglobal_store_dword v1, v31, s[82:83] offset:72\ns_mov_b64 exec, s[80:81]")

vACC = 96; vS = (80, 88); vL = 72; vVA = 64; vKA = 60; vXA = 58
vE, vO_, vWE, vWO, vX, vST, vTCH, vDUM, vOW, vFL = 56, 57, 54, 55, 53, 52, 51, 50, 49, 48
v2VO, v2B, v2A = 32, 41, 45
vNM = 8
aQ = 0; aK = (80, 112); aV = (144, 176); aXB = (208, 228); aWA = (0, 32)
vVB = 8
a2A = (80, 92); a2B = (104, 140)
v2ACC = 96
sX, sW, sK, sV, sO, sKV, sWO = 8, 12, 16, 20, 24, 68, 56
sWAVE, sHL, sROT, sNONCE = 28, 29, 30, 31
sWS, sWM, sXS, sXM, sWD, sXD, sT, sT2, sIT = 32, 33, 34, 35, 36, 37, 38, 39, 40
sKN, sKM, sKS, sRB, sHI, sWSL, sXB = 41, 42, 43, 44, 45, 46, 47
sC, sSC, sOB, sNEG, sKROT, sS0, sWEND, sTW = 48, 49, 50, 51, 52, 53, 54, 55
sWS2, sXM0, sXS0 = 72, 74, 75
gSRC, gSTR, gDST, gST, gQ1, gQ2, gQ3, gRI = 60, 52, 62, 63, 64, 65, 66, 67
gC1, gC2, gDL, gM0, gSO, gDL2, gLO, gHIW = 72, 73, 74, 75, 76, 77, 78, 79
gLOW, gLIM, gREDO, gMASK, gTAB, gP4 = 32, 33, 34, 35, 36, 79
gF = 40
REL = [0, 1, 2, 3, 4, 6, 8, 10, 12, 14, 5, 7, 9, 11, 13, 15]
FA, F2, FP = F_OFF, F_OFF + 32768, F_OFF + 49152
gFP, gOFF, gCHK, gPOST, gNN = 80, 33, 32, 53, 46
vPA, vNZ = 47, 48
sPG = 60
sPA, sPM = 73, 74
sSW = 62
XBUF = 65536
WQB = XBUF + 2 * 18432
QX = 155648
def acc(t, dt): return vACC + (t * 8 + dt) * 4
def acc2(nt, u): return v2ACC + 4 * (nt * 9 + u)

def flat_dma(groups, pos):
    out = []
    for g, q in zip(groups, pos):
        for x in g:
            if x.startswith("s_nop"): continue
            out.append(It(x, q, q + 1) if x.startswith("buffer_") else It(x))
    return out
def read_pos(nrd, start, end, taken):
    free = [i for i in range(start, end) if i not in taken]
    dbl = max(0, nrd - len(free))
    pos = []
    for i in free:
        pos.append(i)
        if dbl > 0: pos.append(i); dbl -= 1
    assert len(pos) >= nrd
    return pos[:nrd]

WDr, WSr, WS2r = (sWD, 62), (sWS, 63), (sWS2, 64)
def w_dma(p, par=0):
    w = lambda v, so, o: f"buffer_load_dwordx4 v{v}, s[{sW}:{sW+3}], s{so} offen offset:{o} {p.wfl} lds"
    return [[f"s_mov_b32 m0, s{sWM}", "s_nop 0", w(vWE, WSr[par], 0)], [w(vWO, WSr[par], 1024)], [w(vWE, WS2r[par], 2048)], [w(vWO, WS2r[par], 3072)]]
def x_dma(p, nX):
    out = []
    for m in range(nX):
        g = [f"s_mov_b32 m0, s{sXM}", "s_nop 0"] if m == 0 else []
        g.append(f"buffer_load_dwordx4 v{vX}, s[{sX}:{sX+3}], s{sXS} offen offset:{2048*(m & 1)} {p.xfl} lds")
        if m + 1 < nX:
            g.append(f"s_add_u32 s{sXS}, s{sXS}, {16384 if m % 2 == 0 else 20480}")
            if m % 2 == 1: g.append("s_add_u32 m0, m0, 4096")
        out.append(g)
    return out
def kv_dma(p):
    out = []
    for j in range(2 * p.ppe):
        g = [f"s_mov_b32 m0, s{sKM}", "s_nop 0"] if j == 0 else []
        if j == 4: g = [f"s_add_u32 m0, s{sKM}, 4096", f"s_add_u32 s{sKS}, s{sKS}, 4096"]
        g.append(f"buffer_load_dwordx4 v{vE if j % 2 == 0 else vO_}, s[{sKV}:{sKV+3}], s{sKS} offen offset:{1024*(j % 4)} {p.kvfl} lds")
        out.append(g)
    return out
def kv_book(p):
    return [[f"s_ashr_i32 s{sKN}, s{sIT}, 1", f"s_sub_u32 s{sKN}, s{sKN}, s{sS0}", f"s_mul_i32 s{sKN}, s{sKN}, {p.ppe}"],
            [f"s_lshr_b32 s{sT}, s{sKN}, 1", f"s_add_u32 s{sKS}, s{sT}, s{sROT}"] + ([f"s_and_b32 s{sT}, s{sT}, 2", f"s_add_u32 s{sKS}, s{sKS}, s{sT}"] if p.par8 else []) + [f"s_and_b32 s{sKS}, s{sKS}, 31"],
            [f"s_lshl_b32 s{sKS}, s{sKS}, 12", f"s_and_b32 s{sT}, s{sKN}, 1", f"s_lshl_b32 s{sT}, s{sT}, 11", f"s_add_u32 s{sKS}, s{sKS}, s{sT}"],
            [f"s_bfe_u32 s{sKM}, s{sKN}, 0x10002", f"s_lshl_b32 s{sKM}, s{sKM}, 14", f"s_and_b32 s{sT}, s{sKN}, 3", f"s_lshl_b32 s{sT}, s{sT}, 11"],
            [f"s_add_u32 s{sKM}, s{sKM}, s{sT}", f"s_add_u32 s{sKM}, s{sKM}, s{sT2}"],
            [f"s_cmp_ge_u32 s{sKN}, {16 if p.px else 8}", f"s_cselect_b32 s{sKM}, {LDSOOB}, s{sKM}", f"s_cselect_b32 s{sKS}, {OOB}, s{sKS}"]]
def x_book(p):
    return [[f"s_add_u32 s{sT}, s{sIT}, 3", f"s_lshr_b32 s{sT}, s{sT}, 1", f"s_add_u32 s{sXS}, s{sT}, s{sKROT}"],
            [f"s_sub_u32 s{sXM}, s{sXS}, {8 if p.c0 else 9}", f"s_cmp_lt_u32 s{sXS}, 9", f"s_cselect_b32 s{sXS}, s{sXS}, s{sXM}", f"s_lshl_b32 s{sXS}, s{sXS}, 7"],
            [f"s_add_u32 s{sXS}, s{sXS}, s{sXS0}", f"s_and_b32 s{sT}, s{sT}, 1", f"s_mul_i32 s{sT}, s{sT}, 18432"],
            [f"s_add_u32 s{sXM}, s{sXM0}, s{sT}"],
            [f"s_cmp_ge_u32 s{sIT}, 15", f"s_cselect_b32 s{sXM}, {LDSOOB}, s{sXM}", f"s_cselect_b32 s{sXS}, {OOB}, s{sXS}"]]
def w_adv(p, src=sWS, dst=sWS):
    return [f"s_add_u32 s{dst}, s{src}, {32*8192}", f"s_cmp_ge_u32 s{dst}, s{sWEND}", f"s_cselect_b32 s{dst}, s78, s{dst}"]
def q_reads(T, par, ks):
    rd = [f"ds_read_b128 {ar(aXB[par] + 4*t)}, v{vXA + ks} offset:{2048*t}" for t in range(T)]
    for dt in range(8):
        rd.append(f"ds_read_b64_tr_b16 {ar(aWA[par] + 4*dt, 2)}, v{vVA+dt}")
        rd.append(f"ds_read_b64_tr_b16 {ar(aWA[par] + 4*dt + 2, 2)}, v{vVA+dt} offset:2048")
    return rd
LAND = {4: [(sK, j, vr(224 + 4*j) if j < 4 else ar(48 + 4*j)) for j in range(8)] + [(sV, 0, vr(16)), (sV, 1, vr(24)), (sV, 2, ar(248)), (sV, 3, ar(252))],
        5: [(sV, 4, vr(16)), (sV, 5, vr(24)), (sV, 6, ar(248)), (sV, 7, ar(252))]}
def qstep(a, p, T, par, more=(), last=0, xb=()):
    A_, B_ = aWA[par], aXB[par]
    e = 2 * p.ppe
    mf = []
    for dt in range(8):
        for u in range(5):
            if T == 5:
                if u == 4 and dt >= 4: continue
                t = u
            else:
                if u == 0 and dt < 4: continue
                t = (u - 1) % 5
            mf.append(f"{MF} {vr(acc(t, dt))}, {ar(A_ + 4*dt)}, {ar(B_ + 4*u)}, {vr(acc(t, dt))}")
    if not p.exp & 128: a("s_waitcnt lgkmcnt(0)")
    if last == 16: a(f"s_waitcnt vmcnt({4 + len(LAND[T]) // 2})")
    elif last != 17 and not p.exp & 64: a(f"s_waitcnt vmcnt({e + 4 + (T - p.wsh if par == 0 else 0)})")
    if not p.exp & 32: a("s_barrier")
    if p.qprof: a(f"s_sub_u32 s98, s{sIT}, {p.qprof - 1}\ns_min_u32 m0, s98, 63\nv_writelane_b32 v31, s96, m0\n{'s_memtime' if p.cyc else 's_memrealtime'} s[96:97]")
    upd = [f"v_add_u32 v{vVA+d}, s{WDr[par]}, v{vVA+d}" for d in range(8)]
    if par == 0: upd = [f"v_add_u32 v{vXA}, s{sXD}, v{vXA}", f"v_add_u32 v{vXA+1}, s{sXD}, v{vXA+1}"] + upd
    rd = q_reads(5, par ^ 1, par ^ 1) + list(more)
    dma = (x_dma(p, T) + w_dma(p, 1)[:4 - p.wsh]) if par == 1 else (w_dma(p, 1)[4 - p.wsh:] + w_dma(p, 0) + kv_dma(p))
    q = par ^ 1
    book = [[f"s_add_u32 s{sIT}, s{sIT}, 1"]] + (kv_book(p) if par == 1 else x_book(p)) + \
           [[f"s_add_u32 s{sWSL}, s{sWSL}, 8192", f"s_cmp_eq_u32 s{sWSL}, 24576", f"s_cselect_b32 s{sWSL}, 0, s{sWSL}"],
            [f"s_cmp_eq_u32 s{sWSL}, 8192", f"s_cselect_b32 s{WDr[q]}, s{sNEG}, s{sC}"],
            w_adv(p, WSr[par], WSr[q]) + [f"s_add_u32 s65, s{sWSL}, s{sXB}"],
            [f"s_cmp_ge_u32 s{sIT}, 15", f"s_cselect_b32 s65, {LDSOOB}, s65", f"s_cselect_b32 s{WSr[q]}, {OOB}, s{WSr[q]}"],
            [f"s_add_u32 s{WS2r[q]}, s{WSr[q]}, {4*8192 - 2048}", f"s_mov_b32 s{sWM}, s65"] + ([f"s_sub_u32 s{sXD}, 0, s{sXD}"] if par == 0 else [])]
    n = len(mf)
    book += [list(xb)]
    if last:
        ld = [[f"buffer_load_dwordx4 {r}, v{vE if j % 2 == 0 else vO_}, s[{d}:{d+3}], s{66 + j // 4} offen offset:{1024*(j % 4)} {p.kvfl}"] for d, j, r in LAND[T]]
        k = len(ld) // 4
        dma = {15: ld[:2*k], 16: kv_dma(p) + ld[2*k:3*k], 17: ld[3*k:]}[last]
        book = [[f"s_add_u32 s{sIT}, s{sIT}, 1"]] + (kv_book(p) + [[f"s_mov_b32 s{WDr[0]}, s{sC}"]] if last == 15 else [])
        if last == 17: rd, upd = [], []
        if last == 16: upd = []
        rp = read_pos(len(rd), 0, n - p.qr, set(1 + 3*i for i in range(len(dma))))
        gaps, over = schedule(n, [], [It(x, q, q + 1) for x, q in zip(rd, rp)] + [It(x, p.vlo, n - 1) for x in upd] + flat_dma(dma, [1 + 3*i for i in range(len(dma))]) + [It(x, 0, n - 1) for g in book for x in g])
        return weave(a, mf, gaps)
    pos = [1 + i * (n - p.qb) // len(dma) for i in range(len(dma))]
    if par == 0 and p.esp: pos = [1 + p.esp * i for i in range(len(dma))]
    if par == 1 and p.xsp:
        x0 = 1 + p.xsp * T + 2
        pos = [1 + p.xsp * i for i in range(T)] + [x0 + i * (n - p.qb - x0) // (len(dma) - T) for i in range(len(dma) - T)]
    rp = read_pos(len(rd), 0, n - p.qr, set(pos))
    if p.exp & 8: dma = [[x for x in g if not x.startswith("buffer")] for g in dma]
    if p.exp & 16: rd = []
    flo = [It(x, q, q + 1) for x, q in zip(rd, rp)] + [It(x, p.vlo, n - 1) for x in upd] + flat_dma(dma, pos) + [It(x, 0, n - 1) for g in book for x in g]
    gaps, over = schedule(n, [], flo)
    if VERB: print(f"qstep T{T} par{par} over", over, file=sys.stderr)
    weave(a, mf, gaps)

def kv_tile_dma(p, sm, ss, parts=(0, 1, 2, 3), plain=False):
    out = []
    d1, d2 = (sK, sV) if plain or not p.swap else (sKV, sW)
    for half, (srd, lo) in enumerate(((d1, 0), (d1, 4096), (d2, 8192), (d2, 12288))):
        if half not in parts: continue
        so = ss if (half & 1) == 0 else sT
        for j in range(4):
            g = []
            if j == 0:
                g = [f"s_xor_b32 m0, s{sm}, {lo}"]
                g += [f"s_add_u32 s{sT}, s{ss}, 4096", f"s_bitset0_b32 s{sT}, 17"] if half == 0 else ["s_nop 0"]
            if p.lim and (j % p.limg == 0): g.append(f"s_waitcnt vmcnt({p.lim - p.limg})")
            g.append(f"buffer_load_dwordx4 v{vE if j % 2 == 0 else vO_}, s[{srd}:{srd+3}], s{so} offen offset:{1024*j} {p.kvfl} lds")
            out.append(g)
    return out
def frag_reads(par, off, vVA=vVA):
    rd = [f"ds_read_b128 {ar(aK[par] + (kt*4+s)*4)}, v{vKA+s} offset:{off + 4096*kt}" for kt in range(2) for s in range(4)]
    for dt in range(8):
        rd.append(f"ds_read_b64_tr_b16 {ar(aV[par] + 4*dt, 2)}, v{vVA+dt} offset:{off}")
        rd.append(f"ds_read_b64_tr_b16 {ar(aV[par] + 4*dt + 2, 2)}, v{vVA+dt} offset:{off + 4096}")
    return rd
def soft2(S, t):
    ad = [f"v_add_f32 v{vL+t}, v{vL+t}, v{S+j}" for j in range(8)]
    cv = [f"v_cvt_pk_bf16_f32 v{S+j}, v{S+2*j}, v{S+2*j+1}" for j in range(4)]
    return ad[:4] + cv + ad[4:]
def qk(S, Kc, t, c0):
    return [f"{MF} {vr(S + 4*kt)}, {ar(Kc + (kt*4+s)*4)}, {ar(aQ + (t*4+s)*4)}, {c0 if s == 0 else vr(S + 4*kt)}" for kt in range(2) for s in range(4)]
def pv(S, Vc, t, zero=False):
    return [f"{MF} {vr(acc(t, dt))}, {ar(Vc + 4*dt)}, {vr(S)}, {'0' if zero else vr(acc(t, dt))}" for dt in range(8)]
def block(a, p, T, par, loader, top, mid, ins=None, nodma=False, nord=False, lr=False, first=False):
    mf, fixed = [], []
    for t in range(T):
        n = par * T + t
        S, Sp = vS[n & 1], vS[(n & 1) ^ 1]
        tp = (t - 1) % T
        mf += qk(S, aK[par], t, "0") + pv(Sp, aV[par ^ 1] if t == 0 else aV[par], tp, first and (par == 0 or t == 0))
        v2 = soft2(Sp, tp)
        fixed += [v2[0:1], v2[1:3], v2[3:4], v2[4:6], v2[6:7], v2[7:9], v2[9:10], v2[10:12]]
        fixed += [[f"v_exp_f32 v{S+j}, v{S+j}"] for j in range(8)]
    n = 16 * T
    if first and par == 0:
        mf[8:16] = ["s_nop 3"] + ["s_nop 0"] * 7
        fixed[0:8] = [[] for _ in range(8)]
    free = [16*t + j for t in range(T) for j in (0, 2, 4, 6)]
    dma = kv_tile_dma(p, sKM, sKS) if loader and not nodma else []
    top(a)
    if lr:
        m = n - p.lrg
        weave(a, mf[:m], fixed[:m])
        mid(a)
        rd = frag_reads(par ^ 1, 16384 * (par ^ 1))
        k = p.lrg - 8
        gaps, over = schedule(n - m, fixed[m:], [It(x, i * k // 24, i * k // 24) for i, x in enumerate(rd)])
        weave(a, mf[m:], gaps)
    elif not p.late:
        rd = frag_reads(par ^ 1, 16384 * (par ^ 1))
        tog = [f"v_xor_b32 v{r}, 0x10000, v{r}" for r in list(range(vKA, vKA+4)) + list(range(vVA, vVA+8))] if par == 0 else []
        if nord: rd, tog = [], []
        lim = n - 12
        slots = [g for g in free if g < lim]
        extra = [g for g in range(lim) if g not in slots]
        need = len(rd) + len(dma) - len(slots)
        if need > 0: slots = sorted(slots + [extra[(2*i + 1) * len(extra) // (2*need)] for i in range(need)])
        dpos = [slots[(i * len(slots)) // len(dma)] for i in range(len(dma))] if dma else []
        rpos = [g for g in slots if g not in dpos]
        rpos = [max(g, 16) if i >= 8 else g for i, g in enumerate(rpos[:len(rd)])]
        flo = [It(x, q, q + 1) for x, q in zip(rd, rpos)] + flat_dma(dma, dpos) + [It(x, 0, n - 1 - (len(tog) - 1 - i)) for i, x in enumerate(tog)]
        gaps, over = schedule(n, fixed, flo)
        weave(a, mf, gaps)
    else:
        m = n - 16
        rv = frag_reads(par, 16384 * par)[8:]
        vpos = [0, 1, 2, 3, 4, 5, 6, 7, 9, 11, 13, 15, 16, 17, 18, 20]
        togv = [f"v_xor_b32 v{r}, 0x10000, v{r}" for r in range(vVA, vVA+8)] if par == 1 else []
        togk = [f"v_xor_b32 v{r}, 0x10000, v{r}" for r in range(vKA, vKA+4)] if par == 1 else []
        cand = [g for g in range(24 if p.fc else 21, m - 1)]
        dpos = [cand[(i * len(cand)) // len(dma)] for i in range(len(dma))] if dma else []
        flo = [It(x, q, q) for x, q in zip(rv, vpos)] + [It("s_waitcnt lgkmcnt(0)", 23, 23)] + flat_dma(dma, dpos) + \
              [It(x, 22, m - 1 - (11 - i)) for i, x in enumerate(togv + togk)]
        gaps, over = schedule(m, fixed[:m], flo)
        assert any("lgkmcnt" in x for x in gaps[23])
        if loader and p.fc: gaps[23] += [f"s_cmp_eq_u32 s{sWAVE}, 1", f"s_cbranch_scc1 L_fc{par}", f"L_fcb{par}:"]
        if ins:
            for t in range(1, T):
                x = A(); ins(x, t)
                gaps[16*t - 1] += [y.strip() for y in x.l]
        weave(a, mf[:m], gaps)
        mid(a)
        rk = frag_reads(par ^ 1, 16384 * (par ^ 1))[:8]
        gaps, o2 = schedule(16, fixed[m:], [It(x, i, i) for i, x in enumerate(rk)])
        over += o2
        weave(a, mf[m:], gaps)
    if VERB: print(f"block T{T} par{par} over", over, file=sys.stderr)

def wo_touch(a, p, t1=sT, t2=sT2, fl=None):
    if p.notouch: return
    for f in ([fl] if fl is not None else ["nt", ""] if p.tw2 == 1 else ["nt"] if p.tw2 else [p.twfl]):
        a(f"""s_add_u32 s{t2}, s{sTW}, 8192
        s_add_u32 s{t1}, s{sTW}, 10240
        buffer_load_dword v{vDUM}, v{vTCH}, s[{sWO}:{sWO+3}], s{sTW} offen {f}
        buffer_load_dword v{vDUM}, v{vTCH}, s[{sWO}:{sWO+3}], s{t2} offen {f}
        buffer_load_dword v{vDUM}, v{vTCH}, s[{sWO}:{sWO+3}], s{t1} offen {f}""")
        if p.tw2 == 3 and fl is None:
            a("s_waitcnt vmcnt(0)")
            wo_touch(a, p, t1, t2, "")

vT1, vT2 = 28, 29
def wo_touch_setup(a):
    a(f"""v_and_b32 v1, 63, v0
    v_mul_u32_u24 v2, 43, v1
    v_lshrrev_b32 v2, 7, v2
    v_mul_u32_u24 v3, 3, v2
    v_sub_u32 v3, v1, v3
    v_and_b32 v4, 7, v2
    s_lshl_b32 s{sT}, s5, 3
    v_add_u32 v4, s{sT}, v4
    v_mul_u32_u24 v4, 1152, v4
    v_lshl_add_u32 v4, v3, 7, v4
    s_and_b32 s{sT}, s3, 3
    s_mul_i32 s{sT}, s{sT}, {1024*1152}
    s_lshl_b32 s80, s4, 8
    s_add_u32 s{sT}, s{sT}, s80
    v_add_u32 v4, s{sT}, v4
    v_lshrrev_b32 v2, 3, v2
    s_mov_b32 s{sT}, 73728
    v_mad_u32_u24 v{vT1}, v2, s{sT}, v4
    v_mad_u32_u24 v{vT2}, v2, s{sT}, v{vT1}
    v_mov_b32 v3, {OOB}
    v_cmp_gt_u32 vcc, 48, v1
    s_nop 1
    v_cndmask_b32 v{vT1}, v3, v{vT1}, vcc
    v_cndmask_b32 v{vT2}, v3, v{vT2}, vcc""")
def wo_touch_part(a, p, part):
    for r0, r1, v in (((0, 2, vT1), (4, 8, vT2)) if part == 0 else ((12, 5, vT2), (9, 13, vT2))):
        a(f"""s_mul_i32 s{sT}, s{sHL}, {r1 - r0}
        s_add_u32 s{sT}, s{sT}, s{gP4}
        s_add_u32 s{sT}, s{sT}, {r0}
        s_and_b32 s{sT}, s{sT}, 15
        s_mul_i32 s{sT}, s{sT}, 73728
        s_nop 0
        buffer_load_dword v{vDUM}, v{v}, s[{sWO}:{sWO+3}], s{sT} offen {p.twfl}""")
def g_dma(fl):
    out = []
    for j in range(9):
        g = [f"s_add_u32 m0, s{gM0}, {1024*j}", "s_nop 0"] if j % 4 == 0 else []
        g.append(f"buffer_load_dwordx4 v{v2VO+j}, s[{sX}:{sX+3}], s{gSO} offen offset:{1024*(j % 4)} {fl} lds")
        out.append(g)
    return out
def g_stage_now(a, fl, st):
    a(f"s_add_u32 s{gSO}, s{gP4}, {REL[st]}\ns_and_b32 s{gSO}, s{gSO}, 15\ns_mul_i32 s{gSO}, s{gSO}, s{gSTR}\ns_add_u32 s{gSO}, s{gSO}, s{gLO}")
    a(f"s_add_u32 s{gM0}, s{gDL2}, {(st & 3)*STG}")
    emit(a, g_dma(fl), nop=False)
def o_touch(a, p, half):
    if not p.rb: return
    for o in (0, 8192, 10240):
        a(f"s_add_u32 s{sT}, s{sOB}, {half*18432 + o}\ns_nop 0\nbuffer_load_dword v{vDUM}, v{vTCH}, s[{sO}:{sO+3}], s{sT} offen")

KEEP = [16, 20, 24, 28, 192, 196, 200, 204, 224, 228]
def o_store(p, t, s, d):
    return [f"s_add_u32 s{sT}, s{sOB}, {s*9216 + (4096 if t == 4 else 0)}", "s_nop 0",
            f"buffer_store_dwordx4 {vr(d)}, v{vST}, s[{sO}:{sO+3}], s{sT} offen offset:{1024*(t & 3)} {p.ofl}"]
def lanesum(a, T, op):
    for sw in ("v_permlane32_swap_b32", "v_permlane16_swap_b32"):
        for t in range(T): a(f"v_mov_b32 v{1+t}, v{vL+t}")
        a("s_nop 1")
        for t in range(T): a(f"{sw} v{1+t}, v{vL+t}")
        a("s_nop 1")
        for t in range(T): a(f"{op} v{vL+t}, v{vL+t}, v{1+t}")

def wave_front(a, p, T, loader, tag):
    TAB = sum(REL[4+i] << (4*i) for i in range(12))
    e = 2 * p.ppe
    a(f"s_waitcnt vmcnt({4 if p.early else 4 + e + T + 4})\ns_waitcnt lgkmcnt(0)\ns_barrier")
    stamp(a, p, 1)
    for x in q_reads(5, 0, 0): a(x)
    if p.early: p.batch2(a, T)
    for dt in range(8): a(f"v_add_u32 v{vVA+dt}, s{sWD}, v{vVA+dt}")
    align(a, p)
    a(f"L_q{tag}:")
    if p.twq >= 0 and not loader:
        a(f"s_cmp_eq_u32 s{sIT}, s79\ns_cbranch_scc1 L_tq\nL_tqb:")
    KT = [tuple(int(y) for y in x.split(":")) for x in p.kt.split(",") if x]
    if KT: a(f"s_bitcmp1_b32 s79, s{sIT}\ns_cbranch_scc1 L_kt{tag}\nL_ktb{tag}:")
    qstep(a, p, T, 0)
    qstep(a, p, T, 1)
    if p.px:
        assert p.ppe == 2 and p.s0 in (1, 2) and not p.stag and not p.late
        a(("" if p.p6 else f"s_cmp_eq_u32 s{sIT}, 18\ns_cbranch_scc1 L_qe{tag}\n") + f"s_cmp_eq_u32 s{sIT}, {4 + 2*p.s0}\ns_cbranch_scc0 L_q{tag}")
        for tile in range(2):
            r = frag_reads(tile, 16384 * tile, vVB)
            qstep(a, p, T, 0); qstep(a, p, T, 1, r[:12]); qstep(a, p, T, 0, r[12:]); qstep(a, p, T, 1)
        if p.p6:
            assert p.s0 == 1 and p.pace >= 3 and p.dsw
            qstep(a, p, T, 0, xb=[f"s_add_u32 s66, s{sROT}, 8", "s_add_u32 s67, s66, 1", "s_and_b32 s66, s66, 31", "s_and_b32 s67, s67, 31", "s_lshl_b32 s66, s66, 12", "s_lshl_b32 s67, s67, 12"])
            qstep(a, p, T, 1, last=15); qstep(a, p, T, 0, last=16); qstep(a, p, T, 1, last=17)
        else: a(f"s_branch L_q{tag}\nL_qe{tag}:")
        if p.s0 == 2: emit(a, kv_dma(p), nop=False)
    else: a(f"s_cmp_lt_u32 s{sIT}, 18\ns_cbranch_scc1 L_q{tag}")
    stamp(a, p, 2)
    a("s_waitcnt lgkmcnt(0)")
    for dt in range(8): a(f"v_mov_b32 v{vVA+dt}, v{vVB+dt}")
    dma = []
    if loader:
        if p.swap:
            a(f"""{f"s_bitcmp1_b32 s2, {p.swap}" if p.swap < 99 else f"s_bitcmp1_b32 s{sHL}, 0"}
            s_cselect_b32 s{sKV}, s{sV}, s{sK}
            s_cselect_b32 s{sKV+1}, s{sV+1}, s{sK+1}
            s_cselect_b32 s{sW}, s{sK}, s{sV}
            s_cselect_b32 s{sW+1}, s{sK+1}, s{sV+1}
            s_cselect_b32 s{sXB}, 8192, 0
            s_mov_b32 s{sW+2}, 131072
            s_add_u32 s{sXB}, s{sXB}, s{sRB}""")
        else: a(f"s_mov_b32 s{sXB}, s{sRB}")
        for n in ([] if p.px and p.p6 else range(2, p.kvd - (p.t5 if p.px else 1 if p.late and not p.t3 else 0))):
            dma.append([f"s_add_u32 s{sKS}, s{sROT}, {(4 if p.par8 else 2)*(n + (2 if p.px else 0))}", f"s_and_b32 s{sKS}, s{sKS}, 31", f"s_lshl_b32 s{sKS}, s{sKS}, 12",
                        f"s_add_u32 s{sKM}, s{sXB}, {65536 + 16384*(n & 1)}"])
            dma += kv_tile_dma(p, sKM, sKS)
    di = 0
    a(f"s_load_dword s{sNONCE}, s[6:7], 0")
    if p.warm and not loader:
        flag_addr(a, 1, FA)
        a(f"s_add_u32 s{sT}, s{sT}, 64\ns_load_dword s{sKN}, s[82:83], s{sT}")
    a(f"v_and_b32 v1, 63, v0\ns_lshl_b32 s{sT}, s{sHL}, 11\ns_add_u32 s{sT}, s{sT}, {QX}\nv_lshl_add_u32 v1, v1, 4, s{sT}")
    units = [(t, s) for t in range(4) for s in range(4)]
    units = ([(4, 2), (4, 3)] + units) if loader else (units + [(4, 0), (4, 1)])
    def conv(a, t, s):
        A0, B0 = acc(t, 2*s), acc(t, 2*s+1)
        for r in range(0, 8, 2): a(f"v_pk_mul_f32 {vr(A0+r, 2)}, {vr(A0+r, 2)}, s[{sSC-1}:{sSC}] op_sel:[0,1] op_sel_hi:[1,1]")
        a(f"v_cvt_pk_bf16_f32 v4, v{A0}, v{A0+1}\nv_cvt_pk_bf16_f32 v5, v{A0+2}, v{A0+3}\nv_cvt_pk_bf16_f32 v6, v{B0}, v{B0+1}\nv_cvt_pk_bf16_f32 v7, v{B0+2}, v{B0+3}")
        if p.zc and p.px: a("s_nop 1")
        else:
            for r in range(0, 4, 2): a(f"v_pk_mov_b32 {vr(A0+r, 2)}, 0, 0")
        a("v_permlane32_swap_b32 v4, v6\nv_permlane32_swap_b32 v5, v7")
        if p.zc and p.px: a("s_nop 0")
        else:
            for r in range(0, 4, 2): a(f"v_pk_mov_b32 {vr(B0+r, 2)}, 0, 0")
        a("v_permlane16_swap_b32 v4, v6\nv_permlane16_swap_b32 v5, v7\ns_nop 0")
        if loader and t == 4:
            a(f"ds_write_b128 v1, v[4:7] offset:{1024*(s - 2)}\ns_nop 1")
        else:
            q = aQ + (t*4+s)*4
            for r in (0, 2, 1, 3): a(f"v_accvgpr_write_b32 a{q+r}, v{4+r}")
    if p.zc and p.px:
        def s1(n):
            t, s_ = units[n]; A0, d = acc(t, 2*s_), 4 + 16 * (n & 1)
            return [f"v_pk_mul_f32 {vr(A0+r, 2)}, {vr(A0+r, 2)}, s[{sSC-1}:{sSC}] op_sel:[0,1] op_sel_hi:[1,1]" for r in range(0, 8, 2)] + \
                   [f"v_cvt_pk_bf16_f32 v{d+r}, v{A0+2*r}, v{A0+2*r+1}" for r in range(4)]
        def conv(a, t, s):
            n = units.index((t, s)); d = 4 + 16 * (n & 1)
            if n == 0:
                for x in s1(0): a(x)
            nx = s1(n + 1) if n + 1 < len(units) else ["s_nop 0"] * 5
            a(f"{nx[0]}\n{nx[1]}\nv_permlane32_swap_b32 v{d}, v{d+2}\nv_permlane32_swap_b32 v{d+1}, v{d+3}\n{nx[2]}\n{nx[3]}")
            a(f"v_permlane16_swap_b32 v{d}, v{d+2}\nv_permlane16_swap_b32 v{d+1}, v{d+3}\n{nx[4]}")
            if loader and t == 4: a(f"ds_write_b128 v1, {vr(d)} offset:{1024*(s - 2)}")
            else:
                for r in (0, 2, 1, 3): a(f"v_accvgpr_write_b32 a{aQ + (t*4+s)*4 + r}, v{d+r}")
            for x in nx[5:]: a(x)
    nb = 6 if p.soft else 10
    later = units[nb:] if p.soft else []
    for n, (t, s) in enumerate(units + [(None, None)]):
        if n == nb:
            assert di == len(dma)
            if loader and p.tst >= 0: a(f"s_bitcmp1_b32 s2, {p.tst}\ns_cbranch_scc0 L_ts\ns_waitcnt vmcnt({p.tsw})\nL_ts:")
            a(f"s_waitcnt lgkmcnt(0)\ns_waitcnt vmcnt({(16*(p.kvd - 2 - (p.t5 if p.px else 1 if p.late and not p.t3 else 0)) if loader else 0) + (4 if p.px and p.s0 == 2 else 0) if not (p.px and p.p6) else 63})\ns_barrier")
            if not loader:
                for s2 in (2, 3): a(f"ds_read_b128 {ar(aQ + (16 + s2)*4)}, v1 offset:{1024*(s2 - 2)}")
            for x in frag_reads(0, 0)[:0 if p.px else 8 if p.late else 24]: a(x)
            if p.soft: break
        if t is None: break
        for _ in range(6 if p.soft and p.t3 else 4 if not p.soft else 3):
            if di < len(dma):
                for x in dma[di]: a(x)
                di += 1
        conv(a, t, s)
    for t in range(T): a(f"v_mov_b32 v{vL+t}, 0")
    for j in range(8): a(f"v_mov_b32 v{vS[1]+j}, 0")
    if not p.px:
        for j in range(32): a(f"v_accvgpr_write_b32 a{aV[1]+j}, 0")
    if loader:
        a(f"""s_mov_b32 s{sX}, s{sWO}
        s_mov_b32 s{sX+1}, s{sWO+1}
        s_mov_b32 s{sX+2}, s{sWO+2}
        s_and_b32 s{gLO}, s3, 3
        s_lshl_b32 s{gLO}, s{gLO}, 10
        s_lshl_b32 s{sT}, s{sHL}, 5
        s_add_u32 s{gLO}, s{gLO}, s{sT}
        s_mul_i32 s{gLO}, s{gLO}, 1152
        s_mul_i32 s{sT}, s4, 288
        s_add_u32 s{gLO}, s{gLO}, s{sT}
        s_mov_b32 s{gSTR}, {0 if p.exp & 1 else 73728}
        s_mul_i32 s{gDL2}, s{sHL}, 9216
        s_add_u32 s{gDL2}, s{gDL2}, 18432""")
    else:
        a(f"""s_mov_b32 s{sX}, s{sO}
        s_mov_b32 s{sX+1}, s{sO+1}
        s_mov_b32 s{sX+2}, s{sO+2}
        s_lshl_b32 s{sT}, s4, 1
        s_add_u32 s{sT}, s{sT}, s{sHL}
        s_mul_i32 s{sT}, s{sT}, {4*9216}
        s_sub_u32 s{gLO}, s{sOB}, s{sT}
        s_mul_i32 s{gDL2}, s{sHL}, 9216
        s_add_u32 s{gLO}, s{gLO}, s{gDL2}
        s_movk_i32 s{gSTR}, {0 if p.exp & 2 else 18432}""")
    a(f"""s_lshl_b32 s{gP4}, s4, 2
    s_mov_b32 s{gTAB}, {TAB & 0xffffffff:#x}
    s_mov_b32 s{gTAB+1}, {TAB >> 32:#x}
    s_mov_b32 s{gREDO}, 0
    s_mov_b32 s{sNEG}, {(127+40) << 23:#x}
    s_mov_b32 s{sIT}, 0
    s_mov_b32 s{sHI}, 0""")
    if p.warm and not loader:
        flag_addr(a, 1, FA)
        a(f"""s_add_u32 s{sT}, s{sT}, 64
        v_and_b32 v1, 7, v0
        s_lshr_b32 s80, s3, 2
        s_lshl_b32 s80, s80, 3
        s_add_u32 s80, s80, s5
        s_lshl_b32 s80, s80, 2
        s_add_u32 s80, s80, s4
        s_mul_i32 s80, s80, {PBLK}
        s_add_u32 s80, s80, {P_OFF}
        s_mov_b32 s81, {64*PBLK}
        v_mad_u32_u24 v2, v1, s81, v1
        v_sub_u32 v2, v2, v1
        v_add_u32 v2, s80, v2
        v_mov_b32 v3, s{sT}
        v_cmp_gt_u32 vcc, 4, v1
        s_nop 1
        v_cndmask_b32 v2, v3, v2, vcc
        global_load_dword v{vDUM}, v2, s[82:83] sc1""")
    a(f"s_cmp_eq_u32 s{sNONCE}, 0\ns_cbranch_scc1 L_tag{tag}\nL_tagb{tag}:")
    if loader and p.pace >= 0:
        a(f"s_lshr_b32 s{sSW}, s2, 3\ns_mul_i32 s{sSW+1}, s3, {p.pmul}\ns_add_u32 s{sSW}, s{sSW}, s{sSW+1}\ns_and_b32 s{sSW}, s{sSW}, {p.pmask}\ns_add_u32 s{sSW}, s{sSW}, {p.pace}\ns_sub_u32 s{sSW+1}, s{sSW}, 1")
    if loader and p.fc:
        a(f"""s_lshr_b32 s{sPA}, s2, 3
        s_lshl_b32 s{sPA}, s{sPA}, 7
        s_add_u32 s{sPA}, s{sPA}, {FP}
        s_lshl_b32 s{sT}, s3, 2
        s_add_u32 s{sT}, s{sT}, s{sPA}
        v_mov_b32 v{vFL}, s{sT}""")
    out = A()
    out(f"""L_tag{tag}:
    s_memrealtime s[80:81]
    v_mov_b32 v1, 0
    v_mov_b32 v3, 0
    s_waitcnt lgkmcnt(0)
    s_or_b32 s80, s80, 1
    v_mov_b32 v2, s80
    s_mov_b64 exec, 1
    global_atomic_cmpswap v4, v1, v[2:3], s[6:7] sc0 sc1
    s_waitcnt vmcnt(0)
    s_mov_b64 exec, -1
    v_readfirstlane_b32 s{sNONCE}, v4
    s_nop 1
    s_cmp_eq_u32 s{sNONCE}, 0
    s_cselect_b32 s{sNONCE}, s80, s{sNONCE}
    s_branch L_tagb{tag}""")
    if KT:
        out(f"L_kt{tag}:\ns_mul_i32 s81, s4, {p.ktst}\ns_sub_u32 s81, s{sIT}, s81")
        for i, (st, f0, cnt) in enumerate(KT):
            out(f"s_cmp_eq_u32 s81, {st}\ns_cbranch_scc0 L_kt{tag}{i}")
            for n in range(f0, f0 + cnt):
                out(f"s_add_u32 s80, s{sROT}, {2*n}\ns_and_b32 s80, s80, 31\ns_lshl_b32 s80, s80, 12\ns_nop 0\nbuffer_load_dword v{vDUM}, v{vTCH}, s[{sKV}:{sKV+3}], s80 offen {p.ktfl}")
            out(f"L_kt{tag}{i}:")
        out(f"s_branch L_ktb{tag}")
    if p.twq >= 0 and not loader:
        out("L_tq:")
        wo_touch(out, p, 80, 81)
        out("s_branch L_tqb")
    if p.px:
        assert not p.late
        for par in range(2):
            n = {1: (5, None), 2: (4, 5), 0: (None, None)}[p.t5][par]
            if p.p6 or p.x6: p.pb = (-1, 63)
            if (p.p6 or p.x6) and par == 1:
                n = 6
                if loader: a(f"s_add_u32 s{sKS}, s{sROT}, {2*n}\ns_and_b32 s{sKS}, s{sKS}, 31\ns_lshl_b32 s{sKS}, s{sKS}, 12\ns_lshr_b32 s{sKM}, s{sRB}, 1\ns_sub_u32 s{sKM}, s{sXB}, s{sKM}\ns_add_u32 s{sKM}, s{sKM}, 131072")
            elif n and loader: a(f"s_add_u32 s{sKS}, s{sROT}, {2*n}\ns_and_b32 s{sKS}, s{sKS}, 31\ns_lshl_b32 s{sKS}, s{sKS}, 12\ns_add_u32 s{sKM}, s{sXB}, {65536 + 16384*(n & 1)}")
            block(a, p, T, par, loader, lambda a: a("s_waitcnt lgkmcnt(0)" + (f"\ns_waitcnt vmcnt({p.pb[par]})\ns_barrier" if p.pb[par] >= 0 else "")), None, nodma=not n, nord=par == 0, first=p.zc)
        if p.p6:
            a(f"s_waitcnt vmcnt({32 if loader else 0})\ns_add_u32 s{sT}, s{sRB}, 65536\nv_and_b32 v2, 63, v0\nv_lshl_add_u32 v2, v2, 4, s{sT}")
            for d, j, r in LAND[T]: a(f"ds_write_b128 v2, {r} offset:{1024*j + (8192 if d == sV else 0)}")
        a(f"s_mov_b32 s{sIT}, 2")
        if p.s0 == 2 and not loader: a("s_waitcnt vmcnt(0)")
    hk = {}
    seq = ([(0, True)] if p.soft else []) + [(0, False), (1, False)]
    for par, peeled in seq:
        if par == 0 and not peeled:
            if p.soft: a(f"s_branch L_a1{tag}")
            align(a, p)
            a(f"L_a{tag}:")
        if par == 1: a(f"L_a1{tag}:")
        dist = p.kvd - (1 if p.late else 0)
        def kvbook(a):
            if p.px and p.dsw:
                a(f"""s_cmp_gt_i32 s{sIT}, s{sSW + par}
                s_cselect_b32 s{sT}, {3 + par}, {4 + par}
                s_add_u32 s{sT}, s{sT}, s{sIT}
                s_lshl_b32 s{sKS}, s{sT}, 1
                s_add_u32 s{sKS}, s{sKS}, s{sROT}
                s_and_b32 s{sKS}, s{sKS}, 31
                s_lshl_b32 s{sKS}, s{sKS}, 12
                s_and_b32 s{sKM}, s{sT}, 1
                s_lshl_b32 s{sKM}, s{sKM}, 14
                s_add_u32 s{sKM}, s{sKM}, s{sXB}
                s_andn2_b32 s{sKN}, 2, s{sT}
                s_lshl_b32 s{sKN}, s{sKN}, 15
                s_add_u32 s{sKM}, s{sKM}, s{sKN}
                s_cmp_eq_u32 s{sIT}, s{sSW + par}
                s_cselect_b32 s{sT}, 16, s{sT}
                {f"s_cmp_eq_u32 s{sT}, 6" if (p.p6 or p.x6) and par == 0 else ""}
                {f"s_cselect_b32 s{sT}, 16, s{sT}" if (p.p6 or p.x6) and par == 0 else ""}
                s_cmp_ge_u32 s{sT}, 16
                s_cselect_b32 s{sKM}, {LDSOOB}, s{sKM}
                s_cselect_b32 s{sKS}, {OOB}, s{sKS}""")
                return
            e0 = p.late and p.t3 and par == 0
            if p.par8: a(f"s_add_u32 s{sT}, s{sIT}, {dist+par}\ns_lshl_b32 s{sKS}, s{sT}, 2\ns_lshr_b32 s{sT}, s{sT}, 2\ns_and_b32 s{sT}, s{sT}, 2\ns_add_u32 s{sKS}, s{sKS}, s{sT}")
            else: a(f"s_lshl_b32 s{sKS}, s{sIT}, 1\ns_add_u32 s{sKS}, s{sKS}, {2*(dist+par)}")
            a(f"""s_add_u32 s{sKS}, s{sKS}, s{sROT}
            s_and_b32 s{sKS}, s{sKS}, 31
            s_lshl_b32 s{sKS}, s{sKS}, 12
            s_xor_b32 s{sKM}, s{sHI}, {0x10000 * (((dist + par) >> 1) & 1)}
            s_add_u32 s{sKM}, s{sKM}, s{sXB}
            s_add_u32 s{sKM}, s{sKM}, {16384*((dist + par) & 1)}
            {f"s_sub_u32 s{sT}, s{sIT}, 1" if e0 else ""}
            s_cmp_ge_u32 s{sT if e0 else sIT}, {16 - dist - par - (1 if e0 else 0)}
            s_cselect_b32 s{sKM}, {LDSOOB}, s{sKM}
            s_cselect_b32 s{sKS}, {OOB}, s{sKS}""")
        def hooks(a, tailblk=False, par=par):
            if p.px and (p.p6 or p.x6) and not tailblk:
                a(f"s_cmp_eq_u32 s{sIT}, {6 - 2*par}\ns_cbranch_scc1 L_x{par}{tag}\nL_xb{par}{tag}:")
                out(f"L_x{par}{tag}:\ns_lshr_b32 s{sT2}, s{sRB}, 1\ns_sub_u32 s{sT2}, 131072, s{sT2}")
                for r in list(range(vKA, vKA+4)) + list(range(vVA, vVA+8)): out(f"{'v_add_u32' if par else 'v_subrev_u32'} v{r}, s{sT2}, v{r}")
                if par == 0: out(f"v_mov_b32 v1, {LFLAG}\nv_mov_b32 v2, 0\nds_write_b32 v1, v2")
                out(f"s_branch L_xb{par}{tag}")
            if loader and p.px and p.l14:
                if par == 1 and tailblk: g_stage_now(a, p.wofl, 0); g_stage_now(a, p.wofl, 1)
                elif par == 1:
                    a(f"s_cmp_eq_u32 s{sIT}, 12\ns_cbranch_scc1 L_w1\nL_wb1:")
                    out("L_w1:")
                    g_stage_now(out, p.wofl, 2); g_stage_now(out, p.wofl, 3)
                    out("s_branch L_wb1")
            elif loader and p.px:
                if par == 1:
                    a(f"s_cmp_ge_u32 s{sIT}, 12\ns_cbranch_scc1 L_w1\nL_wb1:")
                    out(f"L_w1:\ns_cmp_eq_u32 s{sIT}, 12\ns_cbranch_scc0 L_w1b")
                    g_stage_now(out, p.wofl, 2); g_stage_now(out, p.wofl, 3)
                    out("s_branch L_wb1\nL_w1b:")
                    g_stage_now(out, p.wofl, 0); g_stage_now(out, p.wofl, 1)
                    out("s_branch L_wb1")
            elif loader:
                a(f"s_cmp_ge_u32 s{sIT}, {14 - 2*par}\ns_cbranch_scc1 L_w{par}\nL_wb{par}:")
                out(f"L_w{par}:")
                if par == 0: g_stage_now(out, p.wofl, 1)
                else:
                    out(f"s_cmp_eq_u32 s{sIT}, 12\ns_cbranch_scc0 L_w1b")
                    g_stage_now(out, p.wofl, 0)
                    out("s_branch L_wb1\nL_w1b:")
                    g_stage_now(out, p.wofl, 2)
                    g_stage_now(out, p.wofl, 3)
                out(f"s_branch L_wb{par}")
            elif p.tws:
                blks = [int(x) for x in p.tws.split(",")]
                for bk in sorted(set(blks)):
                    if bk & 1 != par or (p.l14 and bk >= 14) != tailblk or bk > 15: continue
                    if not tailblk: a(f"s_cmp_eq_u32 s{sIT}, {bk & ~1}\ns_cbranch_scc0 L_nt{tag}{bk}")
                    for j, o in enumerate((0, 8192, 10240)):
                        if blks[j] == bk: a(f"s_add_u32 s{sT}, s{sTW}, {o}\ns_nop 0\nbuffer_load_dword v{vDUM}, v{vTCH}, s[{sWO}:{sWO+3}], s{sT} offen {p.twfl}")
                    a(f"L_nt{tag}{bk}:")
            elif par == 0 and p.twown >= 0:
                a(f"""s_cmp_eq_u32 s{sIT}, {p.twown}
                s_cbranch_scc0 L_nt{tag}
                s_and_b32 s{sT}, s3, 3
                s_lshl_b32 s{sT}, s{sT}, 2
                s_add_u32 s{sT}, s{sT}, s4
                s_lshl_b32 s{sT}, s{sT}, 3
                s_add_u32 s{sT}, s{sT}, s5
                s_lshl_b32 s{sT}, s{sT}, 1
                s_add_u32 s{sT}, s{sT}, s{sHL}
                s_mul_i32 s{sT}, s{sT}, {16*1152}
                s_mul_i32 s{sT2}, s4, 288
                s_and_b32 s{sT2}, s{sT2}, 0xff80
                s_add_u32 s{sT}, s{sT}, s{sT2}
                v_and_b32 v1, 63, v0
                v_lshrrev_b32 v2, 2, v1
                v_mul_u32_u24 v2, 1152, v2
                v_and_b32 v1, 3, v1
                v_lshl_add_u32 v1, v1, 7, v2
                buffer_load_dword v{vDUM}, v1, s[{sWO}:{sWO+3}], s{sT} offen {p.twfl}
                L_nt{tag}:""")
                if p.twpos < 15:
                    a(f"s_cmp_eq_u32 s{sIT}, {p.twpos}\ns_cbranch_scc0 L_nv{tag}")
                    wo_touch(a, p)
                    a(f"L_nv{tag}:")
            elif tailblk: pass
            elif par == 0 and p.twpos < 15:
                a(f"s_cmp_eq_u32 s{sIT}, {p.twpos}\ns_cbranch_scc0 L_nt{tag}")
                if p.tsplit >= 0:
                    wo_touch_part(a, p, 0)
                else: wo_touch(a, p)
                a(f"L_nt{tag}:")
            elif par == 1 and p.tw2 == 2:
                a(f"s_cmp_eq_u32 s{sIT}, {p.twpos}\ns_cbranch_scc0 L_nu{tag}")
                wo_touch(a, p, fl="")
                a(f"L_nu{tag}:")
        def top(a):
            if loader: kvbook(a)
            a("s_waitcnt lgkmcnt(0)")
            if loader and p.fc:
                out(f"""L_fc{par}:
                s_add_u32 s74, s{sIT}, {par}
                s_add_u32 s75, s74, s{sNONCE}
                v_mov_b32 v2, s75
                s_mov_b64 exec, 1
                global_store_dword v{vFL}, v2, s[82:83] sc1
                s_mov_b64 exec, -1
                s_mov_b32 s76, 0
                s_cmp_lt_u32 s74, {p.fc + 1}
                s_cbranch_scc1 L_fce{par}
                L_fcl{par}:""")
                for j in range(8): out(f"s_sub_u32 s{sPG+j}, s{sPG+j}, s{sNONCE}\ns_cmp_gt_u32 s{sPG+j}, 31\ns_cselect_b32 s{sPG+j}, 0, s{sPG+j}")
                for j in range(1, 8): out(f"s_min_u32 s{sPG}, s{sPG}, s{sPG+j}")
                out(f"""s_add_u32 s{sPG}, s{sPG}, {p.fc}
                s_cmp_ge_u32 s{sPG}, s74
                s_cbranch_scc1 L_fce{par}
                s_add_u32 s76, s76, 1
                s_cmp_ge_u32 s76, {p.fcs}
                s_cbranch_scc1 L_fce{par}
                s_load_dwordx8 s[{sPG}:{sPG+7}], s[82:83], s{sPA} glc
                s_waitcnt lgkmcnt(0)
                s_branch L_fcl{par}
                L_fce{par}:
                s_load_dwordx8 s[{sPG}:{sPG+7}], s[82:83], s{sPA} glc
                s_branch L_fcb{par}""")
            if not p.late:
                if loader and p.pace >= 0:
                    a(f"s_cmp_lt_i32 s{sIT}, s{sSW + par}\ns_cbranch_scc0 L_pc{par}")
                    if p.p6 or p.x6: a(f"s_waitcnt vmcnt({p.pw4})\ns_cmp_eq_u32 s{sIT}, 2\ns_cbranch_scc1 L_pc{par}")
                    a(f"s_waitcnt vmcnt({p.pw2})\nL_pc{par}:")
                if loader and p.px and p.dsw: a(f"s_sub_u32 s{sT2}, s{sIT}, 3\ns_cmp_ge_i32 s{sT2}, s{sSW + par}\ns_cbranch_scc0 L_pd{par}\ns_waitcnt vmcnt(16)\nL_pd{par}:")
                if loader: a(f"s_waitcnt vmcnt({16*(p.kvd - 2)})")
                a("s_barrier")
                if p.aprof: a(f"s_add_u32 s98, s{sIT}, {par - (2 if p.px else 0)}\ns_mov_b32 s99, m0\ns_mov_b32 m0, s98\nv_writelane_b32 v31, s96, m0\ns_memrealtime s[96:97]\ns_mov_b32 m0, s99")
                hooks(a)
        def mid(a):
            if loader and p.pace >= 0:
                a(f"s_cmp_lt_i32 s{sIT}, s{sSW + par}\ns_cbranch_scc0 L_pc{par}\ns_waitcnt vmcnt({p.pw2})")
                if p.pw3 >= 0: a(f"s_bitcmp1_b32 s2, {p.pbit}\ns_cbranch_scc0 L_pc{par}\ns_waitcnt vmcnt({p.pw3})")
                if p.st0 >= 0 and par == 0: a(f"s_cmp_eq_u32 s{sIT}, 0\ns_cbranch_scc0 L_pc{par}\ns_bitcmp1_b32 s2, {p.pbit}\ns_cbranch_scc0 L_pc{par}\ns_waitcnt vmcnt({p.st0})")
                a(f"L_pc{par}:")
            if loader: a(f"s_waitcnt vmcnt({16*(dist - 1)})")
            a("s_barrier")
            if p.aprof: a(f"s_add_u32 s98, s{sIT}, {par}\ns_mov_b32 s99, m0\ns_mov_b32 m0, s98\nv_writelane_b32 v31, s96, m0\ns_memrealtime s[96:97]\ns_mov_b32 m0, s99")
            hooks(a)
        if peeled:
            assert p.late and not p.fc
            def top0(a):
                if loader: kvbook(a)
                a("s_waitcnt lgkmcnt(0)")
            def mid0(a):
                if loader: a(f"s_waitcnt vmcnt({p.pw2 if p.pace >= 1 else 16*(dist - 1)})")
                a("s_barrier")
                if p.aprof: a("s_memrealtime s[96:97]")
            def ins(a, t):
                for u in later:
                    if u[0] == t: conv(a, *u)
            block(a, p, T, 0, loader, top0, mid0, ins)
            continue
        block(a, p, T, par, loader, top, mid)
        hk[par] = hooks
    a(f"s_xor_b32 s{sHI}, s{sHI}, 0x10000\ns_add_u32 s{sIT}, s{sIT}, 2\ns_cmp_lt_u32 s{sIT}, {14 if p.l14 else 16}\ns_cbranch_scc1 L_a{tag}")
    if p.l14:
        assert p.px
        pr = lambda k: f"\nv_writelane_b32 v31, s96, {k}\ns_memrealtime s[96:97]" if p.aprof else ""
        def mid14(a):
            a(("s_waitcnt vmcnt(34)\n" if loader else "") + "s_barrier" + pr(12))
            if not loader and p.tws:
                for j, o in enumerate((0, 8192, 10240)):
                    if p.tws.split(",")[j] == "20": a(f"s_add_u32 s{sT}, s{sTW}, {o}\ns_nop 0\nbuffer_load_dword v{vDUM}, v{vTCH}, s[{sWO}:{sWO+3}], s{sT} offen {p.twfl}")
        block(a, p, T, 0, loader, lambda a: (a("s_waitcnt lgkmcnt(0)"), hk[0](a, True)), mid14, nodma=True, lr=True)
        block(a, p, T, 1, loader, lambda a: (a("s_waitcnt lgkmcnt(0)\ns_barrier" + pr(13)), hk[1](a, True)), None, nodma=True, nord=True)
    S = vS[(2*T - 1) & 1]
    a("s_nop 0")
    for x in soft2(S, T-1): a(x)
    ls = A(); lanesum(ls, T, "v_add_f32")
    ls = [x.strip() for x in ls.l]
    per = -(-len(ls) // 8)
    weave(a, pv(S, aV[1], T-1), [ls[i*per:(i+1)*per] for i in range(8)])
    stamp(a, p, 3)
    a(f"L_e{tag}:")
    if not loader and p.twpos == 16: wo_touch(a, p)
    a(f"v_mov_b32 v6, v{vL}\nv_mov_b32 v7, v{vL}")
    for t in range(1, T): a(f"v_min_u32 v6, v6, v{vL+t}\nv_max_u32 v7, v7, v{vL+t}")
    a(f"""v_cmp_gt_u32 vcc, {(127-20) << 23:#x}, v6
    v_cmp_lt_u32 s[80:81], s{sNEG}, v7
    s_nop 1
    s_or_b64 vcc, vcc, s[80:81]
    {'s_mov_b64 vcc, -1' if p.force else ''}
    s_cbranch_vccz L_ok{tag}
    v_mov_b32 v6, {LFLAG}
    v_mov_b32 v7, 1
    ds_write_b32 v6, v7
    L_ok{tag}:""")
    for t in range(T): a(f"v_rcp_f32 v{vL+t}, v{vL+t}")
    a("s_nop 0")
    buf = 0
    for sp in range(2):
        for n, (t, s) in enumerate([(t, 2*sp + k) for t in range(T) for k in range(2)]):
            A0 = acc(t, 2*s)
            rp = (vL + t) & ~1
            sel = (vL + t) & 1
            for r in range(0, 8, 2): a(f"v_pk_mul_f32 {vr(A0+r, 2)}, {vr(A0+r, 2)}, {vr(rp, 2)} op_sel:[0,{sel}] op_sel_hi:[1,{sel}]")
            if sp == 0 or not p.defer: d = (8, 12, 80, 84)[buf & 3]; buf += 1
            else: d = KEEP[n]
            for r in range(4): a(f"v_cvt_pk_bf16_f32 v{d+r}, v{A0+2*r}, v{A0+2*r+1}")
            a(f"ds_write_b128 v{vOW}, {vr(d)} offset:{(s >> 1)*STG + (s & 1)*9216 + 1024*t}")
            if sp == 0 or not p.defer:
                for x in o_store(p, t, s, d): a(x)
            for r in range(0, 8, 2):
                if A0 + r < v2ACC + 84: a(f"v_pk_mov_b32 {vr(A0+r, 2)}, 0, 0")
    if not loader and p.twpos == 17: wo_touch(a, p)
    a(f"""s_mov_b32 s{gST}, 0
    s_mov_b32 s{gRI}, 0
    s_mov_b32 s{gC1}, {STG}
    s_mov_b32 s{gC2}, {-3*STG}
    s_mov_b32 s{gDL}, {STG}
    s_mov_b32 s{gM0}, {LDSOOB}
    s_mov_b32 m0, {LDSOOB}
    s_mov_b32 s{gSO}, {OOB}
    s_mov_b32 s{gDST}, s{gDL2}
    v_mov_b32 v1, {LFLAG}""")
    if True:
        flag_addr(a, 1, FA)
        CHK = 0x3cf
        a(f"""s_add_u32 s{gFP}, s82, s{sT}
        s_addc_u32 s{gFP+1}, s83, 0
        s_lshl_b32 s{sT}, s4, 2
        v_mov_b32 v{vPA}, s{sT}
        v_mov_b32 v{vNZ}, s{sNONCE}
        s_mov_b32 s{gOFF}, 0
        s_mov_b32 s{gCHK}, {CHK}
        s_cmp_eq_u32 s{sWAVE}, 0
        s_cselect_b32 s{gPOST}, {16 if p.defer else 8}, 0
        s_add_u32 s64, s{sOB}, 18432
        s_add_u32 s65, s{sOB}, 27648
        s_add_u32 s66, s{sOB}, 22528
        s_add_u32 s61, s{sOB}, 31744
        s_mov_b32 s{gMASK}, {7 if loader else CHK | CHK >> 1}
        s_mov_b64 s[{gF}:{gF+1}], 0""")
    a(f"s_waitcnt lgkmcnt(0)\ns_waitcnt vmcnt({4*T if p.exp & 512 else (0 if p.pa < 0 and p.defer else 2*T) + (3 if not loader and p.twpos == 17 else 0)})")
    a("s_branch L_gemm")
    a.l += out.l
    a(f"L_redo{tag}:")
    a(f"s_waitcnt vmcnt(0) lgkmcnt(0)\ns_barrier\nv_mov_b32 v6, {LFLAG}\nv_mov_b32 v7, 0\nds_write_b32 v6, v7")
    for r in list(range(vKA, vKA+4)) + list(range(vVA, vVA+8)): a(f"v_and_b32 v{r}, 0xffff, v{r}")
    for t in range(T): a(f"v_mov_b32 v{vL+t}, 0xff800000")
    for ps in range(2):
        a(f"s_mov_b32 s{sKS}, 0\nL_r{ps}{tag}:")
        if loader:
            emit(a, kv_tile_dma(p, sRB, sKS, (0, 1) if ps == 0 else (0, 1, 2, 3), plain=True), nop=False)
        a("s_waitcnt vmcnt(0)\ns_barrier")
        for x in frag_reads(0, 0)[:8 if ps == 0 else 24]: a(x)
        a("s_waitcnt lgkmcnt(0)\ns_barrier")
        for t in range(T):
            S = vS[0]
            for x in qk(S, aK[0], t, "0" if ps == 0 else vr(vNM + 4*t)): a(x)
            a("s_nop 7")
            if ps == 0:
                for j in range(0, 8, 2): a(f"v_max3_f32 v{vL+t}, v{vL+t}, v{S+j}, v{S+j+1}")
            else:
                for j in range(8): a(f"v_exp_f32 v{S+j}, v{S+j}")
                for x in soft2(S, t) + pv(S, aV[0], t): a(x)
        a(f"s_add_u32 s{sKS}, s{sKS}, 8192\ns_cmp_lt_u32 s{sKS}, 131072\ns_cbranch_scc1 L_r{ps}{tag}")
        if ps == 0:
            lanesum(a, T, "v_max_f32")
            for t in range(T):
                for r in range(4): a(f"v_sub_f32 v{vNM + 4*t + r}, 0, v{vL+t}")
                a(f"v_mov_b32 v{vL+t}, 0")
            for r in range(32 * T): a(f"v_mov_b32 v{vACC+r}, 0")
    a("s_barrier")
    if loader:
        for st in range(4): g_stage_now(a, p.wofl, st)
    lanesum(a, T, "v_add_f32")
    a(f"s_mov_b32 s{gREDO}, 1\ns_branch L_e{tag}")

def g_reads(par, off):
    A_, B_ = a2A[par], a2B[par]
    rd = []
    for nt in range(3):
        reg, o = (v2A, 32 * nt) if nt < 2 else (v2A + 1, 0)
        rd.append(f"ds_read_b64_tr_b16 {ar(A_ + 4*nt, 2)}, v{reg} offset:{off + o}")
        rd.append(f"ds_read_b64_tr_b16 {ar(A_ + 4*nt + 2, 2)}, v{reg} offset:{off + o + 4608}")
    for u in range(9):
        reg, o = (v2B, 1024 * u) if u < 3 else (v2B + 1 + (u - 3) // 2, 1024 * ((u - 3) & 1))
        rd.append(f"ds_read_b128 {ar(B_ + 4*u)}, v{reg} offset:{off + o}" if not (EXP & 256 and u >= 6) else "s_nop 0")
    return rd
def g_mf(par, n3=3):
    return [f"{MF} {vr(acc2(nt, u))}, {ar(a2A[par] + 4*nt)}, {ar(a2B[par] + 4*u)}, {vr(acc2(nt, u))}" for u in range(9) for nt in range(3 if u < n3 else 2)]

def flag_addr(a, hop, base):
    if hop == 1: a(f"s_lshr_b32 s{sT}, s2, 5\ns_lshl_b32 s{sT}, s{sT}, 3\ns_add_u32 s{sT}, s{sT}, s3")
    else: a(f"s_lshr_b32 s{sT}, s2, 2")
    a(f"s_lshl_b32 s{sT}, s{sT}, {8 if hop == 1 else 7}\ns_add_u32 s{sT}, s{sT}, {base}")
def poll_issue(a):
    a(f"s_load_dwordx4 s[{gF}:{gF+3}], s[82:83], s{sT} glc")
def poll(a, tag, hop, base, issued=False, lim=SPIN, fail=None):
    flag_addr(a, hop, base)
    a(f"s_mov_b32 s{sT2}, 0")
    if issued: a(f"s_branch L_pc{tag}")
    a(f"L_p{tag}:")
    poll_issue(a)
    a(f"""L_pc{tag}:
    s_waitcnt lgkmcnt(0)
    s_xor_b32 s{gF}, s{gF}, s{sNONCE}
    s_xor_b32 s{gF+1}, s{gF+1}, s{sNONCE}
    s_xor_b32 s{gF+2}, s{gF+2}, s{sNONCE}
    s_xor_b32 s{gF+3}, s{gF+3}, s{sNONCE}
    s_or_b64 s[{gF}:{gF+1}], s[{gF}:{gF+1}], s[{gF+2}:{gF+3}]
    s_cbranch_scc0 L_pd{tag}
    s_add_u32 s{sT2}, s{sT2}, 1
    s_cmp_lt_u32 s{sT2}, {lim}
    s_cbranch_scc1 L_p{tag}
    {f"s_cmp_eq_u32 {lim}, 0" if fail else ""}
    {f"s_cbranch_scc1 {fail}" if fail else ""}
    L_pd{tag}:""")
def vpoll(a, tag, hop, base):
    flag_addr(a, hop, base)
    a(f"""v_and_b32 v1, 3, v0
    v_lshl_add_u32 v1, v1, 2, s{sT}
    s_mov_b32 s{sT}, 0
    L_p{tag}:
    global_load_dword v2, v1, s[82:83] sc1
    s_add_u32 s{sT}, s{sT}, 1
    s_waitcnt vmcnt(0)
    v_cmp_ne_u32 vcc, s{sNONCE}, v2
    s_cmp_lt_u32 s{sT}, {SPIN}
    s_cbranch_vccz L_pd{tag}
    s_cbranch_scc1 L_p{tag}
    L_pd{tag}:""")
def post(a, hop, base):
    flag_addr(a, hop, base)
    if hop == 1: a(f"s_lshl_b32 s{sT2}, s4, 2")
    else: a(f"s_and_b32 s{sT2}, s2, 3\ns_lshl_b32 s{sT2}, s{sT2}, 2")
    a(f"""s_add_u32 s{sT}, s{sT}, s{sT2}
    v_mov_b32 v1, s{sT}
    v_mov_b32 v2, s{sNONCE}
    s_mov_b64 exec, 1
    global_store_dword v1, v2, s[82:83] sc1
    s_mov_b64 exec, -1""")

gRET = 54
OSO = {(2, 0): 64, (3, 0): 65, (2, 1): 66, (3, 1): 61}
PSETUP = f"""s_and_b32 s{sT}, s3, 3
s_lshl_b32 s60, s{sT}, 4
s_lshr_b32 s61, s3, 2
s_lshl_b32 s61, s61, 3
s_add_u32 s61, s61, s5
s_add_u32 s60, s60, s61
s_lshl_b32 s60, s60, 2
s_add_u32 s60, s60, s4
s_mul_i32 s60, s60, {PBLK}
s_add_u32 s{sW}, s82, {P_OFF}
s_addc_u32 s{sW+1}, s83, 0
s_mov_b32 s{sW+2}, {256*PBLK}
s_mul_i32 s62, s{sWAVE}, 9216
s_add_u32 s62, s62, s60
s_lshl_b32 s63, s{sWAVE}, 1
s_cmp_eq_u32 s{sWAVE}, 0
s_cselect_b32 s{gQ1}, 3, 0
s_cmp_lt_u32 s{sWAVE}, 2
s_cselect_b32 s{gQ2}, 5, 2
s_cmp_lt_u32 s{sWAVE}, 3
s_cselect_b32 s{gQ3}, 7, 4""".split("\n")
def gemm_stage(a, p, role, un, stores, pub=False, start=0, d0=True, d1=True, hook=True, vm=None, last=False, extra=()):
    fl = p.wofl if role == "w" else p.olfl
    d = g_dma(fl)
    n3 = 2 if role == "o" and p.dd else 3
    n = 18 + n3
    sto = lambda n, q: [It(stores[n], q, q)] if n < len(stores) else []
    a("s_waitcnt lgkmcnt(6)")
    r = g_reads(1, 9216)
    upd = [f"v_add_u32 v{x}, s{gDL}, v{x}" for x in (v2A, v2A + 1, v2B, v2B + 1, v2B + 2, v2B + 3)]
    book0 = [f"s_add_u32 s{gRI}, s{gRI}, 1", f"s_and_b32 s{gRI}, s{gRI}, 3", f"s_cmp_eq_u32 s{gRI}, 3", f"s_cselect_b32 s{gDL}, s{gC2}, s{gC1}"]
    book2 = [f"s_and_b32 s{gSRC}, s{gTAB}, 15", f"s_lshr_b64 s[{gTAB}:{gTAB+1}], s[{gTAB}:{gTAB+1}], 4", f"s_add_u32 s{gSRC}, s{gSRC}, s{gP4}",
             f"s_and_b32 s{gSRC}, s{gSRC}, 15", f"s_mul_i32 s{gSRC}, s{gSRC}, s{gSTR}", f"s_add_u32 s{gSRC}, s{gSRC}, s{gLO}"]
    book1 = book2 + [f"s_cmp_ge_u32 s{gST}, 12", f"s_cselect_b32 s{gM0}, {LDSOOB}, s{gDST}", f"s_cselect_b32 s{gSO}, {OOB}, s{gSRC}",
             f"s_add_u32 s{gDST}, s{gDST}, s{gDL}"] + book0 + ([] if un else [f"s_bitcmp1_b32 s{gMASK}, s{gST}"])
    rp = [0, 0, 1, 1, 2, 2, 3, 5, 6, 8, 9, 11, 12, 14, 15]
    dm = flat_dma(d[3:], [4, 7, 10, 13, 16, 19])
    k = next(i for i, x in enumerate(dm) if x.k == "M" and x.lo == 7)
    k2 = next(i for i, x in enumerate(dm) if x.k == "M" and x.lo == 19)
    dm = dm[:k] + sto(0, 5 if role == "o" else 6) + dm[k:k2] + sto(1, 17 if role == "o" else 18) + dm[k2:]
    if not d0: dm = [x for x in dm if x.t.startswith("buffer_store")]
    flo = [It(x, q, q) for x, q in zip(r[:9], rp)] + [It("s_waitcnt lgkmcnt(9)", 7, 8) if n3 == 3 else It("s_waitcnt lgkmcnt(8)", 6, 6)] + [It(x, q, q) for x, q in zip(r[9:], rp[9:])] + \
          dm + sto(3, n - 1) + [It(x, 0, n - 1) for x in upd]
    flo[9].W = {"x"}; flo[9].R = set()
    if n3 == 2: flo[8], flo[9] = flo[9], flo[8]
    for it in flo[7 + n3:16]: it.R = it.R | {"x"}
    gaps, over = schedule(n, [], flo)
    assert any("lgkmcnt" in x for g in gaps[6:6 + n3] for x in g)
    if VERB: print("gemm step0 over", over, file=sys.stderr)
    weave(a, g_mf(0, n3), gaps)
    mf = g_mf(1, n3)
    a("s_waitcnt lgkmcnt(6)")
    if vm is not None or last: book1 = book0
    gaps, over = schedule(6, [], [It(x, 0, 5) for x in book1])
    weave(a, mf[:6], gaps)
    if pub:
        a(f"s_waitcnt vmcnt({sum(1 for x in a.l[start:] if x.strip().startswith('buffer_'))})")
    if vm is not None: a(f"s_waitcnt vmcnt({vm})")
    if last: a("s_waitcnt lgkmcnt(0)\ns_barrier")
    elif un: a(f"s_call_b64 s[{gRET}:{gRET+1}], L_ho" if role == "o" and hook else "s_waitcnt lgkmcnt(0)\ns_barrier")
    if pub and role == "o": a(f"s_lshr_b32 exec_lo, s{gPOST}, 4\ns_mov_b32 exec_hi, 0\nglobal_store_dword v{vPA}, v{vNZ}, s[{gFP}:{gFP+1}] sc1\ns_mov_b64 exec, -1")
    if un: pass
    elif role == "o": a(f"s_cbranch_scc1 L_ho\ns_waitcnt lgkmcnt(0)\ns_waitcnt vmcnt(18)\ns_barrier\nL_hc{role}:")
    elif p.defer: a("s_waitcnt lgkmcnt(0)\ns_waitcnt vmcnt(18)\ns_barrier")
    else: a(f"s_waitcnt lgkmcnt(0)\ns_cbranch_scc1 L_hw\ns_waitcnt vmcnt(18)\nL_hw:\ns_barrier\nL_hc{role}:")
    if p.gprof: a(f"s_mov_b32 m0, s{gST}\nv_writelane_b32 v31, s98, m0\n{'s_memtime' if p.cyc else 's_memrealtime'} s[98:99]")
    r = g_reads(0, 0)
    rp = [0, 0, 1, 1, 2, 2, 3, 4, 5, 7, 8, 10, 11, 13, 14] if n3 == 3 else [0, 0, 1, 1, 2, 2, 3, 4, 5, 7, 8, 10, 11, 13, 13]
    if last: r = []
    gaps, over = schedule(n - 6, [], [It(x, 0, n - 7) for x in extra] + [It(x, q, q) for x, q in zip(r, rp)] + sto(2, 3 if role == "o" else 4) + (flat_dma(d[:3], [6, 9, 12]) if d1 else []) +
                          ([] if last else [It(f"s_add_u32 s{gST}, s{gST}, 1", 7, n - 7)]) + ([] if un else [It(f"s_cmp_lt_u32 s{gST}, {12 if p.tail else 16}", 7, n - 7)]))
    if VERB: print("gemm step1 over", over, file=sys.stderr)
    weave(a, mf[6:], gaps)

def gemm_loop(a, out, p, role):
    fl = p.wofl if role == "w" else p.olfl
    a(f"L_gs{role}:")
    if p.defer:
        T = 5 if role == "o" else 4
        st = [f"buffer_store_dwordx4 {vr(KEEP[n])}, v{vST}, s[{sO}:{sO+3}], s{OSO[(s, int(t == 4))]} offen offset:{1024*(t & 3)} {p.ofl}"
              for n, (t, s) in enumerate([(t, 2 + k) for t in range(T) for k in range(2)])]
        cuts = [0, 4, 7, 10] if T == 5 else [0, 3, 6, 8]
        start = len(a.l)
        for i in range(3):
            o = role == "o"
            gemm_stage(a, p, role, True, st[cuts[i]:cuts[i+1]], p.pa == i, start, d0=not o and i > 0, d1=not o or i == 2, hook=i == 2)
            if o and i == 1:
                j = max(j for j, x in enumerate(a.l) if x.strip() == "s_barrier")
                a.l.insert(j + 1, f"  s_load_dwordx4 s[{gF}:{gF+3}], s[{gFP}:{gFP+1}], s{gOFF} glc")
    elif p.nod:
        if role == "o":
            gemm_stage(a, p, role, True, [], d0=False, d1=False, hook=False)
            gemm_stage(a, p, role, True, [], d0=False, d1=False, hook=False)
            i = max(j for j, x in enumerate(a.l) if x.strip() == "s_barrier")
            a.l.insert(i + 1, f"  s_load_dwordx4 s[{gF}:{gF+3}], s[{gFP}:{gFP+1}], s{gOFF} glc")
            gemm_stage(a, p, role, True, [], d0=False)
        else: gemm_stage(a, p, role, True, [], d0=False)
    if role == "o": a(f"s_getpc_b64 s[{gRET}:{gRET+1}]\nL_gp:\ns_add_u32 s{gRET}, s{gRET}, L_hco-L_gp\ns_addc_u32 s{gRET+1}, s{gRET+1}, 0")
    align(a, p)
    a(f"L_g{role}:")
    gemm_stage(a, p, role, False, [])
    a(f"s_cbranch_scc1 L_g{role}")
    if p.tail:
        gemm_stage(a, p, role, True, [], d1=False, hook=False, vm=18)
        gemm_stage(a, p, role, True, [], d0=False, d1=False, hook=False, vm=9)
        gemm_stage(a, p, role, True, [], d0=False, d1=False, hook=False, vm=0)
        gemm_stage(a, p, role, True, [], d0=False, d1=False, hook=False, last=True, extra=PSETUP)
    if role == "w": return
    out(f"""L_ho:
    s_waitcnt lgkmcnt(0)
    s_bitcmp1_b32 s{gCHK}, s{gST}
    s_cbranch_scc0 L_hx
    s_mov_b32 s{sT2}, 0
    L_hk:
    s_xor_b64 s[{gF}:{gF+1}], s[{gF}:{gF+1}], s[{gNN}:{gNN+1}]
    s_xor_b64 s[{gF+2}:{gF+3}], s[{gF+2}:{gF+3}], s[{gNN}:{gNN+1}]
    s_or_b64 s[{gF}:{gF+1}], s[{gF}:{gF+1}], s[{gF+2}:{gF+3}]
    s_cbranch_scc0 L_hr
    s_bitcmp1_b32 {p.spm:#x}, s{gST}
    s_cbranch_scc1 L_hs
    s_mov_b32 s{gM0}, {LDSOOB}
    s_mov_b32 s{gSO}, {OOB}
    L_hx:
    s_cmp_lt_u32 s{gST}, 3
    s_cbranch_scc1 L_hn
    s_waitcnt vmcnt(18)
    L_hn:
    s_barrier
    s_lshr_b32 s{sT}, s{gCHK}, 1
    s_bitcmp1_b32 s{sT}, s{gST}
    s_cbranch_scc0 L_hp
    s_load_dwordx4 s[{gF}:{gF+3}], s[{gFP}:{gFP+1}], s{gOFF} glc
    L_hp:
    {f"s_cmp_eq_u32 s{gST}, {p.tsplit}" if p.tsplit >= 0 else ""}
    {"s_cbranch_scc1 L_ht" if p.tsplit >= 0 else ""}
    L_hq:
    s_bitcmp1_b32 s{gPOST}, s{gST}
    s_cbranch_scc0 L_hz
    s_mov_b64 exec, 1
    global_store_dword v{vPA}, v{vNZ}, s[{gFP}:{gFP+1}] offset:128 sc1
    s_mov_b64 exec, -1
    L_hz:
    s_setpc_b64 s[{gRET}:{gRET+1}]
    L_hs:
    s_add_u32 s{sT2}, s{sT2}, 1
    s_cmp_ge_u32 s{sT2}, {SPIN}
    s_cbranch_scc1 L_hr
    s_load_dwordx4 s[{gF}:{gF+3}], s[{gFP}:{gFP+1}], s{gOFF} glc
    s_waitcnt lgkmcnt(0)
    s_branch L_hk
    L_hr:
    s_mov_b32 s44, s{gM0}
    s_mov_b32 s45, s{gSO}
    s_cmp_eq_u32 s{gOFF}, 0
    s_cbranch_scc0 L_hr1""")
    for ph, lo in enumerate((0, 6)):
        out(f"L_hr{ph}:")
        if ph == 0 and p.pst < 10: stamp(out, p, 5)
        out(f"s_movk_i32 s{gOFF}, 128\ns_and_b32 s{gCHK}, s{gCHK}, {0x3c0 if ph == 0 else 0}\ns_mov_b32 s{gMASK}, {(0x3ff if p.defer else 0x3ef) if ph == 0 else 0}")
        for j in range(3):
            out(f"s_cmp_gt_u32 s{gST}, {lo + j}\ns_cbranch_scc0 L_hy")
            g_stage_now(out, fl, lo + 4 + j)
        if ph == 0: out("s_branch L_hy")
    out(f"L_hy:\ns_mov_b32 s{gM0}, s44\ns_mov_b32 s{gSO}, s45\ns_branch L_hx")
    if p.tsplit >= 0:
        out("L_ht:")
        wo_touch_part(out, p, 1)
        out("s_branch L_hq")

def back(a, p):
    out = A()
    a(f"""L_gemm:
    s_barrier""")
    stamp(a, p, 4)
    a("ds_read_b32 v2, v1")
    rd0 = g_reads(0, 0)
    for x in rd0[:12]: a(x)
    a(f"""s_waitcnt lgkmcnt(12)
    v_readfirstlane_b32 s{sT}, v2
    {rd0[12]}
    {rd0[13]}
    {rd0[14]}
    s_andn2_b32 s{sT}, s{sT}, s{gREDO}
    s_cbranch_scc1 L_redo
    s_mov_b32 s{gNN}, s{sNONCE}
    s_mov_b32 s{gNN+1}, s{sNONCE}
    s_bitcmp1_b32 s{sWAVE}, 0
    s_cbranch_scc1 L_gsw
""")
    if p.pa < 0: a(f"""s_lshr_b32 exec_lo, s{gPOST}, {4 if p.defer else 3}
    s_mov_b32 exec_hi, 0
    global_store_dword v{vPA}, v{vNZ}, s[{gFP}:{gFP+1}] sc1
    s_mov_b64 exec, -1""")
    if p.twpos == 18: wo_touch(a, p)
    o_touch(a, p, 0)
    out(f"""L_redo:
    s_bitcmp1_b32 s{sWAVE}, 0
    s_cbranch_scc1 L_redos
    s_branch L_redob""")
    gemm_loop(a, out, p, "o")
    a("s_branch L_ge")
    gemm_loop(a, out, p, "w")
    a("L_ge:")
    stamp(a, p, 6)
    if not p.tail:
        for x in PSETUP: a(x)
    a("""v_and_b32 v2, 63, v0\nv_lshlrev_b32 v3, 4, v2\nv_lshlrev_b32 v4, 3, v2""")
    qs = [63, 63, 63, gQ1, gQ1, gQ2, gQ2, gQ3, gQ3]
    qo = [0, 1, 2, 0, 1, 0, 1, 0, 1]
    a(f"s_and_b32 s{sT}, s3, 3\ns_cmp_eq_u32 s{sT}, s{sWAVE}\ns_cbranch_scc1 L_own")
    for own in range(2):
        if own: a(f"s_branch L_pe\nL_own:")
        for u in range(9):
            d = 8 + 4 * (u & 3)
            A0, B0 = acc2(0, u), acc2(1, u)
            a(f"v_cvt_pk_bf16_f32 v{d}, v{A0}, v{A0+1}\nv_cvt_pk_bf16_f32 v{d+1}, v{A0+2}, v{A0+3}\nv_cvt_pk_bf16_f32 v{d+2}, v{B0}, v{B0+1}\nv_cvt_pk_bf16_f32 v{d+3}, v{B0+2}, v{B0+3}")
            if own:
                if qo[u] == 0: a(f"s_lshl_b32 s{sT}, s{qs[u]}, 10\nv_add_u32 v5, s{sT}, v3")
                a(f"ds_write_b128 v5, {vr(d)} offset:{PL + 1024*qo[u]}")
            else:
                a(f"s_lshl_b32 s{sT}, s{qs[u]}, 10\ns_add_u32 s{sT}, s{sT}, s62")
                a(f"buffer_store_dwordx4 {vr(d)}, v3, s[{sW}:{sW+3}], s{sT} offen offset:{1024*qo[u]} {p.pfl}")
        if not own: a(f"s_lshl_b32 s{sT}, s63, 9\ns_add_u32 s{sT}, s{sT}, s60\ns_add_u32 s{sT}, s{sT}, 36864")
        for u in range(3):
            d = 24 + 2 * u
            A0 = acc2(2, u)
            if u == 2 and not own: a(f"s_cmp_eq_u32 s{sWAVE}, 3\ns_cbranch_scc0 L_pe")
            a(f"v_cvt_pk_bf16_f32 v{d}, v{A0}, v{A0+1}\nv_cvt_pk_bf16_f32 v{d+1}, v{A0+2}, v{A0+3}")
            if own: a(f"ds_write_b64 v4, {vr(d, 2)} offset:{PL + 9216 + 512*u}")
            else: a(f"buffer_store_dwordx2 {vr(d, 2)}, v4, s[{sW}:{sW+3}], s{sT} offen offset:{512*u} {p.pfl}")
    a("L_pe:")
    if p.pst == 10: stamp(a, p, 5)
    a("s_load_dwordx2 s[68:69], s[0:1], 80")
    a(f"""s_and_b32 s64, s3, 3
    s_lshl_b32 s65, s61, 2
    s_add_u32 s65, s65, s4
    s_mul_i32 s65, s65, {PBLK}
    s_mul_i32 s66, s64, 9216
    s_add_u32 s66, s66, s65
    s_lshl_b32 s{sT}, s{sWAVE}, 10
    s_add_u32 s66, s66, s{sT}
    s_lshl_b32 s67, s64, 1
    s_add_u32 s67, s67, s{sWAVE}
    s_sub_u32 s67, s67, 1
    s_lshl_b32 s72, s67, 9
    s_add_u32 s72, s72, s65
    s_add_u32 s72, s72, 36864
    s_lshr_b32 s73, s3, 2
    s_mul_i32 s73, s73, 1152
    s_mul_i32 s{sT}, s4, 288
    s_add_u32 s73, s73, s{sT}
    s_mul_i32 s{sT}, s5, {144*2304}
    s_add_u32 s73, s73, s{sT}
    s_mul_i32 s74, s67, {16*2304}
    s_add_u32 s74, s74, s73
    s_add_u32 s74, s74, 256
    s_lshl_b32 s{sT}, s64, 6
    s_add_u32 s73, s73, s{sT}
    s_mul_i32 s{sT}, s{sWAVE}, {16*2304}
    s_add_u32 s73, s73, s{sT}
    s_cmp_eq_u32 s{sWAVE}, 3
    s_cselect_b32 s75, 8, s67
    s_cmp_eq_u32 s75, s67
    s_cselect_b32 s72, s72, {OOB}
    s_cselect_b32 s74, s74, {OOB}
    v_and_b32 v5, 15, v2
    s_movk_i32 s{sT}, 2304
    v_lshrrev_b32 v6, 4, v2
    v_lshlrev_b32 v6, 3, v6
    v_mad_u32_u24 v7, v5, s{sT}, v6
    s_mov_b32 s70, {8*144*1152*2}
    s_mov_b32 s71, 0x20000
    s_add_u32 s76, s64, 1
    s_add_u32 s77, s64, 2
    s_add_u32 s78, s64, 3
    s_and_b32 s76, s76, 3
    s_and_b32 s77, s77, 3
    s_and_b32 s78, s78, 3
    s_mul_i32 s76, s76, {64*PBLK}
    s_mul_i32 s77, s77, {64*PBLK}
    s_mul_i32 s78, s78, {64*PBLK}
    v_add_u32 v9, 4096, v3
    s_lshl_b32 s{sT}, s{sWAVE}, 10
    v_add_u32 v10, s{sT}, v3
    s_lshl_b32 s{sT}, s{sWAVE}, 9
    v_add_u32 v11, s{sT}, v4
    s_waitcnt vmcnt(0) lgkmcnt(0)
    s_barrier
    s_cmp_eq_u32 s{sWAVE}, 0
    s_cbranch_scc0 L_n1""")
    if p.pst == 11: stamp(a, p, 5)
    post(a, 2, F2)
    a(f"ds_read_b128 v[128:131], v3 offset:{PL + 8192}\ns_branch L_n2\nL_n1:\nds_read_b64 v[128:129], v11 offset:{PL + 9216 - 512}\nL_n2:")
    a(f"ds_read_b128 v[96:99], v10 offset:{PL}\nds_read_b128 v[112:115], v10 offset:{PL + 4096}")
    if p.dyn:
        own = [96, 97, 98, 99, 112, 113, 114, 115, 128, 129, 130, 131]
        flag_addr(a, 2, F2)
        a(f"""v_and_b32 v1, 3, v0
        v_lshl_add_u32 v1, v1, 2, s{sT}
        s_add_u32 s75, s66, 8192
        s_cmp_eq_u32 s{sWAVE}, 0
        s_cselect_b32 s75, s75, s72
        s_cselect_b64 vcc, -1, 0
        v_cndmask_b32 v8, v4, v3, vcc
        s_add_u32 s64, s64, 1
        s_mov_b32 s65, 7
        s_mov_b32 s{sT2}, 0
        global_load_dword v2, v1, s[82:83] sc1
        s_waitcnt lgkmcnt(0)""")
        for i, r in enumerate(own): a(f"v_lshlrev_b32 v{180+2*i}, 16, v{r}\nv_and_b32 v{181+2*i}, 0xffff0000, v{r}")
        a(f"""s_branch L_q2
        L_q1:
        global_load_dword v2, v1, s[82:83] sc1
        L_q2:
        s_add_u32 s{sT2}, s{sT2}, 1
        s_waitcnt vmcnt(0)
        v_cmp_eq_u32 vcc, s{sNONCE}, v2
        s_cmp_ge_u32 s{sT2}, {SPIN}
        s_cselect_b32 s67, -1, vcc_lo
        s_lshr_b32 s67, s67, s64
        s_and_b32 s67, s67, s65
        s_cbranch_scc0 L_q1""")
        for k in range(3):
            a(f"""s_bitcmp1_b32 s67, {k}
            s_cbranch_scc0 L_q3{k}
            s_add_u32 s{sT}, s66, s{76+k}
            s_add_u32 s60, s75, s{76+k}
            buffer_load_dwordx4 {vr(96 + 12*k)}, v3, s[{sW}:{sW+3}], s{sT} offen {p.plfl}
            buffer_load_dwordx4 {vr(100 + 12*k)}, v9, s[{sW}:{sW+3}], s{sT} offen {p.plfl}
            buffer_load_dwordx4 {vr(104 + 12*k)}, v8, s[{sW}:{sW+3}], s60 offen {p.plfl}
            L_q3{k}:""")
        a("s_andn2_b32 s65, s65, s67\ns_waitcnt vmcnt(0)")
        for k in range(3):
            a(f"s_bitcmp1_b32 s67, {k}\ns_cbranch_scc0 L_q4{k}")
            for i in range(12):
                r = 96 + 12*k + i; t = 80 + 2 * (i & 1)
                a(f"v_lshlrev_b32 v{t}, 16, v{r}\nv_and_b32 v{t+1}, 0xffff0000, v{r}\nv_pk_add_f32 {vr(180+2*i, 2)}, {vr(180+2*i, 2)}, {vr(t, 2)}")
            a(f"L_q4{k}:")
        a("s_cmp_eq_u32 s65, 0\ns_cbranch_scc0 L_q1")
        stamp(a, p, 7)
        for i in range(12):
            a(f"v_cvt_pk_bf16_f32 v{12+i}, v{180+2*i}, v{181+2*i}")
            if i in (3, 7):
                a(f"buffer_store_dwordx2 {vr(9+i, 2)}, v7, s[68:71], s73 offen {p.outfl}\nbuffer_store_dwordx2 {vr(11+i, 2)}, v7, s[68:71], s73 offen offset:32 {p.outfl}\ns_add_u32 s73, s73, {64*2304}")
        a(f"""s_cmp_eq_u32 s{sWAVE}, 0
        s_cselect_b32 s74, s73, s74
        s_cselect_b32 s73, s73, {OOB}
        s_nop 0
        buffer_store_dwordx2 v[20:21], v7, s[68:71], s74 offen {p.outfl}
        buffer_store_dwordx2 v[22:23], v7, s[68:71], s73 offen offset:32 {p.outfl}""")
    else:
        if p.vp2: vpoll(a, "2", 2, F2)
        else: poll(a, "2", 2, F2)
        stamp(a, p, 7)
        def red(src, stride, n, dst):
            for i in range(n):
                for k in range(4):
                    r = src + stride * k + i
                    if k == 0: a(f"v_lshlrev_b32 v80, 16, v{r}\nv_and_b32 v81, 0xffff0000, v{r}")
                    else: a(f"v_lshlrev_b32 v82, 16, v{r}\nv_and_b32 v83, 0xffff0000, v{r}\nv_pk_add_f32 v[80:81], v[80:81], v[82:83]")
                a(f"v_cvt_pk_bf16_f32 v{dst+i}, v80, v81")
        for u in range(2):
            for k in range(3):
                a(f"s_add_u32 s{sT}, s66, s{76+k}\nbuffer_load_dwordx4 {vr(100 + 16*u + 4*k)}, v{3 if u == 0 else 9}, s[{sW}:{sW+3}], s{sT} offen {p.plfl}")
        a(f"s_cmp_eq_u32 s{sWAVE}, 0\ns_cbranch_scc0 L_r3\ns_add_u32 s66, s66, 8192")
        for k in range(3):
            a(f"s_add_u32 s{sT}, s66, s{76+k}\nbuffer_load_dwordx4 {vr(132 + 4*k)}, v3, s[{sW}:{sW+3}], s{sT} offen {p.plfl}")
        a("s_branch L_r4\nL_r3:")
        for k in range(3):
            a(f"s_add_u32 s{sT}, s72, s{76+k}\nbuffer_load_dwordx2 {vr(132 + 4*k, 2)}, v4, s[{sW}:{sW+3}], s{sT} offen {p.plfl}")
        a("L_r4:\ns_waitcnt lgkmcnt(0)")
        for u in range(2):
            a(f"s_waitcnt vmcnt({6 - u})")
            if p.pst == 12 and u == 0: stamp(a, p, 5)
            red(96 + 16*u, 4, 4, 12 + 4*u)
            a(f"buffer_store_dwordx2 {vr(12+4*u, 2)}, v7, s[68:71], s73 offen {p.outfl}\nbuffer_store_dwordx2 {vr(14+4*u, 2)}, v7, s[68:71], s73 offen offset:32 {p.outfl}")
            a(f"s_add_u32 s73, s73, {64*2304}")
        a("s_waitcnt vmcnt(4)")
        if p.pst == 13: stamp(a, p, 5)
        a(f"s_cmp_eq_u32 s{sWAVE}, 0\ns_cbranch_scc0 L_r5")
        red(128, 4, 4, 20)
        a(f"buffer_store_dwordx2 v[20:21], v7, s[68:71], s73 offen {p.outfl}\nbuffer_store_dwordx2 v[22:23], v7, s[68:71], s73 offen offset:32 {p.outfl}\ns_branch L_r6\nL_r5:")
        red(128, 4, 2, 20)
        a(f"buffer_store_dwordx2 v[20:21], v7, s[68:71], s74 offen {p.outfl}\nL_r6:")
    if p.pst == 14: stamp(a, p, 5)
    if p.stamps:
        a("s_waitcnt vmcnt(0)")
        if not p.pst or p.pst >= 10: stamp(a, p, 8)
        stamp_store(a, p)
    a("L_end:\ns_endpgm")
    a.l += out.l

def kernel(p, K):
    a = A()
    a("s_cmp_ge_u32 s2, 256\ns_cbranch_scc1 L_end")
    if p.perm == 1: a("s_mul_i32 s2, s2, 37\ns_add_u32 s2, s2, 11\ns_and_b32 s2, s2, 255")
    if p.perm == 2: a("s_lshr_b32 s3, s2, 3\ns_and_b32 s2, s2, 7\ns_lshl_b32 s2, s2, 5\ns_or_b32 s2, s2, s3")
    if p.perm == 3: a("s_lshr_b32 s3, s2, 5\ns_and_b32 s2, s2, 31\ns_lshl_b32 s2, s2, 3\ns_or_b32 s2, s2, s3")
    stamp(a, p, 0)
    a(f"""
    s_load_dwordx8 s[52:59], s[0:1], 0
    s_load_dwordx8 s[60:67], s[0:1], 40
    s_load_dwordx2 s[82:83], s[0:1], 96
    s_load_dwordx2 s[94:95], s[0:1], 32
    s_load_dwordx2 s[96:97], s[0:1], 72
    s_load_dwordx2 s[98:99], s[0:1], 88
    v_lshrrev_b32 v1, 6, v0
    v_and_b32 v2, 63, v0
    v_readfirstlane_b32 s{sWAVE}, v1
    s_and_b32 s3, s2, 7
    s_lshr_b32 s4, s2, 3
    s_lshr_b32 s5, s4, 2
    s_and_b32 s4, s4, 3
    s_and_b32 s6, s3, 3
    s_lshl_b32 s6, s6, 3
    s_lshl_b32 s7, s4, 1
    s_add_u32 s6, s6, s7
    s_lshr_b32 s{sHL}, s{sWAVE}, 1
    s_add_u32 s7, s6, s{sHL}
    s_lshl_b32 s{sRB}, s{sHL}, 15
    """)
    if p.rotm == 0: a(f"s_lshr_b32 s{sROT}, s2, 2\ns_and_b32 s{sROT}, s{sROT}, 14\ns_add_u32 s{sROT}, s{sROT}, s{sHL}\ns_lshl_b32 s{sROT}, s{sROT}, 1")
    elif p.rotm == 1: a(f"s_lshr_b32 s{sROT}, s2, 2\ns_and_b32 s{sROT}, s{sROT}, 30\ns_add_u32 s{sROT}, s{sROT}, s{sHL}")
    elif p.rotm == 2: a(f"s_lshr_b32 s{sROT}, s2, 3\ns_lshl_b32 s{sT}, s{sHL}, 4\ns_add_u32 s{sROT}, s{sROT}, s{sT}")
    elif p.rotm == 3: a(f"s_lshl_b32 s{sROT}, s2, 1\ns_add_u32 s{sROT}, s{sROT}, s{sHL}\ns_mul_i32 s{sROT}, s{sROT}, 0x9e3779b1\ns_lshr_b32 s{sROT}, s{sROT}, 27")
    elif p.rotm == 4: a(f"s_lshr_b32 s{sROT}, s2, 2\ns_and_b32 s{sROT}, s{sROT}, 14\ns_add_u32 s{sROT}, s{sROT}, s{sHL}\ns_lshl_b32 s{sROT}, s{sROT}, 1\ns_bfe_u32 s{sT}, s2, 0x10006\ns_add_u32 s{sROT}, s{sROT}, s{sT}")
    a(f"""
    v_lshrrev_b32 v3, 4, v2
    v_and_b32 v4, 15, v2
    v_lshlrev_b32 v5, 1, v3
    v_xor_b32 v5, v5, v4
    v_lshlrev_b32 v5, 4, v5
    v_lshl_add_u32 v{vE}, v3, 8, v5
    v_xor_b32 v{vO_}, 128, v{vE}
    v_lshl_add_u32 v{vWE}, v3, 13, v5
    s_lshl_b32 s{sT}, s7, 8
    v_add_u32 v{vWE}, s{sT}, v{vWE}
    v_xor_b32 v{vWO}, 128, v{vWE}
    v_add_u32 v{vWO}, {8*8192 - 1024}, v{vWO}
    s_lshl_b32 s{sT}, s{sHL}, 2
    v_add_u32 v5, s{sT}, v3
    v_and_b32 v6, 7, v2
    v_xor_b32 v5, v5, v6
    v_lshlrev_b32 v5, 4, v5
    v_lshrrev_b32 v6, 3, v2
    s_lshl_b32 s{sT}, s{sHL}, 3
    v_add_u32 v6, s{sT}, v6
    s_movk_i32 s{sT}, 1152
    v_mad_u32_u24 v{vX}, v6, s{sT}, v5
    s_waitcnt lgkmcnt(0)
    s_cmp_ge_u32 s3, 4
    s_cselect_b32 s52, s60, s52
    s_cselect_b32 s53, s61, s53
    s_cselect_b32 s54, s62, s54
    s_cselect_b32 s55, s63, s55
    s_cselect_b32 s56, s64, s56
    s_cselect_b32 s57, s65, s57
    s_cselect_b32 s58, s66, s58
    s_cselect_b32 s59, s67, s59
    s_cselect_b32 s94, s96, s94
    s_cselect_b32 s95, s97, s95
    s_mul_i32 s{sT}, s5, 165888
    s_add_u32 s{sX}, s52, s{sT}
    s_addc_u32 s{sX+1}, s53, 0
    s_mov_b32 s{sX+2}, 165888
    s_mov_b32 s{sX+3}, 0x20000
    s_mov_b32 s{sW}, s58
    s_mov_b32 s{sW+1}, s59
    s_mov_b32 s{sW+2}, 4718592
    s_mov_b32 s{sW+3}, 0x20000
    s_and_b32 s76, s{sWAVE}, 1
    s_mul_i32 s{sXB}, s{sHL}, 24576
    s_add_u32 s{sXB}, s{sXB}, {WQB}
    s_mul_i32 s{sXS0}, s76, {5*18432}
    s_mul_i32 s{sXM0}, s76, {5*2048}
    s_lshl_b32 s{sT}, s{sHL}, 10
    s_add_u32 s{sXM0}, s{sXM0}, s{sT}
    s_add_u32 s{sXM0}, s{sXM0}, {XBUF}
    s_lshl_b32 s77, s76, 12
    s_add_u32 s77, s77, s{sXB}
    s_lshl_b32 s78, s76, 17
    """)
    def xload(c, a=a, T=None):
        if p.c0: a(f"s_mov_b32 s{sXS}, 0" if c == 0 else f"s_add_u32 s{sXS}, s{sKROT}, 1\ns_lshl_b32 s{sXS}, s{sXS}, 7")
        else: a(f"s_add_u32 s{sXS}, s{sKROT}, {c}\ns_sub_u32 s{sXM}, s{sXS}, 9\ns_cselect_b32 s{sXS}, s{sXS}, s{sXM}\ns_lshl_b32 s{sXS}, s{sXS}, 7")
        a(f"s_add_u32 s{sXM}, s{sXM0}, {18432*c}\ns_add_u32 s{sXS}, s{sXS0}, s{sXS}")
        if T: return emit(a, x_dma(p, T))
        g = x_dma(p, 5)
        emit(a, g[:4])
        a(f"s_cmp_eq_u32 s76, 1\ns_cbranch_scc1 L_x{c}")
        emit(a, g[4:])
        a(f"L_x{c}:")
    def wload(k, a=a):
        a(f"s_add_u32 s{sWM}, s77, {8192*k}\ns_add_u32 s{sWS2}, s{sWS}, {4*8192 - 2048}")
        emit(a, w_dma(p), nop=False)
        emit(a, [w_adv(p)], nop=False)
    a(f"s_mov_b32 s60, s54\ns_mov_b32 s61, s55")
    if p.krot: a(f"s_lshr_b32 s{sKROT}, s4, {p.ksh}\ns_mul_i32 s{sKROT}, s{sKROT}, {p.kc}\ns_andn2_b32 s{sT}, s5, {(1 << p.kbs) - 1}\ns_add_u32 s{sKROT}, s{sKROT}, s{sT}\n" + (f"s_and_b32 s{sKROT}, s{sKROT}, 7" if p.c0 else f"s_sub_u32 s{sT}, s{sKROT}, 9\ns_cselect_b32 s{sKROT}, s{sKROT}, s{sT}"))
    else: a(f"s_mov_b32 s{sKROT}, 0")
    if p.c0: a(f"s_mov_b32 s{sWS}, s78\ns_add_u32 s{sWEND}, s78, {576*8192}")
    else: a(f"s_lshl_b32 s{sWS}, s{sKROT}, 19\ns_add_u32 s{sWS}, s{sWS}, s78\ns_add_u32 s{sWEND}, s78, {576*8192}")
    if p.rotm == 9:
        a(f"s_lshl_b32 s{sT}, s2, 1\ns_add_u32 s{sT}, s{sT}, s{sHL}\ns_lshl_b32 s{sT}, s{sT}, 2\ns_add_u32 s{sT}, s{sT}, {220 << 20}\ns_load_dword s{sROT}, s[82:83], s{sT}\ns_waitcnt lgkmcnt(0)")
    if p.pst == 1: stamp(a, p, 8)
    xload(0); wload(0)
    if p.pst == 2: stamp(a, p, 8)
    if p.pw >= 0: a(f"s_waitcnt vmcnt({p.pw})")
    wload(1)
    a(f"""
    s_mul_i32 s{sS0}, s4, {p.stag}
    s_add_u32 s{sS0}, s{sS0}, {p.s0}
    s_lshl_b32 s{sT}, s5, 5
    s_add_u32 s{sT}, s{sT}, s7
    s_lshl_b32 s{sT2}, {'s3' if p.kvsame else f's{sT}'}, 17
    s_add_u32 s{sK}, s60, s{sT2}
    s_addc_u32 s{sK+1}, s61, 0
    s_mov_b32 s{sK+2}, 131072
    s_mov_b32 s{sK+3}, 0x20000
    s_add_u32 s{sV}, s56, s{sT2}
    s_addc_u32 s{sV+1}, s57, 0
    s_mov_b32 s{sV+2}, 131072
    s_mov_b32 s{sV+3}, 0x20000
    s_mov_b32 s{sO}, s82
    s_mov_b32 s{sO+1}, s83
    s_mov_b32 s{sO+2}, {O_BYTES}
    s_mov_b32 s{sO+3}, 0x20000
    s_lshr_b32 s{sT2}, s3, 2
    s_lshl_b32 s{sT2}, s{sT2}, 8
    s_add_u32 s{sT}, s{sT}, s{sT2}
    s_mul_i32 s{sOB}, s{sT}, {4*9216}
    s_mov_b32 s{sWO}, s94
    s_mov_b32 s{sWO+1}, s95
    s_mov_b32 s{sWO+2}, 4718592
    s_mov_b32 s{sWO+3}, 0x20000
    s_and_b32 s{sTW}, s3, 3
    s_lshl_b32 s{sTW}, s{sTW}, 5
    s_lshr_b32 s{sT}, s2, 3
    s_add_u32 s{sTW}, s{sTW}, s{sT}
    s_lshl_b32 s{sTW}, s{sTW}, 1
    s_add_u32 s{sTW}, s{sTW}, s{sHL}
    s_mul_i32 s{sTW}, s{sTW}, 18432
    s_cmp_eq_u32 s76, 1
    s_cselect_b32 s{sKV}, s{sV}, s{sK}
    s_cselect_b32 s{sKV+1}, s{sV+1}, s{sK+1}
    s_mov_b32 s{sKV+2}, 131072
    s_mov_b32 s{sKV+3}, 0x20000
    s_lshl_b32 s{sT2}, s76, 13
    s_add_u32 s{sT2}, s{sT2}, s{sRB}
    s_mov_b32 s6, s98
    s_mov_b32 s7, s99
    v_lshlrev_b32 v{vTCH}, 7, v2
    s_mov_b32 s{sIT}, -2
    """)
    def batch2(a, T):
        emit(a, kv_book(p), nop=False); emit(a, kv_dma(p), nop=False)
        xload(1, a, T)
        if p.c0: a(f"s_add_u32 s78, s78, {64*8192}\ns_lshl_b32 s{sWS}, s{sKROT}, 19\ns_add_u32 s{sWS}, s{sWS}, s78")
        a(f"s_add_u32 s{sWM}, s77, {8192*2}\ns_mov_b32 s{WSr[1]}, s{sWS}\ns_add_u32 s{WS2r[1]}, s{sWS}, {4*8192 - 2048}")
        emit(a, w_dma(p, 1)[:4 - p.wsh], nop=False)
        emit(a, [w_adv(p)], nop=False)
        a(f"s_mov_b32 s{sIT}, 0")
        emit(a, kv_book(p), nop=False)
        a(f"s_mov_b32 s{sWM}, s77\ns_add_u32 s{sWS2}, s{sWS}, {4*8192 - 2048}")
    if not p.early: batch2(a, None)
    p.batch2 = batch2
    a(f"s_cmp_eq_u32 s{sWAVE}, 0\ns_cbranch_scc0 L_nc")
    if p.touch_code:
        a(f"""s_getpc_b64 s[80:81]
        L_pc:
        s_sub_u32 s80, s80, L_pc-{K}
        s_subb_u32 s81, s81, 0
        s_lshr_b32 s{sT}, s2, 3
        s_and_b32 s{sT}, s{sT}, 15
        s_lshl_b32 s{sT}, s{sT}, 13
        v_add_u32 v8, s{sT}, v{vTCH}
        s_mov_b32 s{sT}, L_codeend-{K}-4
        v_min_u32 v8, s{sT}, v8
        global_load_dword v{vDUM}, v8, s[80:81]""")
    a(f"""v_mov_b32 v8, {LFLAG}
    v_mov_b32 v9, 0
    ds_write_b32 v8, v9
    s_cmp_lt_u32 s2, 8
    s_cbranch_scc0 L_nc
    s_memrealtime s[80:81]
    v_mov_b32 v11, 0
    s_waitcnt lgkmcnt(0)
    s_or_b32 s80, s80, 1
    v_mov_b32 v10, s80
    s_mov_b64 exec, 1
    global_atomic_cmpswap v9, v[10:11], s[6:7] sc1
    s_mov_b64 exec, -1
    L_nc:""")
    a(f"""
    v_and_b32 v5, 7, v4
    v_lshlrev_b32 v5, 1, v5
    v_xor_b32 v5, v5, v3
    v_lshlrev_b32 v5, 4, v5
    v_lshl_add_u32 v5, v4, 8, v5
    v_add_u32 v{vKA}, s{sRB}, v5
    v_xor_b32 v{vKA+1}, 64, v{vKA}
    v_xor_b32 v{vKA+2}, 128, v{vKA}
    v_xor_b32 v{vKA+3}, 192, v{vKA}
    v_bfe_u32 v5, v2, 2, 2
    v_and_b32 v6, 1, v3
    v_lshl_add_u32 v5, v6, 2, v5
    v_lshrrev_b32 v6, 1, v3
    v_lshl_add_u32 v6, v6, 4, v5
    v_lshlrev_b32 v5, 1, v5
    v_bfe_u32 v7, v2, 1, 1
    v_xor_b32 v5, v5, v7
    v_lshlrev_b32 v5, 4, v5
    v_and_b32 v7, 1, v2
    v_lshl_add_u32 v5, v7, 3, v5
    v_lshl_add_u32 v5, v6, 8, v5
    v_add_u32 v{vVA}, s{sXB}, v5
    s_mov_b32 s{sXB}, s77""")
    for dt in range(1, 8): a(f"v_xor_b32 v{vVA+dt}, {32*dt}, v{vVA}")
    a(f"""
    v_lshrrev_b32 v5, 1, v4
    v_xor_b32 v5, v5, v3
    v_lshlrev_b32 v5, 4, v5
    v_lshl_add_u32 v5, v4, 7, v5
    s_mul_i32 s79, s76, {4*2048}
    s_add_u32 s79, s79, {XBUF}
    v_add_u32 v{vXA}, s79, v5
    v_xor_b32 v{vXA+1}, 64, v{vXA}
    s_mul_i32 s79, s76, {5*1024}
    v_lshl_add_u32 v{vST}, v2, 4, s79
    s_mul_i32 s79, s{sHL}, {2*STG}
    v_add_u32 v{vOW}, s79, v{vST}
    s_mov_b32 s{sSC}, 0x3e0293ee
    s_mov_b32 s{sWSL}, 0
    s_mov_b32 s{sC}, 8192
    s_mov_b32 s{sNEG}, -16384
    s_mov_b32 s{sWD}, 8192
    s_mov_b32 s{sXD}, 18432
    """)
    a(f"s_movk_i32 s79, 3641\ns_mul_i32 s80, s76, 864")
    for j in range(9):
        a(f"""v_add_u32 v5, {64*j}, v2
        v_mul_u32_u24 v6, s79, v5
        v_lshrrev_b32 v6, 16, v6
        v_lshlrev_b32 v5, 4, v5
        v_mad_u32_u24 v5, v6, s80, v5
        v_subrev_u32 v{v2VO+j}, {1024*(j % 4)}, v5""")
    a(f"""
    v_lshrrev_b32 v5, 2, v2
    v_and_b32 v6, 3, v2
    v_lshlrev_b32 v6, 3, v6
    s_movk_i32 s79, 288
    v_mad_u32_u24 v5, v5, s79, v6
    v_add_u32 v{v2A+1}, {18432 + 256}, v5
    s_lshl_b32 s79, s{sWAVE}, 6
    s_add_u32 s79, s79, 18432
    v_add_u32 v{v2A}, s79, v5
    v_lshlrev_b32 v5, 4, v2
    s_lshl_b32 s79, s{sWAVE}, 11
    v_add_u32 v{v2B}, s79, v5
    s_cmp_eq_u32 s{sWAVE}, 0
    s_cselect_b32 s79, 3072, 0
    v_add_u32 v{v2B+1}, s79, v5
    s_cmp_lt_u32 s{sWAVE}, 2
    s_movk_i32 s79, 2048
    s_cselect_b32 s79, 5120, s79
    v_add_u32 v{v2B+2}, s79, v5
    s_cmp_lt_u32 s{sWAVE}, 3
    s_movk_i32 s79, 4096
    s_cselect_b32 s79, 7168, s79
    v_add_u32 v{v2B+3}, s79, v5
    """)
    if p.twq >= 0: a(f"s_mul_i32 s79, s4, {p.twstag}\ns_add_u32 s79, s79, {p.twq}")
    if p.kt: a(f"s_mul_i32 s80, s4, {p.ktst}\ns_lshl_b32 s79, {sum(1 << int(x.split(':')[0]) for x in p.kt.split(','))}, s80")
    a(f"""v_lshrrev_b32 v5, 2, v2
    v_and_b32 v6, 7, v5
    v_lshlrev_b32 v6, 1, v6
    v_bfe_u32 v7, v2, 1, 1
    v_xor_b32 v6, v6, v7
    v_lshlrev_b32 v6, 4, v6
    v_and_b32 v7, 1, v2
    v_lshl_add_u32 v6, v7, 3, v6
    v_lshl_add_u32 v6, v5, 8, v6
    s_add_u32 s80, s{sRB}, 8192
    v_add_u32 v{vVB}, s80, v6""")
    for dt in range(1, 8): a(f"v_xor_b32 v{vVB+dt}, {32*dt}, v{vVB}")
    if p.tsplit >= 0: wo_touch_setup(a)
    for r in range(0, 160, 2): a(f"v_pk_mov_b32 {vr(vACC+r, 2)}, 0, 0")
    if p.pst == 4: stamp(a, p, 8)
    a(f"s_bitcmp1_b32 s{sWAVE}, 0\ns_cbranch_scc1 L_small")
    wave_front(a, p, 5, False, "b")
    a("L_small:")
    wave_front(a, p, 4, True, "s")
    back(a, p)
    a("L_codeend:")
    return a.text()

def build(p):
    K = KNAME + "_kernel"
    hdr = open("cdna_kernels/" + KNAME + ".s.ref").read().split("; Override launch geometry")[0]
    doc = """; One workgroup per CU (256), two heads of one batch each; wave = (head, 5 or 4 query tiles of 16 rows).
;     left out only while every row sum stays inside [2^-20, 2^40]; otherwise the workgroup redoes this step with the true maxima.
"""
    return hdr + doc + header(["; @launch grid=(256,1,1) block=(256,1,1) lds=163840"]) + kstart(K) + kernel(p, K) + RODATA + kdesc(K, 512, 256)

if __name__ == "__main__":
    ap = argparse.ArgumentParser()
    ap.add_argument("out")
    ap.add_argument("opts", nargs="*")
    x = ap.parse_args()
    p = P()
    VERB = True
    for o in x.opts:
        k, v = o.split("=")
        cur = getattr(p, k)
        setattr(p, k, (v == "1") if isinstance(cur, bool) else int(v) if isinstance(cur, int) else v.replace("+", " "))
    if p.twq >= 0: p.twpos = 15
    EXP = p.exp
    p.pb = (p.pb0, p.pb1)
    open(x.out, "w").write(build(p))
```

```python
import sys, argparse
sys.path.insert(0, "tools")
from asmlib import *
sys.path.insert(0, 'gen')
from sched import It, schedule
VERB = False
EXP = 0

class P:
    stamps = False
    cyc = False
    xfl = ""; wfl = ""; kvfl = "nt"
    ofl = "sc1"; olfl = "sc1"; wofl = ""; twfl = ""; pfl = "sc1"; plfl = "sc1"; outfl = ""
    s0 = 1; ppe = 2; stag = 0
    rot = True; krot = True
    kvd = 4
    twpos = 12
    rb = False
    fb = 3
    sh = 2
    qb = 4; qr = 6; vlo = 6
    touch_code = True
    force = False
    kvsame = False
    lim = 0
    notouch = False
    limg = 2
    gprof = False
    pa = -1
    esp = 2
    dyn = False
    pw4 = 24
    p6 = False
    t5 = 1
    zc = True
    lrg = 32
    tws = '14,14,14'
    l14 = True
    kbs = 1
    pb0 = -1
    pb1 = -1
    px = True
    tail = True
    dd = True
    spm = 0x208
    nod = True
    soft = False
    tst = -1
    tsw = 0
    aprof = False
    st0 = -1
    pmul = 0
    dsw = True
    pace = 3
    pmask = 7
    pw2 = 8
    pw3 = -1
    pbit = 6
    c0 = False
    kt = ''
    ktfl = ''
    ktst = 0
    tsplit = -1
    tw2 = 0
    dbgst = False
    al = 0
    sh4 = 0
    xsp = 2
    wsh = 0
    qprof = 0
    par8 = False
    fc = 0
    fcs = 64
    twown = -1
    perm = 0
    kc = 4
    ksh = 1
    early = True
    pst = 0
    rotm = 0
    swap = 3
    t3 = False
    vp2 = True
    s1 = 1
    defer = False
    warm = True
    exp = 0
    late = False
    twq = -1
    twstag = 0
    pw = -1

MF = "v_mfma_f32_16x16x32_bf16"
OOB = 0x40000000
LDSOOB = 0x30000
STAMPOFF = 200 << 20
O_BYTES = 16 * 32 * 4 * 9216
P_OFF = 32 << 20
F_OFF = 48 << 20
PBLK = 41472
STG = 36864
LFLAG = 163836
SPIN = 1 << 18
PL = 0

def vr(b, n=4): return f"v[{b}:{b+n-1}]"
def ar(b, n=4): return f"a[{b}:{b+n-1}]"
def weave(a, mfmas, gaps):
    assert len(gaps) <= len(mfmas)
    for i, m in enumerate(mfmas):
        a(m)
        if i < len(gaps):
            for x in gaps[i]: a(x)
def align(a, p):
    if p.al: a(f".p2align {p.al}")
    for _ in range(p.sh4): a("s_nop 0")
def emit(a, gs, nop=True):
    for g in gs:
        for x in g: a(x)
        if nop: a("s_nop 0")
NST = 9
def stamp(a, p, idx):
    if p.stamps: a(f"{'s_memtime' if p.cyc else 's_memrealtime'} s[{84+2*idx}:{85+2*idx}]")
def stamp_store(a, p):
    if not p.stamps: return
    a("s_waitcnt lgkmcnt(0)")
    if p.dbgst:
        a("v_mov_b32 v1, 0\nv_cmp_eq_u32 vcc, 0, v0\ns_and_saveexec_b64 s[44:45], vcc")
        for j in range(NST):
            a(f"s_sub_u32 s46, s{84+2*j}, s{sNONCE}\ns_add_u32 s46, s46, 500\nv_mov_b32 v2, s46\nglobal_atomic_umax v1, v2, s[6:7] offset:{4+4*j} sc1\ns_nop 1")
        a("s_mov_b64 exec, s[44:45]")
        return
    a(f"s_mul_i32 s80, s2, 128\ns_add_u32 s82, s82, s80\ns_addc_u32 s83, s83, 0\ns_add_u32 s82, s82, {STAMPOFF}\ns_addc_u32 s83, s83, 0")
    a("v_mov_b32 v1, 0\nv_cmp_eq_u32 vcc, 0, v0\ns_and_saveexec_b64 s[80:81], vcc")
    for j in range(NST):
        a(f"v_mov_b32 v2, s{84+2*j}\nv_mov_b32 v3, s{85+2*j}\nglobal_store_dwordx2 v1, v[2:3], s[82:83] offset:{8*j}\ns_nop 1")
    a("s_mov_b64 exec, s[80:81]")
    if p.gprof or p.qprof or p.aprof:
        a("v_and_b32 v1, 63, v0\nv_lshlrev_b32 v1, 2, v1\nv_cmp_gt_u32 vcc, 14, v0\ns_and_saveexec_b64 s[80:81], vcc\nglobal_store_dword v1, v31, s[82:83] offset:72\ns_mov_b64 exec, s[80:81]")

vACC = 96; vS = (80, 88); vL = 72; vVA = 64; vKA = 60; vXA = 58
vE, vO_, vWE, vWO, vX, vST, vTCH, vDUM, vOW, vFL = 56, 57, 54, 55, 53, 52, 51, 50, 49, 48
v2VO, v2B, v2A = 32, 41, 45
vNM = 8
aQ = 0; aK = (80, 112); aV = (144, 176); aXB = (208, 228); aWA = (0, 32)
vVB = 8
a2A = (80, 92); a2B = (104, 140)
v2ACC = 96
sX, sW, sK, sV, sO, sKV, sWO = 8, 12, 16, 20, 24, 68, 56
sWAVE, sHL, sROT, sNONCE = 28, 29, 30, 31
sWS, sWM, sXS, sXM, sWD, sXD, sT, sT2, sIT = 32, 33, 34, 35, 36, 37, 38, 39, 40
sKN, sKM, sKS, sRB, sHI, sWSL, sXB = 41, 42, 43, 44, 45, 46, 47
sC, sSC, sOB, sNEG, sKROT, sS0, sWEND, sTW = 48, 49, 50, 51, 52, 53, 54, 55
sWS2, sXM0, sXS0 = 72, 74, 75
gSRC, gSTR, gDST, gST, gQ1, gQ2, gQ3, gRI = 60, 52, 62, 63, 64, 65, 66, 67
gC1, gC2, gDL, gM0, gSO, gDL2, gLO, gHIW = 72, 73, 74, 75, 76, 77, 78, 79
gLOW, gLIM, gREDO, gMASK, gTAB, gP4 = 32, 33, 34, 35, 36, 79
gF = 40
REL = [0, 1, 2, 3, 4, 6, 8, 10, 12, 14, 5, 7, 9, 11, 13, 15]
FA, F2, FP = F_OFF, F_OFF + 32768, F_OFF + 49152
gFP, gOFF, gCHK, gPOST, gNN = 80, 33, 32, 53, 46
vPA, vNZ = 47, 48
sPG = 60
sPA, sPM = 73, 74
sSW = 62
XBUF = 65536
WQB = XBUF + 2 * 18432
QX = 155648
def acc(t, dt): return vACC + (t * 8 + dt) * 4
def acc2(nt, u): return v2ACC + 4 * (nt * 9 + u)

def flat_dma(groups, pos):
    out = []
    for g, q in zip(groups, pos):
        for x in g:
            if x.startswith("s_nop"): continue
            out.append(It(x, q, q + 1) if x.startswith("buffer_") else It(x))
    return out
def read_pos(nrd, start, end, taken):
    free = [i for i in range(start, end) if i not in taken]
    dbl = max(0, nrd - len(free))
    pos = []
    for i in free:
        pos.append(i)
        if dbl > 0: pos.append(i); dbl -= 1
    assert len(pos) >= nrd
    return pos[:nrd]

WDr, WSr, WS2r = (sWD, 62), (sWS, 63), (sWS2, 64)
def w_dma(p, par=0):
    w = lambda v, so, o: f"buffer_load_dwordx4 v{v}, s[{sW}:{sW+3}], s{so} offen offset:{o} {p.wfl} lds"
    return [[f"s_mov_b32 m0, s{sWM}", "s_nop 0", w(vWE, WSr[par], 0)], [w(vWO, WSr[par], 1024)], [w(vWE, WS2r[par], 2048)], [w(vWO, WS2r[par], 3072)]]
def x_dma(p, nX):
    out = []
    for m in range(nX):
        g = [f"s_mov_b32 m0, s{sXM}", "s_nop 0"] if m == 0 else []
        g.append(f"buffer_load_dwordx4 v{vX}, s[{sX}:{sX+3}], s{sXS} offen offset:{2048*(m & 1)} {p.xfl} lds")
        if m + 1 < nX:
            g.append(f"s_add_u32 s{sXS}, s{sXS}, {16384 if m % 2 == 0 else 20480}")
            if m % 2 == 1: g.append("s_add_u32 m0, m0, 4096")
        out.append(g)
    return out
def kv_dma(p):
    out = []
    for j in range(2 * p.ppe):
        g = [f"s_mov_b32 m0, s{sKM}", "s_nop 0"] if j == 0 else []
        if j == 4: g = [f"s_add_u32 m0, s{sKM}, 4096", f"s_add_u32 s{sKS}, s{sKS}, 4096"]
        g.append(f"buffer_load_dwordx4 v{vE if j % 2 == 0 else vO_}, s[{sKV}:{sKV+3}], s{sKS} offen offset:{1024*(j % 4)} {p.kvfl} lds")
        out.append(g)
    return out
def kv_book(p):
    return [[f"s_ashr_i32 s{sKN}, s{sIT}, 1", f"s_sub_u32 s{sKN}, s{sKN}, s{sS0}", f"s_mul_i32 s{sKN}, s{sKN}, {p.ppe}"],
            [f"s_lshr_b32 s{sT}, s{sKN}, 1", f"s_add_u32 s{sKS}, s{sT}, s{sROT}"] + ([f"s_and_b32 s{sT}, s{sT}, 2", f"s_add_u32 s{sKS}, s{sKS}, s{sT}"] if p.par8 else []) + [f"s_and_b32 s{sKS}, s{sKS}, 31"],
            [f"s_lshl_b32 s{sKS}, s{sKS}, 12", f"s_and_b32 s{sT}, s{sKN}, 1", f"s_lshl_b32 s{sT}, s{sT}, 11", f"s_add_u32 s{sKS}, s{sKS}, s{sT}"],
            [f"s_bfe_u32 s{sKM}, s{sKN}, 0x10002", f"s_lshl_b32 s{sKM}, s{sKM}, 14", f"s_and_b32 s{sT}, s{sKN}, 3", f"s_lshl_b32 s{sT}, s{sT}, 11"],
            [f"s_add_u32 s{sKM}, s{sKM}, s{sT}", f"s_add_u32 s{sKM}, s{sKM}, s{sT2}"],
            [f"s_cmp_ge_u32 s{sKN}, {16 if p.px else 8}", f"s_cselect_b32 s{sKM}, {LDSOOB}, s{sKM}", f"s_cselect_b32 s{sKS}, {OOB}, s{sKS}"]]
def x_book(p):
    return [[f"s_add_u32 s{sT}, s{sIT}, 3", f"s_lshr_b32 s{sT}, s{sT}, 1", f"s_add_u32 s{sXS}, s{sT}, s{sKROT}"],
            [f"s_sub_u32 s{sXM}, s{sXS}, {8 if p.c0 else 9}", f"s_cmp_lt_u32 s{sXS}, 9", f"s_cselect_b32 s{sXS}, s{sXS}, s{sXM}", f"s_lshl_b32 s{sXS}, s{sXS}, 7"],
            [f"s_add_u32 s{sXS}, s{sXS}, s{sXS0}", f"s_and_b32 s{sT}, s{sT}, 1", f"s_mul_i32 s{sT}, s{sT}, 18432"],
            [f"s_add_u32 s{sXM}, s{sXM0}, s{sT}"],
            [f"s_cmp_ge_u32 s{sIT}, 15", f"s_cselect_b32 s{sXM}, {LDSOOB}, s{sXM}", f"s_cselect_b32 s{sXS}, {OOB}, s{sXS}"]]
def w_adv(p, src=sWS, dst=sWS):
    return [f"s_add_u32 s{dst}, s{src}, {32*8192}", f"s_cmp_ge_u32 s{dst}, s{sWEND}", f"s_cselect_b32 s{dst}, s78, s{dst}"]
def q_reads(T, par, ks):
    rd = [f"ds_read_b128 {ar(aXB[par] + 4*t)}, v{vXA + ks} offset:{2048*t}" for t in range(T)]
    for dt in range(8):
        rd.append(f"ds_read_b64_tr_b16 {ar(aWA[par] + 4*dt, 2)}, v{vVA+dt}")
        rd.append(f"ds_read_b64_tr_b16 {ar(aWA[par] + 4*dt + 2, 2)}, v{vVA+dt} offset:2048")
    return rd
LAND = {4: [(sK, j, vr(224 + 4*j) if j < 4 else ar(48 + 4*j)) for j in range(8)] + [(sV, 0, vr(16)), (sV, 1, vr(24)), (sV, 2, ar(248)), (sV, 3, ar(252))],
        5: [(sV, 4, vr(16)), (sV, 5, vr(24)), (sV, 6, ar(248)), (sV, 7, ar(252))]}
def qstep(a, p, T, par, more=(), last=0, xb=()):
    A_, B_ = aWA[par], aXB[par]
    e = 2 * p.ppe
    mf = []
    for dt in range(8):
        for u in range(5):
            if T == 5:
                if u == 4 and dt >= 4: continue
                t = u
            else:
                if u == 0 and dt < 4: continue
                t = (u - 1) % 5
            mf.append(f"{MF} {vr(acc(t, dt))}, {ar(A_ + 4*dt)}, {ar(B_ + 4*u)}, {vr(acc(t, dt))}")
    if not p.exp & 128: a("s_waitcnt lgkmcnt(0)")
    if last == 16: a(f"s_waitcnt vmcnt({4 + len(LAND[T]) // 2})")
    elif last != 17 and not p.exp & 64: a(f"s_waitcnt vmcnt({e + 4 + (T - p.wsh if par == 0 else 0)})")
    if not p.exp & 32: a("s_barrier")
    if p.qprof: a(f"s_sub_u32 s98, s{sIT}, {p.qprof - 1}\ns_min_u32 m0, s98, 63\nv_writelane_b32 v31, s96, m0\n{'s_memtime' if p.cyc else 's_memrealtime'} s[96:97]")
    upd = [f"v_add_u32 v{vVA+d}, s{WDr[par]}, v{vVA+d}" for d in range(8)]
    if par == 0: upd = [f"v_add_u32 v{vXA}, s{sXD}, v{vXA}", f"v_add_u32 v{vXA+1}, s{sXD}, v{vXA+1}"] + upd
    rd = q_reads(5, par ^ 1, par ^ 1) + list(more)
    dma = (x_dma(p, T) + w_dma(p, 1)[:4 - p.wsh]) if par == 1 else (w_dma(p, 1)[4 - p.wsh:] + w_dma(p, 0) + kv_dma(p))
    q = par ^ 1
    book = [[f"s_add_u32 s{sIT}, s{sIT}, 1"]] + (kv_book(p) if par == 1 else x_book(p)) + \
           [[f"s_add_u32 s{sWSL}, s{sWSL}, 8192", f"s_cmp_eq_u32 s{sWSL}, 24576", f"s_cselect_b32 s{sWSL}, 0, s{sWSL}"],
            [f"s_cmp_eq_u32 s{sWSL}, 8192", f"s_cselect_b32 s{WDr[q]}, s{sNEG}, s{sC}"],
            w_adv(p, WSr[par], WSr[q]) + [f"s_add_u32 s65, s{sWSL}, s{sXB}"],
            [f"s_cmp_ge_u32 s{sIT}, 15", f"s_cselect_b32 s65, {LDSOOB}, s65", f"s_cselect_b32 s{WSr[q]}, {OOB}, s{WSr[q]}"],
            [f"s_add_u32 s{WS2r[q]}, s{WSr[q]}, {4*8192 - 2048}", f"s_mov_b32 s{sWM}, s65"] + ([f"s_sub_u32 s{sXD}, 0, s{sXD}"] if par == 0 else [])]
    n = len(mf)
    book += [list(xb)]
    if last:
        ld = [[f"buffer_load_dwordx4 {r}, v{vE if j % 2 == 0 else vO_}, s[{d}:{d+3}], s{66 + j // 4} offen offset:{1024*(j % 4)} {p.kvfl}"] for d, j, r in LAND[T]]
        k = len(ld) // 4
        dma = {15: ld[:2*k], 16: kv_dma(p) + ld[2*k:3*k], 17: ld[3*k:]}[last]
        book = [[f"s_add_u32 s{sIT}, s{sIT}, 1"]] + (kv_book(p) + [[f"s_mov_b32 s{WDr[0]}, s{sC}"]] if last == 15 else [])
        if last == 17: rd, upd = [], []
        if last == 16: upd = []
        rp = read_pos(len(rd), 0, n - p.qr, set(1 + 3*i for i in range(len(dma))))
        gaps, over = schedule(n, [], [It(x, q, q + 1) for x, q in zip(rd, rp)] + [It(x, p.vlo, n - 1) for x in upd] + flat_dma(dma, [1 + 3*i for i in range(len(dma))]) + [It(x, 0, n - 1) for g in book for x in g])
        return weave(a, mf, gaps)
    pos = [1 + i * (n - p.qb) // len(dma) for i in range(len(dma))]
    if par == 0 and p.esp: pos = [1 + p.esp * i for i in range(len(dma))]
    if par == 1 and p.xsp:
        x0 = 1 + p.xsp * T + 2
        pos = [1 + p.xsp * i for i in range(T)] + [x0 + i * (n - p.qb - x0) // (len(dma) - T) for i in range(len(dma) - T)]
    rp = read_pos(len(rd), 0, n - p.qr, set(pos))
    if p.exp & 8: dma = [[x for x in g if not x.startswith("buffer")] for g in dma]
    if p.exp & 16: rd = []
    flo = [It(x, q, q + 1) for x, q in zip(rd, rp)] + [It(x, p.vlo, n - 1) for x in upd] + flat_dma(dma, pos) + [It(x, 0, n - 1) for g in book for x in g]
    gaps, over = schedule(n, [], flo)
    if VERB: print(f"qstep T{T} par{par} over", over, file=sys.stderr)
    weave(a, mf, gaps)

def kv_tile_dma(p, sm, ss, parts=(0, 1, 2, 3), plain=False):
    out = []
    d1, d2 = (sK, sV) if plain or not p.swap else (sKV, sW)
    for half, (srd, lo) in enumerate(((d1, 0), (d1, 4096), (d2, 8192), (d2, 12288))):
        if half not in parts: continue
        so = ss if (half & 1) == 0 else sT
        for j in range(4):
            g = []
            if j == 0:
                g = [f"s_xor_b32 m0, s{sm}, {lo}"]
                g += [f"s_add_u32 s{sT}, s{ss}, 4096", f"s_bitset0_b32 s{sT}, 17"] if half == 0 else ["s_nop 0"]
            if p.lim and (j % p.limg == 0): g.append(f"s_waitcnt vmcnt({p.lim - p.limg})")
            g.append(f"buffer_load_dwordx4 v{vE if j % 2 == 0 else vO_}, s[{srd}:{srd+3}], s{so} offen offset:{1024*j} {p.kvfl} lds")
            out.append(g)
    return out
def frag_reads(par, off, vVA=vVA):
    rd = [f"ds_read_b128 {ar(aK[par] + (kt*4+s)*4)}, v{vKA+s} offset:{off + 4096*kt}" for kt in range(2) for s in range(4)]
    for dt in range(8):
        rd.append(f"ds_read_b64_tr_b16 {ar(aV[par] + 4*dt, 2)}, v{vVA+dt} offset:{off}")
        rd.append(f"ds_read_b64_tr_b16 {ar(aV[par] + 4*dt + 2, 2)}, v{vVA+dt} offset:{off + 4096}")
    return rd
def soft2(S, t):
    ad = [f"v_add_f32 v{vL+t}, v{vL+t}, v{S+j}" for j in range(8)]
    cv = [f"v_cvt_pk_bf16_f32 v{S+j}, v{S+2*j}, v{S+2*j+1}" for j in range(4)]
    return ad[:4] + cv + ad[4:]
def qk(S, Kc, t, c0):
    return [f"{MF} {vr(S + 4*kt)}, {ar(Kc + (kt*4+s)*4)}, {ar(aQ + (t*4+s)*4)}, {c0 if s == 0 else vr(S + 4*kt)}" for kt in range(2) for s in range(4)]
def pv(S, Vc, t, zero=False):
    return [f"{MF} {vr(acc(t, dt))}, {ar(Vc + 4*dt)}, {vr(S)}, {'0' if zero else vr(acc(t, dt))}" for dt in range(8)]
def block(a, p, T, par, loader, top, mid, ins=None, nodma=False, nord=False, lr=False, first=False):
    mf, fixed = [], []
    for t in range(T):
        n = par * T + t
        S, Sp = vS[n & 1], vS[(n & 1) ^ 1]
        tp = (t - 1) % T
        mf += qk(S, aK[par], t, "0") + pv(Sp, aV[par ^ 1] if t == 0 else aV[par], tp, first and (par == 0 or t == 0))
        v2 = soft2(Sp, tp)
        fixed += [v2[0:1], v2[1:3], v2[3:4], v2[4:6], v2[6:7], v2[7:9], v2[9:10], v2[10:12]]
        fixed += [[f"v_exp_f32 v{S+j}, v{S+j}"] for j in range(8)]
    n = 16 * T
    if first and par == 0:
        mf[8:16] = ["s_nop 3"] + ["s_nop 0"] * 7
        fixed[0:8] = [[] for _ in range(8)]
    free = [16*t + j for t in range(T) for j in (0, 2, 4, 6)]
    dma = kv_tile_dma(p, sKM, sKS) if loader and not nodma else []
    top(a)
    if lr:
        m = n - p.lrg
        weave(a, mf[:m], fixed[:m])
        mid(a)
        rd = frag_reads(par ^ 1, 16384 * (par ^ 1))
        k = p.lrg - 8
        gaps, over = schedule(n - m, fixed[m:], [It(x, i * k // 24, i * k // 24) for i, x in enumerate(rd)])
        weave(a, mf[m:], gaps)
    elif not p.late:
        rd = frag_reads(par ^ 1, 16384 * (par ^ 1))
        tog = [f"v_xor_b32 v{r}, 0x10000, v{r}" for r in list(range(vKA, vKA+4)) + list(range(vVA, vVA+8))] if par == 0 else []
        if nord: rd, tog = [], []
        lim = n - 12
        slots = [g for g in free if g < lim]
        extra = [g for g in range(lim) if g not in slots]
        need = len(rd) + len(dma) - len(slots)
        if need > 0: slots = sorted(slots + [extra[(2*i + 1) * len(extra) // (2*need)] for i in range(need)])
        dpos = [slots[(i * len(slots)) // len(dma)] for i in range(len(dma))] if dma else []
        rpos = [g for g in slots if g not in dpos]
        rpos = [max(g, 16) if i >= 8 else g for i, g in enumerate(rpos[:len(rd)])]
        flo = [It(x, q, q + 1) for x, q in zip(rd, rpos)] + flat_dma(dma, dpos) + [It(x, 0, n - 1 - (len(tog) - 1 - i)) for i, x in enumerate(tog)]
        gaps, over = schedule(n, fixed, flo)
        weave(a, mf, gaps)
    else:
        m = n - 16
        rv = frag_reads(par, 16384 * par)[8:]
        vpos = [0, 1, 2, 3, 4, 5, 6, 7, 9, 11, 13, 15, 16, 17, 18, 20]
        togv = [f"v_xor_b32 v{r}, 0x10000, v{r}" for r in range(vVA, vVA+8)] if par == 1 else []
        togk = [f"v_xor_b32 v{r}, 0x10000, v{r}" for r in range(vKA, vKA+4)] if par == 1 else []
        cand = [g for g in range(24 if p.fc else 21, m - 1)]
        dpos = [cand[(i * len(cand)) // len(dma)] for i in range(len(dma))] if dma else []
        flo = [It(x, q, q) for x, q in zip(rv, vpos)] + [It("s_waitcnt lgkmcnt(0)", 23, 23)] + flat_dma(dma, dpos) + \
              [It(x, 22, m - 1 - (11 - i)) for i, x in enumerate(togv + togk)]
        gaps, over = schedule(m, fixed[:m], flo)
        assert any("lgkmcnt" in x for x in gaps[23])
        if loader and p.fc: gaps[23] += [f"s_cmp_eq_u32 s{sWAVE}, 1", f"s_cbranch_scc1 L_fc{par}", f"L_fcb{par}:"]
        if ins:
            for t in range(1, T):
                x = A(); ins(x, t)
                gaps[16*t - 1] += [y.strip() for y in x.l]
        weave(a, mf[:m], gaps)
        mid(a)
        rk = frag_reads(par ^ 1, 16384 * (par ^ 1))[:8]
        gaps, o2 = schedule(16, fixed[m:], [It(x, i, i) for i, x in enumerate(rk)])
        over += o2
        weave(a, mf[m:], gaps)
    if VERB: print(f"block T{T} par{par} over", over, file=sys.stderr)

def wo_touch(a, p, t1=sT, t2=sT2, fl=None):
    if p.notouch: return
    for f in ([fl] if fl is not None else ["nt", ""] if p.tw2 == 1 else ["nt"] if p.tw2 else [p.twfl]):
        a(f"""s_add_u32 s{t2}, s{sTW}, 8192
        s_add_u32 s{t1}, s{sTW}, 10240
        buffer_load_dword v{vDUM}, v{vTCH}, s[{sWO}:{sWO+3}], s{sTW} offen {f}
        buffer_load_dword v{vDUM}, v{vTCH}, s[{sWO}:{sWO+3}], s{t2} offen {f}
        buffer_load_dword v{vDUM}, v{vTCH}, s[{sWO}:{sWO+3}], s{t1} offen {f}""")
        if p.tw2 == 3 and fl is None:
            a("s_waitcnt vmcnt(0)")
            wo_touch(a, p, t1, t2, "")

vT1, vT2 = 28, 29
def wo_touch_setup(a):
    a(f"""v_and_b32 v1, 63, v0
    v_mul_u32_u24 v2, 43, v1
    v_lshrrev_b32 v2, 7, v2
    v_mul_u32_u24 v3, 3, v2
    v_sub_u32 v3, v1, v3
    v_and_b32 v4, 7, v2
    s_lshl_b32 s{sT}, s5, 3
    v_add_u32 v4, s{sT}, v4
    v_mul_u32_u24 v4, 1152, v4
    v_lshl_add_u32 v4, v3, 7, v4
    s_and_b32 s{sT}, s3, 3
    s_mul_i32 s{sT}, s{sT}, {1024*1152}
    s_lshl_b32 s80, s4, 8
    s_add_u32 s{sT}, s{sT}, s80
    v_add_u32 v4, s{sT}, v4
    v_lshrrev_b32 v2, 3, v2
    s_mov_b32 s{sT}, 73728
    v_mad_u32_u24 v{vT1}, v2, s{sT}, v4
    v_mad_u32_u24 v{vT2}, v2, s{sT}, v{vT1}
    v_mov_b32 v3, {OOB}
    v_cmp_gt_u32 vcc, 48, v1
    s_nop 1
    v_cndmask_b32 v{vT1}, v3, v{vT1}, vcc
    v_cndmask_b32 v{vT2}, v3, v{vT2}, vcc""")
def wo_touch_part(a, p, part):
    for r0, r1, v in (((0, 2, vT1), (4, 8, vT2)) if part == 0 else ((12, 5, vT2), (9, 13, vT2))):
        a(f"""s_mul_i32 s{sT}, s{sHL}, {r1 - r0}
        s_add_u32 s{sT}, s{sT}, s{gP4}
        s_add_u32 s{sT}, s{sT}, {r0}
        s_and_b32 s{sT}, s{sT}, 15
        s_mul_i32 s{sT}, s{sT}, 73728
        s_nop 0
        buffer_load_dword v{vDUM}, v{v}, s[{sWO}:{sWO+3}], s{sT} offen {p.twfl}""")
def g_dma(fl):
    out = []
    for j in range(9):
        g = [f"s_add_u32 m0, s{gM0}, {1024*j}", "s_nop 0"] if j % 4 == 0 else []
        g.append(f"buffer_load_dwordx4 v{v2VO+j}, s[{sX}:{sX+3}], s{gSO} offen offset:{1024*(j % 4)} {fl} lds")
        out.append(g)
    return out
def g_stage_now(a, fl, st):
    a(f"s_add_u32 s{gSO}, s{gP4}, {REL[st]}\ns_and_b32 s{gSO}, s{gSO}, 15\ns_mul_i32 s{gSO}, s{gSO}, s{gSTR}\ns_add_u32 s{gSO}, s{gSO}, s{gLO}")
    a(f"s_add_u32 s{gM0}, s{gDL2}, {(st & 3)*STG}")
    emit(a, g_dma(fl), nop=False)
def o_touch(a, p, half):
    if not p.rb: return
    for o in (0, 8192, 10240):
        a(f"s_add_u32 s{sT}, s{sOB}, {half*18432 + o}\ns_nop 0\nbuffer_load_dword v{vDUM}, v{vTCH}, s[{sO}:{sO+3}], s{sT} offen")

KEEP = [16, 20, 24, 28, 192, 196, 200, 204, 224, 228]
def o_store(p, t, s, d):
    return [f"s_add_u32 s{sT}, s{sOB}, {s*9216 + (4096 if t == 4 else 0)}", "s_nop 0",
            f"buffer_store_dwordx4 {vr(d)}, v{vST}, s[{sO}:{sO+3}], s{sT} offen offset:{1024*(t & 3)} {p.ofl}"]
def lanesum(a, T, op):
    for sw in ("v_permlane32_swap_b32", "v_permlane16_swap_b32"):
        for t in range(T): a(f"v_mov_b32 v{1+t}, v{vL+t}")
        a("s_nop 1")
        for t in range(T): a(f"{sw} v{1+t}, v{vL+t}")
        a("s_nop 1")
        for t in range(T): a(f"{op} v{vL+t}, v{vL+t}, v{1+t}")

def wave_front(a, p, T, loader, tag):
    TAB = sum(REL[4+i] << (4*i) for i in range(12))
    e = 2 * p.ppe
    a(f"s_waitcnt vmcnt({4 if p.early else 4 + e + T + 4})\ns_waitcnt lgkmcnt(0)\ns_barrier")
    stamp(a, p, 1)
    for x in q_reads(5, 0, 0): a(x)
    if p.early: p.batch2(a, T)
    for dt in range(8): a(f"v_add_u32 v{vVA+dt}, s{sWD}, v{vVA+dt}")
    align(a, p)
    a(f"L_q{tag}:")
    if p.twq >= 0 and not loader:
        a(f"s_cmp_eq_u32 s{sIT}, s79\ns_cbranch_scc1 L_tq\nL_tqb:")
    KT = [tuple(int(y) for y in x.split(":")) for x in p.kt.split(",") if x]
    if KT: a(f"s_bitcmp1_b32 s79, s{sIT}\ns_cbranch_scc1 L_kt{tag}\nL_ktb{tag}:")
    qstep(a, p, T, 0)
    qstep(a, p, T, 1)
    if p.px:
        assert p.ppe == 2 and p.s0 in (1, 2) and not p.stag and not p.late
        a(("" if p.p6 else f"s_cmp_eq_u32 s{sIT}, 18\ns_cbranch_scc1 L_qe{tag}\n") + f"s_cmp_eq_u32 s{sIT}, {4 + 2*p.s0}\ns_cbranch_scc0 L_q{tag}")
        for tile in range(2):
            r = frag_reads(tile, 16384 * tile, vVB)
            qstep(a, p, T, 0); qstep(a, p, T, 1, r[:12]); qstep(a, p, T, 0, r[12:]); qstep(a, p, T, 1)
        if p.p6:
            assert p.s0 == 1 and p.pace >= 3 and p.dsw
            qstep(a, p, T, 0, xb=[f"s_add_u32 s66, s{sROT}, 8", "s_add_u32 s67, s66, 1", "s_and_b32 s66, s66, 31", "s_and_b32 s67, s67, 31", "s_lshl_b32 s66, s66, 12", "s_lshl_b32 s67, s67, 12"])
            qstep(a, p, T, 1, last=15); qstep(a, p, T, 0, last=16); qstep(a, p, T, 1, last=17)
        else: a(f"s_branch L_q{tag}\nL_qe{tag}:")
        if p.s0 == 2: emit(a, kv_dma(p), nop=False)
    else: a(f"s_cmp_lt_u32 s{sIT}, 18\ns_cbranch_scc1 L_q{tag}")
    stamp(a, p, 2)
    a("s_waitcnt lgkmcnt(0)")
    for dt in range(8): a(f"v_mov_b32 v{vVA+dt}, v{vVB+dt}")
    dma = []
    if loader:
        if p.swap:
            a(f"""{f"s_bitcmp1_b32 s2, {p.swap}" if p.swap < 99 else f"s_bitcmp1_b32 s{sHL}, 0"}
            s_cselect_b32 s{sKV}, s{sV}, s{sK}
            s_cselect_b32 s{sKV+1}, s{sV+1}, s{sK+1}
            s_cselect_b32 s{sW}, s{sK}, s{sV}
            s_cselect_b32 s{sW+1}, s{sK+1}, s{sV+1}
            s_cselect_b32 s{sXB}, 8192, 0
            s_mov_b32 s{sW+2}, 131072
            s_add_u32 s{sXB}, s{sXB}, s{sRB}""")
        else: a(f"s_mov_b32 s{sXB}, s{sRB}")
        for n in ([] if p.px and p.p6 else range(2, p.kvd - (p.t5 if p.px else 1 if p.late and not p.t3 else 0))):
            dma.append([f"s_add_u32 s{sKS}, s{sROT}, {(4 if p.par8 else 2)*(n + (2 if p.px else 0))}", f"s_and_b32 s{sKS}, s{sKS}, 31", f"s_lshl_b32 s{sKS}, s{sKS}, 12",
                        f"s_add_u32 s{sKM}, s{sXB}, {65536 + 16384*(n & 1)}"])
            dma += kv_tile_dma(p, sKM, sKS)
    di = 0
    a(f"s_load_dword s{sNONCE}, s[6:7], 0")
    if p.warm and not loader:
        flag_addr(a, 1, FA)
        a(f"s_add_u32 s{sT}, s{sT}, 64\ns_load_dword s{sKN}, s[82:83], s{sT}")
    a(f"v_and_b32 v1, 63, v0\ns_lshl_b32 s{sT}, s{sHL}, 11\ns_add_u32 s{sT}, s{sT}, {QX}\nv_lshl_add_u32 v1, v1, 4, s{sT}")
    units = [(t, s) for t in range(4) for s in range(4)]
    units = ([(4, 2), (4, 3)] + units) if loader else (units + [(4, 0), (4, 1)])
    def conv(a, t, s):
        A0, B0 = acc(t, 2*s), acc(t, 2*s+1)
        for r in range(0, 8, 2): a(f"v_pk_mul_f32 {vr(A0+r, 2)}, {vr(A0+r, 2)}, s[{sSC-1}:{sSC}] op_sel:[0,1] op_sel_hi:[1,1]")
        a(f"v_cvt_pk_bf16_f32 v4, v{A0}, v{A0+1}\nv_cvt_pk_bf16_f32 v5, v{A0+2}, v{A0+3}\nv_cvt_pk_bf16_f32 v6, v{B0}, v{B0+1}\nv_cvt_pk_bf16_f32 v7, v{B0+2}, v{B0+3}")
        if p.zc and p.px: a("s_nop 1")
        else:
            for r in range(0, 4, 2): a(f"v_pk_mov_b32 {vr(A0+r, 2)}, 0, 0")
        a("v_permlane32_swap_b32 v4, v6\nv_permlane32_swap_b32 v5, v7")
        if p.zc and p.px: a("s_nop 0")
        else:
            for r in range(0, 4, 2): a(f"v_pk_mov_b32 {vr(B0+r, 2)}, 0, 0")
        a("v_permlane16_swap_b32 v4, v6\nv_permlane16_swap_b32 v5, v7\ns_nop 0")
        if loader and t == 4:
            a(f"ds_write_b128 v1, v[4:7] offset:{1024*(s - 2)}\ns_nop 1")
        else:
            q = aQ + (t*4+s)*4
            for r in (0, 2, 1, 3): a(f"v_accvgpr_write_b32 a{q+r}, v{4+r}")
    if p.zc and p.px:
        def s1(n):
            t, s_ = units[n]; A0, d = acc(t, 2*s_), 4 + 16 * (n & 1)
            return [f"v_pk_mul_f32 {vr(A0+r, 2)}, {vr(A0+r, 2)}, s[{sSC-1}:{sSC}] op_sel:[0,1] op_sel_hi:[1,1]" for r in range(0, 8, 2)] + \
                   [f"v_cvt_pk_bf16_f32 v{d+r}, v{A0+2*r}, v{A0+2*r+1}" for r in range(4)]
        def conv(a, t, s):
            n = units.index((t, s)); d = 4 + 16 * (n & 1)
            if n == 0:
                for x in s1(0): a(x)
            nx = s1(n + 1) if n + 1 < len(units) else ["s_nop 0"] * 5
            a(f"{nx[0]}\n{nx[1]}\nv_permlane32_swap_b32 v{d}, v{d+2}\nv_permlane32_swap_b32 v{d+1}, v{d+3}\n{nx[2]}\n{nx[3]}")
            a(f"v_permlane16_swap_b32 v{d}, v{d+2}\nv_permlane16_swap_b32 v{d+1}, v{d+3}\n{nx[4]}")
            if loader and t == 4: a(f"ds_write_b128 v1, {vr(d)} offset:{1024*(s - 2)}")
            else:
                for r in (0, 2, 1, 3): a(f"v_accvgpr_write_b32 a{aQ + (t*4+s)*4 + r}, v{d+r}")
            for x in nx[5:]: a(x)
    nb = 6 if p.soft else 10
    later = units[nb:] if p.soft else []
    for n, (t, s) in enumerate(units + [(None, None)]):
        if n == nb:
            assert di == len(dma)
            if loader and p.tst >= 0: a(f"s_bitcmp1_b32 s2, {p.tst}\ns_cbranch_scc0 L_ts\ns_waitcnt vmcnt({p.tsw})\nL_ts:")
            a(f"s_waitcnt lgkmcnt(0)\ns_waitcnt vmcnt({(16*(p.kvd - 2 - (p.t5 if p.px else 1 if p.late and not p.t3 else 0)) if loader else 0) + (4 if p.px and p.s0 == 2 else 0) if not (p.px and p.p6) else 63})\ns_barrier")
            if not loader:
                for s2 in (2, 3): a(f"ds_read_b128 {ar(aQ + (16 + s2)*4)}, v1 offset:{1024*(s2 - 2)}")
            for x in frag_reads(0, 0)[:0 if p.px else 8 if p.late else 24]: a(x)
            if p.soft: break
        if t is None: break
        for _ in range(6 if p.soft and p.t3 else 4 if not p.soft else 3):
            if di < len(dma):
                for x in dma[di]: a(x)
                di += 1
        conv(a, t, s)
    for t in range(T): a(f"v_mov_b32 v{vL+t}, 0")
    for j in range(8): a(f"v_mov_b32 v{vS[1]+j}, 0")
    if not p.px:
        for j in range(32): a(f"v_accvgpr_write_b32 a{aV[1]+j}, 0")
    if loader:
        a(f"""s_mov_b32 s{sX}, s{sWO}
        s_mov_b32 s{sX+1}, s{sWO+1}
        s_mov_b32 s{sX+2}, s{sWO+2}
        s_and_b32 s{gLO}, s3, 3
        s_lshl_b32 s{gLO}, s{gLO}, 10
        s_lshl_b32 s{sT}, s{sHL}, 5
        s_add_u32 s{gLO}, s{gLO}, s{sT}
        s_mul_i32 s{gLO}, s{gLO}, 1152
        s_mul_i32 s{sT}, s4, 288
        s_add_u32 s{gLO}, s{gLO}, s{sT}
        s_mov_b32 s{gSTR}, {0 if p.exp & 1 else 73728}
        s_mul_i32 s{gDL2}, s{sHL}, 9216
        s_add_u32 s{gDL2}, s{gDL2}, 18432""")
    else:
        a(f"""s_mov_b32 s{sX}, s{sO}
        s_mov_b32 s{sX+1}, s{sO+1}
        s_mov_b32 s{sX+2}, s{sO+2}
        s_lshl_b32 s{sT}, s4, 1
        s_add_u32 s{sT}, s{sT}, s{sHL}
        s_mul_i32 s{sT}, s{sT}, {4*9216}
        s_sub_u32 s{gLO}, s{sOB}, s{sT}
        s_mul_i32 s{gDL2}, s{sHL}, 9216
        s_add_u32 s{gLO}, s{gLO}, s{gDL2}
        s_movk_i32 s{gSTR}, {0 if p.exp & 2 else 18432}""")
    a(f"""s_lshl_b32 s{gP4}, s4, 2
    s_mov_b32 s{gTAB}, {TAB & 0xffffffff:#x}
    s_mov_b32 s{gTAB+1}, {TAB >> 32:#x}
    s_mov_b32 s{gREDO}, 0
    s_mov_b32 s{sNEG}, {(127+40) << 23:#x}
    s_mov_b32 s{sIT}, 0
    s_mov_b32 s{sHI}, 0""")
    if p.warm and not loader:
        flag_addr(a, 1, FA)
        a(f"""s_add_u32 s{sT}, s{sT}, 64
        v_and_b32 v1, 7, v0
        s_lshr_b32 s80, s3, 2
        s_lshl_b32 s80, s80, 3
        s_add_u32 s80, s80, s5
        s_lshl_b32 s80, s80, 2
        s_add_u32 s80, s80, s4
        s_mul_i32 s80, s80, {PBLK}
        s_add_u32 s80, s80, {P_OFF}
        s_mov_b32 s81, {64*PBLK}
        v_mad_u32_u24 v2, v1, s81, v1
        v_sub_u32 v2, v2, v1
        v_add_u32 v2, s80, v2
        v_mov_b32 v3, s{sT}
        v_cmp_gt_u32 vcc, 4, v1
        s_nop 1
        v_cndmask_b32 v2, v3, v2, vcc
        global_load_dword v{vDUM}, v2, s[82:83] sc1""")
    a(f"s_cmp_eq_u32 s{sNONCE}, 0\ns_cbranch_scc1 L_tag{tag}\nL_tagb{tag}:")
    if loader and p.pace >= 0:
        a(f"s_lshr_b32 s{sSW}, s2, 3\ns_mul_i32 s{sSW+1}, s3, {p.pmul}\ns_add_u32 s{sSW}, s{sSW}, s{sSW+1}\ns_and_b32 s{sSW}, s{sSW}, {p.pmask}\ns_add_u32 s{sSW}, s{sSW}, {p.pace}\ns_sub_u32 s{sSW+1}, s{sSW}, 1")
    if loader and p.fc:
        a(f"""s_lshr_b32 s{sPA}, s2, 3
        s_lshl_b32 s{sPA}, s{sPA}, 7
        s_add_u32 s{sPA}, s{sPA}, {FP}
        s_lshl_b32 s{sT}, s3, 2
        s_add_u32 s{sT}, s{sT}, s{sPA}
        v_mov_b32 v{vFL}, s{sT}""")
    out = A()
    out(f"""L_tag{tag}:
    s_memrealtime s[80:81]
    v_mov_b32 v1, 0
    v_mov_b32 v3, 0
    s_waitcnt lgkmcnt(0)
    s_or_b32 s80, s80, 1
    v_mov_b32 v2, s80
    s_mov_b64 exec, 1
    global_atomic_cmpswap v4, v1, v[2:3], s[6:7] sc0 sc1
    s_waitcnt vmcnt(0)
    s_mov_b64 exec, -1
    v_readfirstlane_b32 s{sNONCE}, v4
    s_nop 1
    s_cmp_eq_u32 s{sNONCE}, 0
    s_cselect_b32 s{sNONCE}, s80, s{sNONCE}
    s_branch L_tagb{tag}""")
    if KT:
        out(f"L_kt{tag}:\ns_mul_i32 s81, s4, {p.ktst}\ns_sub_u32 s81, s{sIT}, s81")
        for i, (st, f0, cnt) in enumerate(KT):
            out(f"s_cmp_eq_u32 s81, {st}\ns_cbranch_scc0 L_kt{tag}{i}")
            for n in range(f0, f0 + cnt):
                out(f"s_add_u32 s80, s{sROT}, {2*n}\ns_and_b32 s80, s80, 31\ns_lshl_b32 s80, s80, 12\ns_nop 0\nbuffer_load_dword v{vDUM}, v{vTCH}, s[{sKV}:{sKV+3}], s80 offen {p.ktfl}")
            out(f"L_kt{tag}{i}:")
        out(f"s_branch L_ktb{tag}")
    if p.twq >= 0 and not loader:
        out("L_tq:")
        wo_touch(out, p, 80, 81)
        out("s_branch L_tqb")
    if p.px:
        assert not p.late
        for par in range(2):
            n = {1: (5, None), 2: (4, 5), 0: (None, None)}[p.t5][par]
            if p.p6: p.pb = (-1, 63)
            if p.p6 and par == 1:
                n = 6
                if loader: a(f"s_add_u32 s{sKS}, s{sROT}, {2*n}\ns_and_b32 s{sKS}, s{sKS}, 31\ns_lshl_b32 s{sKS}, s{sKS}, 12\ns_lshr_b32 s{sKM}, s{sRB}, 1\ns_sub_u32 s{sKM}, s{sXB}, s{sKM}\ns_add_u32 s{sKM}, s{sKM}, 131072")
            elif n and loader: a(f"s_add_u32 s{sKS}, s{sROT}, {2*n}\ns_and_b32 s{sKS}, s{sKS}, 31\ns_lshl_b32 s{sKS}, s{sKS}, 12\ns_add_u32 s{sKM}, s{sXB}, {65536 + 16384*(n & 1)}")
            block(a, p, T, par, loader, lambda a: a("s_waitcnt lgkmcnt(0)" + (f"\ns_waitcnt vmcnt({p.pb[par]})\ns_barrier" if p.pb[par] >= 0 else "")), None, nodma=not n, nord=par == 0, first=p.zc)
        if p.p6:
            a(f"s_waitcnt vmcnt({32 if loader else 0})\ns_add_u32 s{sT}, s{sRB}, 65536\nv_and_b32 v2, 63, v0\nv_lshl_add_u32 v2, v2, 4, s{sT}")
            for d, j, r in LAND[T]: a(f"ds_write_b128 v2, {r} offset:{1024*j + (8192 if d == sV else 0)}")
        a(f"s_mov_b32 s{sIT}, 2")
        if p.s0 == 2 and not loader: a("s_waitcnt vmcnt(0)")
    hk = {}
    seq = ([(0, True)] if p.soft else []) + [(0, False), (1, False)]
    for par, peeled in seq:
        if par == 0 and not peeled:
            if p.soft: a(f"s_branch L_a1{tag}")
            align(a, p)
            a(f"L_a{tag}:")
        if par == 1: a(f"L_a1{tag}:")
        dist = p.kvd - (1 if p.late else 0)
        def kvbook(a):
            if p.px and p.dsw:
                a(f"""s_cmp_gt_i32 s{sIT}, s{sSW + par}
                s_cselect_b32 s{sT}, {3 + par}, {4 + par}
                s_add_u32 s{sT}, s{sT}, s{sIT}
                s_lshl_b32 s{sKS}, s{sT}, 1
                s_add_u32 s{sKS}, s{sKS}, s{sROT}
                s_and_b32 s{sKS}, s{sKS}, 31
                s_lshl_b32 s{sKS}, s{sKS}, 12
                s_and_b32 s{sKM}, s{sT}, 1
                s_lshl_b32 s{sKM}, s{sKM}, 14
                s_add_u32 s{sKM}, s{sKM}, s{sXB}
                s_andn2_b32 s{sKN}, 2, s{sT}
                s_lshl_b32 s{sKN}, s{sKN}, 15
                s_add_u32 s{sKM}, s{sKM}, s{sKN}
                s_cmp_eq_u32 s{sIT}, s{sSW + par}
                s_cselect_b32 s{sT}, 16, s{sT}
                {f"s_cmp_eq_u32 s{sT}, 6" if p.p6 and par == 0 else ""}
                {f"s_cselect_b32 s{sT}, 16, s{sT}" if p.p6 and par == 0 else ""}
                s_cmp_ge_u32 s{sT}, 16
                s_cselect_b32 s{sKM}, {LDSOOB}, s{sKM}
                s_cselect_b32 s{sKS}, {OOB}, s{sKS}""")
                return
            e0 = p.late and p.t3 and par == 0
            if p.par8: a(f"s_add_u32 s{sT}, s{sIT}, {dist+par}\ns_lshl_b32 s{sKS}, s{sT}, 2\ns_lshr_b32 s{sT}, s{sT}, 2\ns_and_b32 s{sT}, s{sT}, 2\ns_add_u32 s{sKS}, s{sKS}, s{sT}")
            else: a(f"s_lshl_b32 s{sKS}, s{sIT}, 1\ns_add_u32 s{sKS}, s{sKS}, {2*(dist+par)}")
            a(f"""s_add_u32 s{sKS}, s{sKS}, s{sROT}
            s_and_b32 s{sKS}, s{sKS}, 31
            s_lshl_b32 s{sKS}, s{sKS}, 12
            s_xor_b32 s{sKM}, s{sHI}, {0x10000 * (((dist + par) >> 1) & 1)}
            s_add_u32 s{sKM}, s{sKM}, s{sXB}
            s_add_u32 s{sKM}, s{sKM}, {16384*((dist + par) & 1)}
            {f"s_sub_u32 s{sT}, s{sIT}, 1" if e0 else ""}
            s_cmp_ge_u32 s{sT if e0 else sIT}, {16 - dist - par - (1 if e0 else 0)}
            s_cselect_b32 s{sKM}, {LDSOOB}, s{sKM}
            s_cselect_b32 s{sKS}, {OOB}, s{sKS}""")
        def hooks(a, tailblk=False, par=par):
            if p.px and p.p6 and not tailblk:
                a(f"s_cmp_eq_u32 s{sIT}, {6 - 2*par}\ns_cbranch_scc1 L_x{par}{tag}\nL_xb{par}{tag}:")
                out(f"L_x{par}{tag}:\ns_lshr_b32 s{sT2}, s{sRB}, 1\ns_sub_u32 s{sT2}, 131072, s{sT2}")
                for r in list(range(vKA, vKA+4)) + list(range(vVA, vVA+8)): out(f"{'v_add_u32' if par else 'v_subrev_u32'} v{r}, s{sT2}, v{r}")
                if par == 0: out(f"v_mov_b32 v1, {LFLAG}\nv_mov_b32 v2, 0\nds_write_b32 v1, v2")
                out(f"s_branch L_xb{par}{tag}")
            if loader and p.px and p.l14:
                if par == 1 and tailblk: g_stage_now(a, p.wofl, 0); g_stage_now(a, p.wofl, 1)
                elif par == 1:
                    a(f"s_cmp_eq_u32 s{sIT}, 12\ns_cbranch_scc1 L_w1\nL_wb1:")
                    out("L_w1:")
                    g_stage_now(out, p.wofl, 2); g_stage_now(out, p.wofl, 3)
                    out("s_branch L_wb1")
            elif loader and p.px:
                if par == 1:
                    a(f"s_cmp_ge_u32 s{sIT}, 12\ns_cbranch_scc1 L_w1\nL_wb1:")
                    out(f"L_w1:\ns_cmp_eq_u32 s{sIT}, 12\ns_cbranch_scc0 L_w1b")
                    g_stage_now(out, p.wofl, 2); g_stage_now(out, p.wofl, 3)
                    out("s_branch L_wb1\nL_w1b:")
                    g_stage_now(out, p.wofl, 0); g_stage_now(out, p.wofl, 1)
                    out("s_branch L_wb1")
            elif loader:
                a(f"s_cmp_ge_u32 s{sIT}, {14 - 2*par}\ns_cbranch_scc1 L_w{par}\nL_wb{par}:")
                out(f"L_w{par}:")
                if par == 0: g_stage_now(out, p.wofl, 1)
                else:
                    out(f"s_cmp_eq_u32 s{sIT}, 12\ns_cbranch_scc0 L_w1b")
                    g_stage_now(out, p.wofl, 0)
                    out("s_branch L_wb1\nL_w1b:")
                    g_stage_now(out, p.wofl, 2)
                    g_stage_now(out, p.wofl, 3)
                out(f"s_branch L_wb{par}")
            elif p.tws:
                blks = [int(x) for x in p.tws.split(",")]
                for bk in sorted(set(blks)):
                    if bk & 1 != par or (p.l14 and bk >= 14) != tailblk or bk > 15: continue
                    if not tailblk: a(f"s_cmp_eq_u32 s{sIT}, {bk & ~1}\ns_cbranch_scc0 L_nt{tag}{bk}")
                    for j, o in enumerate((0, 8192, 10240)):
                        if blks[j] == bk: a(f"s_add_u32 s{sT}, s{sTW}, {o}\ns_nop 0\nbuffer_load_dword v{vDUM}, v{vTCH}, s[{sWO}:{sWO+3}], s{sT} offen {p.twfl}")
                    a(f"L_nt{tag}{bk}:")
            elif par == 0 and p.twown >= 0:
                a(f"""s_cmp_eq_u32 s{sIT}, {p.twown}
                s_cbranch_scc0 L_nt{tag}
                s_and_b32 s{sT}, s3, 3
                s_lshl_b32 s{sT}, s{sT}, 2
                s_add_u32 s{sT}, s{sT}, s4
                s_lshl_b32 s{sT}, s{sT}, 3
                s_add_u32 s{sT}, s{sT}, s5
                s_lshl_b32 s{sT}, s{sT}, 1
                s_add_u32 s{sT}, s{sT}, s{sHL}
                s_mul_i32 s{sT}, s{sT}, {16*1152}
                s_mul_i32 s{sT2}, s4, 288
                s_and_b32 s{sT2}, s{sT2}, 0xff80
                s_add_u32 s{sT}, s{sT}, s{sT2}
                v_and_b32 v1, 63, v0
                v_lshrrev_b32 v2, 2, v1
                v_mul_u32_u24 v2, 1152, v2
                v_and_b32 v1, 3, v1
                v_lshl_add_u32 v1, v1, 7, v2
                buffer_load_dword v{vDUM}, v1, s[{sWO}:{sWO+3}], s{sT} offen {p.twfl}
                L_nt{tag}:""")
                if p.twpos < 15:
                    a(f"s_cmp_eq_u32 s{sIT}, {p.twpos}\ns_cbranch_scc0 L_nv{tag}")
                    wo_touch(a, p)
                    a(f"L_nv{tag}:")
            elif tailblk: pass
            elif par == 0 and p.twpos < 15:
                a(f"s_cmp_eq_u32 s{sIT}, {p.twpos}\ns_cbranch_scc0 L_nt{tag}")
                if p.tsplit >= 0:
                    wo_touch_part(a, p, 0)
                else: wo_touch(a, p)
                a(f"L_nt{tag}:")
            elif par == 1 and p.tw2 == 2:
                a(f"s_cmp_eq_u32 s{sIT}, {p.twpos}\ns_cbranch_scc0 L_nu{tag}")
                wo_touch(a, p, fl="")
                a(f"L_nu{tag}:")
        def top(a):
            if loader: kvbook(a)
            a("s_waitcnt lgkmcnt(0)")
            if loader and p.fc:
                out(f"""L_fc{par}:
                s_add_u32 s74, s{sIT}, {par}
                s_add_u32 s75, s74, s{sNONCE}
                v_mov_b32 v2, s75
                s_mov_b64 exec, 1
                global_store_dword v{vFL}, v2, s[82:83] sc1
                s_mov_b64 exec, -1
                s_mov_b32 s76, 0
                s_cmp_lt_u32 s74, {p.fc + 1}
                s_cbranch_scc1 L_fce{par}
                L_fcl{par}:""")
                for j in range(8): out(f"s_sub_u32 s{sPG+j}, s{sPG+j}, s{sNONCE}\ns_cmp_gt_u32 s{sPG+j}, 31\ns_cselect_b32 s{sPG+j}, 0, s{sPG+j}")
                for j in range(1, 8): out(f"s_min_u32 s{sPG}, s{sPG}, s{sPG+j}")
                out(f"""s_add_u32 s{sPG}, s{sPG}, {p.fc}
                s_cmp_ge_u32 s{sPG}, s74
                s_cbranch_scc1 L_fce{par}
                s_add_u32 s76, s76, 1
                s_cmp_ge_u32 s76, {p.fcs}
                s_cbranch_scc1 L_fce{par}
                s_load_dwordx8 s[{sPG}:{sPG+7}], s[82:83], s{sPA} glc
                s_waitcnt lgkmcnt(0)
                s_branch L_fcl{par}
                L_fce{par}:
                s_load_dwordx8 s[{sPG}:{sPG+7}], s[82:83], s{sPA} glc
                s_branch L_fcb{par}""")
            if not p.late:
                if loader and p.pace >= 0:
                    a(f"s_cmp_lt_i32 s{sIT}, s{sSW + par}\ns_cbranch_scc0 L_pc{par}")
                    if p.p6: a(f"s_waitcnt vmcnt({p.pw4})\ns_cmp_eq_u32 s{sIT}, 2\ns_cbranch_scc1 L_pc{par}")
                    a(f"s_waitcnt vmcnt({p.pw2})\nL_pc{par}:")
                if loader and p.px and p.dsw: a(f"s_sub_u32 s{sT2}, s{sIT}, 3\ns_cmp_ge_i32 s{sT2}, s{sSW + par}\ns_cbranch_scc0 L_pd{par}\ns_waitcnt vmcnt(16)\nL_pd{par}:")
                if loader: a(f"s_waitcnt vmcnt({16*(p.kvd - 2)})")
                a("s_barrier")
                if p.aprof: a(f"s_add_u32 s98, s{sIT}, {par - (2 if p.px else 0)}\ns_mov_b32 s99, m0\ns_mov_b32 m0, s98\nv_writelane_b32 v31, s96, m0\ns_memrealtime s[96:97]\ns_mov_b32 m0, s99")
                hooks(a)
        def mid(a):
            if loader and p.pace >= 0:
                a(f"s_cmp_lt_i32 s{sIT}, s{sSW + par}\ns_cbranch_scc0 L_pc{par}\ns_waitcnt vmcnt({p.pw2})")
                if p.pw3 >= 0: a(f"s_bitcmp1_b32 s2, {p.pbit}\ns_cbranch_scc0 L_pc{par}\ns_waitcnt vmcnt({p.pw3})")
                if p.st0 >= 0 and par == 0: a(f"s_cmp_eq_u32 s{sIT}, 0\ns_cbranch_scc0 L_pc{par}\ns_bitcmp1_b32 s2, {p.pbit}\ns_cbranch_scc0 L_pc{par}\ns_waitcnt vmcnt({p.st0})")
                a(f"L_pc{par}:")
            if loader: a(f"s_waitcnt vmcnt({16*(dist - 1)})")
            a("s_barrier")
            if p.aprof: a(f"s_add_u32 s98, s{sIT}, {par}\ns_mov_b32 s99, m0\ns_mov_b32 m0, s98\nv_writelane_b32 v31, s96, m0\ns_memrealtime s[96:97]\ns_mov_b32 m0, s99")
            hooks(a)
        if peeled:
            assert p.late and not p.fc
            def top0(a):
                if loader: kvbook(a)
                a("s_waitcnt lgkmcnt(0)")
            def mid0(a):
                if loader: a(f"s_waitcnt vmcnt({p.pw2 if p.pace >= 1 else 16*(dist - 1)})")
                a("s_barrier")
                if p.aprof: a("s_memrealtime s[96:97]")
            def ins(a, t):
                for u in later:
                    if u[0] == t: conv(a, *u)
            block(a, p, T, 0, loader, top0, mid0, ins)
            continue
        block(a, p, T, par, loader, top, mid)
        hk[par] = hooks
    a(f"s_xor_b32 s{sHI}, s{sHI}, 0x10000\ns_add_u32 s{sIT}, s{sIT}, 2\ns_cmp_lt_u32 s{sIT}, {14 if p.l14 else 16}\ns_cbranch_scc1 L_a{tag}")
    if p.l14:
        assert p.px
        pr = lambda k: f"\nv_writelane_b32 v31, s96, {k}\ns_memrealtime s[96:97]" if p.aprof else ""
        def mid14(a):
            a(("s_waitcnt vmcnt(34)\n" if loader else "") + "s_barrier" + pr(12))
            if not loader and p.tws:
                for j, o in enumerate((0, 8192, 10240)):
                    if p.tws.split(",")[j] == "20": a(f"s_add_u32 s{sT}, s{sTW}, {o}\ns_nop 0\nbuffer_load_dword v{vDUM}, v{vTCH}, s[{sWO}:{sWO+3}], s{sT} offen {p.twfl}")
        block(a, p, T, 0, loader, lambda a: (a("s_waitcnt lgkmcnt(0)"), hk[0](a, True)), mid14, nodma=True, lr=True)
        block(a, p, T, 1, loader, lambda a: (a("s_waitcnt lgkmcnt(0)\ns_barrier" + pr(13)), hk[1](a, True)), None, nodma=True, nord=True)
    S = vS[(2*T - 1) & 1]
    a("s_nop 0")
    for x in soft2(S, T-1): a(x)
    ls = A(); lanesum(ls, T, "v_add_f32")
    ls = [x.strip() for x in ls.l]
    per = -(-len(ls) // 8)
    weave(a, pv(S, aV[1], T-1), [ls[i*per:(i+1)*per] for i in range(8)])
    stamp(a, p, 3)
    a(f"L_e{tag}:")
    if not loader and p.twpos == 16: wo_touch(a, p)
    a(f"v_mov_b32 v6, v{vL}\nv_mov_b32 v7, v{vL}")
    for t in range(1, T): a(f"v_min_u32 v6, v6, v{vL+t}\nv_max_u32 v7, v7, v{vL+t}")
    a(f"""v_cmp_gt_u32 vcc, {(127-20) << 23:#x}, v6
    v_cmp_lt_u32 s[80:81], s{sNEG}, v7
    s_nop 1
    s_or_b64 vcc, vcc, s[80:81]
    {'s_mov_b64 vcc, -1' if p.force else ''}
    s_cbranch_vccz L_ok{tag}
    v_mov_b32 v6, {LFLAG}
    v_mov_b32 v7, 1
    ds_write_b32 v6, v7
    L_ok{tag}:""")
    for t in range(T): a(f"v_rcp_f32 v{vL+t}, v{vL+t}")
    a("s_nop 0")
    buf = 0
    for sp in range(2):
        for n, (t, s) in enumerate([(t, 2*sp + k) for t in range(T) for k in range(2)]):
            A0 = acc(t, 2*s)
            rp = (vL + t) & ~1
            sel = (vL + t) & 1
            for r in range(0, 8, 2): a(f"v_pk_mul_f32 {vr(A0+r, 2)}, {vr(A0+r, 2)}, {vr(rp, 2)} op_sel:[0,{sel}] op_sel_hi:[1,{sel}]")
            if sp == 0 or not p.defer: d = (8, 12, 80, 84)[buf & 3]; buf += 1
            else: d = KEEP[n]
            for r in range(4): a(f"v_cvt_pk_bf16_f32 v{d+r}, v{A0+2*r}, v{A0+2*r+1}")
            a(f"ds_write_b128 v{vOW}, {vr(d)} offset:{(s >> 1)*STG + (s & 1)*9216 + 1024*t}")
            if sp == 0 or not p.defer:
                for x in o_store(p, t, s, d): a(x)
            for r in range(0, 8, 2):
                if A0 + r < v2ACC + 84: a(f"v_pk_mov_b32 {vr(A0+r, 2)}, 0, 0")
    if not loader and p.twpos == 17: wo_touch(a, p)
    a(f"""s_mov_b32 s{gST}, 0
    s_mov_b32 s{gRI}, 0
    s_mov_b32 s{gC1}, {STG}
    s_mov_b32 s{gC2}, {-3*STG}
    s_mov_b32 s{gDL}, {STG}
    s_mov_b32 s{gM0}, {LDSOOB}
    s_mov_b32 m0, {LDSOOB}
    s_mov_b32 s{gSO}, {OOB}
    s_mov_b32 s{gDST}, s{gDL2}
    v_mov_b32 v1, {LFLAG}""")
    if True:
        flag_addr(a, 1, FA)
        CHK = 0x3cf
        a(f"""s_add_u32 s{gFP}, s82, s{sT}
        s_addc_u32 s{gFP+1}, s83, 0
        s_lshl_b32 s{sT}, s4, 2
        v_mov_b32 v{vPA}, s{sT}
        v_mov_b32 v{vNZ}, s{sNONCE}
        s_mov_b32 s{gOFF}, 0
        s_mov_b32 s{gCHK}, {CHK}
        s_cmp_eq_u32 s{sWAVE}, 0
        s_cselect_b32 s{gPOST}, {16 if p.defer else 8}, 0
        s_add_u32 s64, s{sOB}, 18432
        s_add_u32 s65, s{sOB}, 27648
        s_add_u32 s66, s{sOB}, 22528
        s_add_u32 s61, s{sOB}, 31744
        s_mov_b32 s{gMASK}, {7 if loader else CHK | CHK >> 1}
        s_mov_b64 s[{gF}:{gF+1}], 0""")
    a(f"s_waitcnt lgkmcnt(0)\ns_waitcnt vmcnt({4*T if p.exp & 512 else (0 if p.pa < 0 and p.defer else 2*T) + (3 if not loader and p.twpos == 17 else 0)})")
    a("s_branch L_gemm")
    a.l += out.l
    a(f"L_redo{tag}:")
    a(f"s_waitcnt vmcnt(0) lgkmcnt(0)\ns_barrier\nv_mov_b32 v6, {LFLAG}\nv_mov_b32 v7, 0\nds_write_b32 v6, v7")
    for r in list(range(vKA, vKA+4)) + list(range(vVA, vVA+8)): a(f"v_and_b32 v{r}, 0xffff, v{r}")
    for t in range(T): a(f"v_mov_b32 v{vL+t}, 0xff800000")
    for ps in range(2):
        a(f"s_mov_b32 s{sKS}, 0\nL_r{ps}{tag}:")
        if loader:
            emit(a, kv_tile_dma(p, sRB, sKS, (0, 1) if ps == 0 else (0, 1, 2, 3), plain=True), nop=False)
        a("s_waitcnt vmcnt(0)\ns_barrier")
        for x in frag_reads(0, 0)[:8 if ps == 0 else 24]: a(x)
        a("s_waitcnt lgkmcnt(0)\ns_barrier")
        for t in range(T):
            S = vS[0]
            for x in qk(S, aK[0], t, "0" if ps == 0 else vr(vNM + 4*t)): a(x)
            a("s_nop 7")
            if ps == 0:
                for j in range(0, 8, 2): a(f"v_max3_f32 v{vL+t}, v{vL+t}, v{S+j}, v{S+j+1}")
            else:
                for j in range(8): a(f"v_exp_f32 v{S+j}, v{S+j}")
                for x in soft2(S, t) + pv(S, aV[0], t): a(x)
        a(f"s_add_u32 s{sKS}, s{sKS}, 8192\ns_cmp_lt_u32 s{sKS}, 131072\ns_cbranch_scc1 L_r{ps}{tag}")
        if ps == 0:
            lanesum(a, T, "v_max_f32")
            for t in range(T):
                for r in range(4): a(f"v_sub_f32 v{vNM + 4*t + r}, 0, v{vL+t}")
                a(f"v_mov_b32 v{vL+t}, 0")
            for r in range(32 * T): a(f"v_mov_b32 v{vACC+r}, 0")
    a("s_barrier")
    if loader:
        for st in range(4): g_stage_now(a, p.wofl, st)
    lanesum(a, T, "v_add_f32")
    a(f"s_mov_b32 s{gREDO}, 1\ns_branch L_e{tag}")

def g_reads(par, off):
    A_, B_ = a2A[par], a2B[par]
    rd = []
    for nt in range(3):
        reg, o = (v2A, 32 * nt) if nt < 2 else (v2A + 1, 0)
        rd.append(f"ds_read_b64_tr_b16 {ar(A_ + 4*nt, 2)}, v{reg} offset:{off + o}")
        rd.append(f"ds_read_b64_tr_b16 {ar(A_ + 4*nt + 2, 2)}, v{reg} offset:{off + o + 4608}")
    for u in range(9):
        reg, o = (v2B, 1024 * u) if u < 3 else (v2B + 1 + (u - 3) // 2, 1024 * ((u - 3) & 1))
        rd.append(f"ds_read_b128 {ar(B_ + 4*u)}, v{reg} offset:{off + o}" if not (EXP & 256 and u >= 6) else "s_nop 0")
    return rd
def g_mf(par, n3=3):
    return [f"{MF} {vr(acc2(nt, u))}, {ar(a2A[par] + 4*nt)}, {ar(a2B[par] + 4*u)}, {vr(acc2(nt, u))}" for u in range(9) for nt in range(3 if u < n3 else 2)]

def flag_addr(a, hop, base):
    if hop == 1: a(f"s_lshr_b32 s{sT}, s2, 5\ns_lshl_b32 s{sT}, s{sT}, 3\ns_add_u32 s{sT}, s{sT}, s3")
    else: a(f"s_lshr_b32 s{sT}, s2, 2")
    a(f"s_lshl_b32 s{sT}, s{sT}, {8 if hop == 1 else 7}\ns_add_u32 s{sT}, s{sT}, {base}")
def poll_issue(a):
    a(f"s_load_dwordx4 s[{gF}:{gF+3}], s[82:83], s{sT} glc")
def poll(a, tag, hop, base, issued=False, lim=SPIN, fail=None):
    flag_addr(a, hop, base)
    a(f"s_mov_b32 s{sT2}, 0")
    if issued: a(f"s_branch L_pc{tag}")
    a(f"L_p{tag}:")
    poll_issue(a)
    a(f"""L_pc{tag}:
    s_waitcnt lgkmcnt(0)
    s_xor_b32 s{gF}, s{gF}, s{sNONCE}
    s_xor_b32 s{gF+1}, s{gF+1}, s{sNONCE}
    s_xor_b32 s{gF+2}, s{gF+2}, s{sNONCE}
    s_xor_b32 s{gF+3}, s{gF+3}, s{sNONCE}
    s_or_b64 s[{gF}:{gF+1}], s[{gF}:{gF+1}], s[{gF+2}:{gF+3}]
    s_cbranch_scc0 L_pd{tag}
    s_add_u32 s{sT2}, s{sT2}, 1
    s_cmp_lt_u32 s{sT2}, {lim}
    s_cbranch_scc1 L_p{tag}
    {f"s_cmp_eq_u32 {lim}, 0" if fail else ""}
    {f"s_cbranch_scc1 {fail}" if fail else ""}
    L_pd{tag}:""")
def vpoll(a, tag, hop, base):
    flag_addr(a, hop, base)
    a(f"""v_and_b32 v1, 3, v0
    v_lshl_add_u32 v1, v1, 2, s{sT}
    s_mov_b32 s{sT}, 0
    L_p{tag}:
    global_load_dword v2, v1, s[82:83] sc1
    s_add_u32 s{sT}, s{sT}, 1
    s_waitcnt vmcnt(0)
    v_cmp_ne_u32 vcc, s{sNONCE}, v2
    s_cmp_lt_u32 s{sT}, {SPIN}
    s_cbranch_vccz L_pd{tag}
    s_cbranch_scc1 L_p{tag}
    L_pd{tag}:""")
def post(a, hop, base):
    flag_addr(a, hop, base)
    if hop == 1: a(f"s_lshl_b32 s{sT2}, s4, 2")
    else: a(f"s_and_b32 s{sT2}, s2, 3\ns_lshl_b32 s{sT2}, s{sT2}, 2")
    a(f"""s_add_u32 s{sT}, s{sT}, s{sT2}
    v_mov_b32 v1, s{sT}
    v_mov_b32 v2, s{sNONCE}
    s_mov_b64 exec, 1
    global_store_dword v1, v2, s[82:83] sc1
    s_mov_b64 exec, -1""")

gRET = 54
OSO = {(2, 0): 64, (3, 0): 65, (2, 1): 66, (3, 1): 61}
PSETUP = f"""s_and_b32 s{sT}, s3, 3
s_lshl_b32 s60, s{sT}, 4
s_lshr_b32 s61, s3, 2
s_lshl_b32 s61, s61, 3
s_add_u32 s61, s61, s5
s_add_u32 s60, s60, s61
s_lshl_b32 s60, s60, 2
s_add_u32 s60, s60, s4
s_mul_i32 s60, s60, {PBLK}
s_add_u32 s{sW}, s82, {P_OFF}
s_addc_u32 s{sW+1}, s83, 0
s_mov_b32 s{sW+2}, {256*PBLK}
s_mul_i32 s62, s{sWAVE}, 9216
s_add_u32 s62, s62, s60
s_lshl_b32 s63, s{sWAVE}, 1
s_cmp_eq_u32 s{sWAVE}, 0
s_cselect_b32 s{gQ1}, 3, 0
s_cmp_lt_u32 s{sWAVE}, 2
s_cselect_b32 s{gQ2}, 5, 2
s_cmp_lt_u32 s{sWAVE}, 3
s_cselect_b32 s{gQ3}, 7, 4""".split("\n")
def gemm_stage(a, p, role, un, stores, pub=False, start=0, d0=True, d1=True, hook=True, vm=None, last=False, extra=()):
    fl = p.wofl if role == "w" else p.olfl
    d = g_dma(fl)
    n3 = 2 if role == "o" and p.dd else 3
    n = 18 + n3
    sto = lambda n, q: [It(stores[n], q, q)] if n < len(stores) else []
    a("s_waitcnt lgkmcnt(6)")
    r = g_reads(1, 9216)
    upd = [f"v_add_u32 v{x}, s{gDL}, v{x}" for x in (v2A, v2A + 1, v2B, v2B + 1, v2B + 2, v2B + 3)]
    book0 = [f"s_add_u32 s{gRI}, s{gRI}, 1", f"s_and_b32 s{gRI}, s{gRI}, 3", f"s_cmp_eq_u32 s{gRI}, 3", f"s_cselect_b32 s{gDL}, s{gC2}, s{gC1}"]
    book2 = [f"s_and_b32 s{gSRC}, s{gTAB}, 15", f"s_lshr_b64 s[{gTAB}:{gTAB+1}], s[{gTAB}:{gTAB+1}], 4", f"s_add_u32 s{gSRC}, s{gSRC}, s{gP4}",
             f"s_and_b32 s{gSRC}, s{gSRC}, 15", f"s_mul_i32 s{gSRC}, s{gSRC}, s{gSTR}", f"s_add_u32 s{gSRC}, s{gSRC}, s{gLO}"]
    book1 = book2 + [f"s_cmp_ge_u32 s{gST}, 12", f"s_cselect_b32 s{gM0}, {LDSOOB}, s{gDST}", f"s_cselect_b32 s{gSO}, {OOB}, s{gSRC}",
             f"s_add_u32 s{gDST}, s{gDST}, s{gDL}"] + book0 + ([] if un else [f"s_bitcmp1_b32 s{gMASK}, s{gST}"])
    rp = [0, 0, 1, 1, 2, 2, 3, 5, 6, 8, 9, 11, 12, 14, 15]
    dm = flat_dma(d[3:], [4, 7, 10, 13, 16, 19])
    k = next(i for i, x in enumerate(dm) if x.k == "M" and x.lo == 7)
    k2 = next(i for i, x in enumerate(dm) if x.k == "M" and x.lo == 19)
    dm = dm[:k] + sto(0, 5 if role == "o" else 6) + dm[k:k2] + sto(1, 17 if role == "o" else 18) + dm[k2:]
    if not d0: dm = [x for x in dm if x.t.startswith("buffer_store")]
    flo = [It(x, q, q) for x, q in zip(r[:9], rp)] + [It("s_waitcnt lgkmcnt(9)", 7, 8) if n3 == 3 else It("s_waitcnt lgkmcnt(8)", 6, 6)] + [It(x, q, q) for x, q in zip(r[9:], rp[9:])] + \
          dm + sto(3, n - 1) + [It(x, 0, n - 1) for x in upd]
    flo[9].W = {"x"}; flo[9].R = set()
    if n3 == 2: flo[8], flo[9] = flo[9], flo[8]
    for it in flo[7 + n3:16]: it.R = it.R | {"x"}
    gaps, over = schedule(n, [], flo)
    assert any("lgkmcnt" in x for g in gaps[6:6 + n3] for x in g)
    if VERB: print("gemm step0 over", over, file=sys.stderr)
    weave(a, g_mf(0, n3), gaps)
    mf = g_mf(1, n3)
    a("s_waitcnt lgkmcnt(6)")
    if vm is not None or last: book1 = book0
    gaps, over = schedule(6, [], [It(x, 0, 5) for x in book1])
    weave(a, mf[:6], gaps)
    if pub:
        a(f"s_waitcnt vmcnt({sum(1 for x in a.l[start:] if x.strip().startswith('buffer_'))})")
    if vm is not None: a(f"s_waitcnt vmcnt({vm})")
    if last: a("s_waitcnt lgkmcnt(0)\ns_barrier")
    elif un: a(f"s_call_b64 s[{gRET}:{gRET+1}], L_ho" if role == "o" and hook else "s_waitcnt lgkmcnt(0)\ns_barrier")
    if pub and role == "o": a(f"s_lshr_b32 exec_lo, s{gPOST}, 4\ns_mov_b32 exec_hi, 0\nglobal_store_dword v{vPA}, v{vNZ}, s[{gFP}:{gFP+1}] sc1\ns_mov_b64 exec, -1")
    if un: pass
    elif role == "o": a(f"s_cbranch_scc1 L_ho\ns_waitcnt lgkmcnt(0)\ns_waitcnt vmcnt(18)\ns_barrier\nL_hc{role}:")
    elif p.defer: a("s_waitcnt lgkmcnt(0)\ns_waitcnt vmcnt(18)\ns_barrier")
    else: a(f"s_waitcnt lgkmcnt(0)\ns_cbranch_scc1 L_hw\ns_waitcnt vmcnt(18)\nL_hw:\ns_barrier\nL_hc{role}:")
    if p.gprof: a(f"s_mov_b32 m0, s{gST}\nv_writelane_b32 v31, s98, m0\n{'s_memtime' if p.cyc else 's_memrealtime'} s[98:99]")
    r = g_reads(0, 0)
    rp = [0, 0, 1, 1, 2, 2, 3, 4, 5, 7, 8, 10, 11, 13, 14] if n3 == 3 else [0, 0, 1, 1, 2, 2, 3, 4, 5, 7, 8, 10, 11, 13, 13]
    if last: r = []
    gaps, over = schedule(n - 6, [], [It(x, 0, n - 7) for x in extra] + [It(x, q, q) for x, q in zip(r, rp)] + sto(2, 3 if role == "o" else 4) + (flat_dma(d[:3], [6, 9, 12]) if d1 else []) +
                          ([] if last else [It(f"s_add_u32 s{gST}, s{gST}, 1", 7, n - 7)]) + ([] if un else [It(f"s_cmp_lt_u32 s{gST}, {12 if p.tail else 16}", 7, n - 7)]))
    if VERB: print("gemm step1 over", over, file=sys.stderr)
    weave(a, mf[6:], gaps)

def gemm_loop(a, out, p, role):
    fl = p.wofl if role == "w" else p.olfl
    a(f"L_gs{role}:")
    if p.defer:
        T = 5 if role == "o" else 4
        st = [f"buffer_store_dwordx4 {vr(KEEP[n])}, v{vST}, s[{sO}:{sO+3}], s{OSO[(s, int(t == 4))]} offen offset:{1024*(t & 3)} {p.ofl}"
              for n, (t, s) in enumerate([(t, 2 + k) for t in range(T) for k in range(2)])]
        cuts = [0, 4, 7, 10] if T == 5 else [0, 3, 6, 8]
        start = len(a.l)
        for i in range(3):
            o = role == "o"
            gemm_stage(a, p, role, True, st[cuts[i]:cuts[i+1]], p.pa == i, start, d0=not o and i > 0, d1=not o or i == 2, hook=i == 2)
            if o and i == 1:
                j = max(j for j, x in enumerate(a.l) if x.strip() == "s_barrier")
                a.l.insert(j + 1, f"  s_load_dwordx4 s[{gF}:{gF+3}], s[{gFP}:{gFP+1}], s{gOFF} glc")
    elif p.nod:
        if role == "o":
            gemm_stage(a, p, role, True, [], d0=False, d1=False, hook=False)
            gemm_stage(a, p, role, True, [], d0=False, d1=False, hook=False)
            i = max(j for j, x in enumerate(a.l) if x.strip() == "s_barrier")
            a.l.insert(i + 1, f"  s_load_dwordx4 s[{gF}:{gF+3}], s[{gFP}:{gFP+1}], s{gOFF} glc")
            gemm_stage(a, p, role, True, [], d0=False)
        else: gemm_stage(a, p, role, True, [], d0=False)
    if role == "o": a(f"s_getpc_b64 s[{gRET}:{gRET+1}]\nL_gp:\ns_add_u32 s{gRET}, s{gRET}, L_hco-L_gp\ns_addc_u32 s{gRET+1}, s{gRET+1}, 0")
    align(a, p)
    a(f"L_g{role}:")
    gemm_stage(a, p, role, False, [])
    a(f"s_cbranch_scc1 L_g{role}")
    if p.tail:
        gemm_stage(a, p, role, True, [], d1=False, hook=False, vm=18)
        gemm_stage(a, p, role, True, [], d0=False, d1=False, hook=False, vm=9)
        gemm_stage(a, p, role, True, [], d0=False, d1=False, hook=False, vm=0)
        gemm_stage(a, p, role, True, [], d0=False, d1=False, hook=False, last=True, extra=PSETUP)
    if role == "w": return
    out(f"""L_ho:
    s_waitcnt lgkmcnt(0)
    s_bitcmp1_b32 s{gCHK}, s{gST}
    s_cbranch_scc0 L_hx
    s_mov_b32 s{sT2}, 0
    L_hk:
    s_xor_b64 s[{gF}:{gF+1}], s[{gF}:{gF+1}], s[{gNN}:{gNN+1}]
    s_xor_b64 s[{gF+2}:{gF+3}], s[{gF+2}:{gF+3}], s[{gNN}:{gNN+1}]
    s_or_b64 s[{gF}:{gF+1}], s[{gF}:{gF+1}], s[{gF+2}:{gF+3}]
    s_cbranch_scc0 L_hr
    s_bitcmp1_b32 {p.spm:#x}, s{gST}
    s_cbranch_scc1 L_hs
    s_mov_b32 s{gM0}, {LDSOOB}
    s_mov_b32 s{gSO}, {OOB}
    L_hx:
    s_cmp_lt_u32 s{gST}, 3
    s_cbranch_scc1 L_hn
    s_waitcnt vmcnt(18)
    L_hn:
    s_barrier
    s_lshr_b32 s{sT}, s{gCHK}, 1
    s_bitcmp1_b32 s{sT}, s{gST}
    s_cbranch_scc0 L_hp
    s_load_dwordx4 s[{gF}:{gF+3}], s[{gFP}:{gFP+1}], s{gOFF} glc
    L_hp:
    {f"s_cmp_eq_u32 s{gST}, {p.tsplit}" if p.tsplit >= 0 else ""}
    {"s_cbranch_scc1 L_ht" if p.tsplit >= 0 else ""}
    L_hq:
    s_bitcmp1_b32 s{gPOST}, s{gST}
    s_cbranch_scc0 L_hz
    s_mov_b64 exec, 1
    global_store_dword v{vPA}, v{vNZ}, s[{gFP}:{gFP+1}] offset:128 sc1
    s_mov_b64 exec, -1
    L_hz:
    s_setpc_b64 s[{gRET}:{gRET+1}]
    L_hs:
    s_add_u32 s{sT2}, s{sT2}, 1
    s_cmp_ge_u32 s{sT2}, {SPIN}
    s_cbranch_scc1 L_hr
    s_load_dwordx4 s[{gF}:{gF+3}], s[{gFP}:{gFP+1}], s{gOFF} glc
    s_waitcnt lgkmcnt(0)
    s_branch L_hk
    L_hr:
    s_mov_b32 s44, s{gM0}
    s_mov_b32 s45, s{gSO}
    s_cmp_eq_u32 s{gOFF}, 0
    s_cbranch_scc0 L_hr1""")
    for ph, lo in enumerate((0, 6)):
        out(f"L_hr{ph}:")
        if ph == 0 and p.pst < 10: stamp(out, p, 5)
        out(f"s_movk_i32 s{gOFF}, 128\ns_and_b32 s{gCHK}, s{gCHK}, {0x3c0 if ph == 0 else 0}\ns_mov_b32 s{gMASK}, {(0x3ff if p.defer else 0x3ef) if ph == 0 else 0}")
        for j in range(3):
            out(f"s_cmp_gt_u32 s{gST}, {lo + j}\ns_cbranch_scc0 L_hy")
            g_stage_now(out, fl, lo + 4 + j)
        if ph == 0: out("s_branch L_hy")
    out(f"L_hy:\ns_mov_b32 s{gM0}, s44\ns_mov_b32 s{gSO}, s45\ns_branch L_hx")
    if p.tsplit >= 0:
        out("L_ht:")
        wo_touch_part(out, p, 1)
        out("s_branch L_hq")

def back(a, p):
    out = A()
    a(f"""L_gemm:
    s_barrier""")
    stamp(a, p, 4)
    a("ds_read_b32 v2, v1")
    rd0 = g_reads(0, 0)
    for x in rd0[:12]: a(x)
    a(f"""s_waitcnt lgkmcnt(12)
    v_readfirstlane_b32 s{sT}, v2
    {rd0[12]}
    {rd0[13]}
    {rd0[14]}
    s_andn2_b32 s{sT}, s{sT}, s{gREDO}
    s_cbranch_scc1 L_redo
    s_mov_b32 s{gNN}, s{sNONCE}
    s_mov_b32 s{gNN+1}, s{sNONCE}
    s_bitcmp1_b32 s{sWAVE}, 0
    s_cbranch_scc1 L_gsw
""")
    if p.pa < 0: a(f"""s_lshr_b32 exec_lo, s{gPOST}, {4 if p.defer else 3}
    s_mov_b32 exec_hi, 0
    global_store_dword v{vPA}, v{vNZ}, s[{gFP}:{gFP+1}] sc1
    s_mov_b64 exec, -1""")
    if p.twpos == 18: wo_touch(a, p)
    o_touch(a, p, 0)
    out(f"""L_redo:
    s_bitcmp1_b32 s{sWAVE}, 0
    s_cbranch_scc1 L_redos
    s_branch L_redob""")
    gemm_loop(a, out, p, "o")
    a("s_branch L_ge")
    gemm_loop(a, out, p, "w")
    a("L_ge:")
    stamp(a, p, 6)
    if not p.tail:
        for x in PSETUP: a(x)
    a("""v_and_b32 v2, 63, v0\nv_lshlrev_b32 v3, 4, v2\nv_lshlrev_b32 v4, 3, v2""")
    qs = [63, 63, 63, gQ1, gQ1, gQ2, gQ2, gQ3, gQ3]
    qo = [0, 1, 2, 0, 1, 0, 1, 0, 1]
    a(f"s_and_b32 s{sT}, s3, 3\ns_cmp_eq_u32 s{sT}, s{sWAVE}\ns_cbranch_scc1 L_own")
    for own in range(2):
        if own: a(f"s_branch L_pe\nL_own:")
        for u in range(9):
            d = 8 + 4 * (u & 3)
            A0, B0 = acc2(0, u), acc2(1, u)
            a(f"v_cvt_pk_bf16_f32 v{d}, v{A0}, v{A0+1}\nv_cvt_pk_bf16_f32 v{d+1}, v{A0+2}, v{A0+3}\nv_cvt_pk_bf16_f32 v{d+2}, v{B0}, v{B0+1}\nv_cvt_pk_bf16_f32 v{d+3}, v{B0+2}, v{B0+3}")
            if own:
                if qo[u] == 0: a(f"s_lshl_b32 s{sT}, s{qs[u]}, 10\nv_add_u32 v5, s{sT}, v3")
                a(f"ds_write_b128 v5, {vr(d)} offset:{PL + 1024*qo[u]}")
            else:
                a(f"s_lshl_b32 s{sT}, s{qs[u]}, 10\ns_add_u32 s{sT}, s{sT}, s62")
                a(f"buffer_store_dwordx4 {vr(d)}, v3, s[{sW}:{sW+3}], s{sT} offen offset:{1024*qo[u]} {p.pfl}")
        if not own: a(f"s_lshl_b32 s{sT}, s63, 9\ns_add_u32 s{sT}, s{sT}, s60\ns_add_u32 s{sT}, s{sT}, 36864")
        for u in range(3):
            d = 24 + 2 * u
            A0 = acc2(2, u)
            if u == 2 and not own: a(f"s_cmp_eq_u32 s{sWAVE}, 3\ns_cbranch_scc0 L_pe")
            a(f"v_cvt_pk_bf16_f32 v{d}, v{A0}, v{A0+1}\nv_cvt_pk_bf16_f32 v{d+1}, v{A0+2}, v{A0+3}")
            if own: a(f"ds_write_b64 v4, {vr(d, 2)} offset:{PL + 9216 + 512*u}")
            else: a(f"buffer_store_dwordx2 {vr(d, 2)}, v4, s[{sW}:{sW+3}], s{sT} offen offset:{512*u} {p.pfl}")
    a("L_pe:")
    if p.pst == 10: stamp(a, p, 5)
    a("s_load_dwordx2 s[68:69], s[0:1], 80")
    a(f"""s_and_b32 s64, s3, 3
    s_lshl_b32 s65, s61, 2
    s_add_u32 s65, s65, s4
    s_mul_i32 s65, s65, {PBLK}
    s_mul_i32 s66, s64, 9216
    s_add_u32 s66, s66, s65
    s_lshl_b32 s{sT}, s{sWAVE}, 10
    s_add_u32 s66, s66, s{sT}
    s_lshl_b32 s67, s64, 1
    s_add_u32 s67, s67, s{sWAVE}
    s_sub_u32 s67, s67, 1
    s_lshl_b32 s72, s67, 9
    s_add_u32 s72, s72, s65
    s_add_u32 s72, s72, 36864
    s_lshr_b32 s73, s3, 2
    s_mul_i32 s73, s73, 1152
    s_mul_i32 s{sT}, s4, 288
    s_add_u32 s73, s73, s{sT}
    s_mul_i32 s{sT}, s5, {144*2304}
    s_add_u32 s73, s73, s{sT}
    s_mul_i32 s74, s67, {16*2304}
    s_add_u32 s74, s74, s73
    s_add_u32 s74, s74, 256
    s_lshl_b32 s{sT}, s64, 6
    s_add_u32 s73, s73, s{sT}
    s_mul_i32 s{sT}, s{sWAVE}, {16*2304}
    s_add_u32 s73, s73, s{sT}
    s_cmp_eq_u32 s{sWAVE}, 3
    s_cselect_b32 s75, 8, s67
    s_cmp_eq_u32 s75, s67
    s_cselect_b32 s72, s72, {OOB}
    s_cselect_b32 s74, s74, {OOB}
    v_and_b32 v5, 15, v2
    s_movk_i32 s{sT}, 2304
    v_lshrrev_b32 v6, 4, v2
    v_lshlrev_b32 v6, 3, v6
    v_mad_u32_u24 v7, v5, s{sT}, v6
    s_mov_b32 s70, {8*144*1152*2}
    s_mov_b32 s71, 0x20000
    s_add_u32 s76, s64, 1
    s_add_u32 s77, s64, 2
    s_add_u32 s78, s64, 3
    s_and_b32 s76, s76, 3
    s_and_b32 s77, s77, 3
    s_and_b32 s78, s78, 3
    s_mul_i32 s76, s76, {64*PBLK}
    s_mul_i32 s77, s77, {64*PBLK}
    s_mul_i32 s78, s78, {64*PBLK}
    v_add_u32 v9, 4096, v3
    s_lshl_b32 s{sT}, s{sWAVE}, 10
    v_add_u32 v10, s{sT}, v3
    s_lshl_b32 s{sT}, s{sWAVE}, 9
    v_add_u32 v11, s{sT}, v4
    s_waitcnt vmcnt(0) lgkmcnt(0)
    s_barrier
    s_cmp_eq_u32 s{sWAVE}, 0
    s_cbranch_scc0 L_n1""")
    if p.pst == 11: stamp(a, p, 5)
    post(a, 2, F2)
    a(f"ds_read_b128 v[128:131], v3 offset:{PL + 8192}\ns_branch L_n2\nL_n1:\nds_read_b64 v[128:129], v11 offset:{PL + 9216 - 512}\nL_n2:")
    a(f"ds_read_b128 v[96:99], v10 offset:{PL}\nds_read_b128 v[112:115], v10 offset:{PL + 4096}")
    if p.dyn:
        own = [96, 97, 98, 99, 112, 113, 114, 115, 128, 129, 130, 131]
        flag_addr(a, 2, F2)
        a(f"""v_and_b32 v1, 3, v0
        v_lshl_add_u32 v1, v1, 2, s{sT}
        s_add_u32 s75, s66, 8192
        s_cmp_eq_u32 s{sWAVE}, 0
        s_cselect_b32 s75, s75, s72
        s_cselect_b64 vcc, -1, 0
        v_cndmask_b32 v8, v4, v3, vcc
        s_add_u32 s64, s64, 1
        s_mov_b32 s65, 7
        s_mov_b32 s{sT2}, 0
        global_load_dword v2, v1, s[82:83] sc1
        s_waitcnt lgkmcnt(0)""")
        for i, r in enumerate(own): a(f"v_lshlrev_b32 v{180+2*i}, 16, v{r}\nv_and_b32 v{181+2*i}, 0xffff0000, v{r}")
        a(f"""s_branch L_q2
        L_q1:
        global_load_dword v2, v1, s[82:83] sc1
        L_q2:
        s_add_u32 s{sT2}, s{sT2}, 1
        s_waitcnt vmcnt(0)
        v_cmp_eq_u32 vcc, s{sNONCE}, v2
        s_cmp_ge_u32 s{sT2}, {SPIN}
        s_cselect_b32 s67, -1, vcc_lo
        s_lshr_b32 s67, s67, s64
        s_and_b32 s67, s67, s65
        s_cbranch_scc0 L_q1""")
        for k in range(3):
            a(f"""s_bitcmp1_b32 s67, {k}
            s_cbranch_scc0 L_q3{k}
            s_add_u32 s{sT}, s66, s{76+k}
            s_add_u32 s60, s75, s{76+k}
            buffer_load_dwordx4 {vr(96 + 12*k)}, v3, s[{sW}:{sW+3}], s{sT} offen {p.plfl}
            buffer_load_dwordx4 {vr(100 + 12*k)}, v9, s[{sW}:{sW+3}], s{sT} offen {p.plfl}
            buffer_load_dwordx4 {vr(104 + 12*k)}, v8, s[{sW}:{sW+3}], s60 offen {p.plfl}
            L_q3{k}:""")
        a("s_andn2_b32 s65, s65, s67\ns_waitcnt vmcnt(0)")
        for k in range(3):
            a(f"s_bitcmp1_b32 s67, {k}\ns_cbranch_scc0 L_q4{k}")
            for i in range(12):
                r = 96 + 12*k + i; t = 80 + 2 * (i & 1)
                a(f"v_lshlrev_b32 v{t}, 16, v{r}\nv_and_b32 v{t+1}, 0xffff0000, v{r}\nv_pk_add_f32 {vr(180+2*i, 2)}, {vr(180+2*i, 2)}, {vr(t, 2)}")
            a(f"L_q4{k}:")
        a("s_cmp_eq_u32 s65, 0\ns_cbranch_scc0 L_q1")
        stamp(a, p, 7)
        for i in range(12):
            a(f"v_cvt_pk_bf16_f32 v{12+i}, v{180+2*i}, v{181+2*i}")
            if i in (3, 7):
                a(f"buffer_store_dwordx2 {vr(9+i, 2)}, v7, s[68:71], s73 offen {p.outfl}\nbuffer_store_dwordx2 {vr(11+i, 2)}, v7, s[68:71], s73 offen offset:32 {p.outfl}\ns_add_u32 s73, s73, {64*2304}")
        a(f"""s_cmp_eq_u32 s{sWAVE}, 0
        s_cselect_b32 s74, s73, s74
        s_cselect_b32 s73, s73, {OOB}
        s_nop 0
        buffer_store_dwordx2 v[20:21], v7, s[68:71], s74 offen {p.outfl}
        buffer_store_dwordx2 v[22:23], v7, s[68:71], s73 offen offset:32 {p.outfl}""")
    else:
        if p.vp2: vpoll(a, "2", 2, F2)
        else: poll(a, "2", 2, F2)
        stamp(a, p, 7)
        def red(src, stride, n, dst):
            for i in range(n):
                for k in range(4):
                    r = src + stride * k + i
                    if k == 0: a(f"v_lshlrev_b32 v80, 16, v{r}\nv_and_b32 v81, 0xffff0000, v{r}")
                    else: a(f"v_lshlrev_b32 v82, 16, v{r}\nv_and_b32 v83, 0xffff0000, v{r}\nv_pk_add_f32 v[80:81], v[80:81], v[82:83]")
                a(f"v_cvt_pk_bf16_f32 v{dst+i}, v80, v81")
        for u in range(2):
            for k in range(3):
                a(f"s_add_u32 s{sT}, s66, s{76+k}\nbuffer_load_dwordx4 {vr(100 + 16*u + 4*k)}, v{3 if u == 0 else 9}, s[{sW}:{sW+3}], s{sT} offen {p.plfl}")
        a(f"s_cmp_eq_u32 s{sWAVE}, 0\ns_cbranch_scc0 L_r3\ns_add_u32 s66, s66, 8192")
        for k in range(3):
            a(f"s_add_u32 s{sT}, s66, s{76+k}\nbuffer_load_dwordx4 {vr(132 + 4*k)}, v3, s[{sW}:{sW+3}], s{sT} offen {p.plfl}")
        a("s_branch L_r4\nL_r3:")
        for k in range(3):
            a(f"s_add_u32 s{sT}, s72, s{76+k}\nbuffer_load_dwordx2 {vr(132 + 4*k, 2)}, v4, s[{sW}:{sW+3}], s{sT} offen {p.plfl}")
        a("L_r4:\ns_waitcnt lgkmcnt(0)")
        for u in range(2):
            a(f"s_waitcnt vmcnt({6 - u})")
            if p.pst == 12 and u == 0: stamp(a, p, 5)
            red(96 + 16*u, 4, 4, 12 + 4*u)
            a(f"buffer_store_dwordx2 {vr(12+4*u, 2)}, v7, s[68:71], s73 offen {p.outfl}\nbuffer_store_dwordx2 {vr(14+4*u, 2)}, v7, s[68:71], s73 offen offset:32 {p.outfl}")
            a(f"s_add_u32 s73, s73, {64*2304}")
        a("s_waitcnt vmcnt(4)")
        if p.pst == 13: stamp(a, p, 5)
        a(f"s_cmp_eq_u32 s{sWAVE}, 0\ns_cbranch_scc0 L_r5")
        red(128, 4, 4, 20)
        a(f"buffer_store_dwordx2 v[20:21], v7, s[68:71], s73 offen {p.outfl}\nbuffer_store_dwordx2 v[22:23], v7, s[68:71], s73 offen offset:32 {p.outfl}\ns_branch L_r6\nL_r5:")
        red(128, 4, 2, 20)
        a(f"buffer_store_dwordx2 v[20:21], v7, s[68:71], s74 offen {p.outfl}\nL_r6:")
    if p.pst == 14: stamp(a, p, 5)
    if p.stamps:
        a("s_waitcnt vmcnt(0)")
        if not p.pst or p.pst >= 10: stamp(a, p, 8)
        stamp_store(a, p)
    a("L_end:\ns_endpgm")
    a.l += out.l

def kernel(p, K):
    a = A()
    a("s_cmp_ge_u32 s2, 256\ns_cbranch_scc1 L_end")
    if p.perm == 1: a("s_mul_i32 s2, s2, 37\ns_add_u32 s2, s2, 11\ns_and_b32 s2, s2, 255")
    if p.perm == 2: a("s_lshr_b32 s3, s2, 3\ns_and_b32 s2, s2, 7\ns_lshl_b32 s2, s2, 5\ns_or_b32 s2, s2, s3")
    if p.perm == 3: a("s_lshr_b32 s3, s2, 5\ns_and_b32 s2, s2, 31\ns_lshl_b32 s2, s2, 3\ns_or_b32 s2, s2, s3")
    stamp(a, p, 0)
    a(f"""
    s_load_dwordx8 s[52:59], s[0:1], 0
    s_load_dwordx8 s[60:67], s[0:1], 40
    s_load_dwordx2 s[82:83], s[0:1], 96
    s_load_dwordx2 s[94:95], s[0:1], 32
    s_load_dwordx2 s[96:97], s[0:1], 72
    s_load_dwordx2 s[98:99], s[0:1], 88
    v_lshrrev_b32 v1, 6, v0
    v_and_b32 v2, 63, v0
    v_readfirstlane_b32 s{sWAVE}, v1
    s_and_b32 s3, s2, 7
    s_lshr_b32 s4, s2, 3
    s_lshr_b32 s5, s4, 2
    s_and_b32 s4, s4, 3
    s_and_b32 s6, s3, 3
    s_lshl_b32 s6, s6, 3
    s_lshl_b32 s7, s4, 1
    s_add_u32 s6, s6, s7
    s_lshr_b32 s{sHL}, s{sWAVE}, 1
    s_add_u32 s7, s6, s{sHL}
    s_lshl_b32 s{sRB}, s{sHL}, 15
    """)
    if p.rotm == 0: a(f"s_lshr_b32 s{sROT}, s2, 2\ns_and_b32 s{sROT}, s{sROT}, 14\ns_add_u32 s{sROT}, s{sROT}, s{sHL}\ns_lshl_b32 s{sROT}, s{sROT}, 1")
    elif p.rotm == 1: a(f"s_lshr_b32 s{sROT}, s2, 2\ns_and_b32 s{sROT}, s{sROT}, 30\ns_add_u32 s{sROT}, s{sROT}, s{sHL}")
    elif p.rotm == 2: a(f"s_lshr_b32 s{sROT}, s2, 3\ns_lshl_b32 s{sT}, s{sHL}, 4\ns_add_u32 s{sROT}, s{sROT}, s{sT}")
    elif p.rotm == 3: a(f"s_lshl_b32 s{sROT}, s2, 1\ns_add_u32 s{sROT}, s{sROT}, s{sHL}\ns_mul_i32 s{sROT}, s{sROT}, 0x9e3779b1\ns_lshr_b32 s{sROT}, s{sROT}, 27")
    elif p.rotm == 4: a(f"s_lshr_b32 s{sROT}, s2, 2\ns_and_b32 s{sROT}, s{sROT}, 14\ns_add_u32 s{sROT}, s{sROT}, s{sHL}\ns_lshl_b32 s{sROT}, s{sROT}, 1\ns_bfe_u32 s{sT}, s2, 0x10006\ns_add_u32 s{sROT}, s{sROT}, s{sT}")
    a(f"""
    v_lshrrev_b32 v3, 4, v2
    v_and_b32 v4, 15, v2
    v_lshlrev_b32 v5, 1, v3
    v_xor_b32 v5, v5, v4
    v_lshlrev_b32 v5, 4, v5
    v_lshl_add_u32 v{vE}, v3, 8, v5
    v_xor_b32 v{vO_}, 128, v{vE}
    v_lshl_add_u32 v{vWE}, v3, 13, v5
    s_lshl_b32 s{sT}, s7, 8
    v_add_u32 v{vWE}, s{sT}, v{vWE}
    v_xor_b32 v{vWO}, 128, v{vWE}
    v_add_u32 v{vWO}, {8*8192 - 1024}, v{vWO}
    s_lshl_b32 s{sT}, s{sHL}, 2
    v_add_u32 v5, s{sT}, v3
    v_and_b32 v6, 7, v2
    v_xor_b32 v5, v5, v6
    v_lshlrev_b32 v5, 4, v5
    v_lshrrev_b32 v6, 3, v2
    s_lshl_b32 s{sT}, s{sHL}, 3
    v_add_u32 v6, s{sT}, v6
    s_movk_i32 s{sT}, 1152
    v_mad_u32_u24 v{vX}, v6, s{sT}, v5
    s_waitcnt lgkmcnt(0)
    s_cmp_ge_u32 s3, 4
    s_cselect_b32 s52, s60, s52
    s_cselect_b32 s53, s61, s53
    s_cselect_b32 s54, s62, s54
    s_cselect_b32 s55, s63, s55
    s_cselect_b32 s56, s64, s56
    s_cselect_b32 s57, s65, s57
    s_cselect_b32 s58, s66, s58
    s_cselect_b32 s59, s67, s59
    s_cselect_b32 s94, s96, s94
    s_cselect_b32 s95, s97, s95
    s_mul_i32 s{sT}, s5, 165888
    s_add_u32 s{sX}, s52, s{sT}
    s_addc_u32 s{sX+1}, s53, 0
    s_mov_b32 s{sX+2}, 165888
    s_mov_b32 s{sX+3}, 0x20000
    s_mov_b32 s{sW}, s58
    s_mov_b32 s{sW+1}, s59
    s_mov_b32 s{sW+2}, 4718592
    s_mov_b32 s{sW+3}, 0x20000
    s_and_b32 s76, s{sWAVE}, 1
    s_mul_i32 s{sXB}, s{sHL}, 24576
    s_add_u32 s{sXB}, s{sXB}, {WQB}
    s_mul_i32 s{sXS0}, s76, {5*18432}
    s_mul_i32 s{sXM0}, s76, {5*2048}
    s_lshl_b32 s{sT}, s{sHL}, 10
    s_add_u32 s{sXM0}, s{sXM0}, s{sT}
    s_add_u32 s{sXM0}, s{sXM0}, {XBUF}
    s_lshl_b32 s77, s76, 12
    s_add_u32 s77, s77, s{sXB}
    s_lshl_b32 s78, s76, 17
    """)
    def xload(c, a=a, T=None):
        if p.c0: a(f"s_mov_b32 s{sXS}, 0" if c == 0 else f"s_add_u32 s{sXS}, s{sKROT}, 1\ns_lshl_b32 s{sXS}, s{sXS}, 7")
        else: a(f"s_add_u32 s{sXS}, s{sKROT}, {c}\ns_sub_u32 s{sXM}, s{sXS}, 9\ns_cselect_b32 s{sXS}, s{sXS}, s{sXM}\ns_lshl_b32 s{sXS}, s{sXS}, 7")
        a(f"s_add_u32 s{sXM}, s{sXM0}, {18432*c}\ns_add_u32 s{sXS}, s{sXS0}, s{sXS}")
        if T: return emit(a, x_dma(p, T))
        g = x_dma(p, 5)
        emit(a, g[:4])
        a(f"s_cmp_eq_u32 s76, 1\ns_cbranch_scc1 L_x{c}")
        emit(a, g[4:])
        a(f"L_x{c}:")
    def wload(k, a=a):
        a(f"s_add_u32 s{sWM}, s77, {8192*k}\ns_add_u32 s{sWS2}, s{sWS}, {4*8192 - 2048}")
        emit(a, w_dma(p), nop=False)
        emit(a, [w_adv(p)], nop=False)
    a(f"s_mov_b32 s60, s54\ns_mov_b32 s61, s55")
    if p.krot: a(f"s_lshr_b32 s{sKROT}, s4, {p.ksh}\ns_mul_i32 s{sKROT}, s{sKROT}, {p.kc}\ns_andn2_b32 s{sT}, s5, {(1 << p.kbs) - 1}\ns_add_u32 s{sKROT}, s{sKROT}, s{sT}\n" + (f"s_and_b32 s{sKROT}, s{sKROT}, 7" if p.c0 else f"s_sub_u32 s{sT}, s{sKROT}, 9\ns_cselect_b32 s{sKROT}, s{sKROT}, s{sT}"))
    else: a(f"s_mov_b32 s{sKROT}, 0")
    if p.c0: a(f"s_mov_b32 s{sWS}, s78\ns_add_u32 s{sWEND}, s78, {576*8192}")
    else: a(f"s_lshl_b32 s{sWS}, s{sKROT}, 19\ns_add_u32 s{sWS}, s{sWS}, s78\ns_add_u32 s{sWEND}, s78, {576*8192}")
    if p.rotm == 9:
        a(f"s_lshl_b32 s{sT}, s2, 1\ns_add_u32 s{sT}, s{sT}, s{sHL}\ns_lshl_b32 s{sT}, s{sT}, 2\ns_add_u32 s{sT}, s{sT}, {220 << 20}\ns_load_dword s{sROT}, s[82:83], s{sT}\ns_waitcnt lgkmcnt(0)")
    if p.pst == 1: stamp(a, p, 8)
    xload(0); wload(0)
    if p.pst == 2: stamp(a, p, 8)
    if p.pw >= 0: a(f"s_waitcnt vmcnt({p.pw})")
    wload(1)
    a(f"""
    s_mul_i32 s{sS0}, s4, {p.stag}
    s_add_u32 s{sS0}, s{sS0}, {p.s0}
    s_lshl_b32 s{sT}, s5, 5
    s_add_u32 s{sT}, s{sT}, s7
    s_lshl_b32 s{sT2}, {'s3' if p.kvsame else f's{sT}'}, 17
    s_add_u32 s{sK}, s60, s{sT2}
    s_addc_u32 s{sK+1}, s61, 0
    s_mov_b32 s{sK+2}, 131072
    s_mov_b32 s{sK+3}, 0x20000
    s_add_u32 s{sV}, s56, s{sT2}
    s_addc_u32 s{sV+1}, s57, 0
    s_mov_b32 s{sV+2}, 131072
    s_mov_b32 s{sV+3}, 0x20000
    s_mov_b32 s{sO}, s82
    s_mov_b32 s{sO+1}, s83
    s_mov_b32 s{sO+2}, {O_BYTES}
    s_mov_b32 s{sO+3}, 0x20000
    s_lshr_b32 s{sT2}, s3, 2
    s_lshl_b32 s{sT2}, s{sT2}, 8
    s_add_u32 s{sT}, s{sT}, s{sT2}
    s_mul_i32 s{sOB}, s{sT}, {4*9216}
    s_mov_b32 s{sWO}, s94
    s_mov_b32 s{sWO+1}, s95
    s_mov_b32 s{sWO+2}, 4718592
    s_mov_b32 s{sWO+3}, 0x20000
    s_and_b32 s{sTW}, s3, 3
    s_lshl_b32 s{sTW}, s{sTW}, 5
    s_lshr_b32 s{sT}, s2, 3
    s_add_u32 s{sTW}, s{sTW}, s{sT}
    s_lshl_b32 s{sTW}, s{sTW}, 1
    s_add_u32 s{sTW}, s{sTW}, s{sHL}
    s_mul_i32 s{sTW}, s{sTW}, 18432
    s_cmp_eq_u32 s76, 1
    s_cselect_b32 s{sKV}, s{sV}, s{sK}
    s_cselect_b32 s{sKV+1}, s{sV+1}, s{sK+1}
    s_mov_b32 s{sKV+2}, 131072
    s_mov_b32 s{sKV+3}, 0x20000
    s_lshl_b32 s{sT2}, s76, 13
    s_add_u32 s{sT2}, s{sT2}, s{sRB}
    s_mov_b32 s6, s98
    s_mov_b32 s7, s99
    v_lshlrev_b32 v{vTCH}, 7, v2
    s_mov_b32 s{sIT}, -2
    """)
    def batch2(a, T):
        emit(a, kv_book(p), nop=False); emit(a, kv_dma(p), nop=False)
        xload(1, a, T)
        if p.c0: a(f"s_add_u32 s78, s78, {64*8192}\ns_lshl_b32 s{sWS}, s{sKROT}, 19\ns_add_u32 s{sWS}, s{sWS}, s78")
        a(f"s_add_u32 s{sWM}, s77, {8192*2}\ns_mov_b32 s{WSr[1]}, s{sWS}\ns_add_u32 s{WS2r[1]}, s{sWS}, {4*8192 - 2048}")
        emit(a, w_dma(p, 1)[:4 - p.wsh], nop=False)
        emit(a, [w_adv(p)], nop=False)
        a(f"s_mov_b32 s{sIT}, 0")
        emit(a, kv_book(p), nop=False)
        a(f"s_mov_b32 s{sWM}, s77\ns_add_u32 s{sWS2}, s{sWS}, {4*8192 - 2048}")
    if not p.early: batch2(a, None)
    p.batch2 = batch2
    a(f"s_cmp_eq_u32 s{sWAVE}, 0\ns_cbranch_scc0 L_nc")
    if p.touch_code:
        a(f"""s_getpc_b64 s[80:81]
        L_pc:
        s_sub_u32 s80, s80, L_pc-{K}
        s_subb_u32 s81, s81, 0
        s_lshr_b32 s{sT}, s2, 3
        s_and_b32 s{sT}, s{sT}, 15
        s_lshl_b32 s{sT}, s{sT}, 13
        v_add_u32 v8, s{sT}, v{vTCH}
        s_mov_b32 s{sT}, L_codeend-{K}-4
        v_min_u32 v8, s{sT}, v8
        global_load_dword v{vDUM}, v8, s[80:81]""")
    a(f"""v_mov_b32 v8, {LFLAG}
    v_mov_b32 v9, 0
    ds_write_b32 v8, v9
    s_cmp_lt_u32 s2, 8
    s_cbranch_scc0 L_nc
    s_memrealtime s[80:81]
    v_mov_b32 v11, 0
    s_waitcnt lgkmcnt(0)
    s_or_b32 s80, s80, 1
    v_mov_b32 v10, s80
    s_mov_b64 exec, 1
    global_atomic_cmpswap v9, v[10:11], s[6:7] sc1
    s_mov_b64 exec, -1
    L_nc:""")
    a(f"""
    v_and_b32 v5, 7, v4
    v_lshlrev_b32 v5, 1, v5
    v_xor_b32 v5, v5, v3
    v_lshlrev_b32 v5, 4, v5
    v_lshl_add_u32 v5, v4, 8, v5
    v_add_u32 v{vKA}, s{sRB}, v5
    v_xor_b32 v{vKA+1}, 64, v{vKA}
    v_xor_b32 v{vKA+2}, 128, v{vKA}
    v_xor_b32 v{vKA+3}, 192, v{vKA}
    v_bfe_u32 v5, v2, 2, 2
    v_and_b32 v6, 1, v3
    v_lshl_add_u32 v5, v6, 2, v5
    v_lshrrev_b32 v6, 1, v3
    v_lshl_add_u32 v6, v6, 4, v5
    v_lshlrev_b32 v5, 1, v5
    v_bfe_u32 v7, v2, 1, 1
    v_xor_b32 v5, v5, v7
    v_lshlrev_b32 v5, 4, v5
    v_and_b32 v7, 1, v2
    v_lshl_add_u32 v5, v7, 3, v5
    v_lshl_add_u32 v5, v6, 8, v5
    v_add_u32 v{vVA}, s{sXB}, v5
    s_mov_b32 s{sXB}, s77""")
    for dt in range(1, 8): a(f"v_xor_b32 v{vVA+dt}, {32*dt}, v{vVA}")
    a(f"""
    v_lshrrev_b32 v5, 1, v4
    v_xor_b32 v5, v5, v3
    v_lshlrev_b32 v5, 4, v5
    v_lshl_add_u32 v5, v4, 7, v5
    s_mul_i32 s79, s76, {4*2048}
    s_add_u32 s79, s79, {XBUF}
    v_add_u32 v{vXA}, s79, v5
    v_xor_b32 v{vXA+1}, 64, v{vXA}
    s_mul_i32 s79, s76, {5*1024}
    v_lshl_add_u32 v{vST}, v2, 4, s79
    s_mul_i32 s79, s{sHL}, {2*STG}
    v_add_u32 v{vOW}, s79, v{vST}
    s_mov_b32 s{sSC}, 0x3e0293ee
    s_mov_b32 s{sWSL}, 0
    s_mov_b32 s{sC}, 8192
    s_mov_b32 s{sNEG}, -16384
    s_mov_b32 s{sWD}, 8192
    s_mov_b32 s{sXD}, 18432
    """)
    a(f"s_movk_i32 s79, 3641\ns_mul_i32 s80, s76, 864")
    for j in range(9):
        a(f"""v_add_u32 v5, {64*j}, v2
        v_mul_u32_u24 v6, s79, v5
        v_lshrrev_b32 v6, 16, v6
        v_lshlrev_b32 v5, 4, v5
        v_mad_u32_u24 v5, v6, s80, v5
        v_subrev_u32 v{v2VO+j}, {1024*(j % 4)}, v5""")
    a(f"""
    v_lshrrev_b32 v5, 2, v2
    v_and_b32 v6, 3, v2
    v_lshlrev_b32 v6, 3, v6
    s_movk_i32 s79, 288
    v_mad_u32_u24 v5, v5, s79, v6
    v_add_u32 v{v2A+1}, {18432 + 256}, v5
    s_lshl_b32 s79, s{sWAVE}, 6
    s_add_u32 s79, s79, 18432
    v_add_u32 v{v2A}, s79, v5
    v_lshlrev_b32 v5, 4, v2
    s_lshl_b32 s79, s{sWAVE}, 11
    v_add_u32 v{v2B}, s79, v5
    s_cmp_eq_u32 s{sWAVE}, 0
    s_cselect_b32 s79, 3072, 0
    v_add_u32 v{v2B+1}, s79, v5
    s_cmp_lt_u32 s{sWAVE}, 2
    s_movk_i32 s79, 2048
    s_cselect_b32 s79, 5120, s79
    v_add_u32 v{v2B+2}, s79, v5
    s_cmp_lt_u32 s{sWAVE}, 3
    s_movk_i32 s79, 4096
    s_cselect_b32 s79, 7168, s79
    v_add_u32 v{v2B+3}, s79, v5
    """)
    if p.twq >= 0: a(f"s_mul_i32 s79, s4, {p.twstag}\ns_add_u32 s79, s79, {p.twq}")
    if p.kt: a(f"s_mul_i32 s80, s4, {p.ktst}\ns_lshl_b32 s79, {sum(1 << int(x.split(':')[0]) for x in p.kt.split(','))}, s80")
    a(f"""v_lshrrev_b32 v5, 2, v2
    v_and_b32 v6, 7, v5
    v_lshlrev_b32 v6, 1, v6
    v_bfe_u32 v7, v2, 1, 1
    v_xor_b32 v6, v6, v7
    v_lshlrev_b32 v6, 4, v6
    v_and_b32 v7, 1, v2
    v_lshl_add_u32 v6, v7, 3, v6
    v_lshl_add_u32 v6, v5, 8, v6
    s_add_u32 s80, s{sRB}, 8192
    v_add_u32 v{vVB}, s80, v6""")
    for dt in range(1, 8): a(f"v_xor_b32 v{vVB+dt}, {32*dt}, v{vVB}")
    if p.tsplit >= 0: wo_touch_setup(a)
    for r in range(0, 160, 2): a(f"v_pk_mov_b32 {vr(vACC+r, 2)}, 0, 0")
    if p.pst == 4: stamp(a, p, 8)
    a(f"s_bitcmp1_b32 s{sWAVE}, 0\ns_cbranch_scc1 L_small")
    wave_front(a, p, 5, False, "b")
    a("L_small:")
    wave_front(a, p, 4, True, "s")
    back(a, p)
    a("L_codeend:")
    return a.text()

def build(p):
    K = KNAME + "_kernel"
    hdr = open("cdna_kernels/" + KNAME + ".s.ref").read().split("; Override launch geometry")[0]
    doc = """; One workgroup per CU (256), two heads of one batch each; wave = (head, 5 or 4 query tiles of 16 rows).
;     left out only while every row sum stays inside [2^-20, 2^40]; otherwise the workgroup redoes this step with the true maxima.
"""
    return hdr + doc + header(["; @launch grid=(256,1,1) block=(256,1,1) lds=163840"]) + kstart(K) + kernel(p, K) + RODATA + kdesc(K, 512, 256)

if __name__ == "__main__":
    ap = argparse.ArgumentParser()
    ap.add_argument("out")
    ap.add_argument("opts", nargs="*")
    x = ap.parse_args()
    p = P()
    VERB = True
    for o in x.opts:
        k, v = o.split("=")
        cur = getattr(p, k)
        setattr(p, k, (v == "1") if isinstance(cur, bool) else int(v) if isinstance(cur, int) else v.replace("+", " "))
    if p.twq >= 0: p.twpos = 15
    EXP = p.exp
    p.pb = (p.pb0, p.pb1)
    open(x.out, "w").write(build(p))
```
